```python
import torch

def _softmax(x, axis=-1):
    return torch.softmax(x, dim=axis)

def _gelu(x):
    return torch.nn.functional.gelu(x, approximate='tanh')

def _silu(x):
    return torch.nn.functional.silu(x)

def _sigmoid(x):
    return torch.sigmoid(x)

def _layernorm(x, axis=-1, eps=1e-05):
    m = x.mean(dim=axis, keepdim=True)
    v = x.var(dim=axis, keepdim=True, unbiased=False)
    return (x - m) / torch.sqrt(v + eps)

def _scatter_add(tgt, idx, src, axis=0):
    return tgt.clone().index_add_(axis, idx, src)

def _segment_sum(src, seg, n):
    out = torch.zeros((n,) + src.shape[1:], dtype=src.dtype)
    return out.index_add_(0, seg, src)

def _pad(x, pw):
    flat = tuple((v for pair in reversed(pw) for v in pair))
    return torch.nn.functional.pad(x, flat)
kernel_name = 'concat_heads__sliding_block__memory_aug_recurrent_mem_tr__prompt'

def setup_inputs():

    _w = lambda a: (lambda t: t.to(torch.bfloat16) if t.is_floating_point() else t)(torch.as_tensor(a))

    def _A_setup():
        B, S, D = (1, 2048, 512)
        return {'x': _w((lambda *s: torch.randn(*s, dtype=torch.bfloat16) * 0.2)(B, S, D)), 'wqkv': _w((lambda *s: torch.randn(*s, dtype=torch.bfloat16) * 0.2)(D, 3 * D)), 'wo': _w((lambda *s: torch.randn(*s, dtype=torch.bfloat16) * 0.05)(D, D))}
    _A_in = _A_setup()

    def _B_setup():
        B, S, Dm = (1, 2048, 512)
        H, Dh = (32, 128)
        M, seg = (8, 32)
        seg = min(seg, S)
        S = S // seg * seg
        return {'x': _w((lambda *s: torch.randn(*s, dtype=torch.bfloat16) * 0.05)(B, S, Dm)), 'mem0': _w((lambda *s: torch.randn(*s, dtype=torch.bfloat16) * 1.6)(B, M, Dm)), 'Wq': _w((lambda *s: torch.randn(*s, dtype=torch.bfloat16) * 0.8)(Dm, H, Dh) * Dm ** (-0.5)), 'Wk': _w((lambda *s: torch.randn(*s, dtype=torch.bfloat16) * 0.8)(Dm, H, Dh) * Dm ** (-0.5)), 'Wv': _w((lambda *s: torch.randn(*s, dtype=torch.bfloat16) * 1.6)(Dm, H, Dh) * Dm ** (-0.5)), 'Wo': _w((lambda *s: torch.randn(*s, dtype=torch.bfloat16) * 1.6)(H, Dh, Dm) * (H * Dh) ** (-0.5)), 'seg_len': seg}
    _B_in = _B_setup()
    return {'A_x': _A_in['x'], 'A_wqkv': _A_in['wqkv'], 'A_wo': _A_in['wo'], 'B_x': _B_in['x'], 'B_mem0': _B_in['mem0'], 'B_Wq': _B_in['Wq'], 'B_Wk': _B_in['Wk'], 'B_Wv': _B_in['Wv'], 'B_Wo': _B_in['Wo'], 'B_seg_len': _B_in['seg_len']}

def reference(A_x, A_wqkv, A_wo, B_x, B_mem0, B_Wq, B_Wk, B_Wv, B_Wo, B_seg_len):

    def _A_ref(x, wqkv, wo):
        B, S, D = x.shape
        H = 32
        Dh = D // H
        W = 256
        qkv = (lambda x, *d: x.permute(*d))((x @ wqkv).reshape(B, S, 3, H, Dh), 2, 0, 3, 1, 4)
        q, k, v = (qkv[0], qkv[1], qkv[2])
        scores = torch.einsum('bhqd,bhkd->bhqk', q, k) * Dh ** (-0.5)
        idx = torch.arange(S)
        mask = (idx[:, None] - idx[None, :] >= 0) & (idx[:, None] - idx[None, :] < W)
        scores = torch.where(mask[None, None], scores, -1000000000.0)
        p = _softmax(scores, axis=-1)
        o = torch.einsum('bhqk,bhkd->bhqd', p, v)
        return (lambda x, *d: x.permute(*d))(o, 0, 2, 1, 3).reshape(B, S, D) @ wo

    def _B_ref(x, mem0, Wq, Wk, Wv, Wo, seg_len):
        B, S, Dm = x.shape
        H, Dh = (Wq.shape[1], Wq.shape[2])
        M = mem0.shape[1]
        scale = Dh ** (-0.5)
        n_seg = S // seg_len
        L = M + seg_len
        idx = torch.arange(L)
        mask = (idx[:, None] < M) | (idx[:, None] >= idx[None, :])
        mem = mem0
        outs = []
        for s in range(n_seg):
            xs = x[:, s * seg_len:(s + 1) * seg_len, :].clone()
            h = torch.concatenate([mem, xs], axis=1)
            q = torch.einsum('btd,dhe->bhte', h, Wq)
            k = torch.einsum('btd,dhe->bhte', h, Wk)
            v = torch.einsum('btd,dhe->bhte', h, Wv)
            scores = torch.einsum('bhqe,bhke->bhqk', q, k) * scale
            scores = torch.where(mask[None, None], scores, -1000000000.0)
            p = _softmax(scores, axis=-1)
            o = torch.einsum('bhqk,bhke->bhqe', p, v)
            o = torch.einsum('bhte,hed->btd', o, Wo)
            mem = o[:, :M, :].clone()
            outs.append(o[:, M:, :])
        return torch.concatenate(outs, axis=1)
    a = _A_ref(A_x, A_wqkv, A_wo)
    b = _B_ref(B_x, B_mem0, B_Wq, B_Wk, B_Wv, B_Wo, B_seg_len)
    return torch.concatenate([a, b], axis=-1)
```

```python
import sys

NAME = 'concat_heads__sliding_block__memory_aug_recurrent_mem_tr__prompt'

WS_FLAGS = 0x0000000
WS_M2 = 0x0020000
WS_PB = 0x0100000
PB_STRIDE = 4224
WS_KX = 0x1000000
WS_VX = 0x2000000
WS_QX = 0x3000000
WS_KM = 0x4000000
WS_VM = 0x4400000
WS_OX = 0x5000000
WS_QKVA = 0x6000000
WS_TS = 0x7000000
WS_SIZE = 268435456
F1_OFF = 0
F2_OFF = 4096

L_WLV = 0
L_WLO = 65536
L_KX = 131072
L_VX = 139264
L_MST = 147456
L_QK = 155648
L_O = 159744
L_MISC = 161792
LDS_SIZE = 163840
RING = [65536, 98304, 131072]

OOB = 0x7FFFFF00


class G:
    def __init__(self):
        self.lines = []
        self.uid = 0

    def e(self, s):
        self.lines.append('    ' + s)

    def c(self, s):
        self.lines.append('    ; ' + s)

    def label(self, l):
        self.lines.append(l + ':')

    def newlabel(self, p='L'):
        self.uid += 1
        return '%s_%d' % (p, self.uid)

    def nop(self, n):
        while n > 0:
            k = min(n, 16)
            self.e('s_nop %d' % (k - 1))
            n -= k

    def guard(self):
        self.e('s_add_u32 s101, s101, 1')
        self.e('s_cmp_gt_u32 s101, 0x200000')
        self.e('s_cbranch_scc1 L_exit')

    def text(self):
        return '\n'.join(self.lines) + '\n'


def vr(a, n=1):
    return 'v%d' % a if n == 1 else 'v[%d:%d]' % (a, a + n - 1)


def ar(a, n=1):
    return 'a%d' % a if n == 1 else 'a[%d:%d]' % (a, a + n - 1)


def sr(a, n=1):
    return 's%d' % a if n == 1 else 's[%d:%d]' % (a, a + n - 1)


S_AX, S_AWQKV, S_AWO, S_BX, S_MEM0, S_WQ, S_WK, S_WV, S_WO, S_SEG, S_OUT, S_DBG, S_WS = 4, 6, 8, 10, 12, 14, 16, 18, 20, 22, 24, 26, 28
SRD_WS = 32
SRD_A = 36
SRD_B = 40
S_XCC = 44
S_WAVE = 45
S_RANK = 46
S_ROLE = 47
S_T0, S_T1, S_T2, S_T3 = 48, 49, 50, 51
S_STEP = 52
S_PHASE = 53
S_PL = 54
S_U1, S_U2, S_U3 = 55, 56, 57
S_M2R = 58
S_M2W = 59
S_M2Z = 60
S_KXO = 61
S_KMO = 62
S_SC = 64
S_L2E = 66
S_M0KX = 68
S_M0VX = 69
S_F1 = 70
S_F2 = 71
S_TS = 72
S_TSI = 74

V_L16, V_WL, V_WO, V_HI, V_HIW, V_AF, V_QW, V_QR, V_KR, V_OW, V_PS, V_MS, V_KS, V_VS, V_WM, V_IDX, V_ONES, V_WD, V_FD = range(1, 20)
ACC = 20
AR = 44
TMP = 60
BUF = 64
V_WV0 = 128
V_WOL = 192
A_WQ = 0
A_WK = 128


def make_srd(g, srd, ptr, nbytes):
    g.e('s_mov_b32 %s, %s' % (sr(srd), sr(ptr)))
    g.e('s_and_b32 %s, %s, 0xffff' % (sr(srd + 1), sr(ptr + 1)))
    g.e('s_mov_b32 %s, 0x%x' % (sr(srd + 2), nbytes))
    g.e('s_mov_b32 %s, 0x00020000' % sr(srd + 3))


def prologue(g, opt):
    g.e('s_cmp_ge_u32 s2, 256')
    g.e('s_cbranch_scc1 L_exit')
    g.e('s_mov_b32 s101, 0')
    g.e('s_load_dwordx16 s[4:19], s[0:1], 0')
    g.e('s_load_dwordx8 s[20:27], s[0:1], 64')
    g.e('s_load_dwordx2 s[28:29], s[0:1], 96')
    g.e('s_getreg_b32 %s, hwreg(HW_REG_XCC_ID)' % sr(S_XCC))
    g.e('s_and_b32 %s, %s, 7' % (sr(S_XCC), sr(S_XCC)))
    g.e('v_lshrrev_b32 v1, 6, v0')
    g.nop(1)
    g.e('v_readfirstlane_b32 %s, v1' % sr(S_WAVE))
    g.e('s_waitcnt lgkmcnt(0)')
    make_srd(g, SRD_WS, S_WS, WS_SIZE)
    g.e('s_cmp_lg_u32 %s, 0' % sr(S_WAVE))
    g.e('s_cbranch_scc1 L_elect_done')
    g.e('s_mov_b64 s[76:77], exec')
    g.e('s_mov_b64 exec, 1')
    g.e('s_lshl_b32 %s, %s, 2' % (sr(S_T0), sr(S_XCC)))
    g.e('v_mov_b32 v2, %s' % sr(S_T0))
    g.e('v_mov_b32 v3, 1')
    g.e('global_atomic_add v4, v2, v3, %s sc0' % sr(S_DBG, 2))
    g.e('s_waitcnt vmcnt(0)')
    g.e('v_readfirstlane_b32 %s, v4' % sr(S_RANK))
    g.nop(3)
    g.e('s_cmp_lg_u32 %s, 31' % sr(S_RANK))
    g.e('s_cbranch_scc1 L_elect_wait')
    g.e('s_add_u32 %s, %s, 1' % (sr(S_T0), sr(S_XCC)))
    g.e('v_mov_b32 v4, %s' % sr(S_T0))
    g.e('v_mov_b32 v5, 0')
    g.e('v_mov_b32 v2, 32')
    g.e('global_atomic_cmpswap v2, v[4:5], %s' % sr(S_DBG, 2))
    g.e('s_waitcnt vmcnt(0)')
    g.label('L_elect_wait')
    g.e('v_mov_b32 v2, 32')
    g.label('L_elect_spin')
    g.guard()
    g.e('global_load_dword v4, v2, %s sc1' % sr(S_DBG, 2))
    g.e('s_waitcnt vmcnt(0)')
    g.e('v_readfirstlane_b32 %s, v4' % sr(S_T0))
    g.nop(3)
    g.e('s_cmp_eq_u32 %s, 0' % sr(S_T0))
    g.e('s_cbranch_scc1 L_elect_spin')
    g.e('s_sub_u32 %s, %s, 1' % (sr(S_T0), sr(S_T0)))
    g.e('s_mov_b32 %s, 1' % sr(S_ROLE))
    g.e('s_cmp_lg_u32 %s, %s' % (sr(S_T0), sr(S_XCC)))
    g.e('s_cbranch_scc1 L_elect_worker')
    g.e('s_cmp_lt_u32 %s, 32' % sr(S_RANK))
    g.e('s_cbranch_scc1 L_elect_pub')
    g.label('L_elect_worker')
    g.e('s_mov_b32 %s, 0' % sr(S_ROLE))
    g.e('v_mov_b32 v2, 36')
    g.e('v_mov_b32 v3, 1')
    g.e('global_atomic_add v4, v2, v3, %s sc0' % sr(S_DBG, 2))
    g.e('s_waitcnt vmcnt(0)')
    g.e('v_readfirstlane_b32 %s, v4' % sr(S_RANK))
    g.nop(3)
    g.label('L_elect_pub')
    g.e('v_mov_b32 v2, %d' % L_MISC)
    g.e('v_mov_b32 v4, %s' % sr(S_ROLE))
    g.e('v_mov_b32 v5, %s' % sr(S_RANK))
    g.e('ds_write_b64 v2, v[4:5]')
    g.e('s_waitcnt lgkmcnt(0)')
    g.e('s_mov_b64 exec, s[76:77]')
    g.label('L_elect_done')
    g.e('s_barrier')
    g.e('v_mov_b32 v2, %d' % L_MISC)
    g.e('ds_read_b64 v[4:5], v2')
    g.e('s_waitcnt lgkmcnt(0)')
    g.e('v_readfirstlane_b32 %s, v4' % sr(S_ROLE))
    g.e('v_readfirstlane_b32 %s, v5' % sr(S_RANK))
    g.nop(3)
    g.e('s_barrier')
    g.e('s_cmp_eq_u32 %s, 0' % sr(S_ROLE))
    g.e('s_cbranch_scc1 L_worker')


TS_NAMES = []


def ts(g, opt, name, fine=False):
    if not opt.get('ts') or (fine and not opt.get('fine')):
        return
    idx = len(TS_NAMES)
    TS_NAMES.append(str(name))
    g.e('s_memtime %s' % sr(S_TS, 2))
    g.e('s_waitcnt lgkmcnt(0)')
    g.e('v_writelane_b32 v%d, %s, %d' % (V_FD, sr(S_TS), idx))


def ts_flush(g, opt):
    if not opt.get('ts'):
        return
    g.e('v_writelane_b32 v%d, s80, 62' % V_FD)
    g.e('v_writelane_b32 v%d, s81, 63' % V_FD)
    g.e('s_lshl_b32 %s, %s, 2' % (sr(S_T0), sr(S_RANK)))
    g.e('s_add_u32 %s, %s, %s' % (sr(S_T0), sr(S_T0), sr(S_WAVE)))
    g.e('s_lshl_b32 %s, %s, 6' % (sr(S_T0), sr(S_T0)))
    g.e('s_add_u32 %s, %s, %s' % (sr(S_T0), sr(S_T0), sr(S_STEP)))
    g.e('s_lshl_b32 %s, %s, 8' % (sr(S_T0), sr(S_T0)))
    g.e('s_add_u32 %s, %s, 0x%x' % (sr(S_T0), sr(S_T0), WS_TS))
    g.e('v_lshrrev_b32 v%d, 2, v%d' % (TMP, V_L16))
    g.e('buffer_store_dword v%d, v%d, %s, %s offen' % (V_FD, TMP, sr(SRD_WS, 4), sr(S_T0)))


def chain_setup(g, opt):
    W = sr(S_WAVE)
    H = sr(S_RANK)
    g.e('v_and_b32 v20, 63, v0')
    g.e('v_and_b32 v21, 15, v0')
    g.e('v_bfe_u32 v22, v0, 4, 2')
    g.e('v_lshlrev_b32 v%d, 4, v20' % V_L16)
    g.e('s_lshl_b32 %s, %s, 14' % (sr(S_T0), W))
    g.e('v_add_u32 v%d, %s, v%d' % (V_WL, sr(S_T0), V_L16))
    g.e('v_add_u32 v%d, 0x%x, v%d' % (V_WO, L_WLO, V_WL))
    g.e('v_add_u32 v%d, 0x%x, v%d' % (V_HI, L_KX, V_L16))
    g.e('s_lshl_b32 %s, %s, 11' % (sr(S_T0), W))
    g.e('v_add_u32 v%d, %s, v%d' % (V_HIW, sr(S_T0), V_HI))
    g.e('v_lshlrev_b32 v23, 8, v22')
    g.e('v_and_b32 v24, 1, v20')
    g.e('v_lshl_add_u32 v23, v24, 7, v23')
    g.e('v_lshrrev_b32 v24, 1, v21')
    g.e('v_lshl_add_u32 v23, v24, 4, v23')
    g.e('v_add_u32 v%d, 0x%x, v23' % (V_AF, L_MST))
    g.e('v_lshrrev_b32 v23, 3, v21')
    g.e('v_lshlrev_b32 v23, 7, v23')
    g.e('v_lshl_add_u32 v23, v22, 5, v23')
    g.e('v_and_b32 v24, 7, v21')
    g.e('v_lshl_add_u32 v23, v24, 1, v23')
    g.e('s_lshl_b32 %s, %s, 9' % (sr(S_T0), W))
    g.e('s_add_u32 %s, %s, 0x%x' % (sr(S_T1), sr(S_T0), L_QK))
    g.e('v_add_u32 v%d, %s, v23' % (V_QW, sr(S_T1)))
    g.e('v_lshlrev_b32 v23, 7, v22')
    g.e('v_lshl_add_u32 v25, v24, 4, v23')
    g.e('v_add_u32 v%d, 0x%x, v25' % (V_QR, L_QK))
    g.e('v_lshrrev_b32 v24, 2, v21')
    g.e('v_lshlrev_b32 v24, 1, v24')
    g.e('v_and_b32 v25, 1, v21')
    g.e('v_add_u32 v24, v24, v25')
    g.e('v_lshl_add_u32 v25, v24, 4, v23')
    g.e('v_add_u32 v%d, 0x%x, v25' % (V_KR, L_QK + 2048))
    g.e('v_add_u32 v25, %s, v25' % sr(S_T0))
    g.e('v_and_b32 v26, 2, v21')
    g.e('v_cmp_eq_u32 vcc, 0, v26')
    g.e('v_mov_b32 v26, 0x%x' % OOB)
    g.nop(1)
    g.e('v_cndmask_b32 v%d, v26, v25, vcc' % V_KS)
    g.e('v_lshrrev_b32 v23, 1, v22')
    g.e('v_lshlrev_b32 v23, 7, v23')
    g.e('v_lshl_add_u32 v23, v21, 4, v23')
    g.e('v_and_b32 v24, 1, v22')
    g.e('v_lshl_add_u32 v23, v24, 3, v23')
    g.e('s_add_u32 %s, %s, 0x%x' % (sr(S_T1), sr(S_T0), L_O))
    g.e('v_add_u32 v23, %s, v23' % sr(S_T1))
    g.e('v_lshlrev_b32 v24, 3, v20')
    g.e('v_add_u32 v24, 0x%x, v24' % (L_MISC + 1024))
    g.e('v_cmp_gt_u32 vcc, 8, v21')
    g.nop(2)
    g.e('v_cndmask_b32 v%d, v24, v23, vcc' % V_OW)
    g.e('v_lshrrev_b32 v23, 1, v21')
    g.e('s_lshl_b32 %s, %s, 5' % (sr(S_T1), W))
    g.e('v_add_u32 v23, %s, v23' % sr(S_T1))
    g.e('v_mul_u32_u24 v23, %d, v23' % PB_STRIDE)
    g.e('v_and_b32 v24, 1, v21')
    g.e('v_lshl_add_u32 v24, v24, 2, v22')
    g.e('v_lshl_add_u32 v23, v24, 4, v23')
    g.e('s_lshl_b32 %s, %s, 7' % (sr(S_T1), H))
    g.e('s_add_u32 %s, %s, 0x%x' % (sr(S_T1), sr(S_T1), WS_PB))
    g.e('v_add_u32 v%d, %s, v23' % (V_PS, sr(S_T1)))
    for u, s in ((1, S_U1), (2, S_U2), (3, S_U3)):
        g.e('s_mov_b32 %s, %d' % (sr(s), u * 8 * PB_STRIDE))
    g.e('s_lshl_b32 %s, %s, 2' % (sr(S_T1), H))
    g.e('s_add_u32 %s, %s, %s' % (sr(S_T1), sr(S_T1), W))
    g.e('s_mul_i32 %s, %s, %d' % (sr(S_PL), sr(S_T1), PB_STRIDE))
    g.e('s_add_u32 %s, %s, 0x%x' % (sr(S_PL), sr(S_PL), WS_PB))
    g.e('s_lshr_b32 %s, %s, 1' % (sr(S_T2), sr(S_T1)))
    g.e('s_lshl_b32 %s, %s, 7' % (sr(S_T2), sr(S_T2)))
    g.e('s_and_b32 %s, %s, 1' % (sr(S_T3), sr(S_T1)))
    g.e('s_lshl_b32 %s, %s, 3' % (sr(S_T3), sr(S_T3)))
    g.e('s_add_u32 %s, %s, %s' % (sr(S_T2), sr(S_T2), sr(S_T3)))
    g.e('v_and_b32 v23, 3, v20')
    g.e('v_lshlrev_b32 v23, 1, v23')
    g.e('v_lshrrev_b32 v24, 5, v20')
    g.e('v_add_u32 v23, v23, v24')
    g.e('v_lshlrev_b32 v23, 4, v23')
    g.e('v_bfe_u32 v24, v20, 2, 1')
    g.e('v_lshl_add_u32 v23, v24, 2, v23')
    g.e('v_add_u32 v23, %s, v23' % sr(S_T2))
    g.e('v_and_b32 v24, 24, v20')
    g.e('v_cmp_eq_u32 vcc, 0, v24')
    g.e('v_mov_b32 v26, 0x%x' % OOB)
    g.nop(1)
    g.e('v_cndmask_b32 v%d, v26, v23, vcc' % V_MS)
    g.e('v_lshlrev_b32 v23, 4, v21')
    g.e('v_lshl_add_u32 v23, v22, 2, v23')
    g.e('v_add_u32 v%d, %s, v23' % (V_VS, sr(S_T0)))
    g.e('v_and_b32 v23, 31, v20')
    g.e('v_lshlrev_b32 v23, 6, v23')
    g.e('v_lshrrev_b32 v24, 5, v20')
    g.e('v_lshl_add_u32 v%d, v24, 24, v23' % V_WM)
    assert WS_VX - WS_KX == 1 << 24
    g.e('v_and_b32 v23, 1, v20')
    g.e('v_mov_b32 v24, 0x4444')
    g.e('v_mov_b32 v25, 0xeeee')
    g.e('v_cmp_eq_u32 vcc, 1, v23')
    g.nop(2)
    g.e('v_cndmask_b32 v%d, v24, v25, vcc' % V_IDX)
    g.e('v_mov_b32 v%d, -1' % V_ONES)
    g.e('s_mov_b32 %s, 0x3db504f3' % sr(S_SC))
    g.e('s_mov_b32 %s, 0x3db504f3' % sr(S_SC + 1))
    g.e('s_mov_b32 %s, 0x3fb8aa3b' % sr(S_L2E))
    g.e('s_mov_b32 %s, 0x3fb8aa3b' % sr(S_L2E + 1))
    g.e('s_lshl_b32 %s, %s, 11' % (sr(S_T1), W))
    g.e('s_add_u32 %s, %s, 0x%x' % (sr(S_M0KX), sr(S_T1), L_KX))
    g.e('s_add_u32 %s, %s, 0x%x' % (sr(S_M0VX), sr(S_T1), L_VX))
    g.e('s_lshl_b32 %s, %s, 13' % (sr(S_T2), H))
    g.e('s_add_u32 %s, %s, %s' % (sr(S_KXO), sr(S_T2), sr(S_T1)))
    g.e('s_add_u32 %s, %s, 0x%x' % (sr(S_KXO), sr(S_KXO), WS_KX))
    g.e('s_lshl_b32 %s, %s, 11' % (sr(S_T2), H))
    g.e('s_add_u32 %s, %s, 0x%x' % (sr(S_KMO), sr(S_T2), WS_KM))
    g.e('s_lshl_b32 %s, %s, 7' % (sr(S_T2), H))
    g.e('s_add_u32 %s, %s, 0x%x' % (sr(S_F1), sr(S_T2), WS_FLAGS + F1_OFF))
    g.e('s_lshl_b32 %s, %s, 2' % (sr(S_T3), W))
    g.e('s_add_u32 %s, %s, %s' % (sr(S_F2), sr(S_T2), sr(S_T3)))
    g.e('s_add_u32 %s, %s, 0x%x' % (sr(S_F2), sr(S_F2), WS_FLAGS + F2_OFF))


def chain_init_buffers(g, opt):
    for i in range(4):
        g.e('v_mov_b32 v%d, 0' % (24 + i))
    for i in range(4):
        g.e('buffer_store_dwordx4 v[24:27], v%d, %s, %s offen offset:%d' % (V_L16, sr(SRD_WS, 4), sr(S_PL), i * 1024))
    for slot in range(3):
        g.e('s_mov_b32 %s, 0x%x' % (sr(S_T0), WS_M2 + slot * 8192))
        g.e('buffer_store_dword v%d, v%d, %s, %s offen' % (V_ONES, V_MS, sr(SRD_WS, 4), sr(S_T0)))
    l = g.newlabel('L_if')
    g.e('s_cmp_lg_u32 %s, 0' % sr(S_WAVE))
    g.e('s_cbranch_scc1 %s' % l)
    g.e('v_and_b32 v28, 31, v20')
    g.e('v_lshlrev_b32 v28, 2, v28')
    g.e('v_lshrrev_b32 v29, 5, v20')
    g.e('v_lshl_add_u32 v28, v29, 12, v28')
    assert F2_OFF - F1_OFF == 4096
    g.e('buffer_store_dword v24, v28, %s, %s offen sc1' % (sr(SRD_WS, 4), sr(S_F1)))
    g.e('v_lshlrev_b32 v28, 11, v20')
    g.e('s_and_b32 %s, %s, 15' % (sr(S_T0), sr(S_RANK)))
    g.e('s_lshl_b32 %s, %s, 7' % (sr(S_T0), sr(S_T0)))
    g.e('s_add_u32 %s, %s, 0x%x' % (sr(S_T0), sr(S_T0), WS_FLAGS + 8192))
    g.e('s_mov_b64 exec, 7')
    g.e('buffer_store_dword v24, v28, %s, %s offen sc1' % (sr(SRD_WS, 4), sr(S_T0)))
    g.e('s_mov_b64 exec, -1')
    g.label(l)
    g.e('s_waitcnt vmcnt(0)')
    g.e('s_barrier')
    l = g.newlabel('L_if')
    g.e('s_cmp_lg_u32 %s, 0' % sr(S_WAVE))
    g.e('s_cbranch_scc1 %s' % l)
    g.e('s_mov_b64 exec, 1')
    g.e('v_mov_b32 v28, 40')
    g.e('v_mov_b32 v29, 1')
    g.e('global_atomic_add v28, v29, %s' % sr(S_DBG, 2))
    g.e('s_mov_b64 exec, -1')
    g.label(l)


def chain_load_weights(g, opt):
    W = sr(S_WAVE)
    H = sr(S_RANK)
    g.e('v_bfe_u32 v23, v20, 4, 1')
    g.e('v_lshlrev_b32 v24, 4, v23')
    g.e('v_lshrrev_b32 v25, 5, v20')
    g.e('v_add_u32 v24, v24, v25')
    g.e('s_lshl_b32 %s, %s, 5' % (sr(S_T0), W))
    g.e('v_add_u32 v24, %s, v24' % sr(S_T0))
    g.e('v_lshlrev_b32 v24, 13, v24')
    g.e('v_lshlrev_b32 v25, 1, v23')
    g.e('v_xor_b32 v25, v25, v21')
    g.e('v_lshl_add_u32 v30, v25, 4, v24')
    for i in range(1, 4):
        g.e('v_xor_b32 v%d, %d, v30' % (30 + i, i * 64))
    g.e('s_and_b32 %s, %s, 1' % (sr(S_T0), W))
    g.e('s_lshl_b32 %s, %s, 7' % (sr(S_T0), sr(S_T0)))
    g.e('v_xor_b32 v34, %s, v%d' % (sr(S_T0), V_L16))
    g.e('s_lshl_b32 %s, %s, 13' % (sr(S_T0), W))
    g.e('v_add_u32 v34, %s, v34' % sr(S_T0))
    g.e('v_lshrrev_b32 v23, 2, v21')
    g.e('v_and_b32 v24, 3, v21')
    g.e('v_lshrrev_b32 v25, 1, v22')
    g.e('v_lshlrev_b32 v25, 4, v25')
    g.e('v_lshrrev_b32 v26, 1, v23')
    g.e('v_lshl_add_u32 v25, v26, 3, v25')
    g.e('v_and_b32 v27, 1, v22')
    g.e('v_lshl_add_u32 v25, v27, 2, v25')
    g.e('v_and_b32 v28, 1, v23')
    g.e('v_add_u32 v25, v25, v28')
    g.e('v_lshl_add_u32 v28, v27, 1, v28')
    g.e('v_lshl_add_u32 v28, v26, 2, v28')
    g.e('v_lshlrev_b32 v28, 1, v28')
    g.e('v_lshrrev_b32 v26, 1, v24')
    g.e('v_and_b32 v27, 1, v24')
    g.e('s_lshl_b32 %s, %s, 2' % (sr(S_T0), W))
    g.e('v_add_u32 v29, %s, v26' % sr(S_T0))
    g.e('v_xor_b32 v29, v29, v28')
    g.e('v_lshlrev_b32 v29, 4, v29')
    g.e('v_lshl_add_u32 v29, v27, 3, v29')
    g.e('v_lshl_add_u32 v35, v25, 8, v29')
    g.e('v_xor_b32 v36, 32, v35')
    g.e('v_xor_b32 v29, v26, v28')
    g.e('s_lshl_b32 %s, %s, 4' % (sr(S_T0), W))
    g.e('v_add_u32 v29, %s, v29' % sr(S_T0))
    g.e('v_lshlrev_b32 v29, 4, v29')
    g.e('v_lshl_add_u32 v29, v27, 3, v29')
    g.e('v_lshl_add_u32 v37, v25, 10, v29')

    chunks = [('V', c) for c in range(4)] + [('Q', c) for c in range(4)] + [('K', c) for c in range(4)] + [('O', c) for c in range(4)]
    ptr = {'V': S_WV, 'Q': S_WQ, 'K': S_WK, 'O': S_WO}
    srd = {'V': SRD_A, 'Q': SRD_B, 'K': SRD_A, 'O': SRD_B}

    def issue(ci):
        m, c = chunks[ci]
        ring = RING[ci % 3]
        if c == 0:
            make_srd(g, srd[m], ptr[m], 4 << 20)
        for i in range(8):
            g.e('s_lshl_b32 %s, %s, 13' % (sr(S_T0), W))
            g.e('s_add_u32 %s, %s, %d' % (sr(S_T0), sr(S_T0), ring + i * 1024))
            g.e('s_mov_b32 m0, %s' % sr(S_T0))
            if m != 'O':
                g.e('s_lshl_b32 %s, %s, 8' % (sr(S_T1), H))
                g.e('s_add_u32 %s, %s, %d' % (sr(S_T1), sr(S_T1), (c * 128 + 2 * i) * 8192))
                g.e('buffer_load_dwordx4 v%d, %s, %s offen lds' % (30 + (i & 3), sr(srd[m], 4), sr(S_T1)))
            else:
                x = ((i & 1) | (((i >> 2) & 1) << 1)) * 32
                g.e('v_xor_b32 v38, %d, v34' % x)
                g.e('s_lshl_b32 %s, %s, 17' % (sr(S_T1), H))
                g.e('s_add_u32 %s, %s, %d' % (sr(S_T1), sr(S_T1), (c * 32 + i) * 1024))
                g.e('buffer_load_dwordx4 v38, %s, %s offen lds' % (sr(srd[m], 4), sr(S_T1)))

    for ci in range(3):
        issue(ci)
    for ci in range(16):
        m, c = chunks[ci]
        ring = RING[ci % 3]
        inflight_after = min(15 - ci, 2)
        g.e('s_waitcnt vmcnt(%d)' % (8 * inflight_after))
        g.e('s_barrier')
        if m != 'O':
            g.e('v_add_u32 v38, %d, v35' % ring)
            g.e('v_add_u32 v39, %d, v36' % ring)
            for ksl in range(2):
                ks = 2 * c + ksl
                for t in range(2):
                    for sq in range(4):
                        off = (64 * ksl + 32 * (sq >> 1) + 2 * (sq & 1)) * 256
                        if m == 'Q':
                            dst = ar(A_WQ + (t * 8 + ks) * 8 + sq * 2, 2)
                        elif m == 'K':
                            dst = ar(A_WK + (t * 8 + ks) * 8 + sq * 2, 2)
                        elif t == 0:
                            dst = vr(V_WV0 + ks * 8 + sq * 2, 2)
                        else:
                            dst = vr(BUF + ksl * 8 + sq * 2, 2)
                        g.e('ds_read_b64_tr_b16 %s, v%d offset:%d' % (dst, 38 + t, off))
            g.e('s_waitcnt lgkmcnt(0)')
            if m == 'V':
                for ksl in range(2):
                    ks = 2 * c + ksl
                    g.e('ds_write_b128 v%d, %s offset:%d' % (V_WL, vr(BUF + ksl * 8, 4), ks * 2048))
                    g.e('ds_write_b128 v%d, %s offset:%d' % (V_WL, vr(BUF + ksl * 8 + 4, 4), ks * 2048 + 1024))
                g.e('s_waitcnt lgkmcnt(0)')
        else:
            ks2, hf = c >> 1, c & 1
            for tp in range(8):
                g.e('v_xor_b32 v38, %d, v37' % (tp * 32))
                g.e('v_add_u32 v38, %d, v38' % ring)
                for s1 in range(2):
                    off = (2 * s1) * 1024
                    if tp < 4:
                        dst = vr(V_WOL + (tp * 2 + ks2) * 8 + hf * 4 + s1 * 2, 2)
                    else:
                        dst = vr(BUF + ((tp - 4) * 2 + ks2) * 8 + hf * 4 + s1 * 2, 2)
                    g.e('ds_read_b64_tr_b16 %s, v38 offset:%d' % (dst, off))
            g.e('s_waitcnt lgkmcnt(0)')
        g.e('s_barrier')
        if ci + 3 < 16:
            issue(ci + 3)
    for f in range(8):
        g.e('ds_write_b128 v%d, %s offset:%d' % (V_WO, vr(BUF + f * 8, 4), f * 2048))
        g.e('ds_write_b128 v%d, %s offset:%d' % (V_WO, vr(BUF + f * 8 + 4, 4), f * 2048 + 1024))
    g.e('s_waitcnt lgkmcnt(0)')


def chain_stage_mem0(g, opt):
    make_srd(g, SRD_A, S_MEM0, 8192)
    for half in range(2):
        g.e('v_add_u32 v23, %d, v0' % (half * 256))
        g.e('v_and_b32 v24, 0x1e0, v23')
        g.e('v_and_b32 v25, 1, v23')
        g.e('v_lshl_add_u32 v24, v25, 4, v24')
        g.e('v_bfe_u32 v25, v23, 1, 4')
        g.e('v_add_u32 v24, v24, v25')
        g.e('v_lshlrev_b32 v%d, 1, v24' % (26 + half))
        g.e('v_lshrrev_b32 v24, 3, v23')
        g.e('v_lshlrev_b32 v24, 7, v24')
        g.e('v_and_b32 v25, 7, v23')
        g.e('v_lshl_add_u32 v24, v25, 1, v24')
        g.e('v_add_u32 v%d, 0x%x, v24' % (28 + half, L_MST))
    for m in range(8):
        for half in range(2):
            g.e('buffer_load_ushort v%d, v%d, %s, 0 offen offset:%d' % (AR + m * 2 + half, 26 + half, sr(SRD_A, 4), (m & 3) * 1024)
                if m < 4 else
                'buffer_load_ushort v%d, v%d, %s, %s offen offset:%d' % (AR + m * 2 + half, 26 + half, sr(SRD_A, 4), sr(S_T3), (m & 3) * 1024))
            if m == 3 and half == 1:
                g.e('s_mov_b32 %s, 4096' % sr(S_T3))
    g.e('s_waitcnt vmcnt(0)')
    for m in range(8):
        for half in range(2):
            g.e('ds_write_b16 v%d, v%d offset:%d' % (28 + half, AR + m * 2 + half, m * 16))
    g.e('s_waitcnt lgkmcnt(0)')


def dma_kxvx(g):
    g.e('s_mov_b32 m0, %s' % sr(S_M0KX))
    g.e('s_add_u32 %s, %s, 0x%x' % (sr(S_T0), sr(S_KXO), WS_VX - WS_KX))
    g.e('buffer_load_dwordx4 v%d, %s, %s offen sc1 lds' % (V_L16, sr(SRD_WS, 4), sr(S_KXO)))
    g.e('buffer_load_dwordx4 v%d, %s, %s offen offset:1024 sc1 lds' % (V_L16, sr(SRD_WS, 4), sr(S_KXO)))
    g.e('s_mov_b32 m0, %s' % sr(S_M0VX))
    g.nop(1)
    g.e('buffer_load_dwordx4 v%d, %s, %s offen sc1 lds' % (V_L16, sr(SRD_WS, 4), sr(S_T0)))
    g.e('buffer_load_dwordx4 v%d, %s, %s offen offset:1024 sc1 lds' % (V_L16, sr(SRD_WS, 4), sr(S_T0)))


def prefetch_buf(g, base):
    for f in range(8):
        g.e('ds_read_b128 %s, v%d offset:%d' % (vr(BUF + f * 8, 4), base, f * 2048))
        g.e('ds_read_b128 %s, v%d offset:%d' % (vr(BUF + f * 8 + 4, 4), base, f * 2048 + 1024))


def zero_regs(g, a, n):
    for i in range(0, n, 2):
        g.e('v_mov_b64 %s, 0' % vr(a + i, 2))


def smf(g, d, a, b):
    g.e('v_smfmac_f32_16x16x64_bf16 %s, %s, %s, v%d' % (vr(d, 4), vr(a, 4), b, V_IDX))


def chain_loop(g, opt):
    Q0, Q1, K0, K1, VT0, VT1 = ACC, ACC + 4, ACC + 8, ACC + 12, ACC + 16, ACC + 20
    g.e('s_mov_b32 %s, 0' % sr(S_STEP))
    g.e('s_mov_b32 %s, 1' % sr(S_PHASE))
    g.e('s_mov_b32 %s, 0x%x' % (sr(S_M2W), WS_M2 + 8192))
    g.e('s_mov_b32 %s, 0x%x' % (sr(S_M2Z), WS_M2 + 16384))
    g.e('s_mov_b32 %s, 0x%x' % (sr(S_M2R), WS_M2))
    l = g.newlabel('L_spin')
    g.e('v_mov_b32 v%d, 40' % TMP)
    g.label(l)
    g.guard()
    g.e('global_load_dword v%d, v%d, %s sc1' % (TMP + 1, TMP, sr(S_DBG, 2)))
    g.e('s_waitcnt vmcnt(0)')
    g.e('v_readfirstlane_b32 %s, v%d' % (sr(S_T0), TMP + 1))
    g.nop(3)
    g.e('s_cmp_lt_u32 %s, 32' % sr(S_T0))
    g.e('s_cbranch_scc1 %s' % l)
    if not opt.get('nof1'):
        wait_f1(g, 0)
    dma_kxvx(g)
    g.e('s_add_u32 %s, %s, 0x40000' % (sr(S_KXO), sr(S_KXO)))
    prefetch_buf(g, V_WL)
    zero_regs(g, ACC, 24)
    g.e('s_waitcnt vmcnt(0) lgkmcnt(0)')
    g.e('s_barrier')

    g.label('L_step')
    ts(g, opt, 'start')
    for ks in range(3):
        g.e('ds_read_b128 %s, v%d offset:%d' % (vr(AR + ks * 4, 4), V_AF, ks * 1024))
    g.e('v_mov_b32 v%d, %s' % (TMP, sr(S_STEP)))
    g.e('v_mov_b32 v%d, 0' % (TMP + 1))
    g.e('s_mov_b64 exec, 1')
    g.e('buffer_store_dword v%d, v%d, %s, %s offen sc1' % (TMP, TMP + 1, sr(SRD_WS, 4), sr(S_F2)))
    g.e('s_mov_b64 exec, -1')
    g.e('buffer_store_dword v%d, v%d, %s, %s offen' % (V_ONES, V_MS, sr(SRD_WS, 4), sr(S_M2Z)))
    g.e('s_cmp_ge_u32 %s, 63' % sr(S_STEP))
    lw = g.newlabel('L_nowarm')
    g.e('s_cbranch_scc1 %s' % lw)
    if not opt.get('nof1'):
        lf = g.newlabel('L_nof1')
        g.e('s_and_b32 %s, %s, 3' % (sr(S_T0), sr(S_STEP)))
        g.e('s_cmp_lg_u32 %s, 3' % sr(S_T0))
        g.e('s_cbranch_scc1 %s' % lf)
        wait_f1(g, None)
        g.label(lf)
    g.e('buffer_load_dword v%d, v%d, %s, %s offen sc1' % (V_WD, V_WM, sr(SRD_WS, 4), sr(S_KXO)))
    g.label(lw)
    ts(g, opt, 'pre-qk', True)
    for ks in range(8):
        a = AR + (ks & 3) * 4
        g.e('s_waitcnt lgkmcnt(%d)' % (2 if ks < 6 else 2))
        nk = ks + 3
        g.e('ds_read_b128 %s, v%d offset:%d' % (vr(AR + (nk & 3) * 4, 4), V_AF, (nk & 7) * 1024))
        smf(g, Q0, a, ar(A_WQ + (0 * 8 + ks) * 8, 8))
        smf(g, Q1, a, ar(A_WQ + (1 * 8 + ks) * 8, 8))
        smf(g, K0, a, ar(A_WK + (0 * 8 + ks) * 8, 8))
        smf(g, K1, a, ar(A_WK + (1 * 8 + ks) * 8, 8))
    ts(g, opt, 'qk', True)
    fin = []
    for t, (acc, base) in enumerate(((Q0, 0), (Q1, 256), (K0, 2048), (K1, 2048 + 256))):
        fin.append('v_add_f32 v%d, v%d, v%d' % (acc, acc, acc + 1))
        fin.append('v_add_f32 v%d, v%d, v%d' % (acc + 2, acc + 2, acc + 3))
        fin.append('v_cvt_pk_bf16_f32 v%d, v%d, v%d' % (acc, acc, acc + 2))
        fin.append('ds_write_b16 v%d, v%d offset:%d' % (V_QW, acc, base))
        fin.append('ds_write_b16_d16_hi v%d, v%d offset:%d' % (V_QW, acc, base + 16))
    lg_out = 3
    pend = ['A0', 'A1', 'A2']

    def wait_for(name):
        i = pend.index(name)
        n = len(pend) - 1 - i
        g.e('s_waitcnt lgkmcnt(%d)' % n)
        del pend[:i + 1]

    fi = 0
    for ks in range(8):
        a = AR + (ks & 3) * 4
        wait_for('A%d' % ks)
        if ks + 3 < 8:
            nk = ks + 3
            g.e('ds_read_b128 %s, v%d offset:%d' % (vr(AR + (nk & 3) * 4, 4), V_AF, nk * 1024))
            pend.append('A%d' % nk)
        smf(g, VT1, a, vr(BUF + ks * 8, 8))
        smf(g, VT0, a, vr(V_WV0 + ks * 8, 8))
        if ks == 0:
            g.nop(4)
        if ks >= 0:
            for _ in range(5):
                if fi < len(fin):
                    g.e(fin[fi])
                    if fin[fi].startswith('ds_'):
                        pend.append('W%d' % fi)
                    fi += 1
        if ks == 3:
            pass
        if ks == 4:
            for f in range(8):
                g.e('ds_read_b128 %s, v%d offset:%d' % (vr(BUF + f * 4, 4), V_HI, f * 1024))
                pend.append('KX%d' % f)
    g.e('s_waitcnt lgkmcnt(0)')
    ts(g, opt, 'v', True)
    pend.clear()
    g.e('s_barrier')
    ts(g, opt, 'qkbar')
    QF, KMF = BUF + 32, BUF + 48
    for ks in range(4):
        g.e('ds_read_b128 %s, v%d offset:%d' % (vr(QF + ks * 4, 4), V_QR, ks * 512))
        g.e('ds_read_b128 %s, v%d offset:%d' % (vr(KMF + ks * 4, 4), V_KR, ks * 512))
    VXF = AR
    g.e('ds_read_b128 %s, v%d offset:%d' % (vr(VXF, 4), V_HIW, 8192))
    g.e('ds_read_b128 %s, v%d offset:%d' % (vr(VXF + 4, 4), V_HIW, 8192 + 1024))
    VM0, VM1 = AR + 8, AR + 10
    g.e('v_add_f32 v%d, v%d, v%d' % (VT0, VT0, VT0 + 1))
    g.e('v_add_f32 v%d, v%d, v%d' % (VT0 + 2, VT0 + 2, VT0 + 3))
    g.e('v_add_f32 v%d, v%d, v%d' % (VT1, VT1, VT1 + 1))
    g.e('v_add_f32 v%d, v%d, v%d' % (VT1 + 2, VT1 + 2, VT1 + 3))
    g.e('v_cvt_pk_bf16_f32 v%d, v%d, v%d' % (VM0, VT0, VT0 + 2))
    g.e('v_cvt_pk_bf16_f32 v%d, v%d, v%d' % (VM1, VT1, VT1 + 2))
    g.e('v_mov_b32 v%d, 0' % (VM0 + 1))
    g.e('v_mov_b32 v%d, 0' % (VM1 + 1))
    SX0, SX1, SM = ACC, ACC + 4, ACC + 8
    for ks in range(4):
        g.e('s_waitcnt lgkmcnt(%d)' % (2 + 2 * (3 - ks)))
        c0 = '0' if ks == 0 else vr(SX0, 4)
        c1 = '0' if ks == 0 else vr(SX1, 4)
        c2 = '0' if ks == 0 else vr(SM, 4)
        g.e('v_mfma_f32_16x16x32_bf16 %s, %s, %s, %s' % (vr(SX0, 4), vr(BUF + (0 * 4 + ks) * 4, 4), vr(QF + ks * 4, 4), c0))
        g.e('v_mfma_f32_16x16x32_bf16 %s, %s, %s, %s' % (vr(SX1, 4), vr(BUF + (1 * 4 + ks) * 4, 4), vr(QF + ks * 4, 4), c1))
        g.e('v_mfma_f32_16x16x32_bf16 %s, %s, %s, %s' % (vr(SM, 4), vr(KMF + ks * 4, 4), vr(QF + ks * 4, 4), c2))
    ts(g, opt, 'scmfma', True)
    for wv in range(4):
        ln = g.newlabel('L_km')
        g.e('s_cmp_lg_u32 %s, %d' % (sr(S_WAVE), wv))
        g.e('s_cbranch_scc1 %s' % ln)
        g.e('buffer_store_dwordx4 %s, v%d, %s, %s offen sc1' % (vr(KMF + wv * 4, 4), V_KS, sr(SRD_WS, 4), sr(S_KMO)))
        g.label(ln)
    g.e('s_add_u32 %s, %s, 0x%x' % (sr(S_T0), sr(S_KMO), WS_VM - WS_KM))
    g.e('buffer_store_dword v%d, v%d, %s, %s offen sc1' % (VM0, V_VS, sr(SRD_WS, 4), sr(S_T0)))
    g.e('buffer_store_dword v%d, v%d, %s, %s offen offset:256 sc1' % (VM1, V_VS, sr(SRD_WS, 4), sr(S_T0)))
    g.e('s_add_u32 %s, %s, 0x10000' % (sr(S_KMO), sr(S_KMO)))
    g.e('s_cmp_eq_u32 %s, 63' % sr(S_STEP))
    g.e('s_cbranch_scc1 L_chain_done')
    ts(g, opt, 'kmst', True)
    for f in range(4):
        g.e('ds_read_b128 %s, v%d offset:%d' % (vr(BUF + f * 8, 4), V_WO, f * 2048))
        g.e('ds_read_b128 %s, v%d offset:%d' % (vr(BUF + f * 8 + 4, 4), V_WO, f * 2048 + 1024))
    ts(g, opt, 'pf1', True)
    S = [SX0 + i for i in range(8)] + [SM, SM + 1]
    C = [ACC + 12 + i for i in range(5)]
    g.nop(2)

    def rnd():
        for i in range(5):
            g.e('v_cvt_pk_bf16_f32 v%d, v%d, v%d' % (C[i], S[2 * i], S[2 * i + 1]))
        for i in range(5):
            g.e('v_lshlrev_b32 v%d, 16, v%d' % (S[2 * i], C[i]))
            g.e('v_and_b32 v%d, 0xffff0000, v%d' % (S[2 * i + 1], C[i]))
    rnd()
    for i in range(5):
        g.e('v_pk_mul_f32 %s, %s, %s' % (vr(S[2 * i], 2), vr(S[2 * i], 2), sr(S_SC, 2)))
    rnd()
    MX, MT = TMP, TMP + 1
    g.e('v_max3_f32 v%d, v%d, v%d, v%d' % (MX, S[0], S[1], S[2]))
    g.e('v_max3_f32 v%d, v%d, v%d, v%d' % (MT, S[3], S[4], S[5]))
    g.e('v_max3_f32 v%d, v%d, v%d, v%d' % (MX, MX, S[6], S[7]))
    g.e('v_max3_f32 v%d, v%d, v%d, v%d' % (MT, MT, S[8], S[9]))
    g.e('v_max_f32 v%d, v%d, v%d' % (MX, MX, MT))
    for sw in ('v_permlane16_swap_b32', 'v_permlane32_swap_b32'):
        g.e('v_mov_b32 v%d, v%d' % (MT, MX))
        g.nop(2)
        g.e('%s v%d, v%d' % (sw, MT, MX))
        g.nop(1)
        g.e('v_max_f32 v%d, v%d, v%d' % (MX, MX, MT))
    g.e('v_mov_b32 v%d, v%d' % (MT, MX))
    for i in range(5):
        g.e('v_pk_add_f32 %s, %s, %s neg_lo:[0,1] neg_hi:[0,1]' % (vr(S[2 * i], 2), vr(S[2 * i], 2), vr(MX, 2)))
    for i in range(5):
        g.e('v_pk_mul_f32 %s, %s, %s' % (vr(S[2 * i], 2), vr(S[2 * i], 2), sr(S_L2E, 2)))
    for i in range(10):
        g.e('v_exp_f32 v%d, v%d' % (S[i], S[i]))
    ts(g, opt, 'exp', True)
    for f in range(4, 8):
        g.e('ds_read_b128 %s, v%d offset:%d' % (vr(BUF + f * 8, 4), V_WO, f * 2048))
        g.e('ds_read_b128 %s, v%d offset:%d' % (vr(BUF + f * 8 + 4, 4), V_WO, f * 2048 + 1024))
    ts(g, opt, 'pf2', True)
    g.e('v_pk_add_f32 %s, %s, %s' % (vr(C[0], 2), vr(S[0], 2), vr(S[2], 2)))
    g.e('v_pk_add_f32 %s, %s, %s' % (vr(C[2], 2), vr(S[4], 2), vr(S[6], 2)))
    g.e('v_pk_add_f32 %s, %s, %s' % (vr(C[0], 2), vr(C[0], 2), vr(S[8], 2)))
    g.e('v_pk_add_f32 %s, %s, %s' % (vr(C[0], 2), vr(C[0], 2), vr(C[2], 2)))
    g.e('v_add_f32 v%d, v%d, v%d' % (MX, C[0], C[1]))
    for sw in ('v_permlane16_swap_b32', 'v_permlane32_swap_b32'):
        g.e('v_mov_b32 v%d, v%d' % (MT, MX))
        g.nop(2)
        g.e('%s v%d, v%d' % (sw, MT, MX))
        g.nop(1)
        g.e('v_add_f32 v%d, v%d, v%d' % (MX, MX, MT))
    g.e('v_rcp_f32 v%d, v%d' % (MX, MX))
    g.nop(1)
    g.e('v_mov_b32 v%d, v%d' % (MT, MX))
    for i in range(5):
        g.e('v_pk_mul_f32 %s, %s, %s' % (vr(S[2 * i], 2), vr(S[2 * i], 2), vr(MX, 2)))
    PX, PM = AR + 12, TMP + 2
    for i in range(4):
        g.e('v_cvt_pk_bf16_f32 v%d, v%d, v%d' % (PX + i, S[2 * i], S[2 * i + 1]))
    g.e('v_cvt_pk_bf16_f32 v%d, v%d, v%d' % (PM, S[8], S[9]))
    g.e('v_mov_b32 v%d, 0' % (PM + 1))
    g.nop(1)
    ts(g, opt, 'smax')
    O0, O1 = ACC + 12, ACC + 16
    g.e('s_waitcnt lgkmcnt(15)')
    g.e('v_mfma_f32_16x16x32_bf16 %s, %s, %s, 0' % (vr(O0, 4), vr(VXF, 4), vr(PX, 4)))
    g.e('v_mfma_f32_16x16x32_bf16 %s, %s, %s, 0' % (vr(O1, 4), vr(VXF + 4, 4), vr(PX, 4)))
    g.e('v_mfma_f32_16x16x16_bf16 %s, %s, %s, %s' % (vr(O0, 4), vr(VM0, 2), vr(PM, 2), vr(O0, 4)))
    g.e('v_mfma_f32_16x16x16_bf16 %s, %s, %s, %s' % (vr(O1, 4), vr(VM1, 2), vr(PM, 2), vr(O1, 4)))
    zero_regs(g, ACC, 12)
    g.nop(2)
    OP = ACC + 20
    g.e('v_cvt_pk_bf16_f32 v%d, v%d, v%d' % (OP, O0, O0 + 1))
    g.e('v_cvt_pk_bf16_f32 v%d, v%d, v%d' % (OP + 1, O0 + 2, O0 + 3))
    g.e('v_cvt_pk_bf16_f32 v%d, v%d, v%d' % (OP + 2, O1, O1 + 1))
    g.e('v_cvt_pk_bf16_f32 v%d, v%d, v%d' % (OP + 3, O1 + 2, O1 + 3))
    g.e('ds_write_b64 v%d, %s' % (V_OW, vr(OP, 2)))
    g.e('ds_write_b64 v%d, %s offset:256' % (V_OW, vr(OP + 2, 2)))
    zero_regs(g, ACC + 12, 8)
    zero_regs(g, AR, 8)
    g.e('s_waitcnt lgkmcnt(0)')
    zero_regs(g, ACC + 20, 4)
    g.e('s_barrier')
    ts(g, opt, 'obar')
    OA = AR + 8
    g.e('ds_read_b128 %s, v%d offset:%d' % (vr(OA, 4), V_AF, L_O - L_MST))
    g.e('ds_read_b128 %s, v%d offset:%d' % (vr(OA + 4, 4), V_AF, L_O - L_MST + 1024))
    dma_kxvx(g)
    g.e('s_add_u32 %s, %s, 0x40000' % (sr(S_KXO), sr(S_KXO)))
    g.e('s_waitcnt lgkmcnt(0)')

    ts(g, opt, 'oread', True)

    def wfrag(tp, ks2):
        if tp < 4:
            return vr(V_WOL + (tp * 2 + ks2) * 8, 8)
        return vr(BUF + ((tp - 4) * 2 + ks2) * 8, 8)

    def post(u):
        a, b = ACC + u * 8, ACC + u * 8 + 4
        ops = ['v_add_f32 v%d, v%d, v%d' % (a, a, a + 1),
               'v_add_f32 v%d, v%d, v%d' % (a + 1, b, b + 1),
               'v_add_f32 v%d, v%d, v%d' % (a + 2, a + 2, a + 3),
               'v_add_f32 v%d, v%d, v%d' % (a + 3, b + 2, b + 3)]
        for i in range(4):
            ops.append('v_bfi_b32 v%d, 1, %s, v%d' % (a + i, sr(S_PHASE), a + i))
        so = '0' if u == 0 else sr((S_U1, S_U2, S_U3)[u - 1])
        ops.append('buffer_store_dwordx4 %s, v%d, %s, %s offen' % (vr(a, 4), V_PS, sr(SRD_WS, 4), so))
        return ops

    pendp = []
    for u in range(4):
        for ks2 in range(2):
            for ab in range(2):
                tp = 2 * u + ab
                smf(g, ACC + tp * 4, OA + ks2 * 4, wfrag(tp, ks2))
                for _ in range(3):
                    if pendp:
                        g.e(pendp.pop(0))
        while pendp:
            g.e(pendp.pop(0))
        pendp = [None]
        pendp = post(u)
        if u < 3:
            pendp = ['s_nop 2', 's_nop 2'] + pendp
    g.nop(8)
    while pendp:
        g.e(pendp.pop(0))
    ts(g, opt, 'wo')
    prefetch_buf(g, V_WL)
    ts(g, opt, 'pfv', True)
    PL = [ACC + 4, ACC + 12, ACC + 20, ACC + 28]
    lp = g.newlabel('L_poll1')
    if opt.get('ts'):
        g.e('s_mov_b32 s80, 0')
    g.label(lp)
    g.guard()
    if opt.get('ts'):
        g.e('s_add_u32 s80, s80, 1')
    for i in range(4):
        g.e('buffer_load_dwordx4 %s, v%d, %s, %s offen offset:%d sc1' % (vr(PL[i], 4), V_L16, sr(SRD_WS, 4), sr(S_PL), i * 1024))
    g.e('v_mov_b32 v%d, %s' % (TMP + 3, sr(S_PHASE)))
    T = [AR + 8 + i for i in range(8)]
    for i in range(4):
        g.e('s_waitcnt vmcnt(%d)' % (3 - i))
        tt = 0
        for a in range(2):
            for b in range(2):
                for c_ in range(2):
                    if (a ^ c_) | (b ^ c_):
                        tt |= 1 << (a * 4 + b * 2 + c_)
        g.e('v_bitop3_b32 v%d, v%d, v%d, v%d bitop3:0x%x' % (T[2 * i], PL[i], PL[i] + 1, TMP + 3, tt))
        g.e('v_bitop3_b32 v%d, v%d, v%d, v%d bitop3:0x%x' % (T[2 * i + 1], PL[i] + 2, PL[i] + 3, TMP + 3, tt))
    g.e('v_or3_b32 v%d, v%d, v%d, v%d' % (T[0], T[0], T[1], T[2]))
    g.e('v_or3_b32 v%d, v%d, v%d, v%d' % (T[3], T[3], T[4], T[5]))
    g.e('v_or3_b32 v%d, v%d, v%d, v%d' % (T[0], T[0], T[6], T[7]))
    g.e('v_or_b32 v%d, v%d, v%d' % (T[0], T[0], T[3]))
    g.e('v_and_b32 v%d, 1, v%d' % (T[0], T[0]))
    g.e('v_cmp_ne_u32 vcc, 0, v%d' % T[0])
    g.e('v_pk_add_f32 %s, %s, %s' % (vr(PL[0], 2), vr(PL[0], 2), vr(PL[1], 2)))
    g.e('v_pk_add_f32 %s, %s, %s' % (vr(PL[0] + 2, 2), vr(PL[0] + 2, 2), vr(PL[1] + 2, 2)))
    g.e('s_cbranch_vccnz %s' % lp)
    ts(g, opt, 'hop1')
    g.e('v_pk_add_f32 %s, %s, %s' % (vr(PL[2], 2), vr(PL[2], 2), vr(PL[3], 2)))
    g.e('v_pk_add_f32 %s, %s, %s' % (vr(PL[2] + 2, 2), vr(PL[2] + 2, 2), vr(PL[3] + 2, 2)))
    g.e('v_pk_add_f32 %s, %s, %s' % (vr(PL[0], 2), vr(PL[0], 2), vr(PL[2], 2)))
    g.e('v_pk_add_f32 %s, %s, %s' % (vr(PL[0] + 2, 2), vr(PL[0] + 2, 2), vr(PL[2] + 2, 2)))
    r0 = PL[0]
    g.nop(2)
    g.e('v_permlane32_swap_b32 v%d, v%d' % (r0, r0 + 2))
    g.e('v_permlane32_swap_b32 v%d, v%d' % (r0 + 1, r0 + 3))
    g.nop(1)
    g.e('v_pk_add_f32 %s, %s, %s' % (vr(r0, 2), vr(r0, 2), vr(r0 + 2, 2)))
    g.nop(2)
    g.e('v_permlane16_swap_b32 v%d, v%d' % (r0, r0 + 1))
    g.nop(1)
    g.e('v_add_f32 v%d, v%d, v%d' % (r0, r0, r0 + 1))
    g.nop(2)
    g.e('v_add_f32_dpp v%d, v%d, v%d row_ror:8 row_mask:0xf bank_mask:0xf' % (r0, r0, r0))
    g.e('v_mov_b32 v%d, v%d' % (r0 + 1, r0))
    g.nop(2)
    g.e('v_permlane16_swap_b32 v%d, v%d' % (r0, r0 + 1))
    g.nop(1)
    g.e('v_cvt_pk_bf16_f32 v%d, v%d, v%d' % (r0, r0, r0 + 1))
    g.e('v_min_u32 v%d, -2, v%d' % (r0, r0))
    g.e('buffer_store_dword v%d, v%d, %s, %s offen' % (r0, V_MS, sr(SRD_WS, 4), sr(S_M2W)))
    g.e('s_add_u32 %s, %s, 1' % (sr(S_STEP), sr(S_STEP)))
    g.e('s_mov_b32 %s, %s' % (sr(S_T0), sr(S_M2R)))
    g.e('s_mov_b32 %s, %s' % (sr(S_M2R), sr(S_M2W)))
    g.e('s_mov_b32 %s, %s' % (sr(S_M2W), sr(S_M2Z)))
    g.e('s_mov_b32 %s, %s' % (sr(S_M2Z), sr(S_T0)))
    g.e('s_xor_b32 %s, %s, 1' % (sr(S_PHASE), sr(S_PHASE)))
    g.e('s_lshl_b32 %s, %s, 11' % (sr(S_T1), sr(S_WAVE)))
    g.e('s_add_u32 %s, %s, %s' % (sr(S_T1), sr(S_T1), sr(S_M2R)))
    zero_regs(g, ACC, 4)
    zero_regs(g, ACC + 8, 16)
    ts(g, opt, 'red')
    PMR = AR + 8
    lp = g.newlabel('L_poll2')
    if opt.get('ts'):
        g.e('s_mov_b32 s81, 0')
    g.label(lp)
    g.guard()
    if opt.get('ts'):
        g.e('s_add_u32 s81, s81, 1')
    g.e('buffer_load_dwordx4 %s, v%d, %s, %s offen sc1' % (vr(PMR, 4), V_L16, sr(SRD_WS, 4), sr(S_T1)))
    g.e('buffer_load_dwordx4 %s, v%d, %s, %s offen offset:1024 sc1' % (vr(PMR + 4, 4), V_L16, sr(SRD_WS, 4), sr(S_T1)))
    g.e('s_waitcnt vmcnt(1)')
    g.e('v_max3_u32 v%d, v%d, v%d, v%d' % (TMP, PMR, PMR + 1, PMR + 2))
    g.e('s_waitcnt vmcnt(0)')
    g.e('v_max3_u32 v%d, v%d, v%d, v%d' % (TMP + 1, PMR + 3, PMR + 4, PMR + 5))
    g.e('v_max3_u32 v%d, v%d, v%d, v%d' % (TMP, TMP, PMR + 6, PMR + 7))
    g.e('v_max_u32 v%d, v%d, v%d' % (TMP, TMP, TMP + 1))
    g.e('v_cmp_eq_u32 vcc, -1, v%d' % TMP)
    g.e('s_cbranch_vccnz %s' % lp)
    g.e('ds_write_b128 v%d, %s offset:16384' % (V_HIW, vr(PMR, 4)))
    g.e('ds_write_b128 v%d, %s offset:17408' % (V_HIW, vr(PMR + 4, 4)))
    zero_regs(g, ACC + 4, 4)
    ts(g, opt, 'hop2')
    ts_flush(g, opt)
    g.e('s_waitcnt lgkmcnt(0)')
    g.e('s_barrier')
    g.e('s_branch L_step')
    g.label('L_chain_done')
    g.e('s_waitcnt vmcnt(0)')
    g.e('v_mov_b32 v%d, 64' % TMP)
    g.e('v_mov_b32 v%d, 0' % (TMP + 1))
    g.e('s_mov_b64 exec, 1')
    g.e('buffer_store_dword v%d, v%d, %s, %s offen sc1' % (TMP, TMP + 1, sr(SRD_WS, 4), sr(S_F2)))
    g.e('s_mov_b64 exec, -1')
    g.e('s_branch L_exit')


def wait_f1(g, R):
    if R is None:
        g.e('s_add_u32 %s, %s, 1' % (sr(S_T0), sr(S_STEP)))
        g.e('s_and_b32 %s, %s, 0xfffffffc' % (sr(S_T0), sr(S_T0)))
        g.e('s_add_u32 %s, %s, %s' % (sr(S_T0), sr(S_T0), sr(S_F1)))
    else:
        g.e('s_add_u32 %s, %s, %d' % (sr(S_T0), sr(S_F1), R * 4))
    l = g.newlabel('L_f1')
    g.e('v_mov_b32 v%d, 0' % TMP)
    g.label(l)
    g.guard()
    g.e('buffer_load_dword v%d, v%d, %s, %s offen sc1' % (TMP + 1, TMP, sr(SRD_WS, 4), sr(S_T0)))
    g.e('s_waitcnt vmcnt(0)')
    g.e('v_readfirstlane_b32 %s, v%d' % (sr(S_T1), TMP + 1))
    g.nop(3)
    g.e('s_cmp_eq_u32 %s, 0' % sr(S_T1))
    g.e('s_cbranch_scc1 %s' % l)


def build(opt):
    g = G()
    hdr = open('cdna_kernels/%s.s.ref' % NAME).read().split('\n')
    for l in hdr:
        if l.startswith(';') and '@launch' not in l:
            g.lines.append(l)
        elif not l.startswith(';'):
            break
    g.lines.append('; @launch grid=(256,1,1) block=(256,1,1) lds=%d' % LDS_SIZE)
    g.lines.append('.amdgcn_target "amdgcn-amd-amdhsa--gfx950"')
    g.lines.append('.text')
    g.lines.append('.globl %s_kernel' % NAME)
    g.lines.append('.p2align 8')
    g.lines.append('.type %s_kernel,@function' % NAME)
    g.label('%s_kernel' % NAME)
    prologue(g, opt)
    chain_setup(g, opt)
    chain_init_buffers(g, opt)
    chain_load_weights(g, opt)
    chain_stage_mem0(g, opt)
    chain_loop(g, opt)
    if opt.get('noworker'):
        g.label('L_worker')
    else:
        import genw
        genw.worker(g, opt)
    g.label('L_exit')
    g.e('s_endpgm')
    g.lines.append('.section .rodata,"a"')
    g.lines.append('.p2align 6')
    g.lines.append('.amdhsa_kernel %s_kernel' % NAME)
    g.lines.append('  .amdhsa_next_free_vgpr 512')
    g.lines.append('  .amdhsa_next_free_sgpr 102')
    g.lines.append('  .amdhsa_accum_offset 256')
    g.lines.append('  .amdhsa_group_segment_fixed_size 0')
    g.lines.append('  .amdhsa_kernarg_size 104')
    g.lines.append('  .amdhsa_user_sgpr_count 2')
    g.lines.append('  .amdhsa_user_sgpr_kernarg_segment_ptr 1')
    g.lines.append('  .amdhsa_system_sgpr_workgroup_id_x 1')
    g.lines.append('  .amdhsa_float_denorm_mode_32 3')
    g.lines.append('.end_amdhsa_kernel')
    return g.text()


if __name__ == '__main__':
    opt = {}
    out = sys.argv[1]
    for a in sys.argv[2:]:
        opt[a] = True
    open(out, 'w').write(build(opt))
    open(out + '.names', 'w').write(' '.join(TS_NAMES))
```

```python
from gen import *

WS_QA = 0x6000000
WS_KA = 0x6200000
WS_VA = 0x6400000
WS_OA = 0x6600000
CA_OFF = 8192
CB_OFF = 8192 + 2048
CO_OFF = 8192 + 4096
FLAG_ZERO_BYTES = 8192 + 6144

N_BP = 512
N_AP = 64
N_AA = 128
N_AO = 64
N_BT = 16 * 36
T_AP = N_BP
T_AA = T_AP + N_AP
T_AO = T_AA + N_AA
T_BT = T_AO + N_AO
T_END = T_BT + N_BT

S_TASK = 52
S_R = 53
S_H = 54
S_AOFF = 55
S_BOFF = 56
S_KC = 59
S_X0, S_X1, S_X2, S_X3 = 60, 61, 62, 63
SRD_B0, SRD_B1, SRD_B2 = 80, 84, 88
SRD_OUT = 92
S_RET = 96
S_INIT = 98

W_LANE = 1
W_AD = 2
W_BD = 6
W_AR = 8
W_BR = 12
W_T = 16
W_ACC = 64
STAGE = 65536


def wave0_begin(g):
    l = g.newlabel('L_w0')
    g.e('s_cmp_lg_u32 %s, 0' % sr(S_WAVE))
    g.e('s_cbranch_scc1 %s' % l)
    return l


def wait_ge(g, soff_expr_emit, target, sleep=8):
    l = g.newlabel('L_wait')
    g.e('v_mov_b32 v%d, 0' % W_T)
    g.label(l)
    g.guard()
    g.e('buffer_load_dword v%d, v%d, %s, %s offen sc1' % (W_T + 1, W_T, sr(SRD_WS, 4), sr(S_X0)))
    g.e('s_waitcnt vmcnt(0)')
    g.e('v_readfirstlane_b32 %s, v%d' % (sr(S_X1), W_T + 1))
    g.nop(3)
    g.e('s_cmp_ge_u32 %s, %s' % (sr(S_X1), target))
    d = g.newlabel('L_waitd')
    g.e('s_cbranch_scc1 %s' % d)
    g.e('s_sleep %d' % sleep)
    g.e('s_branch %s' % l)
    g.label(d)


def signal_add(g):
    g.e('s_waitcnt vmcnt(0)')
    g.e('s_barrier')
    l = wave0_begin(g)
    g.e('s_mov_b64 exec, 1')
    g.e('v_mov_b32 v%d, 0' % W_T)
    g.e('v_mov_b32 v%d, 1' % (W_T + 1))
    g.e('buffer_atomic_add v%d, v%d, %s, %s offen' % (W_T + 1, W_T, sr(SRD_WS, 4), sr(S_X0)))
    g.e('s_mov_b64 exec, -1')
    g.label(l)


def gemm_setup(g, strideA, strideB):
    L = W_LANE
    t = W_T
    g.e('v_lshrrev_b32 v%d, 3, v%d' % (t, L))
    g.e('s_mov_b32 %s, %d' % (sr(S_X0), strideA))
    g.e('v_mul_lo_u32 v%d, v%d, %s' % (t, t, sr(S_X0)))
    g.e('v_and_b32 v%d, 7, v%d' % (t + 1, L))
    g.e('v_lshrrev_b32 v%d, 4, v%d' % (t + 2, L))
    g.e('v_xor_b32 v%d, v%d, v%d' % (t + 1, t + 1, t + 2))
    g.e('v_lshl_add_u32 v%d, v%d, 4, v%d' % (t, t + 1, t))
    for i in range(4):
        g.e('v_xor_b32 v%d, %d, v%d' % (W_AD + i, (i & 1) * 64, t))
        if i:
            g.e('v_add_u32 v%d, %d, v%d' % (W_AD + i, 8 * i * strideA, W_AD + i))
    g.e('s_mov_b32 %s, %d' % (sr(S_X0), strideB))
    g.e('v_mul_lo_u32 v%d, v%d, %s' % (t, t + 2, sr(S_X0)))
    g.e('v_and_b32 v%d, 15, v%d' % (t + 1, L))
    g.e('v_lshlrev_b32 v%d, 2, v%d' % (t + 3, t + 2))
    g.e('v_xor_b32 v%d, v%d, v%d' % (t + 1, t + 1, t + 3))
    g.e('v_lshl_add_u32 v%d, v%d, 4, v%d' % (W_BD, t + 1, t))


def gemm_consts(g):
    L = W_LANE
    t = W_T
    g.e('v_and_b32 v%d, 31, v%d' % (t, L))
    g.e('v_bfe_u32 v%d, v%d, 1, 3' % (t + 1, L))
    g.e('v_lshrrev_b32 v%d, 5, v%d' % (t + 2, L))
    g.e('v_xor_b32 v%d, v%d, v%d' % (t + 1, t + 1, t + 2))
    g.e('v_lshlrev_b32 v%d, 7, v%d' % (t, t))
    g.e('v_lshl_add_u32 v%d, v%d, 4, v%d' % (t, t + 1, t))
    g.e('s_lshl_b32 %s, %s, 12' % (sr(S_X0), sr(S_WAVE)))
    g.e('v_add_u32 v%d, %s, v%d' % (t, sr(S_X0), t))
    for ks in range(4):
        g.e('v_xor_b32 v%d, %d, v%d' % (W_AR + ks, ks * 32, t))
    g.e('v_bfe_u32 v%d, v%d, 2, 2' % (t, L))
    g.e('v_lshl_add_u32 v%d, v%d, 3, v%d' % (t + 1, t + 2, t))
    g.e('v_lshlrev_b32 v%d, 8, v%d' % (t + 1, t + 1))
    g.e('v_bfe_u32 v%d, v%d, 4, 1' % (t + 3, L))
    g.e('v_bfe_u32 v%d, v%d, 1, 1' % (t + 4, L))
    g.e('v_lshl_add_u32 v%d, v%d, 1, v%d' % (t + 3, t + 3, t + 4))
    g.e('v_lshlrev_b32 v%d, 2, v%d' % (t + 4, t))
    g.e('v_xor_b32 v%d, v%d, v%d' % (t + 3, t + 3, t + 4))
    g.e('v_lshl_add_u32 v%d, v%d, 4, v%d' % (t + 1, t + 3, t + 1))
    g.e('v_and_b32 v%d, 1, v%d' % (t + 3, L))
    g.e('v_lshl_add_u32 v%d, v%d, 3, v%d' % (t + 1, t + 3, t + 1))
    g.e('v_add_u32 v%d, 16384, v%d' % (t + 1, t + 1))
    for tt in range(4):
        g.e('v_xor_b32 v%d, %d, v%d' % (W_BR + tt, tt * 64, t + 1))


def gemm_core(g, name, nb, nchunks, strideB, srdA, srdB, swap, asc1=False):
    nt = 4 * nb
    FB = [0, 64]
    FA = [48, 112]

    def dma(stage):
        base = stage * STAGE
        g.e('s_lshl_b32 %s, %s, 12' % (sr(S_X0), sr(S_WAVE)))
        g.e('s_lshl_b32 %s, %s, 7' % (sr(S_X1), sr(S_KC)))
        g.e('s_add_u32 %s, %s, %s' % (sr(S_X1), sr(S_X1), sr(S_AOFF)))
        for i in range(4):
            g.e('s_add_u32 m0, %s, %d' % (sr(S_X0), base + i * 1024))
            g.nop(1)
            g.e('buffer_load_dwordx4 v%d, %s, %s offen%s lds' % (W_AD + i, sr(srdA, 4), sr(S_X1), ' sc1' if asc1 else ''))
        g.e('s_lshl_b32 %s, %s, 6' % (sr(S_X1), sr(S_KC)))
        g.e('s_lshl_b32 %s, %s, 4' % (sr(S_X2), sr(S_WAVE)))
        g.e('s_add_u32 %s, %s, %s' % (sr(S_X1), sr(S_X1), sr(S_X2)))
        g.e('s_mul_i32 %s, %s, %d' % (sr(S_X1), sr(S_X1), strideB))
        for j in range(nb):
            g.e('s_add_u32 %s, %s, %s' % (sr(S_X2), sr(S_X1), sr(S_BOFF + j)))
            for i in range(4):
                g.e('s_add_u32 m0, %s, %d' % (sr(S_X0), base + 16384 + j * 16384 + i * 1024))
                g.e('s_add_u32 %s, %s, %d' % (sr(S_X3), sr(S_X2), 4 * i * strideB))
                g.e('buffer_load_dwordx4 v%d, %s, %s offen lds' % (W_BD, sr(srdB[j], 4), sr(S_X3)))
    nd = 4 + 4 * nb

    def reads(ks, fs):
        g.e('ds_read_b128 %s, v%d' % (ar(FA[fs], 4), W_AR + ks))
        for t in range(nt):
            j, tt = t >> 2, t & 3
            for s in range(2):
                g.e('ds_read_b64_tr_b16 %s, v%d offset:%d' % (ar(FB[fs] + t * 4 + s * 2, 2), W_BR + tt, (16 * ks + 4 * s) * 256 + j * 16384))

    def mfmas(fs, first):
        for t in range(nt):
            acc = vr(W_ACC + t * 16, 16)
            a, b = ar(FA[fs], 4), ar(FB[fs] + t * 4, 4)
            if swap[t >> 2]:
                a, b = b, a
            g.e('v_mfma_f32_32x32x16_bf16 %s, %s, %s, %s' % (acc, a, b, acc))

    for t in range(nt * 8):
        g.e('v_mov_b64 %s, 0' % vr(W_ACC + 2 * t, 2))
    g.e('s_mov_b32 %s, 0' % sr(S_KC))
    dma(0)
    g.e('s_mov_b32 %s, 1' % sr(S_KC))
    dma(1)
    g.e('s_mov_b32 %s, 2' % sr(S_KC))
    loop = 'L_gl_%s' % name
    g.label(loop)
    for st in range(2):
        g.e('s_waitcnt vmcnt(%d)' % nd)
        g.e('s_barrier')
        reads(0, 0)
        for ks in range(4):
            g.e('s_waitcnt lgkmcnt(0)')
            if ks < 3:
                reads(ks + 1, (ks + 1) & 1)
            mfmas(ks & 1, False)
        g.e('s_barrier')
        g.e('s_min_u32 %s, %s, %d' % (sr(S_INIT + 1), sr(S_KC), nchunks - 1))
        g.e('s_mov_b32 %s, %s' % (sr(S_INIT + 2), sr(S_KC)))
        g.e('s_mov_b32 %s, %s' % (sr(S_KC), sr(S_INIT + 1)))
        dma(st)
        g.e('s_add_u32 %s, %s, 1' % (sr(S_KC), sr(S_INIT + 2)))
        for i in range(4):
            g.e('v_xor_b32 v%d, 0x%x, v%d' % (W_AR + i, STAGE, W_AR + i))
            g.e('v_xor_b32 v%d, 0x%x, v%d' % (W_BR + i, STAGE, W_BR + i))
    g.e('s_cmp_lt_u32 %s, %d' % (sr(S_KC), nchunks + 2))
    g.e('s_cbranch_scc1 %s' % loop)
    g.e('s_waitcnt vmcnt(0)')
    g.nop(16)


def epi_ct_store(g, t, voff, srd, soff, ioff_fn, sc1):
    a = W_ACC + t * 16
    for gq in range(4):
        g.e('v_cvt_pk_bf16_f32 v%d, v%d, v%d' % (a + 4 * gq, a + 4 * gq, a + 4 * gq + 1))
        g.e('v_cvt_pk_bf16_f32 v%d, v%d, v%d' % (a + 4 * gq + 1, a + 4 * gq + 2, a + 4 * gq + 3))
    for gq in range(4):
        g.e('buffer_store_dwordx2 %s, v%d, %s, %s offen offset:%d%s' % (vr(a + 4 * gq, 2), voff, sr(srd, 4), soff, ioff_fn(gq), ' sc1' if sc1 else ''))


def epi_v_store(g, t, voff, soff, ioff_fn):
    a = W_ACC + t * 16
    for q in range(2):
        d = W_T + 4 * q
        g.e('v_cvt_pk_bf16_f32 v%d, v%d, v%d' % (d, a + 4 * q, a + 4 * q + 1))
        g.e('v_cvt_pk_bf16_f32 v%d, v%d, v%d' % (d + 1, a + 4 * q + 2, a + 4 * q + 3))
        g.e('v_cvt_pk_bf16_f32 v%d, v%d, v%d' % (d + 2, a + 8 + 4 * q, a + 8 + 4 * q + 1))
        g.e('v_cvt_pk_bf16_f32 v%d, v%d, v%d' % (d + 3, a + 8 + 4 * q + 2, a + 8 + 4 * q + 3))
        for i in range(4):
            g.e('v_mov_b32 v%d, v%d' % (a + 4 * q + i if False else a + 8 * q + i, d + i)) if False else None
    for q in range(2):
        g.e('buffer_store_dwordx4 %s, v%d, %s, %s offen offset:%d sc1' % (vr(W_T + 4 * q, 4), voff, sr(SRD_WS, 4), soff, ioff_fn(q)))
    g.nop(2)


def task_bproj(g):
    g.label('L_t_bproj')
    g.e('s_lshr_b32 %s, %s, 5' % (sr(S_R), sr(S_TASK)))
    g.e('s_and_b32 %s, %s, 31' % (sr(S_H), sr(S_TASK)))
    make_srd(g, SRD_A, S_BX, 2 << 20)
    make_srd(g, SRD_B0, S_WQ, 4 << 20)
    make_srd(g, SRD_B1, S_WK, 4 << 20)
    make_srd(g, SRD_B2, S_WV, 4 << 20)
    gemm_setup(g, 1024, 8192)
    g.e('s_lshl_b32 %s, %s, 17' % (sr(S_AOFF), sr(S_R)))
    g.e('s_lshl_b32 %s, %s, 15' % (sr(S_X0), sr(S_WAVE)))
    g.e('s_add_u32 %s, %s, %s' % (sr(S_AOFF), sr(S_AOFF), sr(S_X0)))
    for j in range(3):
        g.e('s_lshl_b32 %s, %s, 8' % (sr(S_BOFF + j), sr(S_H)))
    gemm_core(g, 'bp', 3, 8, 8192, SRD_A, [SRD_B0, SRD_B1, SRD_B2], [1, 1, 0])
    t = W_T + 8
    L = W_LANE
    g.e('s_lshl_b32 %s, %s, 2' % (sr(S_X0), sr(S_R)))
    g.e('s_add_u32 %s, %s, %s' % (sr(S_X0), sr(S_X0), sr(S_WAVE)))
    g.e('s_lshl_b32 %s, %s, 5' % (sr(S_X0), sr(S_X0)))
    g.e('s_add_u32 %s, %s, %s' % (sr(S_X0), sr(S_X0), sr(S_H)))
    g.e('s_lshl_b32 %s, %s, 13' % (sr(S_X0), sr(S_X0)))
    g.e('s_add_u32 %s, %s, 0x%x' % (sr(S_X1), sr(S_X0), WS_QX))
    g.e('s_add_u32 %s, %s, 0x%x' % (sr(S_X2), sr(S_X0), WS_KX))
    g.e('s_add_u32 %s, %s, 0x%x' % (sr(S_X3), sr(S_X0), WS_VX))
    g.e('v_bfe_u32 v%d, v%d, 4, 1' % (t, L))
    g.e('v_lshlrev_b32 v%d, 12, v%d' % (t, t))
    g.e('v_and_b32 v%d, 15, v%d' % (t + 1, L))
    g.e('v_lshl_add_u32 v%d, v%d, 4, v%d' % (t, t + 1, t))
    g.e('v_lshrrev_b32 v%d, 5, v%d' % (t + 2, L))
    g.e('v_lshl_add_u32 v%d, v%d, 3, v%d' % (t, t + 2, t))
    g.e('v_bfe_u32 v%d, v%d, 4, 1' % (t + 3, L))
    g.e('v_lshl_add_u32 v%d, v%d, 2, v%d' % (t + 3, t + 3, t + 2))
    g.e('v_lshlrev_b32 v%d, 8, v%d' % (t + 3, t + 3))
    g.e('v_lshl_add_u32 v%d, v%d, 4, v%d' % (t + 3, t + 1, t + 3))
    for tt in range(4):
        epi_ct_store(g, tt, t, SRD_WS, sr(S_X1), lambda gq, tt=tt: tt * 1024 + gq * 256, True)
        epi_ct_store(g, 4 + tt, t, SRD_WS, sr(S_X2), lambda gq, tt=tt: tt * 1024 + gq * 256, True)
    for tt in range(4):
        if tt == 2:
            g.e('s_add_u32 %s, %s, 4096' % (sr(S_X3), sr(S_X3)))
        epi_v_store(g, 8 + tt, t + 3, sr(S_X3), lambda q, tt=tt: (tt & 1) * 2048 + q * 512)
    g.e('s_lshl_b32 %s, %s, 7' % (sr(S_X0), sr(S_H)))
    g.e('s_lshl_b32 %s, %s, 2' % (sr(S_X1), sr(S_R)))
    g.e('s_add_u32 %s, %s, %s' % (sr(S_X0), sr(S_X0), sr(S_X1)))
    g.e('s_add_u32 %s, %s, 0x%x' % (sr(S_X0), sr(S_X0), WS_FLAGS + F1_OFF))
    signal_add(g)
    g.e('s_branch L_next')


def task_aproj(g):
    g.label('L_t_aproj')
    g.e('s_sub_u32 %s, %s, %d' % (sr(S_X0), sr(S_TASK), T_AP))
    g.e('s_lshr_b32 %s, %s, 2' % (sr(S_R), sr(S_X0)))
    g.e('s_and_b32 %s, %s, 3' % (sr(S_H), sr(S_X0)))
    make_srd(g, SRD_A, S_AX, 2 << 20)
    make_srd(g, SRD_B0, S_AWQKV, 512 * 3072)
    gemm_setup(g, 1024, 3072)
    g.e('s_lshl_b32 %s, %s, 17' % (sr(S_AOFF), sr(S_R)))
    g.e('s_lshl_b32 %s, %s, 15' % (sr(S_X0), sr(S_WAVE)))
    g.e('s_add_u32 %s, %s, %s' % (sr(S_AOFF), sr(S_AOFF), sr(S_X0)))
    g.e('s_lshl_b32 %s, %s, 8' % (sr(S_BOFF), sr(S_H)))
    g.e('s_add_u32 %s, %s, 1024' % (sr(S_BOFF + 1), sr(S_BOFF)))
    g.e('s_add_u32 %s, %s, 2048' % (sr(S_BOFF + 2), sr(S_BOFF)))
    gemm_core(g, 'ap', 3, 8, 3072, SRD_A, [SRD_B0, SRD_B0, SRD_B0], [1, 1, 0])
    t = W_T + 8
    L = W_LANE
    g.e('v_and_b32 v%d, 31, v%d' % (t, L))
    g.e('v_lshlrev_b32 v%d, 5, v%d' % (t, t))
    g.e('v_lshrrev_b32 v%d, 5, v%d' % (t + 2, L))
    g.e('v_lshl_add_u32 v%d, v%d, 3, v%d' % (t, t + 2, t))
    g.e('v_add_u32 v%d, 65536, v%d' % (t + 4, t))
    g.e('s_lshl_b32 %s, %s, 2' % (sr(S_X0), sr(S_R)))
    g.e('s_add_u32 %s, %s, %s' % (sr(S_X0), sr(S_X0), sr(S_WAVE)))
    g.e('s_lshl_b32 %s, %s, 10' % (sr(S_X0), sr(S_X0)))
    g.e('s_lshl_b32 %s, %s, 19' % (sr(S_X1), sr(S_H)))
    g.e('s_add_u32 %s, %s, %s' % (sr(S_X0), sr(S_X0), sr(S_X1)))
    for tt in range(4):
        for blk, base in ((0, WS_QA), (1, WS_KA)):
            a = W_ACC + (4 * blk + tt) * 16
            g.e('s_add_u32 %s, %s, 0x%x' % (sr(S_X2), sr(S_X0), base + tt * 131072))
            for gq in range(4):
                g.e('v_cvt_pk_bf16_f32 v%d, v%d, v%d' % (a + 4 * gq, a + 4 * gq, a + 4 * gq + 1))
                g.e('v_cvt_pk_bf16_f32 v%d, v%d, v%d' % (a + 4 * gq + 1, a + 4 * gq + 2, a + 4 * gq + 3))
            for gq in range(4):
                g.e('buffer_store_dwordx2 %s, v%d, %s, %s offen offset:%d sc1' % (vr(a + 4 * gq, 2), t + 4 * (gq >> 1), sr(SRD_WS, 4), sr(S_X2), (gq & 1) * 16))
    g.e('v_bfe_u32 v%d, v%d, 4, 1' % (t + 3, L))
    g.e('v_lshlrev_b32 v%d, 16, v%d' % (t + 3, t + 3))
    g.e('v_lshl_add_u32 v%d, v%d, 8, v%d' % (t + 3, t + 2, t + 3))
    g.e('v_and_b32 v%d, 15, v%d' % (t + 1, L))
    g.e('v_lshl_add_u32 v%d, v%d, 4, v%d' % (t + 3, t + 1, t + 3))
    for tt in range(4):
        g.e('s_add_u32 %s, %s, 0x%x' % (sr(S_X3), sr(S_X0), WS_VA + tt * 131072))
        epi_v_store(g, 8 + tt, t + 3, sr(S_X3), lambda q: q * 512)
    g.e('s_lshl_b32 %s, %s, 7' % (sr(S_X0), sr(S_R)))
    g.e('s_add_u32 %s, %s, 0x%x' % (sr(S_X0), sr(S_X0), WS_FLAGS + CA_OFF))
    signal_add(g)
    g.e('s_branch L_next')


def task_out(g, name, label, a_base, a_stride, nchunks, w_ptr, w_bytes, out_col, cnt_off, cnt_target):
    g.label(label)
    l = wave0_begin(g)
    g.e('s_lshl_b32 %s, %s, 7' % (sr(S_X0), sr(S_R)))
    g.e('s_add_u32 %s, %s, 0x%x' % (sr(S_X0), sr(S_X0), WS_FLAGS + cnt_off))
    wait_ge(g, None, str(cnt_target), 16)
    g.label(l)
    g.e('s_barrier')
    make_srd(g, SRD_B0, w_ptr, w_bytes)
    make_srd(g, SRD_OUT, S_OUT, 2048 * 2048)
    gemm_setup(g, a_stride, 1024)
    g.e('s_lshl_b32 %s, %s, 2' % (sr(S_X0), sr(S_R)))
    g.e('s_add_u32 %s, %s, %s' % (sr(S_X0), sr(S_X0), sr(S_WAVE)))
    g.e('s_mul_i32 %s, %s, %d' % (sr(S_AOFF), sr(S_X0), 32 * a_stride))
    g.e('s_add_u32 %s, %s, 0x%x' % (sr(S_AOFF), sr(S_AOFF), a_base))
    g.e('s_lshl_b32 %s, %s, 8' % (sr(S_BOFF), sr(S_H)))
    gemm_core(g, name, 1, nchunks, 1024, SRD_WS, [SRD_B0], [1], asc1=True)
    t = W_T + 8
    L = W_LANE
    g.e('v_and_b32 v%d, 31, v%d' % (t, L))
    g.e('v_lshlrev_b32 v%d, 11, v%d' % (t, t))
    g.e('v_lshrrev_b32 v%d, 5, v%d' % (t + 2, L))
    g.e('v_lshl_add_u32 v%d, v%d, 3, v%d' % (t, t + 2, t))
    g.e('s_lshl_b32 %s, %s, 2' % (sr(S_X0), sr(S_R)))
    g.e('s_add_u32 %s, %s, %s' % (sr(S_X0), sr(S_X0), sr(S_WAVE)))
    g.e('s_lshl_b32 %s, %s, 16' % (sr(S_X0), sr(S_X0)))
    g.e('s_lshl_b32 %s, %s, 8' % (sr(S_X1), sr(S_H)))
    g.e('s_add_u32 %s, %s, %s' % (sr(S_X0), sr(S_X0), sr(S_X1)))
    g.e('s_add_u32 %s, %s, %d' % (sr(S_X0), sr(S_X0), out_col * 2))
    for tt in range(4):
        epi_ct_store(g, tt, t, SRD_OUT, sr(S_X0), lambda gq, tt=tt: tt * 64 + gq * 16, False)
    g.e('s_branch L_next')


def softmax_vals(g, S, C, MX, l2e_sgpr, xl, n_round2_scale=None):
    n = len(S)
    MT = MX + 1

    def rnd():
        for i in range(n // 2):
            c = C[i % len(C)]
            g.e('v_cvt_pk_bf16_f32 v%d, v%d, v%d' % (c, S[2 * i], S[2 * i + 1]))
            g.e('v_lshlrev_b32 v%d, 16, v%d' % (S[2 * i], c))
            g.e('v_and_b32 v%d, 0xffff0000, v%d' % (S[2 * i + 1], c))
    rnd()
    if n_round2_scale is not None:
        for i in range(n // 2):
            g.e('v_pk_mul_f32 %s, %s, %s' % (vr(S[2 * i], 2), vr(S[2 * i], 2), sr(n_round2_scale, 2)))
        rnd()


def softmax_rest(g, S, C, MX, l2e_sgpr, xl):
    n = len(S)
    MT = MX + 1
    g.e('v_max_f32 v%d, v%d, v%d' % (MX, S[0], S[1]))
    for i in range(2, n, 2):
        g.e('v_max3_f32 v%d, v%d, v%d, v%d' % (MX, MX, S[i], S[i + 1]))
    for sw in xl:
        g.e('v_mov_b32 v%d, v%d' % (MT, MX))
        g.nop(2)
        g.e('%s v%d, v%d' % (sw, MT, MX))
        g.nop(1)
        g.e('v_max_f32 v%d, v%d, v%d' % (MX, MX, MT))
    g.e('v_mov_b32 v%d, v%d' % (MT, MX))
    for i in range(n // 2):
        g.e('v_pk_add_f32 %s, %s, %s neg_lo:[0,1] neg_hi:[0,1]' % (vr(S[2 * i], 2), vr(S[2 * i], 2), vr(MX, 2)))
        g.e('v_pk_mul_f32 %s, %s, %s' % (vr(S[2 * i], 2), vr(S[2 * i], 2), sr(l2e_sgpr, 2)))
    for i in range(n):
        g.e('v_exp_f32 v%d, v%d' % (S[i], S[i]))
    g.nop(1)
    g.e('v_pk_add_f32 %s, %s, %s' % (vr(C[0], 2), vr(S[0], 2), vr(S[2], 2)))
    for i in range(2, n // 2):
        g.e('v_pk_add_f32 %s, %s, %s' % (vr(C[0], 2), vr(C[0], 2), vr(S[2 * i], 2)))
    g.e('v_add_f32 v%d, v%d, v%d' % (MX, C[0], C[0] + 1))
    for sw in xl:
        g.e('v_mov_b32 v%d, v%d' % (MT, MX))
        g.nop(2)
        g.e('%s v%d, v%d' % (sw, MT, MX))
        g.nop(1)
        g.e('v_add_f32 v%d, v%d, v%d' % (MX, MX, MT))
    g.e('v_rcp_f32 v%d, v%d' % (MX, MX))
    g.nop(1)
    g.e('v_mov_b32 v%d, v%d' % (MT, MX))
    for i in range(n // 2):
        g.e('v_pk_mul_f32 %s, %s, %s' % (vr(S[2 * i], 2), vr(S[2 * i], 2), vr(MX, 2)))


def task_aattn(g):
    g.label('L_t_aattn')
    g.e('s_sub_u32 %s, %s, %d' % (sr(S_X0), sr(S_TASK), T_AA))
    g.e('s_lshr_b32 %s, %s, 2' % (sr(S_AOFF), sr(S_X0)))
    g.e('s_and_b32 %s, %s, 3' % (sr(S_H), sr(S_X0)))
    g.e('s_lshr_b32 %s, %s, 1' % (sr(S_R), sr(S_AOFF)))
    l = wave0_begin(g)
    for back in range(3):
        g.e('s_sub_u32 %s, %s, %d' % (sr(S_X0), sr(S_R), back))
        g.e('s_max_i32 %s, %s, 0' % (sr(S_X0), sr(S_X0)))
        g.e('s_lshl_b32 %s, %s, 7' % (sr(S_X0), sr(S_X0)))
        g.e('s_add_u32 %s, %s, 0x%x' % (sr(S_X0), sr(S_X0), WS_FLAGS + CA_OFF))
        wait_ge(g, None, '4', 8)
    g.label(l)
    g.e('s_barrier')
    L = W_LANE
    S_QT, S_A, S_HH = S_BOFF, S_BOFF + 1, S_BOFF + 2
    g.e('s_lshl_b32 %s, %s, 2' % (sr(S_QT), sr(S_AOFF)))
    g.e('s_add_u32 %s, %s, %s' % (sr(S_QT), sr(S_QT), sr(S_WAVE)))
    g.e('s_lshr_b32 %s, %s, 1' % (sr(S_A), sr(S_QT)))
    VQK, VL16, VD, VO = 2, 3, 4, 5
    g.e('v_and_b32 v6, 15, v%d' % L)
    g.e('v_lshrrev_b32 v7, 4, v%d' % L)
    g.e('v_lshlrev_b32 v%d, 5, v6' % VQK)
    g.e('v_lshl_add_u32 v%d, v7, 3, v%d' % (VQK, VQK))
    g.e('v_lshlrev_b32 v%d, 4, v%d' % (VL16, L))
    g.e('s_and_b32 %s, %s, 1' % (sr(S_X0), sr(S_QT)))
    g.e('s_lshl_b32 %s, %s, 4' % (sr(S_X0), sr(S_X0)))
    g.e('s_add_u32 %s, %s, 256' % (sr(S_X0), sr(S_X0)))
    g.e('v_add_u32 v%d, %s, v6' % (VD, sr(S_X0)))
    g.e('v_lshlrev_b32 v8, 2, v7')
    g.e('v_sub_u32 v%d, v%d, v8' % (VD, VD))
    g.e('v_lshlrev_b32 v%d, 10, v6' % VO)
    g.e('v_lshl_add_u32 v%d, v7, 3, v%d' % (VO, VO))
    g.e('s_mov_b32 %s, 0x3eb8aa3b' % sr(S_L2E))
    g.e('s_mov_b32 %s, 0x3eb8aa3b' % sr(S_L2E + 1))
    g.e('s_lshl_b32 %s, %s, 3' % (sr(S_HH), sr(S_H)))
    g.e('s_mov_b32 %s, 0' % sr(S_KC))
    QF, KF, VF, SC, CB, PF, OC = 10, 12, 48, 84, 156, 192, 228
    NEG = 232
    lp = g.newlabel('L_aa')
    g.label(lp)
    g.e('s_lshl_b32 %s, %s, 16' % (sr(S_X0), sr(S_HH)))
    g.e('s_lshl_b32 %s, %s, 9' % (sr(S_X1), sr(S_QT)))
    g.e('s_add_u32 %s, %s, %s' % (sr(S_X1), sr(S_X1), sr(S_X0)))
    g.e('s_add_u32 %s, %s, 0x%x' % (sr(S_X1), sr(S_X1), WS_QA))
    g.e('buffer_load_dwordx2 %s, v%d, %s, %s offen sc1' % (vr(QF, 2), VQK, sr(SRD_WS, 4), sr(S_X1)))
    for b in range(9):
        g.e('s_add_i32 %s, %s, %d' % (sr(S_X1), sr(S_A), b - 8))
        g.e('s_max_i32 %s, %s, 0' % (sr(S_X1), sr(S_X1)))
        g.e('s_lshl_b32 %s, %s, 10' % (sr(S_X1), sr(S_X1)))
        g.e('s_add_u32 %s, %s, %s' % (sr(S_X1), sr(S_X1), sr(S_X0)))
        g.e('s_add_u32 %s, %s, 0x%x' % (sr(S_X2), sr(S_X1), WS_KA))
        g.e('s_add_u32 %s, %s, 0x%x' % (sr(S_X3), sr(S_X1), WS_VA))
        g.e('buffer_load_dwordx2 %s, v%d, %s, %s offen sc1' % (vr(KF + 4 * b, 2), VQK, sr(SRD_WS, 4), sr(S_X2)))
        g.e('buffer_load_dwordx2 %s, v%d, %s, %s offen offset:512 sc1' % (vr(KF + 4 * b + 2, 2), VQK, sr(SRD_WS, 4), sr(S_X2)))
        g.e('buffer_load_dwordx4 %s, v%d, %s, %s offen sc1' % (vr(VF + 4 * b, 4), VL16, sr(SRD_WS, 4), sr(S_X3)))
    for b in range(9):
        g.e('s_add_i32 %s, %s, %d' % (sr(S_X1), sr(S_A), b - 8))
        g.e('s_cmp_lt_i32 %s, 0' % sr(S_X1))
        g.e('s_cselect_b32 %s, 0xf149f2ca, 0' % sr(S_X1))
        for i in range(4):
            g.e('v_mov_b32 v%d, %s' % (CB + 4 * b + i, sr(S_X1)))
    g.e('v_mov_b32 v%d, 0xf149f2ca' % NEG)
    g.e('s_waitcnt vmcnt(0)')
    for b in range(9):
        for T in range(2):
            g.e('v_mfma_f32_16x16x16_bf16 %s, %s, %s, %s' % (vr(SC + 8 * b + 4 * T, 4), vr(KF + 4 * b + 2 * T, 2), vr(QF, 2), vr(CB + 4 * b, 4)))
    g.nop(8)
    S = [SC + i for i in range(72)]
    C = [KF + i for i in range(8)]
    softmax_vals(g, S, C, OC, None, None)
    for b in (0, 8):
        for T in range(2):
            for r in range(4):
                g.e('v_subrev_u32 v%d, %d, v%d' % (OC, 32 * b + 16 * T + r, VD))
                g.e('v_cmp_gt_u32 vcc, 0x100, v%d' % OC)
                g.nop(2)
                g.e('v_cndmask_b32 v%d, v%d, v%d, vcc' % (SC + 8 * b + 4 * T + r, NEG, SC + 8 * b + 4 * T + r))
    softmax_rest(g, S, C, OC, S_L2E, ['v_permlane16_swap_b32', 'v_permlane32_swap_b32'])
    for i in range(36):
        g.e('v_cvt_pk_bf16_f32 v%d, v%d, v%d' % (PF + i, S[2 * i], S[2 * i + 1]))
    g.nop(2)
    for b in range(9):
        g.e('v_mfma_f32_16x16x32_bf16 %s, %s, %s, %s' % (vr(OC, 4), vr(VF + 4 * b, 4), vr(PF + 4 * b, 4), '0' if b == 0 else vr(OC, 4)))
    g.nop(8)
    g.e('v_cvt_pk_bf16_f32 v%d, v%d, v%d' % (OC, OC, OC + 1))
    g.e('v_cvt_pk_bf16_f32 v%d, v%d, v%d' % (OC + 1, OC + 2, OC + 3))
    g.e('s_lshl_b32 %s, %s, 14' % (sr(S_X1), sr(S_QT)))
    g.e('s_lshl_b32 %s, %s, 5' % (sr(S_X2), sr(S_HH)))
    g.e('s_add_u32 %s, %s, %s' % (sr(S_X1), sr(S_X1), sr(S_X2)))
    g.e('s_add_u32 %s, %s, 0x%x' % (sr(S_X1), sr(S_X1), WS_OA))
    g.e('buffer_store_dwordx2 %s, v%d, %s, %s offen sc1' % (vr(OC, 2), VO, sr(SRD_WS, 4), sr(S_X1)))
    g.e('s_add_u32 %s, %s, 1' % (sr(S_HH), sr(S_HH)))
    g.e('s_add_u32 %s, %s, 1' % (sr(S_KC), sr(S_KC)))
    g.e('s_cmp_lt_u32 %s, 8' % sr(S_KC))
    g.nop(2)
    g.e('s_cbranch_scc1 %s' % lp)
    g.e('s_lshl_b32 %s, %s, 7' % (sr(S_X0), sr(S_R)))
    g.e('s_add_u32 %s, %s, 0x%x' % (sr(S_X0), sr(S_X0), WS_FLAGS + CB_OFF))
    signal_add(g)
    g.e('s_branch L_next_regs')


def task_battn(g):
    g.label('L_t_battn')
    S_SEGI, S_HD = S_AOFF, S_BOFF
    g.e('s_lshl_b32 %s, %s, 2' % (sr(S_HD), sr(S_H)))
    g.e('s_add_u32 %s, %s, %s' % (sr(S_HD), sr(S_HD), sr(S_WAVE)))
    g.e('s_lshl_b32 %s, %s, 7' % (sr(S_X0), sr(S_HD)))
    g.e('s_lshl_b32 %s, %s, 2' % (sr(S_X1), sr(S_R)))
    g.e('s_add_u32 %s, %s, %s' % (sr(S_X0), sr(S_X0), sr(S_X1)))
    g.e('s_add_u32 %s, %s, 0x%x' % (sr(S_X0), sr(S_X0), WS_FLAGS + F1_OFF))
    wait_ge(g, None, '1', 16)
    l = g.newlabel('L_wait')
    g.e('s_lshl_b32 %s, %s, 7' % (sr(S_X0), sr(S_HD)))
    g.e('s_add_u32 %s, %s, 0x%x' % (sr(S_X0), sr(S_X0), WS_FLAGS + F2_OFF))
    g.e('v_mov_b32 v%d, 0' % W_T)
    g.label(l)
    g.guard()
    g.e('buffer_load_dwordx4 %s, v%d, %s, %s offen sc1' % (vr(W_T + 4, 4), W_T, sr(SRD_WS, 4), sr(S_X0)))
    g.e('s_waitcnt vmcnt(0)')
    g.e('v_min3_u32 v%d, v%d, v%d, v%d' % (W_T + 4, W_T + 4, W_T + 5, W_T + 6))
    g.e('v_min_u32 v%d, v%d, v%d' % (W_T + 4, W_T + 4, W_T + 7))
    g.nop(1)
    g.e('v_readfirstlane_b32 %s, v%d' % (sr(S_X1), W_T + 4))
    g.nop(3)
    g.e('s_cmp_gt_u32 %s, %s' % (sr(S_X1), sr(S_SEGI)))
    d = g.newlabel('L_waitd')
    g.e('s_cbranch_scc1 %s' % d)
    g.e('s_sleep 16')
    g.e('s_branch %s' % l)
    g.label(d)
    L = W_LANE
    VK, VKM, VV, VVM, VO, VD = 2, 3, 4, 5, 6, 7
    g.e('v_bfe_u32 v8, v%d, 4, 1' % L)
    g.e('v_lshrrev_b32 v9, 5, v%d' % L)
    g.e('v_and_b32 v10, 15, v%d' % L)
    g.e('v_lshlrev_b32 v%d, 12, v8' % VK)
    g.e('v_lshl_add_u32 v%d, v9, 8, v%d' % (VK, VK))
    g.e('v_lshl_add_u32 v%d, v10, 4, v%d' % (VK, VK))
    g.e('v_and_b32 v11, 7, v%d' % L)
    g.e('v_lshlrev_b32 v%d, 7, v9' % VKM)
    g.e('v_lshl_add_u32 v%d, v11, 4, v%d' % (VKM, VKM))
    g.e('v_lshlrev_b32 v%d, 10, v8' % VV)
    g.e('v_lshl_add_u32 v%d, v9, 8, v%d' % (VV, VV))
    g.e('v_lshl_add_u32 v%d, v10, 4, v%d' % (VV, VV))
    g.e('v_and_b32 v11, 31, v%d' % L)
    g.e('v_lshlrev_b32 v%d, 4, v11' % VVM)
    g.e('v_lshl_add_u32 v%d, v9, 3, v%d' % (VVM, VVM))
    g.e('v_lshlrev_b32 v%d, 13, v11' % VO)
    g.e('v_lshl_add_u32 v%d, v9, 3, v%d' % (VO, VO))
    g.e('v_lshlrev_b32 v12, 2, v9')
    g.e('v_sub_u32 v%d, v11, v12' % VD)
    g.e('s_lshl_b32 %s, %s, 5' % (sr(S_X0), sr(S_SEGI)))
    g.e('s_add_u32 %s, %s, %s' % (sr(S_X0), sr(S_X0), sr(S_HD)))
    g.e('s_lshl_b32 %s, %s, 13' % (sr(S_X1), sr(S_X0)))
    g.e('s_lshl_b32 %s, %s, 11' % (sr(S_X0), sr(S_X0)))
    QF, KF, KM, VF, VMF = 16, 48, 80, 112, 144
    SX, SMm, PF, OC = 160, 176, 192, 208
    g.e('s_add_u32 %s, %s, 0x%x' % (sr(S_X2), sr(S_X1), WS_QX))
    g.e('s_add_u32 %s, %s, 0x%x' % (sr(S_X3), sr(S_X1), WS_KX))
    for ks in range(8):
        o = (ks >> 1) * 1024 + (ks & 1) * 512
        g.e('buffer_load_dwordx4 %s, v%d, %s, %s offen offset:%d sc1' % (vr(QF + 4 * ks, 4), VK, sr(SRD_WS, 4), sr(S_X2), o))
        g.e('buffer_load_dwordx4 %s, v%d, %s, %s offen offset:%d sc1' % (vr(KF + 4 * ks, 4), VK, sr(SRD_WS, 4), sr(S_X3), o))
    g.e('s_add_u32 %s, %s, 0x%x' % (sr(S_X2), sr(S_X0), WS_KM))
    for ks in range(8):
        g.e('buffer_load_dwordx4 %s, v%d, %s, %s offen offset:%d sc1' % (vr(KM + 4 * ks, 4), VKM, sr(SRD_WS, 4), sr(S_X2), ks * 256))
    g.e('s_add_u32 %s, %s, 0x%x' % (sr(S_X2), sr(S_X1), WS_VX))
    g.e('s_add_u32 %s, %s, 4096' % (sr(S_X3), sr(S_X2)))
    for ft in range(4):
        so = sr(S_X2) if ft < 2 else sr(S_X3)
        for ks in range(2):
            for e in range(2):
                g.e('buffer_load_dwordx2 %s, v%d, %s, %s offen offset:%d sc1' % (vr(VF + 8 * ft + 4 * ks + 2 * e, 2), VV, sr(SRD_WS, 4), so, (ft & 1) * 2048 + e * 512 + ks * 8))
    g.e('s_add_u32 %s, %s, 0x%x' % (sr(S_X2), sr(S_X0), WS_VM))
    for ft in range(4):
        g.e('buffer_load_dwordx2 %s, v%d, %s, %s offen offset:%d sc1' % (vr(VMF + 4 * ft, 2), VVM, sr(SRD_WS, 4), sr(S_X2), ft * 512))
        g.e('v_mov_b64 %s, 0' % vr(VMF + 4 * ft + 2, 2))
    g.e('s_mov_b32 %s, 0x3db504f3' % sr(S_SC))
    g.e('s_mov_b32 %s, 0x3db504f3' % sr(S_SC + 1))
    g.e('s_mov_b32 %s, 0x3fb8aa3b' % sr(S_L2E))
    g.e('s_mov_b32 %s, 0x3fb8aa3b' % sr(S_L2E + 1))
    g.e('s_waitcnt vmcnt(20)')
    for ks in range(8):
        g.e('v_mfma_f32_32x32x16_bf16 %s, %s, %s, %s' % (vr(SX, 16), vr(KF + 4 * ks, 4), vr(QF + 4 * ks, 4), '0' if ks == 0 else vr(SX, 16)))
        g.e('v_mfma_f32_32x32x16_bf16 %s, %s, %s, %s' % (vr(SMm, 16), vr(KM + 4 * ks, 4), vr(QF + 4 * ks, 4), '0' if ks == 0 else vr(SMm, 16)))
    g.nop(16)
    S = [SX + i for i in range(16)] + [SMm + i for i in range(4)]
    C = [QF + i for i in range(8)]
    MX = QF + 8
    softmax_vals(g, S, C, MX, None, None, S_SC)
    g.e('v_mov_b32 v%d, 0xf149f2ca' % (QF + 10))
    for r in range(16):
        key = 8 * (r >> 2) + (r & 3)
        g.e('v_cmp_le_i32 vcc, %d, v%d' % (key, VD))
        g.nop(2)
        g.e('v_cndmask_b32 v%d, v%d, v%d, vcc' % (SX + r, QF + 10, SX + r))
    softmax_rest(g, S, C, MX, S_L2E, ['v_permlane32_swap_b32'])
    for i in range(10):
        g.e('v_cvt_pk_bf16_f32 v%d, v%d, v%d' % (PF + i, S[2 * i], S[2 * i + 1]))
    g.e('v_mov_b64 %s, 0' % vr(PF + 10, 2))
    g.e('s_waitcnt vmcnt(0)')
    g.e('s_lshl_b32 %s, %s, 18' % (sr(S_X0), sr(S_SEGI)))
    g.e('s_lshl_b32 %s, %s, 8' % (sr(S_X1), sr(S_HD)))
    g.e('s_add_u32 %s, %s, %s' % (sr(S_X0), sr(S_X0), sr(S_X1)))
    g.e('s_add_u32 %s, %s, 0x%x' % (sr(S_X0), sr(S_X0), WS_OX))
    OCS = [OC, OC + 16, KF, KF + 16]
    for ft in range(4):
        oc = vr(OCS[ft], 16)
        g.e('v_mfma_f32_32x32x16_bf16 %s, %s, %s, 0' % (oc, vr(VF + 8 * ft, 4), vr(PF, 4)))
        g.e('v_mfma_f32_32x32x16_bf16 %s, %s, %s, %s' % (oc, vr(VF + 8 * ft + 4, 4), vr(PF + 4, 4), oc))
        g.e('v_mfma_f32_32x32x16_bf16 %s, %s, %s, %s' % (oc, vr(VMF + 4 * ft, 4), vr(PF + 8, 4), oc))
    g.nop(16)
    for ft in range(4):
        a = OCS[ft]
        for gq in range(4):
            g.e('v_cvt_pk_bf16_f32 v%d, v%d, v%d' % (a + 4 * gq, a + 4 * gq, a + 4 * gq + 1))
            g.e('v_cvt_pk_bf16_f32 v%d, v%d, v%d' % (a + 4 * gq + 1, a + 4 * gq + 2, a + 4 * gq + 3))
        for gq in range(4):
            g.e('buffer_store_dwordx2 %s, v%d, %s, %s offen offset:%d sc1' % (vr(a + 4 * gq, 2), VO, sr(SRD_WS, 4), sr(S_X0), ft * 64 + gq * 16))
    g.e('s_lshl_b32 %s, %s, 7' % (sr(S_X0), sr(S_R)))
    g.e('s_add_u32 %s, %s, 0x%x' % (sr(S_X0), sr(S_X0), WS_FLAGS + CO_OFF))
    signal_add(g)
    g.e('s_branch L_next_regs')


def worker(g, opt):
    g.label('L_worker')
    g.e('v_and_b32 v%d, 63, v0' % W_LANE)
    g.e('s_mov_b32 %s, 0' % sr(S_INIT))
    g.label('L_next_regs')
    gemm_consts(g)
    g.label('L_next')
    g.e('s_barrier')
    l = wave0_begin(g)
    g.e('s_mov_b64 exec, 1')
    g.e('v_mov_b32 v%d, 44' % W_T)
    g.e('v_mov_b32 v%d, 1' % (W_T + 1))
    g.e('global_atomic_add v%d, v%d, v%d, %s sc0' % (W_T + 2, W_T, W_T + 1, sr(S_DBG, 2)))
    lw = g.newlabel('L_iw')
    ld = g.newlabel('L_id')
    g.e('s_cmp_lg_u32 %s, 0' % sr(S_INIT))
    g.e('s_cbranch_scc1 %s' % ld)
    g.e('v_mov_b32 v%d, 40' % W_T)
    g.label(lw)
    g.guard()
    g.e('global_load_dword v%d, v%d, %s sc1' % (W_T + 1, W_T, sr(S_DBG, 2)))
    g.e('s_waitcnt vmcnt(0)')
    g.e('v_readfirstlane_b32 %s, v%d' % (sr(S_X0), W_T + 1))
    g.nop(3)
    g.e('s_cmp_lt_u32 %s, 32' % sr(S_X0))
    g.e('s_cbranch_scc1 %s' % lw)
    g.e('s_mov_b32 %s, 1' % sr(S_INIT))
    g.label(ld)
    g.e('s_waitcnt vmcnt(0)')
    g.e('v_mov_b32 v%d, %d' % (W_T, L_MISC))
    g.e('ds_write_b32 v%d, v%d' % (W_T, W_T + 2))
    g.e('s_waitcnt lgkmcnt(0)')
    g.e('s_mov_b64 exec, -1')
    g.label(l)
    g.e('s_barrier')
    g.e('v_mov_b32 v%d, %d' % (W_T, L_MISC))
    g.e('ds_read_b32 v%d, v%d' % (W_T + 1, W_T))
    g.e('s_waitcnt lgkmcnt(0)')
    g.e('v_readfirstlane_b32 %s, v%d' % (sr(S_TASK), W_T + 1))
    g.nop(3)
    g.e('s_cmp_lt_u32 %s, %d' % (sr(S_TASK), T_AP))
    g.e('s_cbranch_scc1 L_t_bproj')
    g.e('s_cmp_lt_u32 %s, %d' % (sr(S_TASK), T_AA))
    g.e('s_cbranch_scc1 L_t_aproj')
    g.e('s_cmp_lt_u32 %s, %d' % (sr(S_TASK), T_AO))
    g.e('s_cbranch_scc1 L_t_aattn')
    g.e('s_cmp_ge_u32 %s, %d' % (sr(S_TASK), T_END))
    g.e('s_cbranch_scc1 L_exit')
    g.e('s_cmp_ge_u32 %s, %d' % (sr(S_TASK), T_BT))
    g.e('s_cbranch_scc1 L_t_bt')
    g.e('s_sub_u32 %s, %s, %d' % (sr(S_X0), sr(S_TASK), T_AO))
    g.e('s_lshr_b32 %s, %s, 2' % (sr(S_R), sr(S_X0)))
    g.e('s_and_b32 %s, %s, 3' % (sr(S_H), sr(S_X0)))
    g.e('s_branch L_t_aout')
    g.label('L_t_bt')
    g.e('s_sub_u32 %s, %s, %d' % (sr(S_X0), sr(S_TASK), T_BT))
    g.e('s_mul_i32 %s, %s, 1821' % (sr(S_R), sr(S_X0)))
    g.e('s_lshr_b32 %s, %s, 16' % (sr(S_R), sr(S_R)))
    g.e('s_mul_i32 %s, %s, 36' % (sr(S_X1), sr(S_R)))
    g.e('s_sub_u32 %s, %s, %s' % (sr(S_X0), sr(S_X0), sr(S_X1)))
    g.e('s_cmp_ge_u32 %s, 32' % sr(S_X0))
    lb = g.newlabel('L_bo')
    g.e('s_cbranch_scc1 %s' % lb)
    g.e('s_lshr_b32 %s, %s, 3' % (sr(S_X1), sr(S_X0)))
    g.e('s_lshl_b32 %s, %s, 2' % (sr(S_AOFF), sr(S_R)))
    g.e('s_add_u32 %s, %s, %s' % (sr(S_AOFF), sr(S_AOFF), sr(S_X1)))
    g.e('s_and_b32 %s, %s, 7' % (sr(S_H), sr(S_X0)))
    g.e('s_branch L_t_battn')
    g.label(lb)
    g.e('s_sub_u32 %s, %s, 32' % (sr(S_H), sr(S_X0)))
    g.e('s_branch L_t_bout')
    task_bproj(g)
    task_aproj(g)
    task_aattn(g)
    task_out(g, 'ao', 'L_t_aout', WS_OA, 1024, 8, S_AWO, 512 * 1024, 0, CB_OFF, 8)
    task_battn(g)
    task_out(g, 'bo', 'L_t_bout', WS_OX, 8192, 64, S_WO, 4 << 20, 512, CO_OFF, 32)


for x in range(576):
    assert (x * 1821) >> 16 == x // 36
```

```python
import sys

NAME = 'concat_heads__sliding_block__memory_aug_recurrent_mem_tr__prompt'

WS_FLAGS = 0x0000000
WS_M2 = 0x0020000
WS_PB = 0x0100000
PB_STRIDE = 4224
WS_KX = 0x1000000
WS_VX = 0x2000000
WS_QX = 0x3000000
WS_KM = 0x4000000
WS_VM = 0x4400000
WS_OX = 0x5000000
WS_QKVA = 0x6000000
WS_TS = 0x7000000
WS_SIZE = 268435456
F1_OFF = 0
F2_OFF = 4096

L_WLV = 0
L_WLO = 65536
L_KX = 131072
L_VX = 139264
L_MST = 147456
L_QK = 155648
L_O = 159744
L_MISC = 161792
LDS_SIZE = 163840
RING = [65536, 98304, 131072]

OOB = 0x7FFFFF00


class G:
    def __init__(self):
        self.lines = []
        self.uid = 0

    def e(self, s):
        self.lines.append('    ' + s)

    def c(self, s):
        self.lines.append('    ; ' + s)

    def label(self, l):
        self.lines.append(l + ':')

    def newlabel(self, p='L'):
        self.uid += 1
        return '%s_%d' % (p, self.uid)

    def nop(self, n):
        while n > 0:
            k = min(n, 16)
            self.e('s_nop %d' % (k - 1))
            n -= k

    def guard(self):
        self.e('s_add_u32 s101, s101, 1')
        self.e('s_cmp_gt_u32 s101, 0x200000')
        self.e('s_cbranch_scc1 L_exit')

    def text(self):
        return '\n'.join(self.lines) + '\n'


def vr(a, n=1):
    return 'v%d' % a if n == 1 else 'v[%d:%d]' % (a, a + n - 1)


def ar(a, n=1):
    return 'a%d' % a if n == 1 else 'a[%d:%d]' % (a, a + n - 1)


def sr(a, n=1):
    return 's%d' % a if n == 1 else 's[%d:%d]' % (a, a + n - 1)


S_AX, S_AWQKV, S_AWO, S_BX, S_MEM0, S_WQ, S_WK, S_WV, S_WO, S_SEG, S_OUT, S_DBG, S_WS = 4, 6, 8, 10, 12, 14, 16, 18, 20, 22, 24, 26, 28
SRD_WS = 32
SRD_A = 36
SRD_B = 40
S_XCC = 44
S_WAVE = 45
S_RANK = 46
S_ROLE = 47
S_T0, S_T1, S_T2, S_T3 = 48, 49, 50, 51
S_STEP = 52
S_PHASE = 53
S_PL = 54
S_U1, S_U2, S_U3 = 55, 56, 57
S_M2R = 58
S_M2W = 59
S_M2Z = 60
S_KXO = 61
S_KMO = 62
S_SC = 64
S_L2E = 66
S_M0KX = 68
S_M0VX = 69
S_F1 = 70
S_F2 = 71
S_TS = 72
S_TSI = 74

V_L16, V_WL, V_WO, V_HI, V_HIW, V_AF, V_QW, V_QR, V_KR, V_OW, V_PS, V_MS, V_KS, V_VS, V_WM, V_IDX, V_ONES, V_WD, V_FD = range(1, 20)
ACC = 20
AR = 44
TMP = 60
BUF = 64
V_WV0 = 128
V_WOL = 192
A_WQ = 0
A_WK = 128


def make_srd(g, srd, ptr, nbytes):
    g.e('s_mov_b32 %s, %s' % (sr(srd), sr(ptr)))
    g.e('s_and_b32 %s, %s, 0xffff' % (sr(srd + 1), sr(ptr + 1)))
    g.e('s_mov_b32 %s, 0x%x' % (sr(srd + 2), nbytes))
    g.e('s_mov_b32 %s, 0x00020000' % sr(srd + 3))


def prologue(g, opt):
    g.e('s_cmp_ge_u32 s2, 256')
    g.e('s_cbranch_scc1 L_exit')
    g.e('s_mov_b32 s101, 0')
    if opt.get('rt'):
        g.e('s_memrealtime s[74:75]')
    g.e('s_load_dwordx16 s[4:19], s[0:1], 0')
    g.e('s_load_dwordx8 s[20:27], s[0:1], 64')
    g.e('s_load_dwordx2 s[28:29], s[0:1], 96')
    g.e('s_getreg_b32 %s, hwreg(HW_REG_XCC_ID)' % sr(S_XCC))
    g.e('s_and_b32 %s, %s, 7' % (sr(S_XCC), sr(S_XCC)))
    g.e('v_lshrrev_b32 v1, 6, v0')
    g.nop(1)
    g.e('v_readfirstlane_b32 %s, v1' % sr(S_WAVE))
    g.e('s_waitcnt lgkmcnt(0)')
    make_srd(g, SRD_WS, S_WS, WS_SIZE)
    g.e('s_cmp_lg_u32 %s, 0' % sr(S_WAVE))
    g.e('s_cbranch_scc1 L_elect_done')
    g.e('s_mov_b64 s[76:77], exec')
    g.e('s_mov_b64 exec, 1')
    g.e('s_lshl_b32 %s, %s, 2' % (sr(S_T0), sr(S_XCC)))
    g.e('v_mov_b32 v2, %s' % sr(S_T0))
    g.e('v_mov_b32 v3, 1')
    g.e('global_atomic_add v4, v2, v3, %s sc0' % sr(S_DBG, 2))
    g.e('s_waitcnt vmcnt(0)')
    g.e('v_readfirstlane_b32 %s, v4' % sr(S_RANK))
    g.nop(3)
    g.e('s_cmp_lg_u32 %s, 31' % sr(S_RANK))
    g.e('s_cbranch_scc1 L_elect_wait')
    g.e('s_add_u32 %s, %s, 1' % (sr(S_T0), sr(S_XCC)))
    g.e('v_mov_b32 v4, %s' % sr(S_T0))
    g.e('v_mov_b32 v5, 0')
    g.e('v_mov_b32 v2, 64')
    g.e('global_atomic_cmpswap v2, v[4:5], %s' % sr(S_DBG, 2))
    g.e('s_waitcnt vmcnt(0)')
    g.label('L_elect_wait')
    g.e('v_mov_b32 v2, 64')
    g.label('L_elect_spin')
    g.guard()
    g.e('global_load_dword v4, v2, %s sc1' % sr(S_DBG, 2))
    g.e('s_waitcnt vmcnt(0)')
    g.e('v_readfirstlane_b32 %s, v4' % sr(S_T0))
    g.nop(3)
    g.e('s_cmp_eq_u32 %s, 0' % sr(S_T0))
    g.e('s_cbranch_scc1 L_elect_spin')
    g.e('s_sub_u32 %s, %s, 1' % (sr(S_T0), sr(S_T0)))
    g.e('s_mov_b32 %s, 1' % sr(S_ROLE))
    g.e('s_cmp_lg_u32 %s, %s' % (sr(S_T0), sr(S_XCC)))
    g.e('s_cbranch_scc1 L_elect_worker')
    g.e('s_cmp_lt_u32 %s, 32' % sr(S_RANK))
    g.e('s_cbranch_scc1 L_elect_pub')
    g.label('L_elect_worker')
    g.e('s_mov_b32 %s, 0' % sr(S_ROLE))
    g.e('s_cmp_gt_u32 %s, %s' % (sr(S_XCC), sr(S_T0)))
    g.e('s_cselect_b32 %s, 1, 0' % sr(S_T1))
    g.e('s_sub_u32 %s, %s, %s' % (sr(S_RANK), sr(S_XCC), sr(S_T1)))
    g.e('s_min_u32 %s, %s, 6' % (sr(S_RANK), sr(S_RANK)))
    g.label('L_elect_pub')
    g.e('v_mov_b32 v2, %d' % L_MISC)
    g.e('v_mov_b32 v4, %s' % sr(S_ROLE))
    g.e('v_mov_b32 v5, %s' % sr(S_RANK))
    g.e('ds_write_b64 v2, v[4:5]')
    g.e('s_waitcnt lgkmcnt(0)')
    g.e('s_mov_b64 exec, s[76:77]')
    g.label('L_elect_done')
    g.e('s_barrier')
    g.e('v_mov_b32 v2, %d' % L_MISC)
    g.e('ds_read_b64 v[4:5], v2')
    g.e('s_waitcnt lgkmcnt(0)')
    g.e('v_readfirstlane_b32 %s, v4' % sr(S_ROLE))
    g.e('v_readfirstlane_b32 %s, v5' % sr(S_RANK))
    g.nop(3)
    g.e('s_barrier')
    g.e('s_cmp_eq_u32 %s, 0' % sr(S_ROLE))
    g.e('s_cbranch_scc1 L_worker')


TS_NAMES = []


def ts(g, opt, name, fine=False):
    if not opt.get('ts') or (fine and not opt.get('fine')):
        return
    idx = len(TS_NAMES)
    TS_NAMES.append(str(name))
    g.e('s_memtime %s' % sr(S_TS, 2))
    g.e('s_waitcnt lgkmcnt(0)')
    g.e('v_writelane_b32 v%d, %s, %d' % (V_FD, sr(S_TS), idx))


def ts_flush(g, opt):
    if not opt.get('ts'):
        return
    g.e('v_writelane_b32 v%d, s80, 62' % V_FD)
    g.e('v_writelane_b32 v%d, s81, 63' % V_FD)
    g.e('s_lshl_b32 %s, %s, 2' % (sr(S_T0), sr(S_RANK)))
    g.e('s_add_u32 %s, %s, %s' % (sr(S_T0), sr(S_T0), sr(S_WAVE)))
    g.e('s_lshl_b32 %s, %s, 6' % (sr(S_T0), sr(S_T0)))
    g.e('s_add_u32 %s, %s, %s' % (sr(S_T0), sr(S_T0), sr(S_STEP)))
    g.e('s_lshl_b32 %s, %s, 8' % (sr(S_T0), sr(S_T0)))
    g.e('s_add_u32 %s, %s, 0x%x' % (sr(S_T0), sr(S_T0), WS_TS))
    g.e('v_lshrrev_b32 v%d, 2, v%d' % (TMP, V_L16))
    g.e('buffer_store_dword v%d, v%d, %s, %s offen' % (V_FD, TMP, sr(SRD_WS, 4), sr(S_T0)))


def chain_setup(g, opt):
    W = sr(S_WAVE)
    H = sr(S_RANK)
    g.e('v_and_b32 v20, 63, v0')
    g.e('v_and_b32 v21, 15, v0')
    g.e('v_bfe_u32 v22, v0, 4, 2')
    g.e('v_lshlrev_b32 v%d, 4, v20' % V_L16)
    g.e('s_lshl_b32 %s, %s, 14' % (sr(S_T0), W))
    g.e('v_add_u32 v%d, %s, v%d' % (V_WL, sr(S_T0), V_L16))
    g.e('v_add_u32 v%d, 0x%x, v%d' % (V_WO, L_WLO, V_WL))
    g.e('v_add_u32 v%d, 0x%x, v%d' % (V_HI, L_KX, V_L16))
    g.e('s_lshl_b32 %s, %s, 11' % (sr(S_T0), W))
    g.e('v_add_u32 v%d, %s, v%d' % (V_HIW, sr(S_T0), V_HI))
    g.e('v_lshlrev_b32 v23, 8, v22')
    g.e('v_and_b32 v24, 1, v20')
    g.e('v_lshl_add_u32 v23, v24, 7, v23')
    g.e('v_lshrrev_b32 v24, 1, v21')
    g.e('v_lshl_add_u32 v23, v24, 4, v23')
    g.e('v_add_u32 v%d, 0x%x, v23' % (V_AF, L_MST))
    g.e('v_lshrrev_b32 v23, 3, v21')
    g.e('v_lshlrev_b32 v23, 7, v23')
    g.e('v_lshl_add_u32 v23, v22, 5, v23')
    g.e('v_and_b32 v24, 7, v21')
    g.e('v_lshl_add_u32 v23, v24, 1, v23')
    g.e('s_lshl_b32 %s, %s, 9' % (sr(S_T0), W))
    g.e('s_add_u32 %s, %s, 0x%x' % (sr(S_T1), sr(S_T0), L_QK))
    g.e('v_add_u32 v%d, %s, v23' % (V_QW, sr(S_T1)))
    g.e('v_lshlrev_b32 v23, 7, v22')
    g.e('v_lshl_add_u32 v25, v24, 4, v23')
    g.e('v_add_u32 v%d, 0x%x, v25' % (V_QR, L_QK))
    g.e('v_lshrrev_b32 v24, 2, v21')
    g.e('v_lshlrev_b32 v24, 1, v24')
    g.e('v_and_b32 v25, 1, v21')
    g.e('v_add_u32 v24, v24, v25')
    g.e('v_lshl_add_u32 v25, v24, 4, v23')
    g.e('v_add_u32 v%d, 0x%x, v25' % (V_KR, L_QK + 2048))
    g.e('v_add_u32 v25, %s, v25' % sr(S_T0))
    g.e('v_and_b32 v26, 2, v21')
    g.e('v_cmp_eq_u32 vcc, 0, v26')
    g.e('v_mov_b32 v26, 0x%x' % OOB)
    g.nop(1)
    g.e('v_cndmask_b32 v%d, v26, v25, vcc' % V_KS)
    g.e('v_lshrrev_b32 v23, 1, v22')
    g.e('v_lshlrev_b32 v23, 7, v23')
    g.e('v_lshl_add_u32 v23, v21, 4, v23')
    g.e('v_and_b32 v24, 1, v22')
    g.e('v_lshl_add_u32 v23, v24, 3, v23')
    g.e('s_add_u32 %s, %s, 0x%x' % (sr(S_T1), sr(S_T0), L_O))
    g.e('v_add_u32 v23, %s, v23' % sr(S_T1))
    g.e('v_lshlrev_b32 v24, 3, v20')
    g.e('v_add_u32 v24, 0x%x, v24' % (L_MISC + 1024))
    g.e('v_cmp_gt_u32 vcc, 8, v21')
    g.nop(2)
    g.e('v_cndmask_b32 v%d, v24, v23, vcc' % V_OW)
    g.e('v_lshrrev_b32 v23, 1, v21')
    g.e('s_lshl_b32 %s, %s, 5' % (sr(S_T1), W))
    g.e('v_add_u32 v23, %s, v23' % sr(S_T1))
    g.e('v_mul_u32_u24 v23, %d, v23' % PB_STRIDE)
    g.e('v_and_b32 v24, 1, v21')
    g.e('v_lshl_add_u32 v24, v24, 2, v22')
    g.e('v_lshl_add_u32 v23, v24, 4, v23')
    g.e('s_lshl_b32 %s, %s, 7' % (sr(S_T1), H))
    g.e('s_add_u32 %s, %s, 0x%x' % (sr(S_T1), sr(S_T1), WS_PB))
    g.e('v_add_u32 v%d, %s, v23' % (V_PS, sr(S_T1)))
    for u, s in ((1, S_U1), (2, S_U2), (3, S_U3)):
        g.e('s_mov_b32 %s, %d' % (sr(s), u * 8 * PB_STRIDE))
    g.e('s_lshl_b32 %s, %s, 2' % (sr(S_T1), H))
    g.e('s_add_u32 %s, %s, %s' % (sr(S_T1), sr(S_T1), W))
    g.e('s_mul_i32 %s, %s, %d' % (sr(S_PL), sr(S_T1), PB_STRIDE))
    g.e('s_add_u32 %s, %s, 0x%x' % (sr(S_PL), sr(S_PL), WS_PB))
    g.e('s_lshr_b32 %s, %s, 1' % (sr(S_T2), sr(S_T1)))
    g.e('s_lshl_b32 %s, %s, 7' % (sr(S_T2), sr(S_T2)))
    g.e('s_and_b32 %s, %s, 1' % (sr(S_T3), sr(S_T1)))
    g.e('s_lshl_b32 %s, %s, 3' % (sr(S_T3), sr(S_T3)))
    g.e('s_add_u32 %s, %s, %s' % (sr(S_T2), sr(S_T2), sr(S_T3)))
    g.e('v_and_b32 v23, 3, v20')
    g.e('v_lshlrev_b32 v23, 1, v23')
    g.e('v_lshrrev_b32 v24, 5, v20')
    g.e('v_add_u32 v23, v23, v24')
    g.e('v_lshlrev_b32 v23, 4, v23')
    g.e('v_bfe_u32 v24, v20, 2, 1')
    g.e('v_lshl_add_u32 v23, v24, 2, v23')
    g.e('v_add_u32 v23, %s, v23' % sr(S_T2))
    g.e('v_and_b32 v24, 24, v20')
    g.e('v_cmp_eq_u32 vcc, 0, v24')
    g.e('v_mov_b32 v26, 0x%x' % OOB)
    g.nop(1)
    g.e('v_cndmask_b32 v%d, v26, v23, vcc' % V_MS)
    g.e('v_lshlrev_b32 v23, 4, v21')
    g.e('v_lshl_add_u32 v23, v22, 2, v23')
    g.e('v_add_u32 v%d, %s, v23' % (V_VS, sr(S_T0)))
    g.e('v_and_b32 v23, 31, v20')
    g.e('v_lshlrev_b32 v23, 6, v23')
    g.e('v_lshrrev_b32 v24, 5, v20')
    g.e('v_lshl_add_u32 v%d, v24, 24, v23' % V_WM)
    assert WS_VX - WS_KX == 1 << 24
    g.e('v_and_b32 v23, 1, v20')
    g.e('v_mov_b32 v24, 0x4444')
    g.e('v_mov_b32 v25, 0xeeee')
    g.e('v_cmp_eq_u32 vcc, 1, v23')
    g.nop(2)
    g.e('v_cndmask_b32 v%d, v24, v25, vcc' % V_IDX)
    g.e('v_mov_b32 v%d, -1' % V_ONES)
    g.e('s_mov_b32 %s, 0x3db504f3' % sr(S_SC))
    g.e('s_mov_b32 %s, 0x3db504f3' % sr(S_SC + 1))
    g.e('s_mov_b32 %s, 0x3fb8aa3b' % sr(S_L2E))
    g.e('s_mov_b32 %s, 0x3fb8aa3b' % sr(S_L2E + 1))
    g.e('s_lshl_b32 %s, %s, 11' % (sr(S_T1), W))
    g.e('s_add_u32 %s, %s, 0x%x' % (sr(S_M0KX), sr(S_T1), L_KX))
    g.e('s_add_u32 %s, %s, 0x%x' % (sr(S_M0VX), sr(S_T1), L_VX))
    g.e('s_lshl_b32 %s, %s, 13' % (sr(S_T2), H))
    g.e('s_add_u32 %s, %s, %s' % (sr(S_KXO), sr(S_T2), sr(S_T1)))
    g.e('s_add_u32 %s, %s, 0x%x' % (sr(S_KXO), sr(S_KXO), WS_KX))
    g.e('s_lshl_b32 %s, %s, 11' % (sr(S_T2), H))
    g.e('s_add_u32 %s, %s, 0x%x' % (sr(S_KMO), sr(S_T2), WS_KM))
    g.e('s_lshl_b32 %s, %s, 7' % (sr(S_T2), H))
    g.e('s_add_u32 %s, %s, 0x%x' % (sr(S_F1), sr(S_T2), WS_FLAGS + F1_OFF))
    g.e('s_lshl_b32 %s, %s, 2' % (sr(S_T3), W))
    g.e('s_add_u32 %s, %s, %s' % (sr(S_F2), sr(S_T2), sr(S_T3)))
    g.e('s_add_u32 %s, %s, 0x%x' % (sr(S_F2), sr(S_F2), WS_FLAGS + F2_OFF))


def chain_init_buffers(g, opt):
    for i in range(4):
        g.e('v_mov_b32 v%d, 0' % (24 + i))
    for i in range(4):
        g.e('buffer_store_dwordx4 v[24:27], v%d, %s, %s offen offset:%d' % (V_L16, sr(SRD_WS, 4), sr(S_PL), i * 1024))
    for slot in range(3):
        g.e('s_mov_b32 %s, 0x%x' % (sr(S_T0), WS_M2 + slot * 8192))
        g.e('buffer_store_dword v%d, v%d, %s, %s offen' % (V_ONES, V_MS, sr(SRD_WS, 4), sr(S_T0)))
    l = g.newlabel('L_if')
    g.e('s_cmp_lg_u32 %s, 0' % sr(S_WAVE))
    g.e('s_cbranch_scc1 %s' % l)
    g.e('v_and_b32 v28, 31, v20')
    g.e('v_lshlrev_b32 v28, 2, v28')
    g.e('v_lshrrev_b32 v29, 5, v20')
    g.e('v_lshl_add_u32 v28, v29, 12, v28')
    assert F2_OFF - F1_OFF == 4096
    g.e('buffer_store_dword v24, v28, %s, %s offen sc1' % (sr(SRD_WS, 4), sr(S_F1)))
    g.e('v_lshlrev_b32 v28, 11, v20')
    g.e('s_and_b32 %s, %s, 15' % (sr(S_T0), sr(S_RANK)))
    g.e('s_lshl_b32 %s, %s, 7' % (sr(S_T0), sr(S_T0)))
    g.e('s_add_u32 %s, %s, 0x%x' % (sr(S_T0), sr(S_T0), WS_FLAGS + 8192))
    g.e('s_mov_b64 exec, 7')
    g.e('buffer_store_dword v24, v28, %s, %s offen sc1' % (sr(SRD_WS, 4), sr(S_T0)))
    g.e('s_mov_b64 exec, -1')
    g.label(l)
    g.e('s_waitcnt vmcnt(0)')
    g.e('s_barrier')
    l = g.newlabel('L_if')
    g.e('s_cmp_lg_u32 %s, 0' % sr(S_WAVE))
    g.e('s_cbranch_scc1 %s' % l)
    g.e('s_mov_b64 exec, 1')
    g.e('v_mov_b32 v28, 40')
    g.e('v_mov_b32 v29, 1')
    g.e('global_atomic_add v28, v29, %s' % sr(S_DBG, 2))
    g.e('s_mov_b64 exec, -1')
    g.label(l)


def chain_load_weights(g, opt):
    W = sr(S_WAVE)
    H = sr(S_RANK)
    g.e('v_bfe_u32 v23, v20, 4, 1')
    g.e('v_lshlrev_b32 v24, 4, v23')
    g.e('v_lshrrev_b32 v25, 5, v20')
    g.e('v_add_u32 v24, v24, v25')
    g.e('s_lshl_b32 %s, %s, 5' % (sr(S_T0), W))
    g.e('v_add_u32 v24, %s, v24' % sr(S_T0))
    g.e('v_lshlrev_b32 v24, 13, v24')
    g.e('v_lshlrev_b32 v25, 1, v23')
    g.e('v_xor_b32 v25, v25, v21')
    g.e('v_lshl_add_u32 v30, v25, 4, v24')
    for i in range(1, 4):
        g.e('v_xor_b32 v%d, %d, v30' % (30 + i, i * 64))
    g.e('s_and_b32 %s, %s, 1' % (sr(S_T0), W))
    g.e('s_lshl_b32 %s, %s, 7' % (sr(S_T0), sr(S_T0)))
    g.e('v_xor_b32 v34, %s, v%d' % (sr(S_T0), V_L16))
    g.e('s_lshl_b32 %s, %s, 13' % (sr(S_T0), W))
    g.e('v_add_u32 v34, %s, v34' % sr(S_T0))
    g.e('v_lshrrev_b32 v23, 2, v21')
    g.e('v_and_b32 v24, 3, v21')
    g.e('v_lshrrev_b32 v25, 1, v22')
    g.e('v_lshlrev_b32 v25, 4, v25')
    g.e('v_lshrrev_b32 v26, 1, v23')
    g.e('v_lshl_add_u32 v25, v26, 3, v25')
    g.e('v_and_b32 v27, 1, v22')
    g.e('v_lshl_add_u32 v25, v27, 2, v25')
    g.e('v_and_b32 v28, 1, v23')
    g.e('v_add_u32 v25, v25, v28')
    g.e('v_lshl_add_u32 v28, v27, 1, v28')
    g.e('v_lshl_add_u32 v28, v26, 2, v28')
    g.e('v_lshlrev_b32 v28, 1, v28')
    g.e('v_lshrrev_b32 v26, 1, v24')
    g.e('v_and_b32 v27, 1, v24')
    g.e('s_lshl_b32 %s, %s, 2' % (sr(S_T0), W))
    g.e('v_add_u32 v29, %s, v26' % sr(S_T0))
    g.e('v_xor_b32 v29, v29, v28')
    g.e('v_lshlrev_b32 v29, 4, v29')
    g.e('v_lshl_add_u32 v29, v27, 3, v29')
    g.e('v_lshl_add_u32 v35, v25, 8, v29')
    g.e('v_xor_b32 v36, 32, v35')
    g.e('v_xor_b32 v29, v26, v28')
    g.e('s_lshl_b32 %s, %s, 4' % (sr(S_T0), W))
    g.e('v_add_u32 v29, %s, v29' % sr(S_T0))
    g.e('v_lshlrev_b32 v29, 4, v29')
    g.e('v_lshl_add_u32 v29, v27, 3, v29')
    g.e('v_lshl_add_u32 v37, v25, 10, v29')

    chunks = [('V', c) for c in range(4)] + [('Q', c) for c in range(4)] + [('K', c) for c in range(4)] + [('O', c) for c in range(4)]
    ptr = {'V': S_WV, 'Q': S_WQ, 'K': S_WK, 'O': S_WO}
    srd = {'V': SRD_A, 'Q': SRD_B, 'K': SRD_A, 'O': SRD_B}

    def issue(ci):
        m, c = chunks[ci]
        ring = RING[ci % 3]
        if c == 0:
            make_srd(g, srd[m], ptr[m], 4 << 20)
        for i in range(8):
            g.e('s_lshl_b32 %s, %s, 13' % (sr(S_T0), W))
            g.e('s_add_u32 %s, %s, %d' % (sr(S_T0), sr(S_T0), ring + i * 1024))
            g.e('s_mov_b32 m0, %s' % sr(S_T0))
            if m != 'O':
                g.e('s_lshl_b32 %s, %s, 8' % (sr(S_T1), H))
                g.e('s_add_u32 %s, %s, %d' % (sr(S_T1), sr(S_T1), (c * 128 + 2 * i) * 8192))
                g.e('buffer_load_dwordx4 v%d, %s, %s offen lds' % (30 + (i & 3), sr(srd[m], 4), sr(S_T1)))
            else:
                x = ((i & 1) | (((i >> 2) & 1) << 1)) * 32
                g.e('v_xor_b32 v38, %d, v34' % x)
                g.e('s_lshl_b32 %s, %s, 17' % (sr(S_T1), H))
                g.e('s_add_u32 %s, %s, %d' % (sr(S_T1), sr(S_T1), (c * 32 + i) * 1024))
                g.e('buffer_load_dwordx4 v38, %s, %s offen lds' % (sr(srd[m], 4), sr(S_T1)))

    for ci in range(3):
        issue(ci)
    for ci in range(16):
        m, c = chunks[ci]
        ring = RING[ci % 3]
        inflight_after = min(15 - ci, 2)
        g.e('s_waitcnt vmcnt(%d)' % (8 * inflight_after))
        g.e('s_barrier')
        if m != 'O':
            g.e('v_add_u32 v38, %d, v35' % ring)
            g.e('v_add_u32 v39, %d, v36' % ring)
            for ksl in range(2):
                ks = 2 * c + ksl
                for t in range(2):
                    for sq in range(4):
                        off = (64 * ksl + 32 * (sq >> 1) + 2 * (sq & 1)) * 256
                        if m == 'Q':
                            dst = ar(A_WQ + (t * 8 + ks) * 8 + sq * 2, 2)
                        elif m == 'K':
                            dst = ar(A_WK + (t * 8 + ks) * 8 + sq * 2, 2)
                        elif t == 0:
                            dst = vr(V_WV0 + ks * 8 + sq * 2, 2)
                        else:
                            dst = vr(BUF + ksl * 8 + sq * 2, 2)
                        g.e('ds_read_b64_tr_b16 %s, v%d offset:%d' % (dst, 38 + t, off))
            g.e('s_waitcnt lgkmcnt(0)')
            if m == 'V':
                for ksl in range(2):
                    ks = 2 * c + ksl
                    g.e('ds_write_b128 v%d, %s offset:%d' % (V_WL, vr(BUF + ksl * 8, 4), ks * 2048))
                    g.e('ds_write_b128 v%d, %s offset:%d' % (V_WL, vr(BUF + ksl * 8 + 4, 4), ks * 2048 + 1024))
                g.e('s_waitcnt lgkmcnt(0)')
        else:
            ks2, hf = c >> 1, c & 1
            for tp in range(8):
                g.e('v_xor_b32 v38, %d, v37' % (tp * 32))
                g.e('v_add_u32 v38, %d, v38' % ring)
                for s1 in range(2):
                    off = (2 * s1) * 1024
                    if tp < 4:
                        dst = vr(V_WOL + (tp * 2 + ks2) * 8 + hf * 4 + s1 * 2, 2)
                    else:
                        dst = vr(BUF + ((tp - 4) * 2 + ks2) * 8 + hf * 4 + s1 * 2, 2)
                    g.e('ds_read_b64_tr_b16 %s, v38 offset:%d' % (dst, off))
            g.e('s_waitcnt lgkmcnt(0)')
        g.e('s_barrier')
        if ci + 3 < 16:
            issue(ci + 3)
    for f in range(8):
        g.e('ds_write_b128 v%d, %s offset:%d' % (V_WO, vr(BUF + f * 8, 4), f * 2048))
        g.e('ds_write_b128 v%d, %s offset:%d' % (V_WO, vr(BUF + f * 8 + 4, 4), f * 2048 + 1024))
    g.e('s_waitcnt lgkmcnt(0)')


def chain_stage_mem0(g, opt):
    make_srd(g, SRD_A, S_MEM0, 8192)
    for half in range(2):
        g.e('v_add_u32 v23, %d, v0' % (half * 256))
        g.e('v_and_b32 v24, 0x1e0, v23')
        g.e('v_and_b32 v25, 1, v23')
        g.e('v_lshl_add_u32 v24, v25, 4, v24')
        g.e('v_bfe_u32 v25, v23, 1, 4')
        g.e('v_add_u32 v24, v24, v25')
        g.e('v_lshlrev_b32 v%d, 1, v24' % (26 + half))
        g.e('v_lshrrev_b32 v24, 3, v23')
        g.e('v_lshlrev_b32 v24, 7, v24')
        g.e('v_and_b32 v25, 7, v23')
        g.e('v_lshl_add_u32 v24, v25, 1, v24')
        g.e('v_add_u32 v%d, 0x%x, v24' % (28 + half, L_MST))
    for m in range(8):
        for half in range(2):
            g.e('buffer_load_ushort v%d, v%d, %s, 0 offen offset:%d' % (AR + m * 2 + half, 26 + half, sr(SRD_A, 4), (m & 3) * 1024)
                if m < 4 else
                'buffer_load_ushort v%d, v%d, %s, %s offen offset:%d' % (AR + m * 2 + half, 26 + half, sr(SRD_A, 4), sr(S_T3), (m & 3) * 1024))
            if m == 3 and half == 1:
                g.e('s_mov_b32 %s, 4096' % sr(S_T3))
    g.e('s_waitcnt vmcnt(0)')
    for m in range(8):
        for half in range(2):
            g.e('ds_write_b16 v%d, v%d offset:%d' % (28 + half, AR + m * 2 + half, m * 16))
    g.e('s_waitcnt lgkmcnt(0)')


def dma_kxvx(g):
    g.e('s_mov_b32 m0, %s' % sr(S_M0KX))
    g.e('s_add_u32 %s, %s, 0x%x' % (sr(S_T0), sr(S_KXO), WS_VX - WS_KX))
    g.e('buffer_load_dwordx4 v%d, %s, %s offen sc1 lds' % (V_L16, sr(SRD_WS, 4), sr(S_KXO)))
    g.e('buffer_load_dwordx4 v%d, %s, %s offen offset:1024 sc1 lds' % (V_L16, sr(SRD_WS, 4), sr(S_KXO)))
    g.e('s_mov_b32 m0, %s' % sr(S_M0VX))
    g.nop(1)
    g.e('buffer_load_dwordx4 v%d, %s, %s offen sc1 lds' % (V_L16, sr(SRD_WS, 4), sr(S_T0)))
    g.e('buffer_load_dwordx4 v%d, %s, %s offen offset:1024 sc1 lds' % (V_L16, sr(SRD_WS, 4), sr(S_T0)))


def prefetch_buf(g, base):
    for f in range(8):
        g.e('ds_read_b128 %s, v%d offset:%d' % (vr(BUF + f * 8, 4), base, f * 2048))
        g.e('ds_read_b128 %s, v%d offset:%d' % (vr(BUF + f * 8 + 4, 4), base, f * 2048 + 1024))


def zero_regs(g, a, n):
    for i in range(0, n, 2):
        g.e('v_mov_b64 %s, 0' % vr(a + i, 2))


def smf(g, d, a, b):
    g.e('v_smfmac_f32_16x16x64_bf16 %s, %s, %s, v%d' % (vr(d, 4), vr(a, 4), b, V_IDX))


def chain_loop(g, opt):
    Q0, Q1, K0, K1, VT0, VT1 = ACC, ACC + 4, ACC + 8, ACC + 12, ACC + 16, ACC + 20
    g.e('s_mov_b32 %s, 0' % sr(S_STEP))
    g.e('s_mov_b32 %s, 1' % sr(S_PHASE))
    g.e('s_mov_b32 %s, 0x%x' % (sr(S_M2W), WS_M2 + 8192))
    g.e('s_mov_b32 %s, 0x%x' % (sr(S_M2Z), WS_M2 + 16384))
    g.e('s_mov_b32 %s, 0x%x' % (sr(S_M2R), WS_M2))
    l = g.newlabel('L_spin')
    g.e('v_mov_b32 v%d, 40' % TMP)
    g.label(l)
    g.guard()
    g.e('global_load_dword v%d, v%d, %s sc1' % (TMP + 1, TMP, sr(S_DBG, 2)))
    g.e('s_waitcnt vmcnt(0)')
    g.e('v_readfirstlane_b32 %s, v%d' % (sr(S_T0), TMP + 1))
    g.nop(3)
    g.e('s_cmp_lt_u32 %s, 32' % sr(S_T0))
    g.e('s_cbranch_scc1 %s' % l)
    if not opt.get('nof1'):
        wait_f1(g, 0)
    dma_kxvx(g)
    g.e('s_add_u32 %s, %s, 0x40000' % (sr(S_KXO), sr(S_KXO)))
    prefetch_buf(g, V_WL)
    zero_regs(g, ACC, 24)
    g.e('s_waitcnt vmcnt(0) lgkmcnt(0)')
    g.e('s_barrier')

    g.label('L_step')
    ts(g, opt, 'start')
    for ks in range(3):
        g.e('ds_read_b128 %s, v%d offset:%d' % (vr(AR + ks * 4, 4), V_AF, ks * 1024))
    g.e('v_mov_b32 v%d, %s' % (TMP, sr(S_STEP)))
    g.e('v_mov_b32 v%d, 0' % (TMP + 1))
    g.e('s_mov_b64 exec, 1')
    g.e('buffer_store_dword v%d, v%d, %s, %s offen sc1' % (TMP, TMP + 1, sr(SRD_WS, 4), sr(S_F2)))
    g.e('s_mov_b64 exec, -1')
    g.e('buffer_store_dword v%d, v%d, %s, %s offen' % (V_ONES, V_MS, sr(SRD_WS, 4), sr(S_M2Z)))
    g.e('s_cmp_ge_u32 %s, 63' % sr(S_STEP))
    lw = g.newlabel('L_nowarm')
    g.e('s_cbranch_scc1 %s' % lw)
    if not opt.get('nof1'):
        lf = g.newlabel('L_nof1')
        g.e('s_and_b32 %s, %s, 3' % (sr(S_T0), sr(S_STEP)))
        g.e('s_cmp_lg_u32 %s, 3' % sr(S_T0))
        g.e('s_cbranch_scc1 %s' % lf)
        wait_f1(g, None)
        g.label(lf)
    g.e('buffer_load_dword v%d, v%d, %s, %s offen sc1' % (V_WD, V_WM, sr(SRD_WS, 4), sr(S_KXO)))
    g.label(lw)
    ts(g, opt, 'pre-qk', True)
    for ks in range(8):
        a = AR + (ks & 3) * 4
        g.e('s_waitcnt lgkmcnt(%d)' % (2 if ks < 6 else 2))
        nk = ks + 3
        g.e('ds_read_b128 %s, v%d offset:%d' % (vr(AR + (nk & 3) * 4, 4), V_AF, (nk & 7) * 1024))
        smf(g, Q0, a, ar(A_WQ + (0 * 8 + ks) * 8, 8))
        smf(g, Q1, a, ar(A_WQ + (1 * 8 + ks) * 8, 8))
        smf(g, K0, a, ar(A_WK + (0 * 8 + ks) * 8, 8))
        smf(g, K1, a, ar(A_WK + (1 * 8 + ks) * 8, 8))
    ts(g, opt, 'qk', True)
    fin = []
    for t, (acc, base) in enumerate(((Q0, 0), (Q1, 256), (K0, 2048), (K1, 2048 + 256))):
        fin.append('v_add_f32 v%d, v%d, v%d' % (acc, acc, acc + 1))
        fin.append('v_add_f32 v%d, v%d, v%d' % (acc + 2, acc + 2, acc + 3))
        fin.append('v_cvt_pk_bf16_f32 v%d, v%d, v%d' % (acc, acc, acc + 2))
        fin.append('ds_write_b16 v%d, v%d offset:%d' % (V_QW, acc, base))
        fin.append('ds_write_b16_d16_hi v%d, v%d offset:%d' % (V_QW, acc, base + 16))
    lg_out = 3
    pend = ['A0', 'A1', 'A2']

    def wait_for(name):
        i = pend.index(name)
        n = len(pend) - 1 - i
        g.e('s_waitcnt lgkmcnt(%d)' % n)
        del pend[:i + 1]

    fi = 0
    for ks in range(8):
        a = AR + (ks & 3) * 4
        wait_for('A%d' % ks)
        if ks + 3 < 8:
            nk = ks + 3
            g.e('ds_read_b128 %s, v%d offset:%d' % (vr(AR + (nk & 3) * 4, 4), V_AF, nk * 1024))
            pend.append('A%d' % nk)
        smf(g, VT1, a, vr(BUF + ks * 8, 8))
        smf(g, VT0, a, vr(V_WV0 + ks * 8, 8))
        if ks == 0:
            g.nop(4)
        if ks >= 0:
            for _ in range(5):
                if fi < len(fin):
                    g.e(fin[fi])
                    if fin[fi].startswith('ds_'):
                        pend.append('W%d' % fi)
                    fi += 1
        if ks == 3:
            pass
        if ks == 4:
            for f in range(8):
                g.e('ds_read_b128 %s, v%d offset:%d' % (vr(BUF + f * 4, 4), V_HI, f * 1024))
                pend.append('KX%d' % f)
    g.e('s_waitcnt lgkmcnt(0)')
    ts(g, opt, 'v', True)
    pend.clear()
    g.e('s_barrier')
    ts(g, opt, 'qkbar')
    QF, KMF = BUF + 32, BUF + 48
    for ks in range(4):
        g.e('ds_read_b128 %s, v%d offset:%d' % (vr(QF + ks * 4, 4), V_QR, ks * 512))
        g.e('ds_read_b128 %s, v%d offset:%d' % (vr(KMF + ks * 4, 4), V_KR, ks * 512))
    VXF = AR
    g.e('ds_read_b128 %s, v%d offset:%d' % (vr(VXF, 4), V_HIW, 8192))
    g.e('ds_read_b128 %s, v%d offset:%d' % (vr(VXF + 4, 4), V_HIW, 8192 + 1024))
    VM0, VM1 = AR + 8, AR + 10
    g.e('v_add_f32 v%d, v%d, v%d' % (VT0, VT0, VT0 + 1))
    g.e('v_add_f32 v%d, v%d, v%d' % (VT0 + 2, VT0 + 2, VT0 + 3))
    g.e('v_add_f32 v%d, v%d, v%d' % (VT1, VT1, VT1 + 1))
    g.e('v_add_f32 v%d, v%d, v%d' % (VT1 + 2, VT1 + 2, VT1 + 3))
    g.e('v_cvt_pk_bf16_f32 v%d, v%d, v%d' % (VM0, VT0, VT0 + 2))
    g.e('v_cvt_pk_bf16_f32 v%d, v%d, v%d' % (VM1, VT1, VT1 + 2))
    g.e('v_mov_b32 v%d, 0' % (VM0 + 1))
    g.e('v_mov_b32 v%d, 0' % (VM1 + 1))
    SX0, SX1, SM = ACC, ACC + 4, ACC + 8
    for ks in range(4):
        g.e('s_waitcnt lgkmcnt(%d)' % (2 + 2 * (3 - ks)))
        c0 = '0' if ks == 0 else vr(SX0, 4)
        c1 = '0' if ks == 0 else vr(SX1, 4)
        c2 = '0' if ks == 0 else vr(SM, 4)
        g.e('v_mfma_f32_16x16x32_bf16 %s, %s, %s, %s' % (vr(SX0, 4), vr(BUF + (0 * 4 + ks) * 4, 4), vr(QF + ks * 4, 4), c0))
        g.e('v_mfma_f32_16x16x32_bf16 %s, %s, %s, %s' % (vr(SX1, 4), vr(BUF + (1 * 4 + ks) * 4, 4), vr(QF + ks * 4, 4), c1))
        g.e('v_mfma_f32_16x16x32_bf16 %s, %s, %s, %s' % (vr(SM, 4), vr(KMF + ks * 4, 4), vr(QF + ks * 4, 4), c2))
    ts(g, opt, 'scmfma', True)
    for wv in range(4):
        ln = g.newlabel('L_km')
        g.e('s_cmp_lg_u32 %s, %d' % (sr(S_WAVE), wv))
        g.e('s_cbranch_scc1 %s' % ln)
        g.e('buffer_store_dwordx4 %s, v%d, %s, %s offen sc1' % (vr(KMF + wv * 4, 4), V_KS, sr(SRD_WS, 4), sr(S_KMO)))
        g.label(ln)
    g.e('s_add_u32 %s, %s, 0x%x' % (sr(S_T0), sr(S_KMO), WS_VM - WS_KM))
    g.e('buffer_store_dword v%d, v%d, %s, %s offen sc1' % (VM0, V_VS, sr(SRD_WS, 4), sr(S_T0)))
    g.e('buffer_store_dword v%d, v%d, %s, %s offen offset:256 sc1' % (VM1, V_VS, sr(SRD_WS, 4), sr(S_T0)))
    g.e('s_add_u32 %s, %s, 0x10000' % (sr(S_KMO), sr(S_KMO)))
    g.e('s_cmp_eq_u32 %s, 63' % sr(S_STEP))
    g.e('s_cbranch_scc1 L_chain_done')
    ts(g, opt, 'kmst', True)
    for f in range(4):
        g.e('ds_read_b128 %s, v%d offset:%d' % (vr(BUF + f * 8, 4), V_WO, f * 2048))
        g.e('ds_read_b128 %s, v%d offset:%d' % (vr(BUF + f * 8 + 4, 4), V_WO, f * 2048 + 1024))
    ts(g, opt, 'pf1', True)
    S = [SX0 + i for i in range(8)] + [SM, SM + 1]
    C = [ACC + 12 + i for i in range(5)]
    g.nop(2)

    def rnd():
        for i in range(5):
            g.e('v_cvt_pk_bf16_f32 v%d, v%d, v%d' % (C[i], S[2 * i], S[2 * i + 1]))
        for i in range(5):
            g.e('v_lshlrev_b32 v%d, 16, v%d' % (S[2 * i], C[i]))
            g.e('v_and_b32 v%d, 0xffff0000, v%d' % (S[2 * i + 1], C[i]))
    rnd()
    for i in range(5):
        g.e('v_pk_mul_f32 %s, %s, %s' % (vr(S[2 * i], 2), vr(S[2 * i], 2), sr(S_SC, 2)))
    rnd()
    MX, MT = TMP, TMP + 1
    g.e('v_max3_f32 v%d, v%d, v%d, v%d' % (MX, S[0], S[1], S[2]))
    g.e('v_max3_f32 v%d, v%d, v%d, v%d' % (MT, S[3], S[4], S[5]))
    g.e('v_max3_f32 v%d, v%d, v%d, v%d' % (MX, MX, S[6], S[7]))
    g.e('v_max3_f32 v%d, v%d, v%d, v%d' % (MT, MT, S[8], S[9]))
    g.e('v_max_f32 v%d, v%d, v%d' % (MX, MX, MT))
    for sw in ('v_permlane16_swap_b32', 'v_permlane32_swap_b32'):
        g.e('v_mov_b32 v%d, v%d' % (MT, MX))
        g.nop(2)
        g.e('%s v%d, v%d' % (sw, MT, MX))
        g.nop(1)
        g.e('v_max_f32 v%d, v%d, v%d' % (MX, MX, MT))
    g.e('v_mov_b32 v%d, v%d' % (MT, MX))
    for i in range(5):
        g.e('v_pk_add_f32 %s, %s, %s neg_lo:[0,1] neg_hi:[0,1]' % (vr(S[2 * i], 2), vr(S[2 * i], 2), vr(MX, 2)))
    for i in range(5):
        g.e('v_pk_mul_f32 %s, %s, %s' % (vr(S[2 * i], 2), vr(S[2 * i], 2), sr(S_L2E, 2)))
    for i in range(10):
        g.e('v_exp_f32 v%d, v%d' % (S[i], S[i]))
    ts(g, opt, 'exp', True)
    for f in range(4, 8):
        g.e('ds_read_b128 %s, v%d offset:%d' % (vr(BUF + f * 8, 4), V_WO, f * 2048))
        g.e('ds_read_b128 %s, v%d offset:%d' % (vr(BUF + f * 8 + 4, 4), V_WO, f * 2048 + 1024))
    ts(g, opt, 'pf2', True)
    g.e('v_pk_add_f32 %s, %s, %s' % (vr(C[0], 2), vr(S[0], 2), vr(S[2], 2)))
    g.e('v_pk_add_f32 %s, %s, %s' % (vr(C[2], 2), vr(S[4], 2), vr(S[6], 2)))
    g.e('v_pk_add_f32 %s, %s, %s' % (vr(C[0], 2), vr(C[0], 2), vr(S[8], 2)))
    g.e('v_pk_add_f32 %s, %s, %s' % (vr(C[0], 2), vr(C[0], 2), vr(C[2], 2)))
    g.e('v_add_f32 v%d, v%d, v%d' % (MX, C[0], C[1]))
    for sw in ('v_permlane16_swap_b32', 'v_permlane32_swap_b32'):
        g.e('v_mov_b32 v%d, v%d' % (MT, MX))
        g.nop(2)
        g.e('%s v%d, v%d' % (sw, MT, MX))
        g.nop(1)
        g.e('v_add_f32 v%d, v%d, v%d' % (MX, MX, MT))
    g.e('v_rcp_f32 v%d, v%d' % (MX, MX))
    g.nop(1)
    g.e('v_mov_b32 v%d, v%d' % (MT, MX))
    for i in range(5):
        g.e('v_pk_mul_f32 %s, %s, %s' % (vr(S[2 * i], 2), vr(S[2 * i], 2), vr(MX, 2)))
    PX, PM = AR + 12, TMP + 2
    for i in range(4):
        g.e('v_cvt_pk_bf16_f32 v%d, v%d, v%d' % (PX + i, S[2 * i], S[2 * i + 1]))
    g.e('v_cvt_pk_bf16_f32 v%d, v%d, v%d' % (PM, S[8], S[9]))
    g.e('v_mov_b32 v%d, 0' % (PM + 1))
    g.nop(1)
    ts(g, opt, 'smax')
    O0, O1 = ACC + 12, ACC + 16
    g.e('s_waitcnt lgkmcnt(15)')
    g.e('v_mfma_f32_16x16x32_bf16 %s, %s, %s, 0' % (vr(O0, 4), vr(VXF, 4), vr(PX, 4)))
    g.e('v_mfma_f32_16x16x32_bf16 %s, %s, %s, 0' % (vr(O1, 4), vr(VXF + 4, 4), vr(PX, 4)))
    g.e('v_mfma_f32_16x16x16_bf16 %s, %s, %s, %s' % (vr(O0, 4), vr(VM0, 2), vr(PM, 2), vr(O0, 4)))
    g.e('v_mfma_f32_16x16x16_bf16 %s, %s, %s, %s' % (vr(O1, 4), vr(VM1, 2), vr(PM, 2), vr(O1, 4)))
    zero_regs(g, ACC, 12)
    g.nop(2)
    OP = ACC + 20
    g.e('v_cvt_pk_bf16_f32 v%d, v%d, v%d' % (OP, O0, O0 + 1))
    g.e('v_cvt_pk_bf16_f32 v%d, v%d, v%d' % (OP + 1, O0 + 2, O0 + 3))
    g.e('v_cvt_pk_bf16_f32 v%d, v%d, v%d' % (OP + 2, O1, O1 + 1))
    g.e('v_cvt_pk_bf16_f32 v%d, v%d, v%d' % (OP + 3, O1 + 2, O1 + 3))
    g.e('ds_write_b64 v%d, %s' % (V_OW, vr(OP, 2)))
    g.e('ds_write_b64 v%d, %s offset:256' % (V_OW, vr(OP + 2, 2)))
    zero_regs(g, ACC + 12, 8)
    zero_regs(g, AR, 8)
    g.e('s_waitcnt lgkmcnt(0)')
    zero_regs(g, ACC + 20, 4)
    g.e('s_barrier')
    ts(g, opt, 'obar')
    OA = AR + 8
    g.e('ds_read_b128 %s, v%d offset:%d' % (vr(OA, 4), V_AF, L_O - L_MST))
    g.e('ds_read_b128 %s, v%d offset:%d' % (vr(OA + 4, 4), V_AF, L_O - L_MST + 1024))
    dma_kxvx(g)
    g.e('s_add_u32 %s, %s, 0x40000' % (sr(S_KXO), sr(S_KXO)))
    g.e('s_waitcnt lgkmcnt(0)')

    ts(g, opt, 'oread', True)

    def wfrag(tp, ks2):
        if tp < 4:
            return vr(V_WOL + (tp * 2 + ks2) * 8, 8)
        return vr(BUF + ((tp - 4) * 2 + ks2) * 8, 8)

    def post(u):
        a, b = ACC + u * 8, ACC + u * 8 + 4
        ops = ['v_add_f32 v%d, v%d, v%d' % (a, a, a + 1),
               'v_add_f32 v%d, v%d, v%d' % (a + 1, b, b + 1),
               'v_add_f32 v%d, v%d, v%d' % (a + 2, a + 2, a + 3),
               'v_add_f32 v%d, v%d, v%d' % (a + 3, b + 2, b + 3)]
        for i in range(4):
            ops.append('v_bfi_b32 v%d, 1, %s, v%d' % (a + i, sr(S_PHASE), a + i))
        so = '0' if u == 0 else sr((S_U1, S_U2, S_U3)[u - 1])
        ops.append('buffer_store_dwordx4 %s, v%d, %s, %s offen' % (vr(a, 4), V_PS, sr(SRD_WS, 4), so))
        return ops

    pendp = []
    for u in range(4):
        for ks2 in range(2):
            for ab in range(2):
                tp = 2 * u + ab
                smf(g, ACC + tp * 4, OA + ks2 * 4, wfrag(tp, ks2))
                for _ in range(3):
                    if pendp:
                        g.e(pendp.pop(0))
        while pendp:
            g.e(pendp.pop(0))
        pendp = [None]
        pendp = post(u)
        if u < 3:
            pendp = ['s_nop 2', 's_nop 2'] + pendp
    g.nop(8)
    while pendp:
        g.e(pendp.pop(0))
    ts(g, opt, 'wo')
    prefetch_buf(g, V_WL)
    ts(g, opt, 'pfv', True)
    PL = [ACC + 4, ACC + 12, ACC + 20, ACC + 28]
    lp = g.newlabel('L_poll1')
    if opt.get('ts'):
        g.e('s_mov_b32 s80, 0')
    g.label(lp)
    g.guard()
    if opt.get('ts'):
        g.e('s_add_u32 s80, s80, 1')
    for i in range(4):
        g.e('buffer_load_dwordx4 %s, v%d, %s, %s offen offset:%d sc1' % (vr(PL[i], 4), V_L16, sr(SRD_WS, 4), sr(S_PL), i * 1024))
    g.e('v_mov_b32 v%d, %s' % (TMP + 3, sr(S_PHASE)))
    T = [AR + 8 + i for i in range(8)]
    for i in range(4):
        g.e('s_waitcnt vmcnt(%d)' % (3 - i))
        tt = 0
        for a in range(2):
            for b in range(2):
                for c_ in range(2):
                    if (a ^ c_) | (b ^ c_):
                        tt |= 1 << (a * 4 + b * 2 + c_)
        g.e('v_bitop3_b32 v%d, v%d, v%d, v%d bitop3:0x%x' % (T[2 * i], PL[i], PL[i] + 1, TMP + 3, tt))
        g.e('v_bitop3_b32 v%d, v%d, v%d, v%d bitop3:0x%x' % (T[2 * i + 1], PL[i] + 2, PL[i] + 3, TMP + 3, tt))
    g.e('v_or3_b32 v%d, v%d, v%d, v%d' % (T[0], T[0], T[1], T[2]))
    g.e('v_or3_b32 v%d, v%d, v%d, v%d' % (T[3], T[3], T[4], T[5]))
    g.e('v_or3_b32 v%d, v%d, v%d, v%d' % (T[0], T[0], T[6], T[7]))
    g.e('v_or_b32 v%d, v%d, v%d' % (T[0], T[0], T[3]))
    g.e('v_and_b32 v%d, 1, v%d' % (T[0], T[0]))
    g.e('v_cmp_ne_u32 vcc, 0, v%d' % T[0])
    g.e('v_pk_add_f32 %s, %s, %s' % (vr(PL[0], 2), vr(PL[0], 2), vr(PL[1], 2)))
    g.e('v_pk_add_f32 %s, %s, %s' % (vr(PL[0] + 2, 2), vr(PL[0] + 2, 2), vr(PL[1] + 2, 2)))
    g.e('s_cbranch_vccnz %s' % lp)
    ts(g, opt, 'hop1')
    g.e('v_pk_add_f32 %s, %s, %s' % (vr(PL[2], 2), vr(PL[2], 2), vr(PL[3], 2)))
    g.e('v_pk_add_f32 %s, %s, %s' % (vr(PL[2] + 2, 2), vr(PL[2] + 2, 2), vr(PL[3] + 2, 2)))
    g.e('v_pk_add_f32 %s, %s, %s' % (vr(PL[0], 2), vr(PL[0], 2), vr(PL[2], 2)))
    g.e('v_pk_add_f32 %s, %s, %s' % (vr(PL[0] + 2, 2), vr(PL[0] + 2, 2), vr(PL[2] + 2, 2)))
    r0 = PL[0]
    g.nop(2)
    g.e('v_permlane32_swap_b32 v%d, v%d' % (r0, r0 + 2))
    g.e('v_permlane32_swap_b32 v%d, v%d' % (r0 + 1, r0 + 3))
    g.nop(1)
    g.e('v_pk_add_f32 %s, %s, %s' % (vr(r0, 2), vr(r0, 2), vr(r0 + 2, 2)))
    g.nop(2)
    g.e('v_permlane16_swap_b32 v%d, v%d' % (r0, r0 + 1))
    g.nop(1)
    g.e('v_add_f32 v%d, v%d, v%d' % (r0, r0, r0 + 1))
    g.nop(2)
    g.e('v_add_f32_dpp v%d, v%d, v%d row_ror:8 row_mask:0xf bank_mask:0xf' % (r0, r0, r0))
    g.e('v_mov_b32 v%d, v%d' % (r0 + 1, r0))
    g.nop(2)
    g.e('v_permlane16_swap_b32 v%d, v%d' % (r0, r0 + 1))
    g.nop(1)
    g.e('v_cvt_pk_bf16_f32 v%d, v%d, v%d' % (r0, r0, r0 + 1))
    g.e('v_min_u32 v%d, -2, v%d' % (r0, r0))
    g.e('buffer_store_dword v%d, v%d, %s, %s offen' % (r0, V_MS, sr(SRD_WS, 4), sr(S_M2W)))
    g.e('s_add_u32 %s, %s, 1' % (sr(S_STEP), sr(S_STEP)))
    g.e('s_mov_b32 %s, %s' % (sr(S_T0), sr(S_M2R)))
    g.e('s_mov_b32 %s, %s' % (sr(S_M2R), sr(S_M2W)))
    g.e('s_mov_b32 %s, %s' % (sr(S_M2W), sr(S_M2Z)))
    g.e('s_mov_b32 %s, %s' % (sr(S_M2Z), sr(S_T0)))
    g.e('s_xor_b32 %s, %s, 1' % (sr(S_PHASE), sr(S_PHASE)))
    g.e('s_lshl_b32 %s, %s, 11' % (sr(S_T1), sr(S_WAVE)))
    g.e('s_add_u32 %s, %s, %s' % (sr(S_T1), sr(S_T1), sr(S_M2R)))
    zero_regs(g, ACC, 4)
    zero_regs(g, ACC + 8, 16)
    ts(g, opt, 'red')
    PMR = AR + 8
    lp = g.newlabel('L_poll2')
    if opt.get('ts'):
        g.e('s_mov_b32 s81, 0')
    g.label(lp)
    g.guard()
    if opt.get('ts'):
        g.e('s_add_u32 s81, s81, 1')
    g.e('buffer_load_dwordx4 %s, v%d, %s, %s offen sc1' % (vr(PMR, 4), V_L16, sr(SRD_WS, 4), sr(S_T1)))
    g.e('buffer_load_dwordx4 %s, v%d, %s, %s offen offset:1024 sc1' % (vr(PMR + 4, 4), V_L16, sr(SRD_WS, 4), sr(S_T1)))
    g.e('s_waitcnt vmcnt(1)')
    g.e('v_max3_u32 v%d, v%d, v%d, v%d' % (TMP, PMR, PMR + 1, PMR + 2))
    g.e('s_waitcnt vmcnt(0)')
    g.e('v_max3_u32 v%d, v%d, v%d, v%d' % (TMP + 1, PMR + 3, PMR + 4, PMR + 5))
    g.e('v_max3_u32 v%d, v%d, v%d, v%d' % (TMP, TMP, PMR + 6, PMR + 7))
    g.e('v_max_u32 v%d, v%d, v%d' % (TMP, TMP, TMP + 1))
    g.e('v_cmp_eq_u32 vcc, -1, v%d' % TMP)
    g.e('s_cbranch_vccnz %s' % lp)
    g.e('ds_write_b128 v%d, %s offset:16384' % (V_HIW, vr(PMR, 4)))
    g.e('ds_write_b128 v%d, %s offset:17408' % (V_HIW, vr(PMR + 4, 4)))
    zero_regs(g, ACC + 4, 4)
    ts(g, opt, 'hop2')
    ts_flush(g, opt)
    g.e('s_waitcnt lgkmcnt(0)')
    g.e('s_barrier')
    g.e('s_branch L_step')
    g.label('L_chain_done')
    g.e('s_waitcnt vmcnt(0)')
    g.e('v_mov_b32 v%d, 64' % TMP)
    g.e('v_mov_b32 v%d, 0' % (TMP + 1))
    g.e('s_mov_b64 exec, 1')
    g.e('buffer_store_dword v%d, v%d, %s, %s offen sc1' % (TMP, TMP + 1, sr(SRD_WS, 4), sr(S_F2)))
    g.e('s_mov_b64 exec, -1')
    g.e('s_branch L_exit')


def wait_f1(g, R):
    if R is None:
        g.e('s_add_u32 %s, %s, 1' % (sr(S_T0), sr(S_STEP)))
        g.e('s_and_b32 %s, %s, 0xfffffffc' % (sr(S_T0), sr(S_T0)))
        g.e('s_add_u32 %s, %s, %s' % (sr(S_T0), sr(S_T0), sr(S_F1)))
    else:
        g.e('s_add_u32 %s, %s, %d' % (sr(S_T0), sr(S_F1), R * 4))
    l = g.newlabel('L_f1')
    g.e('v_mov_b32 v%d, 0' % TMP)
    g.label(l)
    g.guard()
    g.e('buffer_load_dword v%d, v%d, %s, %s offen sc1' % (TMP + 1, TMP, sr(SRD_WS, 4), sr(S_T0)))
    g.e('s_waitcnt vmcnt(0)')
    g.e('v_readfirstlane_b32 %s, v%d' % (sr(S_T1), TMP + 1))
    g.nop(3)
    g.e('s_cmp_eq_u32 %s, 0' % sr(S_T1))
    g.e('s_cbranch_scc1 %s' % l)


def build(opt):
    g = G()
    hdr = open('cdna_kernels/%s.s.ref' % NAME).read().split('\n')
    for l in hdr:
        if l.startswith(';') and '@launch' not in l:
            g.lines.append(l)
        elif not l.startswith(';'):
            break
    g.lines.append('; @launch grid=(256,1,1) block=(256,1,1) lds=%d' % LDS_SIZE)
    g.lines.append('.amdgcn_target "amdgcn-amd-amdhsa--gfx950"')
    g.lines.append('.text')
    g.lines.append('.globl %s_kernel' % NAME)
    g.lines.append('.p2align 8')
    g.lines.append('.type %s_kernel,@function' % NAME)
    g.label('%s_kernel' % NAME)
    prologue(g, opt)
    import genc
    genc.setup(g, opt)
    genc.load_weights(g, opt)
    if opt.get('rt'):
        g.e('s_memrealtime s[76:77]')
        g.e('s_waitcnt lgkmcnt(0)')
    genc.loop(g, opt)
    if opt.get('noworker'):
        g.label('L_worker')
    else:
        import genw
        genw.worker(g, opt)
    g.label('L_exit')
    g.e('s_endpgm')
    g.lines.append('.section .rodata,"a"')
    g.lines.append('.p2align 6')
    g.lines.append('.amdhsa_kernel %s_kernel' % NAME)
    g.lines.append('  .amdhsa_next_free_vgpr 512')
    g.lines.append('  .amdhsa_next_free_sgpr 102')
    g.lines.append('  .amdhsa_accum_offset 256')
    g.lines.append('  .amdhsa_group_segment_fixed_size 0')
    g.lines.append('  .amdhsa_kernarg_size 104')
    g.lines.append('  .amdhsa_user_sgpr_count 2')
    g.lines.append('  .amdhsa_user_sgpr_kernarg_segment_ptr 1')
    g.lines.append('  .amdhsa_system_sgpr_workgroup_id_x 1')
    g.lines.append('  .amdhsa_float_denorm_mode_32 3')
    g.lines.append('.end_amdhsa_kernel')
    return g.text()


if __name__ == '__main__':
    opt = {}
    out = sys.argv[1]
    for a in sys.argv[2:]:
        opt[a] = True
    open(out, 'w').write(build(opt))
    open(out + '.names', 'w').write(' '.join(TS_NAMES))
```

```python
from gen import *

C_KX = 0
C_VX = 8192
C_MST = 16384
C_Q = 24576
C_K = 26624
C_VM = 28672
C_O = 30720
C_W = 32768
C_RING = [0, 98304, 131072]
C_SEL = C_O

PB2_STRIDE = 8192 + 128
WS_KV = WS_KM

(V_L16, V_WL, V_AF, V_QW, V_QR, V_KR, V_OW, V_PS, V_MS, V_PLD, V_WM, V_IDX, V_VW, V_FL, V_WD, V_ONE) = range(16)
S_SELM = 86
S_H0, S_H1, S_H2 = 94, 95, 96
A0 = 16
ACC2 = 48
RG = 72
PM = 120
Q0, Q1, K0, K1, VT0, VT1 = ACC2, ACC2 + 4, ACC2 + 8, ACC2 + 12, ACC2 + 16, ACC2 + 20
A_Q0, A_K, A_V0 = 0, 64, 192
V_V1 = 128
V_WOL = 192
S_PL2 = 56
S_P1M = 84

S_W512 = 78
S_W1K = 79
S_U = 55
S_KVO = 62
S_LO8 = 82


class Sched:
    def __init__(self, g):
        self.g = g
        self.l = []
        self.v = []

    def ds(self, s, name=None):
        self.g.e(s)
        self.l.append(name)

    def vm(self, s, name=None):
        self.g.e(s)
        self.v.append(name)

    def wl(self, name):
        if name not in self.l:
            return
        i = len(self.l) - 1 - self.l[::-1].index(name)
        n = len(self.l) - 1 - i
        assert n <= 15, (name, n)
        self.g.e('s_waitcnt lgkmcnt(%d)' % n)
        del self.l[:i + 1]

    def wl_all(self):
        self.g.e('s_waitcnt lgkmcnt(0)')
        self.l = []


TS_PAIRS = [4, 6, 8, 10, 12, 14, 16, 18, 20, 22, 24, 36, 38, 40, 42, 98, 72, 30]


def ts2(g, opt, name, fine=False):
    if not opt.get('ts') or (fine and not opt.get('fine')):
        return
    if opt.get('only') is not None and name not in opt['only'] and name != 'start':
        return
    idx = len(TS_NAMES)
    TS_NAMES.append(str(name))
    g.e('s_memtime %s' % sr(TS_PAIRS[idx], 2))


def ts2_flush(g, opt, tmp):
    if not opt.get('ts'):
        return
    g.e('s_waitcnt lgkmcnt(0)')
    for i in range(len(TS_NAMES)):
        g.e('v_writelane_b32 v%d, s%d, %d' % (tmp + 1, TS_PAIRS[i], i))
    g.e('v_writelane_b32 v%d, s80, 62' % (tmp + 1))
    g.e('v_writelane_b32 v%d, s81, 63' % (tmp + 1))
    g.e('s_lshl_b32 %s, %s, 2' % (sr(S_T0), sr(S_RANK)))
    g.e('s_add_u32 %s, %s, %s' % (sr(S_T0), sr(S_T0), sr(S_WAVE)))
    g.e('s_lshl_b32 %s, %s, 6' % (sr(S_T0), sr(S_T0)))
    g.e('s_add_u32 %s, %s, %s' % (sr(S_T0), sr(S_T0), sr(S_STEP)))
    g.e('s_lshl_b32 %s, %s, 8' % (sr(S_T0), sr(S_T0)))
    g.e('s_add_u32 %s, %s, 0x%x' % (sr(S_T0), sr(S_T0), WS_TS))
    g.e('v_lshrrev_b32 v%d, 2, v%d' % (tmp, V_L16))
    g.e('buffer_store_dword v%d, v%d, %s, %s offen' % (tmp + 1, tmp, sr(SRD_WS, 4), sr(S_T0)))


def setup(g, opt):
    W = sr(S_WAVE)
    H = sr(S_RANK)
    g.e('v_mov_b32 v19, v0')
    g.e('v_and_b32 v20, 63, v19')
    g.e('v_and_b32 v21, 15, v19')
    g.e('v_bfe_u32 v22, v19, 4, 2')
    g.e('v_lshlrev_b32 v%d, 4, v20' % V_L16)
    g.e('s_lshl_b32 %s, %s, 9' % (sr(S_W512), W))
    g.e('s_lshl_b32 %s, %s, 10' % (sr(S_W1K), W))
    g.e('s_lshl_b32 %s, %s, 14' % (sr(S_T0), W))
    g.e('s_add_u32 %s, %s, %d' % (sr(S_T0), sr(S_T0), C_W))
    g.e('v_add_u32 v%d, %s, v%d' % (V_WL, sr(S_T0), V_L16))
    g.e('v_lshlrev_b32 v23, 8, v22')
    g.e('v_bfe_u32 v24, v21, 1, 1')
    g.e('v_lshl_add_u32 v23, v24, 7, v23')
    g.e('v_lshrrev_b32 v24, 2, v21')
    g.e('v_lshl_add_u32 v23, v24, 5, v23')
    g.e('v_and_b32 v24, 1, v21')
    g.e('v_lshl_add_u32 v%d, v24, 4, v23' % V_AF)
    g.e('v_lshrrev_b32 v23, 3, v21')
    g.e('v_lshlrev_b32 v23, 7, v23')
    g.e('v_lshl_add_u32 v23, v22, 5, v23')
    g.e('v_and_b32 v24, 7, v21')
    g.e('v_lshl_add_u32 v23, v24, 1, v23')
    g.e('v_add_u32 v%d, %s, v23' % (V_QW, sr(S_W512)))
    g.e('v_lshlrev_b32 v23, 7, v22')
    g.e('v_lshl_add_u32 v%d, v24, 4, v23' % V_QR)
    g.e('v_lshrrev_b32 v24, 2, v21')
    g.e('v_lshlrev_b32 v24, 1, v24')
    g.e('v_and_b32 v25, 1, v21')
    g.e('v_add_u32 v24, v24, v25')
    g.e('v_lshl_add_u32 v%d, v24, 4, v23' % V_KR)
    g.e('v_lshrrev_b32 v23, 1, v22')
    g.e('v_lshlrev_b32 v23, 7, v23')
    g.e('v_lshl_add_u32 v23, v21, 4, v23')
    g.e('v_and_b32 v24, 1, v22')
    g.e('v_lshl_add_u32 v23, v24, 3, v23')
    g.e('s_add_u32 %s, %s, %d' % (sr(S_T1), sr(S_W512), C_O))
    g.e('v_add_u32 v23, %s, v23' % sr(S_T1))
    g.e('v_lshlrev_b32 v24, 3, v19')
    g.e('v_add_u32 v24, %d, v24' % C_MST)
    g.e('v_cmp_gt_u32 vcc, 8, v21')
    g.nop(2)
    g.e('v_cndmask_b32 v%d, v24, v23, vcc' % V_OW)
    g.e('v_lshlrev_b32 v23, 4, v21')
    g.e('v_lshl_add_u32 v23, v22, 2, v23')
    g.e('v_add_u32 v%d, %s, v23' % (V_VW, sr(S_W512)))
    g.e('s_lshl_b32 %s, %s, 3' % (sr(S_T1), W))
    g.e('v_add_u32 v23, %s, v22' % sr(S_T1))
    g.e('v_mul_u32_u24 v23, %d, v23' % PB2_STRIDE)
    g.e('v_lshl_add_u32 v23, v21, 4, v23')
    g.e('s_lshl_b32 %s, %s, 8' % (sr(S_T1), H))
    g.e('s_add_u32 %s, %s, 0x%x' % (sr(S_T1), sr(S_T1), WS_PB))
    g.e('v_add_u32 v%d, %s, v23' % (V_PS, sr(S_T1)))
    g.e('s_mov_b32 %s, %d' % (sr(S_U), 4 * PB2_STRIDE))
    g.e('s_mul_i32 %s, %s, %d' % (sr(S_PL), H, PB2_STRIDE))
    g.e('s_lshl_b32 %s, %s, 6' % (sr(S_T1), W))
    g.e('s_add_u32 %s, %s, %s' % (sr(S_PL), sr(S_PL), sr(S_T1)))
    g.e('s_add_u32 %s, %s, 0x%x' % (sr(S_PL), sr(S_PL), WS_PB))
    g.e('s_add_u32 %s, %s, 4096' % (sr(S_PL2), sr(S_PL)))
    g.e('v_lshrrev_b32 v23, 2, v20')
    g.e('v_lshlrev_b32 v23, 8, v23')
    g.e('v_and_b32 v24, 3, v20')
    g.e('v_lshl_add_u32 v%d, v24, 4, v23' % V_PLD)
    g.e('s_lshr_b32 %s, %s, 2' % (sr(S_T2), H))
    g.e('s_lshl_b32 %s, %s, 10' % (sr(S_T2), sr(S_T2)))
    g.e('s_lshl_b32 %s, %s, 8' % (sr(S_T3), W))
    g.e('s_add_u32 %s, %s, %s' % (sr(S_T2), sr(S_T2), sr(S_T3)))
    g.e('s_and_b32 %s, %s, 3' % (sr(S_T3), H))
    g.e('s_lshl_b32 %s, %s, 1' % (sr(S_T3), sr(S_T3)))
    g.e('v_bfe_u32 v25, v20, 2, 2')
    g.e('v_add_u32 v27, %s, v25' % sr(S_T3))
    g.e('v_lshrrev_b32 v23, 1, v24')
    g.e('v_lshlrev_b32 v23, 7, v23')
    g.e('v_lshl_add_u32 v23, v27, 4, v23')
    g.e('v_and_b32 v26, 1, v24')
    g.e('v_lshl_add_u32 v23, v26, 3, v23')
    g.e('v_lshl_add_u32 v23, v22, 2, v23')
    g.e('v_add_u32 v23, %s, v23' % sr(S_T2))
    g.e('v_and_b32 v26, 0x28, v20')
    g.e('v_cmp_eq_u32 vcc, 0, v26')
    g.e('v_mov_b32 v26, 0x%x' % OOB)
    g.nop(1)
    g.e('v_cndmask_b32 v%d, v26, v23, vcc' % V_MS)
    g.e('s_mov_b32 %s, 0x00f000f0' % sr(S_P1M))
    g.e('s_mov_b32 %s, 0x00f000f0' % sr(S_P1M + 1))
    g.e('v_and_b32 v23, 31, v20')
    g.e('v_lshlrev_b32 v23, 6, v23')
    g.e('v_lshrrev_b32 v24, 5, v20')
    g.e('v_lshl_add_u32 v%d, v24, 24, v23' % V_WM)
    g.e('v_and_b32 v23, 1, v20')
    g.e('v_lshlrev_b32 v23, 4, v23')
    g.e('v_mov_b32 v24, 0x3f80')
    g.e('v_lshlrev_b32 v%d, v23, v24' % V_ONE)
    for d in range(4):
        mk = (3 << (2 * d)) * 0x00010001
        g.e('s_mov_b32 %s, 0x%x' % (sr(S_SELM + 2 * d), mk))
        g.e('s_mov_b32 %s, 0x%x' % (sr(S_SELM + 2 * d + 1), mk))
    g.e('v_bfe_u32 v23, v20, 1, 1')
    g.e('v_mov_b32 v24, 0x4444')
    g.e('v_mov_b32 v25, 0xeeee')
    g.e('v_cmp_eq_u32 vcc, 1, v23')
    g.nop(2)
    g.e('v_cndmask_b32 v%d, v24, v25, vcc' % V_IDX)
    g.e('s_mov_b32 %s, 0x3db504f3' % sr(S_SC))
    g.e('s_mov_b32 %s, 0x3db504f3' % sr(S_SC + 1))
    import struct
    c = struct.unpack('<I', struct.pack('<f', (128 ** -0.5) * 1.4426950408889634))[0]
    g.e('s_mov_b32 %s, 0x%x' % (sr(S_L2E), c))
    g.e('s_mov_b32 %s, 0x%x' % (sr(S_L2E + 1), c))
    g.e('s_lshl_b32 %s, %s, 11' % (sr(S_T2), W))
    g.e('s_add_u32 %s, %s, %d' % (sr(S_M0KX), sr(S_T2), C_KX))
    g.e('s_add_u32 %s, %s, %d' % (sr(S_M0VX), sr(S_T2), C_VX))
    g.e('s_lshl_b32 %s, %s, 13' % (sr(S_T3), H))
    g.e('s_add_u32 %s, %s, %s' % (sr(S_KXO), sr(S_T3), sr(S_T2)))
    g.e('s_add_u32 %s, %s, 0x%x' % (sr(S_KXO), sr(S_KXO), WS_KX))
    g.e('s_lshl_b32 %s, %s, 12' % (sr(S_T3), H))
    g.e('s_add_u32 %s, %s, %s' % (sr(S_KVO), sr(S_T3), sr(S_W1K)))
    g.e('s_add_u32 %s, %s, 0x%x' % (sr(S_KVO), sr(S_KVO), WS_KV))
    g.e('s_lshl_b32 %s, %s, 7' % (sr(S_T2), H))
    g.e('s_add_u32 %s, %s, 0x%x' % (sr(S_F1), sr(S_T2), WS_FLAGS + F1_OFF))
    g.e('s_lshl_b32 %s, %s, 2' % (sr(S_T3), W))
    g.e('s_add_u32 %s, %s, %s' % (sr(S_F2), sr(S_T2), sr(S_T3)))
    g.e('s_add_u32 %s, %s, 0x%x' % (sr(S_F2), sr(S_F2), WS_FLAGS + F2_OFF))
    for i in range(4):
        g.e('v_mov_b32 v%d, 0' % (28 + i))
    g.e('buffer_store_dwordx4 v[28:31], v%d, %s, %s offen' % (V_PLD, sr(SRD_WS, 4), sr(S_PL)))
    g.e('buffer_store_dwordx4 v[28:31], v%d, %s, %s offen' % (V_PLD, sr(SRD_WS, 4), sr(S_PL2)))
    g.e('v_mov_b32 v32, -1')
    for slot in (1, 2):
        g.e('s_mov_b32 %s, 0x%x' % (sr(S_T0), WS_M2 + slot * 8192))
        g.e('buffer_store_dword v32, v%d, %s, %s offen' % (V_MS, sr(SRD_WS, 4), sr(S_T0)))
    make_srd(g, SRD_A, S_MEM0, 8192)
    g.e('s_lshr_b32 %s, %s, 2' % (sr(S_T2), H))
    g.e('s_lshl_b32 %s, %s, 7' % (sr(S_T2), sr(S_T2)))
    g.e('s_lshl_b32 %s, %s, 3' % (sr(S_T3), W))
    g.e('s_add_u32 %s, %s, %s' % (sr(S_T2), sr(S_T2), sr(S_T3)))
    g.e('v_and_b32 v23, 3, v20')
    g.e('v_lshlrev_b32 v23, 1, v23')
    g.e('v_and_b32 v24, 1, v22')
    g.e('v_lshl_add_u32 v23, v24, 6, v23')
    g.e('v_and_b32 v24, 7, v27')
    g.e('v_lshl_add_u32 v23, v24, 10, v23')
    g.e('buffer_load_ushort v24, v23, %s, %s offen' % (sr(SRD_A, 4), sr(S_T2)))
    g.e('buffer_load_ushort v25, v23, %s, %s offen offset:32' % (sr(SRD_A, 4), sr(S_T2)))
    g.e('s_waitcnt vmcnt(0)')
    g.e('v_lshl_or_b32 v24, v25, 16, v24')
    g.e('v_min_u32 v24, -2, v24')
    g.e('s_mov_b32 %s, 0x%x' % (sr(S_T0), WS_M2))
    g.e('buffer_store_dword v24, v%d, %s, %s offen' % (V_MS, sr(SRD_WS, 4), sr(S_T0)))
    l = g.newlabel('L_if')
    g.e('s_cmp_lg_u32 %s, 0' % sr(S_WAVE))
    g.e('s_cbranch_scc1 %s' % l)
    g.e('v_and_b32 v33, 31, v20')
    g.e('v_lshlrev_b32 v33, 2, v33')
    g.e('v_lshrrev_b32 v34, 5, v20')
    g.e('v_lshl_add_u32 v33, v34, 12, v33')
    g.e('buffer_store_dword v28, v33, %s, %s offen sc1' % (sr(SRD_WS, 4), sr(S_F1)))
    g.e('v_lshlrev_b32 v33, 11, v20')
    g.e('s_and_b32 %s, %s, 15' % (sr(S_T0), sr(S_RANK)))
    g.e('s_lshl_b32 %s, %s, 7' % (sr(S_T0), sr(S_T0)))
    g.e('s_add_u32 %s, %s, 0x%x' % (sr(S_T0), sr(S_T0), WS_FLAGS + 8192))
    g.e('s_mov_b64 exec, 15')
    g.e('buffer_store_dword v28, v33, %s, %s offen sc1' % (sr(SRD_WS, 4), sr(S_T0)))
    g.e('s_mov_b64 exec, -1')
    g.label(l)
    g.e('s_waitcnt vmcnt(0)')
    g.e('s_barrier')
    l = g.newlabel('L_if')
    g.e('s_cmp_lg_u32 %s, 0' % sr(S_WAVE))
    g.e('s_cbranch_scc1 %s' % l)
    g.e('s_mov_b64 exec, 1')
    g.e('v_mov_b32 v28, 128')
    g.e('v_mov_b32 v29, 1')
    g.e('global_atomic_add v28, v29, %s' % sr(S_DBG, 2))
    g.e('s_mov_b64 exec, -1')
    g.label(l)


def load_weights(g, opt):
    W = sr(S_WAVE)
    H = sr(S_RANK)
    TB = 64
    g.e('s_lshr_b32 %s, %s, 1' % (sr(S_T0), W))
    g.e('s_lshl_b32 %s, %s, 6' % (sr(S_T0), sr(S_T0)))
    g.e('s_and_b32 %s, %s, 1' % (sr(S_T1), W))
    g.e('s_lshl_b32 %s, %s, 3' % (sr(S_T1), sr(S_T1)))
    g.e('s_add_u32 %s, %s, %s' % (sr(S_T0), sr(S_T0), sr(S_T1)))
    g.e('v_lshlrev_b32 v24, 4, v22')
    g.e('v_add_u32 v24, %s, v24' % sr(S_T0))
    g.e('v_lshlrev_b32 v24, 13, v24')
    g.e('v_bfe_u32 v23, v20, 4, 1')
    g.e('v_lshlrev_b32 v25, 1, v23')
    g.e('v_xor_b32 v25, v25, v21')
    g.e('v_lshl_add_u32 v30, v25, 4, v24')
    for i in range(1, 4):
        g.e('v_xor_b32 v%d, %d, v30' % (30 + i, i * 64))
    g.e('s_and_b32 %s, %s, 1' % (sr(S_T0), W))
    g.e('s_lshl_b32 %s, %s, 7' % (sr(S_T0), sr(S_T0)))
    g.e('v_xor_b32 v34, %s, v%d' % (sr(S_T0), V_L16))
    g.e('s_lshl_b32 %s, %s, 13' % (sr(S_T0), W))
    g.e('v_add_u32 v34, %s, v34' % sr(S_T0))
    g.e('v_lshrrev_b32 v23, 2, v21')
    g.e('v_and_b32 v24, 3, v21')
    g.e('v_lshrrev_b32 v25, 1, v22')
    g.e('v_lshlrev_b32 v25, 4, v25')
    g.e('v_lshrrev_b32 v26, 1, v23')
    g.e('v_lshl_add_u32 v25, v26, 3, v25')
    g.e('v_and_b32 v27, 1, v22')
    g.e('v_lshl_add_u32 v25, v27, 2, v25')
    g.e('v_and_b32 v28, 1, v23')
    g.e('v_add_u32 v25, v25, v28')
    g.e('v_lshl_add_u32 v28, v27, 1, v28')
    g.e('v_lshl_add_u32 v28, v26, 2, v28')
    g.e('v_lshlrev_b32 v28, 1, v28')
    g.e('v_lshrrev_b32 v26, 1, v24')
    g.e('v_and_b32 v27, 1, v24')
    g.e('s_lshl_b32 %s, %s, 2' % (sr(S_T0), W))
    g.e('v_add_u32 v29, %s, v26' % sr(S_T0))
    g.e('v_xor_b32 v29, v29, v28')
    g.e('v_lshlrev_b32 v29, 4, v29')
    g.e('v_lshl_add_u32 v29, v27, 3, v29')
    g.e('v_lshl_add_u32 v35, v25, 8, v29')
    g.e('v_xor_b32 v36, 32, v35')
    g.e('v_xor_b32 v29, v26, v28')
    g.e('s_lshl_b32 %s, %s, 4' % (sr(S_T0), W))
    g.e('v_add_u32 v29, %s, v29' % sr(S_T0))
    g.e('v_lshlrev_b32 v29, 4, v29')
    g.e('v_lshl_add_u32 v29, v27, 3, v29')
    g.e('v_lshl_add_u32 v37, v25, 10, v29')

    chunks = [('V', c) for c in range(4)] + [('K', c) for c in range(4)] + [('Q', c) for c in range(4)] + [('O', c) for c in range(4)]
    ptr = {'V': S_WV, 'Q': S_WQ, 'K': S_WK, 'O': S_WO}
    srd = {'V': SRD_A, 'K': SRD_B, 'Q': SRD_A, 'O': SRD_B}

    def issue(ci):
        m, c = chunks[ci]
        ring = C_RING[ci % 3]
        if c == 0:
            make_srd(g, srd[m], ptr[m], 4 << 20)
        for i in range(8):
            g.e('s_lshl_b32 %s, %s, 13' % (sr(S_T0), W))
            g.e('s_add_u32 m0, %s, %d' % (sr(S_T0), ring + i * 1024))
            if m != 'O':
                g.e('s_lshl_b32 %s, %s, 8' % (sr(S_T1), H))
                g.e('s_add_u32 %s, %s, %d' % (sr(S_T1), sr(S_T1), (c * 128 + i) * 8192))
                g.e('buffer_load_dwordx4 v%d, %s, %s offen lds' % (30 + (i & 3), sr(srd[m], 4), sr(S_T1)))
            else:
                x = ((i & 1) | (((i >> 2) & 1) << 1)) * 32
                g.e('v_xor_b32 v38, %d, v34' % x)
                g.e('s_lshl_b32 %s, %s, 17' % (sr(S_T1), H))
                g.e('s_add_u32 %s, %s, %d' % (sr(S_T1), sr(S_T1), (c * 32 + i) * 1024))
                g.e('buffer_load_dwordx4 v38, %s, %s offen lds' % (sr(srd[m], 4), sr(S_T1)))

    for ci in range(3):
        issue(ci)
    for ci in range(16):
        m, c = chunks[ci]
        ring = C_RING[ci % 3]
        g.e('s_waitcnt vmcnt(%d)' % (8 * min(15 - ci, 2)))
        g.e('s_barrier')
        if m != 'O':
            g.e('v_add_u32 v38, %d, v35' % ring)
            g.e('v_add_u32 v39, %d, v36' % ring)
            for ksl in range(2):
                ks = 2 * c + ksl
                for t in range(2):
                    for sq in range(4):
                        off = (64 * ksl + 32 * (sq >> 1) + 2 * (sq & 1)) * 256
                        if m == 'V':
                            dst = ar(A_V0 + ks * 8 + sq * 2, 2) if t == 0 else vr(V_V1 + ks * 8 + sq * 2, 2)
                        elif m == 'K':
                            dst = ar(A_K + (t * 8 + ks) * 8 + sq * 2, 2)
                        elif t == 0:
                            dst = ar(A_Q0 + ks * 8 + sq * 2, 2)
                        else:
                            dst = vr(TB + ksl * 8 + sq * 2, 2)
                        g.e('ds_read_b64_tr_b16 %s, v%d offset:%d' % (dst, 38 + t, off))
            g.e('s_waitcnt lgkmcnt(0)')
            if m == 'Q':
                for ksl in range(2):
                    ks = 2 * c + ksl
                    g.e('ds_write_b128 v%d, %s offset:%d' % (V_WL, vr(TB + ksl * 8, 4), ks * 2048))
                    g.e('ds_write_b128 v%d, %s offset:%d' % (V_WL, vr(TB + ksl * 8 + 4, 4), ks * 2048 + 1024))
                g.e('s_waitcnt lgkmcnt(0)')
        else:
            ks2, hf = c >> 1, c & 1
            for tp in range(8):
                g.e('v_xor_b32 v38, %d, v37' % (tp * 32))
                g.e('v_add_u32 v38, %d, v38' % ring)
                for s1 in range(2):
                    if tp < 4:
                        dst = vr(V_WOL + (tp * 2 + ks2) * 8 + hf * 4 + s1 * 2, 2)
                    else:
                        dst = vr(TB + ((tp - 4) * 2 + ks2) * 8 + hf * 4 + s1 * 2, 2)
                    g.e('ds_read_b64_tr_b16 %s, v38 offset:%d' % (dst, 2 * s1 * 1024))
            g.e('s_waitcnt lgkmcnt(0)')
        g.e('s_barrier')
        if ci + 3 < 16:
            issue(ci + 3)
    g.e('v_add_u32 v38, 65536, v%d' % V_WL)
    for f in range(8):
        g.e('ds_write_b128 v38, %s offset:%d' % (vr(TB + f * 8, 4), f * 2048))
        g.e('ds_write_b128 v38, %s offset:%d' % (vr(TB + f * 8 + 4, 4), f * 2048 + 1024))
    g.e('s_waitcnt lgkmcnt(0)')


def dma_kxvx2(g, sc):
    g.e('s_mov_b32 m0, %s' % sr(S_M0KX))
    g.e('s_add_u32 %s, %s, 0x%x' % (sr(S_T0), sr(S_KXO), WS_VX - WS_KX))
    sc.vm('buffer_load_dwordx4 v%d, %s, %s offen sc1 lds' % (V_L16, sr(SRD_WS, 4), sr(S_KXO)))
    sc.vm('buffer_load_dwordx4 v%d, %s, %s offen offset:1024 sc1 lds' % (V_L16, sr(SRD_WS, 4), sr(S_KXO)))
    g.e('s_mov_b32 m0, %s' % sr(S_M0VX))
    g.e('s_add_u32 %s, %s, 0x40000' % (sr(S_KXO), sr(S_KXO)))
    sc.vm('buffer_load_dwordx4 v%d, %s, %s offen sc1 lds' % (V_L16, sr(SRD_WS, 4), sr(S_T0)))
    sc.vm('buffer_load_dwordx4 v%d, %s, %s offen offset:1024 sc1 lds' % (V_L16, sr(SRD_WS, 4), sr(S_T0)))


def ring_load(sc, idx, VK1):
    slot = RG + (idx % 6) * 8
    base, f = (V_WL, idx) if idx < 8 else (VK1, idx - 8)
    sc.ds('ds_read_b128 %s, v%d offset:%d' % (vr(slot, 4), base, f * 2048), None)
    sc.ds('ds_read_b128 %s, v%d offset:%d' % (vr(slot + 4, 4), base, f * 2048 + 1024), 'R%d' % idx)


def smf2(g, d, a, b):
    g.e('v_smfmac_f32_16x16x64_bf16 %s, %s, %s, v%d' % (vr(d, 4), vr(a, 4), b, V_IDX))


def xlane(g, op, MX, MT):
    for sw in ('v_permlane16_swap_b32', 'v_permlane32_swap_b32'):
        g.e('v_mov_b32 v%d, v%d' % (MT, MX))
        g.nop(2)
        g.e('%s v%d, v%d' % (sw, MT, MX))
        g.nop(1)
        g.e('%s v%d, v%d, v%d' % (op, MX, MX, MT))


def poll(g, opt, name, issue_fn, check_fn, fillers, cnt_sgpr, depth=3):
    NL = 2
    for d in range(depth):
        issue_fn()
        if d < len(fillers):
            for s in fillers[d]:
                g.e(s)
    for grp in fillers[depth:]:
        for s in grp:
            g.e(s)
    lp = g.newlabel('L_' + name)
    dn = g.newlabel('L_' + name + 'd')
    if opt.get('ts'):
        g.e('s_mov_b32 %s, 0' % cnt_sgpr)
    g.label(lp)
    if opt.get('ts'):
        g.e('s_add_u32 %s, %s, 1' % (cnt_sgpr, cnt_sgpr))
    g.e('s_waitcnt vmcnt(%d)' % (NL * (depth - 1)))
    check_fn()
    g.e('s_cbranch_vccz %s' % dn)
    g.e('s_mov_b64 exec, vcc')
    issue_fn()
    g.e('s_mov_b64 exec, -1')
    g.guard()
    g.e('s_branch %s' % lp)
    g.label(dn)


def loop(g, opt):
    sc = Sched(g)
    VK1 = V_WD
    g.e('v_add_u32 v%d, 65536, v%d' % (VK1, V_WL))
    g.e('s_mov_b32 %s, 0' % sr(S_STEP))
    g.e('s_mov_b32 %s, 1' % sr(S_PHASE))
    g.e('s_mov_b32 %s, 0x%x' % (sr(S_M2R), WS_M2))
    g.e('s_mov_b32 %s, 0x%x' % (sr(S_M2W), WS_M2 + 8192))
    g.e('s_mov_b32 %s, 0x%x' % (sr(S_M2Z), WS_M2 + 16384))
    l = g.newlabel('L_spin')
    g.e('v_mov_b32 v%d, 128' % PM)
    g.label(l)
    g.guard()
    g.e('global_load_dword v%d, v%d, %s sc1' % (PM + 1, PM, sr(S_DBG, 2)))
    g.e('s_waitcnt vmcnt(0)')
    g.e('v_readfirstlane_b32 %s, v%d' % (sr(S_T0), PM + 1))
    g.nop(3)
    g.e('s_cmp_lt_u32 %s, 32' % sr(S_T0))
    g.e('s_cbranch_scc1 %s' % l)

    def f1_spin(off_reg):
        l = g.newlabel('L_f1')
        g.e('v_mov_b32 v%d, 0' % A0)
        g.label(l)
        g.guard()
        g.e('buffer_load_dword v%d, v%d, %s, %s offen sc1' % (V_FL, A0, sr(SRD_WS, 4), off_reg))
        g.e('s_waitcnt vmcnt(0)')
        g.e('v_readfirstlane_b32 %s, v%d' % (sr(S_T1), V_FL))
        g.nop(3)
        g.e('s_cmp_eq_u32 %s, 0' % sr(S_T1))
        g.e('s_cbranch_scc1 %s' % l)
    if not opt.get('nof1'):
        f1_spin(sr(S_F1))
    g.e('s_barrier')
    dma_kxvx2(g, sc)
    g.e('v_mov_b32 v%d, 1' % V_FL)
    if opt.get('rt'):
        g.e('s_memrealtime s[4:5]')
        g.e('s_waitcnt lgkmcnt(0)')
    for idx in range(6):
        ring_load(sc, idx, VK1)
    g.e('s_branch L_hop2')

    g.label('L_step')
    sc.l = []
    ts2(g, opt, 'start')
    for ks in range(8):
        sc.ds('ds_read_b128 %s, v%d offset:%d' % (vr(A0 + ks * 4, 4), V_AF, C_MST + ks * 1024), 'A%d' % ks)
    HK = VT0
    fillQ = [
        [('ds', 'ds_read_b128 %s, v%d offset:%d' % (vr(PM, 4), HK, C_K), 'PUB')],
        ['buffer_store_dword v%d, v%d, %s, %s offen' % (HK + 1, V_MS, sr(SRD_WS, 4), sr(S_M2Z))],
        ['buffer_load_dword v%d, v%d, %s, %s offen sc1' % (V_FL, V_WM, sr(SRD_WS, 4), sr(S_H0))],
        ([] if opt.get('nof1') else
         ['buffer_load_dword v%d, v%d, %s, %s offen sc1' % (V_FL, HK + 2, sr(SRD_WS, 4), sr(S_H1))]),
        ['buffer_store_dword v%d, v%d, %s, %s offen sc1' % (HK + 3, HK + 2, sr(SRD_WS, 4), sr(S_F2))],
        [],
        [('wl', 'PUB'),
         'buffer_store_dwordx4 %s, v%d, %s, %s offen sc1' % (vr(PM, 4), V_L16, sr(SRD_WS, 4), sr(S_H2))],
        [],
    ]

    def emit_fill(grp):
        for s in grp:
            if isinstance(s, tuple):
                if s[0] == 'ds':
                    sc.ds(s[1], s[2])
                elif s[0] == 'wl':
                    sc.wl(s[1])
                elif s[0] == 'bar':
                    g.e('s_barrier')
            else:
                g.e(s)

    SL = lambda i: RG + i * 8
    KXF = lambda T, k4: SL(2 + 2 * T + (k4 >> 1)) + (k4 & 1) * 4
    SX0, SX1, SM = SL(0), SL(0) + 4, SL(1)
    MXX, MTT = SL(1) + 4, SL(1) + 5
    for ks in range(8):
        sc.wl('A%d' % ks)
        smf2(g, Q0, A0 + ks * 4, ar(A_Q0 + ks * 8, 8))
        if fillQ:
            emit_fill(fillQ.pop(0))
        sc.wl('R%d' % ks)
        smf2(g, Q1, A0 + ks * 4, vr(SL(ks % 6), 8))
        if ks < 2:
            ring_load(sc, ks + 6, VK1)
        if 2 <= ks <= 5:
            T, hh = (ks - 2) >> 1, (ks - 2) & 1
            for e in range(2):
                k4 = 2 * hh + e
                sc.ds('ds_read_b128 %s, v%d offset:%d' % (vr(KXF(T, k4), 4), V_L16, C_KX + (T * 4 + k4) * 1024), 'KX%d_%d' % (T, k4))
    assert not fillQ
    ts2(g, opt, 'q', True)
    QF = [Q0, Q1, PM, PM + 4]

    def fin(accs, base0, tag):
        o = []
        for acc, base in ((accs[0], base0), (accs[1], base0 + 256)):
            o.append(['v_pk_add_f32 %s, %s, %s' % (vr(acc, 2), vr(acc, 2), vr(acc + 2, 2)),
                      'v_cvt_pk_bf16_f32 v%d, v%d, v%d' % (acc, acc, acc + 1)])
            o.append([('ds', 'ds_write_b16 v%d, v%d offset:%d' % (V_QW, acc, base), None),
                      ('ds', 'ds_write_b16_d16_hi v%d, v%d offset:%d' % (V_QW, acc, base + 16), tag)])
        return o
    fin_q = fin((Q0, Q1), C_Q, 'QW')
    fillK = {
        (0, 0): ['s_nop 1'], (0, 1): ['s_nop 2'],
        (1, 0): fin_q[0], (1, 1): fin_q[1], (2, 0): fin_q[2], (2, 1): fin_q[3],
        (6, 0): ['v_mov_b64 %s, 0' % vr(VT0, 2)], (6, 1): ['v_mov_b64 %s, 0' % vr(VT0 + 2, 2)],
        (7, 0): ['v_mov_b64 %s, 0' % vr(VT1, 2)], (7, 1): ['v_mov_b64 %s, 0' % vr(VT1 + 2, 2)],
        (4, 0): [('wl', 'QW'), ('bar',)],
        (4, 1): [('ds', 'ds_read_b128 %s, v%d offset:%d' % (vr(QF[k], 4), V_QR, C_Q + k * 512), 'QF%d' % k) for k in range(2)],
        (5, 0): [('ds', 'ds_read_b128 %s, v%d offset:%d' % (vr(QF[k], 4), V_QR, C_Q + k * 512), 'QF%d' % k) for k in range(2, 4)],
    }
    for ks in range(8):
        smf2(g, K0, A0 + ks * 4, ar(A_K + ks * 8, 8))
        emit_fill(fillK.get((ks, 0), []))
        smf2(g, K1, A0 + ks * 4, ar(A_K + (8 + ks) * 8, 8))
        emit_fill(fillK.get((ks, 1), []))
    ts2(g, opt, 'k', True)
    fin_k = fin((K0, K1), C_K, 'KW')
    fillX = {1: ['s_nop 3'], 2: fin_k[0], 3: fin_k[1], 4: fin_k[2], 5: fin_k[3]}
    n = 0
    for T, S_ in ((0, SX0), (1, SX1)):
        for k4 in range(4):
            sc.wl('QF%d' % k4)
            sc.wl('KX%d_%d' % (T, k4))
            g.e('v_mfma_f32_16x16x32_bf16 %s, %s, %s, %s' % (vr(S_, 4), vr(KXF(T, k4), 4), vr(QF[k4], 4), '0' if k4 == 0 else vr(S_, 4)))
            emit_fill(fillX.get(n, []))
            n += 1
    vq = [(t, ks) for ks in range(8) for t in range(2)]

    def vsmf(k=1):
        for _ in range(k):
            if vq:
                t, ks = vq.pop(0)
                smf2(g, VT0 + 4 * t, A0 + ks * 4, ar(A_V0 + ks * 8, 8) if t == 0 else vr(V_V1 + ks * 8, 8))

    WH = [SL(5), SL(2), SL(3), PM, SL(0), SL(1), SL(4), A0 + 16]

    def wh_load(f):
        sc.ds('ds_read_b128 %s, v%d offset:%d' % (vr(WH[f], 4), VK1, f * 2048), None)
        sc.ds('ds_read_b128 %s, v%d offset:%d' % (vr(WH[f] + 4, 4), VK1, f * 2048 + 1024), 'WH%d' % f)
    ts2(g, opt, 'xsc', True)
    vsmf(2)
    sc.wl('KW')
    g.e('s_barrier')
    ts2(g, opt, 'kbar', True)
    KMF = lambda k4: KXF(0, k4)
    for k4 in range(4):
        sc.ds('ds_read_b128 %s, v%d offset:%d' % (vr(KMF(k4), 4), V_KR, C_K + k4 * 512), 'KM%d' % k4)
    vsmf(1)
    VXF = SL(4)
    g.e('v_add_u32 v%d, %s, v%d' % (K0, sr(S_M0VX), V_L16))
    sc.ds('ds_read_b128 %s, v%d' % (vr(VXF, 4), K0), None)
    sc.ds('ds_read_b128 %s, v%d offset:1024' % (vr(VXF + 4, 4), K0), 'VX')
    vsmf(1)
    S = [SX0 + i for i in range(8)]
    g.e('v_max3_f32 v%d, v%d, v%d, v%d' % (MXX, S[0], S[1], S[2]))
    g.e('v_max3_f32 v%d, v%d, v%d, v%d' % (MTT, S[3], S[4], S[5]))
    vsmf(1)
    g.e('v_max3_f32 v%d, v%d, v%d, v%d' % (MXX, MXX, S[6], S[7]))
    g.e('v_max_f32 v%d, v%d, v%d' % (MXX, MXX, MTT))
    vsmf(1)
    wh_load(0)
    g.e('v_mov_b32 v%d, 0x3f803f80' % K0)
    g.e('v_mov_b32 v%d, 0x3f803f80' % (K0 + 1))
    g.e('v_mov_b64 %s, %s' % (vr(K0 + 2, 2), vr(K0, 2)))
    for k4 in range(4):
        sc.wl('KM%d' % k4)
        g.e('v_mfma_f32_16x16x32_bf16 %s, %s, %s, %s' % (vr(SM, 4), vr(KMF(k4), 4), vr(QF[k4], 4), '0' if k4 == 0 else vr(SM, 4)))
    vsmf(1)
    wh_load(1)
    vsmf(1)
    wh_load(2)
    vsmf(1)
    g.nop(1)
    ts2(g, opt, 'msc', True)
    g.e('v_max3_f32 v%d, v%d, v%d, v%d' % (MXX, MXX, SM, SM + 1))
    for sw in ('v_permlane16_swap_b32', 'v_permlane32_swap_b32'):
        g.e('v_mov_b32 v%d, v%d' % (MTT, MXX))
        vsmf(1)
        g.nop(1)
        g.e('%s v%d, v%d' % (sw, MTT, MXX))
        g.nop(1)
        g.e('v_max_f32 v%d, v%d, v%d' % (MXX, MXX, MTT))
    ts2(g, opt, 'max', True)
    g.e('v_mul_f32 v%d, %s, v%d' % (MXX, sr(S_L2E), MXX))
    g.e('v_mov_b32 v%d, v%d' % (MTT, MXX))
    SA = S + [SM, SM + 1]
    for i in range(5):
        g.e('v_pk_fma_f32 %s, %s, %s, %s neg_lo:[0,0,1] neg_hi:[0,0,1]' % (vr(SA[2 * i], 2), vr(SA[2 * i], 2), sr(S_L2E, 2), vr(MXX, 2)))
        if i % 2 == 1:
            vsmf(1)
    for i in range(10):
        g.e('v_exp_f32 v%d, v%d' % (SA[i], SA[i]))
        if i % 3 == 1:
            vsmf(1)
    assert not vq, len(vq)
    ts2(g, opt, 'exp', True)
    VM0, VM1 = A0, A0 + 2
    PX, PMm, RINV = A0 + 4, A0 + 8, A0 + 10
    O0, O1, OP = A0 + 12, A0 + 16, A0 + 4
    ONES, SUMS = K0, K1
    for i in range(4):
        g.e('v_cvt_pk_bf16_f32 v%d, v%d, v%d' % (PX + i, SA[2 * i], SA[2 * i + 1]))
    g.e('v_cvt_pk_bf16_f32 v%d, v%d, v%d' % (PMm, SA[8], SA[9]))
    g.e('v_mov_b32 v%d, 0' % (PMm + 1))
    sc.wl('VX')
    g.e('v_mfma_f32_16x16x32_bf16 %s, %s, %s, 0' % (vr(SUMS, 4), vr(ONES, 4), vr(PX, 4)))
    g.e('v_pk_add_f32 %s, %s, %s' % (vr(VT0, 2), vr(VT0, 2), vr(VT0 + 2, 2)))
    g.e('v_mfma_f32_16x16x16_bf16 %s, %s, %s, %s' % (vr(SUMS, 4), vr(ONES, 2), vr(PMm, 2), vr(SUMS, 4)))
    g.e('v_pk_add_f32 %s, %s, %s' % (vr(VT1, 2), vr(VT1, 2), vr(VT1 + 2, 2)))
    g.e('v_mfma_f32_16x16x32_bf16 %s, %s, %s, 0' % (vr(O0, 4), vr(VXF, 4), vr(PX, 4)))
    g.e('v_cvt_pk_bf16_f32 v%d, v%d, v%d' % (VM0, VT0, VT0 + 1))
    g.e('v_cvt_pk_bf16_f32 v%d, v%d, v%d' % (VM1, VT1, VT1 + 1))
    g.e('v_mfma_f32_16x16x32_bf16 %s, %s, %s, 0' % (vr(O1, 4), vr(VXF + 4, 4), vr(PX, 4)))
    g.e('v_mov_b32 v%d, 0' % (VM0 + 1))
    g.e('v_mov_b32 v%d, 0' % (VM1 + 1))
    sc.ds('ds_write_b32 v%d, v%d offset:%d' % (V_VW, VM0, C_VM), None)
    g.e('v_rcp_f32 v%d, v%d' % (RINV, SUMS))
    g.e('v_mfma_f32_16x16x16_bf16 %s, %s, %s, %s' % (vr(O0, 4), vr(VM0, 2), vr(PMm, 2), vr(O0, 4)))
    g.e('v_mfma_f32_16x16x16_bf16 %s, %s, %s, %s' % (vr(O1, 4), vr(VM1, 2), vr(PMm, 2), vr(O1, 4)))
    sc.ds('ds_write_b32 v%d, v%d offset:%d' % (V_VW, VM1, C_VM + 256), None)
    g.e('s_cmp_eq_u32 %s, 63' % sr(S_STEP))
    g.e('s_cbranch_scc1 L_chain_done')
    ts2(g, opt, 'pv', True)
    WA = [ACC2 + 4 * i for i in range(6)] + [A0 + 24, A0 + 28]
    zl = ['v_mov_b64 %s, 0' % vr(WA[i // 2] + 2 * (i & 1), 2) for i in range(16)]
    g.e('v_mov_b32 v%d, v%d' % (RINV + 1, RINV))
    for _ in range(4):
        g.e(zl.pop(0))
    for i in range(4):
        g.e('v_pk_mul_f32 %s, %s, %s' % (vr(O0 + 2 * i, 2), vr(O0 + 2 * i, 2), vr(RINV, 2)))
    for i in range(4):
        g.e('v_cvt_pk_bf16_f32 v%d, v%d, v%d' % (OP + i, O0 + 2 * i, O0 + 2 * i + 1))
    sc.ds('ds_write_b64 v%d, %s' % (V_OW, vr(OP, 2)), None)
    sc.ds('ds_write_b64 v%d, %s offset:256' % (V_OW, vr(OP + 2, 2)), 'OW')
    ts2(g, opt, 'smax')
    wh_load(3)
    wh_load(4)
    for _ in range(6):
        g.e(zl.pop(0))
    sc.wl('OW')
    g.e('s_barrier')
    ts2(g, opt, 'obar')
    OA = A0 + 8
    sc.ds('ds_read_b128 %s, v%d offset:%d' % (vr(OA, 4), V_AF, C_O), 'OA0')
    sc.ds('ds_read_b128 %s, v%d offset:%d' % (vr(OA + 4, 4), V_AF, C_O + 1024), 'OA1')
    while zl:
        g.e(zl.pop(0))
    ST = [A0, A0 + 4]

    def post(u):
        ops = []
        for d in range(4):
            a = WA[4 * u + d]
            ops += ['v_pk_add_f32 %s, %s, %s' % (vr(a, 2), vr(a, 2), vr(a + 2, 2)),
                    'v_cvt_pk_bf16_f32 v%d, v%d, v%d' % (ST[u] + d, a, a + 1)]
            if d == 0:
                ops.append('v_bfi_b32 v%d, 1, %s, v%d' % (ST[u], sr(S_PHASE), ST[u]))
        ops.append('buffer_store_dwordx4 %s, v%d, %s, %s offen' % (vr(ST[u], 4), V_PS, sr(SRD_WS, 4), '0' if u == 0 else sr(S_U)))
        return ops
    side = []
    for f in (5, 6, 7):
        side.append(('ds', 'ds_read_b128 %s, v%d offset:%d' % (vr(WH[f], 4), VK1, f * 2048), None))
        side.append(('ds', 'ds_read_b128 %s, v%d offset:%d' % (vr(WH[f] + 4, 4), VK1, f * 2048 + 1024), 'WH%d' % f))
    g.e('s_mov_b32 m0, %s' % sr(S_M0KX))
    g.e('s_add_u32 %s, %s, 0x%x' % (sr(S_T0), sr(S_KXO), WS_VX - WS_KX))
    dm = ['buffer_load_dwordx4 v%d, %s, %s offen sc1 lds' % (V_L16, sr(SRD_WS, 4), sr(S_KXO)),
          'buffer_load_dwordx4 v%d, %s, %s offen offset:1024 sc1 lds' % (V_L16, sr(SRD_WS, 4), sr(S_KXO)),
          'buffer_load_dwordx4 v%d, %s, %s offen sc1 lds' % (V_L16, sr(SRD_WS, 4), sr(S_T0)),
          'buffer_load_dwordx4 v%d, %s, %s offen offset:1024 sc1 lds' % (V_L16, sr(SRD_WS, 4), sr(S_T0))]
    sc.wl('OA0')
    ts2(g, opt, 'oa', True)
    for d in range(4):
        smf2(g, WA[d], OA, vr(V_WOL + (d * 2) * 8, 8))
        emit_fill([side.pop(0)])
    sc.wl('OA1')
    for d in range(4):
        smf2(g, WA[d], OA + 4, vr(V_WOL + (d * 2 + 1) * 8, 8))
        if side:
            emit_fill([side.pop(0)])
        else:
            g.e(dm.pop(0))
    g.e('s_mov_b32 m0, %s' % sr(S_M0VX))
    ts2(g, opt, 'wo8', True)
    pp = post(0) + post(1)
    n = 0
    for d in range(4, 8):
        for ks2 in range(2):
            f = (d - 4) * 2 + ks2
            sc.wl('WH%d' % f)
            smf2(g, WA[d], OA + 4 * ks2, vr(WH[f], 8))
            if n < 2:
                g.e(dm.pop(0))
                g.nop(1)
            else:
                for _ in range(2):
                    g.e(pp.pop(0))
            n += 1
    ts2(g, opt, 'wo16', True)
    for i, s_ in enumerate(pp):
        if i == 5:
            g.nop(1)
        g.e(s_)
    g.e('s_add_u32 %s, %s, 0x40000' % (sr(S_KXO), sr(S_KXO)))
    ts2(g, opt, 'wo')
    if opt.get('ack'):
        g.e('s_waitcnt vmcnt(2)')
        ts2(g, opt, 'dmaack')
        g.e('s_waitcnt vmcnt(1)')
        ts2(g, opt, 'ack0')
        g.e('s_waitcnt vmcnt(0)')
        ts2(g, opt, 'ack1')
    SEL = A0 + 8
    RD = A0 + 12
    tt = 0
    for a in range(2):
        for b in range(2):
            for c_ in range(2):
                if (a ^ c_) | (b ^ c_):
                    tt |= 1 << (a * 4 + b * 2 + c_)
    PHV, CK = A0 + 16, A0 + 17

    def issue1():
        g.e('buffer_load_dwordx4 %s, v%d, %s, %s offen sc1' % (vr(PM, 4), V_PLD, sr(SRD_WS, 4), sr(S_PL)))
        g.e('buffer_load_dwordx4 %s, v%d, %s, %s offen sc1' % (vr(PM + 4, 4), V_PLD, sr(SRD_WS, 4), sr(S_PL2)))

    def check1():
        g.e('v_bitop3_b32 v%d, v%d, v%d, v%d bitop3:0x%x' % (CK, PM, PM + 4, PHV, tt))
        g.e('v_and_b32 v%d, 1, v%d' % (CK, CK))
        g.e('v_cmp_ne_u32 vcc, 0, v%d' % CK)
    sel = ['v_mov_b32 v%d, %s' % (PHV, sr(S_PHASE))]
    for d in range(4):
        sel += ['v_cndmask_b32 v%d, 0, v%d, %s' % (SEL + d, V_ONE, sr(S_SELM + 2 * d, 2))]
    rp = []
    for idx in range(6):
        rp.append('ds_read_b128 %s, v%d offset:%d' % (vr(SL(idx), 4), V_WL, idx * 2048))
        rp.append('ds_read_b128 %s, v%d offset:%d' % (vr(SL(idx) + 4, 4), V_WL, idx * 2048 + 1024))
    if opt.get('pd', 1) == 1:
        for s_ in sel:
            g.e(s_)
        if opt.get('ack'):
            ts2(g, opt, 'sel')
            issue1()
            g.e('s_waitcnt vmcnt(0)')
            ts2(g, opt, 'ld1')
            issue1()
            g.e('s_waitcnt vmcnt(0)')
            ts2(g, opt, 'ld2')
        poll(g, opt, 'p1', issue1, check1, [], 's80', depth=1)
    elif opt.get('pd') == 2:
        for s_ in sel[:7]:
            g.e(s_)
        poll(g, opt, 'p1', issue1, check1, [sel[7:] + rp[:4], []], 's80', depth=2)
        rp = rp[4:]
    else:
        for s_ in sel[:7]:
            g.e(s_)
        poll(g, opt, 'p1', issue1, check1, [sel[7:] + rp[:1], rp[1:6], []], 's80', depth=3)
        rp = rp[6:]
    ts2(g, opt, 'hop1')
    g.e('v_mfma_f32_16x16x32_bf16 %s, %s, %s, 0' % (vr(RD, 4), vr(SEL, 4), vr(PM, 4)))
    g.e('v_mfma_f32_16x16x32_bf16 %s, %s, %s, %s' % (vr(RD, 4), vr(SEL, 4), vr(PM + 4, 4), vr(RD, 4)))
    g.e('s_add_u32 %s, %s, 1' % (sr(S_STEP), sr(S_STEP)))
    g.e('s_mov_b32 %s, %s' % (sr(S_T0), sr(S_M2R)))
    g.e('s_mov_b32 %s, %s' % (sr(S_M2R), sr(S_M2W)))
    g.e('s_mov_b32 %s, %s' % (sr(S_M2W), sr(S_M2Z)))
    g.e('s_mov_b32 %s, %s' % (sr(S_M2Z), sr(S_T0)))
    g.e('s_xor_b32 %s, %s, 1' % (sr(S_PHASE), sr(S_PHASE)))
    g.nop(2)
    for ror in (4, 8):
        for i in range(4):
            g.e('v_add_f32_dpp v%d, v%d, v%d row_ror:%d row_mask:0xf bank_mask:0xf' % (RD + i, RD + i, RD + i, ror))
    g.e('v_cvt_pk_bf16_f32 v%d, v%d, v%d' % (RD, RD, RD + 2))
    g.e('v_cvt_pk_bf16_f32 v%d, v%d, v%d' % (RD + 1, RD + 1, RD + 3))
    g.e('v_cndmask_b32 v%d, v%d, v%d, %s' % (RD, RD, RD + 1, sr(S_P1M, 2)))
    g.e('v_min_u32 v%d, -2, v%d' % (RD, RD))
    g.e('buffer_store_dword v%d, v%d, %s, %s offen' % (RD, V_MS, sr(SRD_WS, 4), sr(S_M2R)))
    ts2(g, opt, 'red')
    if opt.get('ack'):
        g.e('s_waitcnt vmcnt(0)')
        ts2(g, opt, 'ack2')
    rp2 = rp
    g.label('L_hop2')
    g.e('s_lshl_b32 %s, %s, 11' % (sr(S_T3), sr(S_WAVE)))
    g.e('s_add_u32 %s, %s, %s' % (sr(S_T3), sr(S_T3), sr(S_M2R)))

    def issue2():
        g.e('buffer_load_dwordx4 %s, v%d, %s, %s offen sc1' % (vr(PM, 4), V_L16, sr(SRD_WS, 4), sr(S_T3)))
        g.e('buffer_load_dwordx4 %s, v%d, %s, %s offen offset:1024 sc1' % (vr(PM + 4, 4), V_L16, sr(SRD_WS, 4), sr(S_T3)))

    def check2():
        g.e('v_max3_u32 v%d, v%d, v%d, v%d' % (CK, PM, PM + 1, PM + 2))
        g.e('v_max3_u32 v%d, v%d, v%d, v%d' % (CK + 1, PM + 3, PM + 4, PM + 5))
        g.e('v_max3_u32 v%d, v%d, v%d, v%d' % (CK, CK, PM + 6, PM + 7))
        g.e('v_max_u32 v%d, v%d, v%d' % (CK, CK, CK + 1))
        g.e('v_cmp_eq_u32 vcc, -1, v%d' % CK)
    zr = ['v_mov_b64 %s, 0' % vr(ACC2 + 2 * i, 2) for i in range(8)]
    HK = VT0
    zr += ['v_add_u32 v%d, %s, v%d' % (HK, sr(S_W1K), V_L16),
           'v_mov_b32 v%d, -1' % (HK + 1),
           'v_mov_b32 v%d, 0' % (HK + 2),
           's_sub_u32 %s, %s, 1' % (sr(S_T0), sr(S_STEP)),
           's_max_i32 %s, %s, 0' % (sr(S_T0), sr(S_T0)),
           'v_mov_b32 v%d, %s' % (HK + 3, sr(S_T0)),
           's_cmp_ge_u32 %s, 63' % sr(S_STEP),
           's_cselect_b32 %s, 0x7ff00000, %s' % (sr(S_H0), sr(S_KXO)),
           's_add_u32 %s, %s, 2' % (sr(S_T0), sr(S_STEP)),
           's_min_u32 %s, %s, 63' % (sr(S_T0), sr(S_T0)),
           's_and_b32 %s, %s, 0xfffffffc' % (sr(S_T0), sr(S_T0)),
           's_add_u32 %s, %s, %s' % (sr(S_H1), sr(S_T0), sr(S_F1)),
           's_cmp_eq_u32 %s, 0' % sr(S_STEP),
           's_cselect_b32 %s, 0x7ff00000, %s' % (sr(S_H2), sr(S_KVO)),
           's_cselect_b32 %s, 0, 0x20000' % sr(S_T0),
           's_add_u32 %s, %s, %s' % (sr(S_KVO), sr(S_KVO), sr(S_T0))]
    lf = g.newlabel('L_flok')
    fl = ['v_readfirstlane_b32 %s, v%d' % (sr(S_T1), V_FL),
          'v_add_u32 v%d, %s, v%d' % (A0 + 20, sr(S_M0KX), V_L16),
          's_nop 1',
          's_cmp_lg_u32 %s, 0' % sr(S_T1)]
    fl2 = fl + ['s_mov_b32 %s, 0' % sr(S_T2) if opt.get('nof1') else 's_cselect_b32 %s, 0, 1' % sr(S_T2)]
    if opt.get('pd2', 1) == 1:
        for s_ in rp2:
            g.e(s_)
        poll(g, opt, 'p2', issue2, check2, [zr + fl2], 's81', depth=1)
    elif opt.get('pd2') == 2:
        for s_ in zr:
            g.e(s_)
        poll(g, opt, 'p2', issue2, check2, [rp2 + fl2, []], 's81', depth=2)
    else:
        for s_ in zr[:6]:
            g.e(s_)
        h_ = len(rp2) // 2
        poll(g, opt, 'p2', issue2, check2, [rp2[:h_] + zr[6:], rp2[h_:] + fl2, []], 's81', depth=3)
    g.e('ds_write_b128 v%d, %s offset:%d' % (A0 + 20, vr(PM, 4), C_MST))
    g.e('ds_write_b128 v%d, %s offset:%d' % (A0 + 20, vr(PM + 4, 4), C_MST + 1024))
    ts2(g, opt, 'hop2')
    ts2_flush(g, opt, A0 + 21)
    g.e('s_cmp_eq_u32 %s, 0' % sr(S_T2))
    g.e('s_cbranch_scc1 %s' % lf)
    g.e('s_add_u32 %s, %s, 1' % (sr(S_T0), sr(S_STEP)))
    g.e('s_min_u32 %s, %s, 63' % (sr(S_T0), sr(S_T0)))
    g.e('s_and_b32 %s, %s, 0xfffffffc' % (sr(S_T0), sr(S_T0)))
    g.e('s_add_u32 %s, %s, %s' % (sr(S_T2), sr(S_T0), sr(S_F1)))
    f1_spin(sr(S_T2))
    g.label(lf)
    g.e('s_waitcnt lgkmcnt(0)')
    g.e('s_barrier')
    g.e('s_branch L_step')
    g.label('L_chain_done')
    g.e('s_waitcnt lgkmcnt(0)')
    g.e('s_barrier')
    g.e('v_add_u32 v%d, %s, v%d' % (PM + 4, sr(S_W1K), V_L16))
    g.e('ds_read_b128 %s, v%d offset:%d' % (vr(PM, 4), PM + 4, C_K))
    g.e('s_waitcnt lgkmcnt(0)')
    g.e('buffer_store_dwordx4 %s, v%d, %s, %s offen sc1' % (vr(PM, 4), V_L16, sr(SRD_WS, 4), sr(S_KVO)))
    g.e('s_waitcnt vmcnt(0)')
    g.e('v_mov_b32 v%d, 64' % PM)
    g.e('v_mov_b32 v%d, 0' % (PM + 1))
    g.e('s_mov_b64 exec, 1')
    g.e('buffer_store_dword v%d, v%d, %s, %s offen sc1' % (PM, PM + 1, sr(SRD_WS, 4), sr(S_F2)))
    g.e('s_mov_b64 exec, -1')
    if opt.get('rt'):
        g.e('s_memrealtime s[98:99]')
        g.e('s_waitcnt lgkmcnt(0)')
        for i, r_ in enumerate((74, 76, 4, 98)):
            g.e('v_writelane_b32 v%d, s%d, %d' % (PM, r_, i))
        g.e('s_lshl_b32 %s, %s, 2' % (sr(S_T0), sr(S_RANK)))
        g.e('s_add_u32 %s, %s, %s' % (sr(S_T0), sr(S_T0), sr(S_WAVE)))
        g.e('s_lshl_b32 %s, %s, 8' % (sr(S_T0), sr(S_T0)))
        g.e('s_add_u32 %s, %s, 0x%x' % (sr(S_T0), sr(S_T0), WS_TS + 0x800000))
        g.e('v_lshrrev_b32 v%d, 2, v%d' % (PM + 1, V_L16))
        g.e('buffer_store_dword v%d, v%d, %s, %s offen' % (PM, PM + 1, sr(SRD_WS, 4), sr(S_T0)))
    g.e('s_branch L_exit')
```

```python
from gen import *

WS_QA = 0x6000000
WS_KA = 0x6200000
WS_VA = 0x6400000
WS_OA = 0x6600000
CA_OFF = 8192
CB_OFF = 8192 + 2048
CO_OFF = 8192 + 4096
FLAG_ZERO_BYTES = 8192 + 6144

N_BP = 512
N_AP = 64
N_AA = 128
N_AO = 64
NBIG = 12
N_BT = NBIG * 36
N_BF = (64 - 4 * NBIG) * 24
CS_OFF = 8192 + 6144
T_AP = N_BP
T_AA = T_AP + N_AP
T_AO = T_AA + N_AA
T_BT = T_AO + N_AO
T_BF = T_BT + N_BT
T_END = T_BF + N_BF

S_TASK = 52
S_R = 53
S_H = 54
S_AOFF = 55
S_BOFF = 56
S_KC = 59
S_X0, S_X1, S_X2, S_X3 = 60, 61, 62, 63
SRD_B0, SRD_B1, SRD_B2 = 80, 84, 88
SRD_OUT = 92
S_RET = 96
S_INIT = 98
S_LOG = 75
S_QN = 74

W_LANE = 1
W_AD = 2
W_BD = 6
W_AR = 8
W_BR = 12
W_T = 16
W_ACC = 64
STAGE = 65536


def wave0_begin(g):
    l = g.newlabel('L_w0')
    g.e('s_cmp_lg_u32 %s, 0' % sr(S_WAVE))
    g.e('s_cbranch_scc1 %s' % l)
    return l


def ensure_init(g):
    lw = g.newlabel('L_iw')
    ld = g.newlabel('L_id')
    g.e('s_cmp_lg_u32 %s, 0' % sr(S_INIT))
    g.e('s_cbranch_scc1 %s' % ld)
    g.e('v_mov_b32 v%d, 128' % W_T)
    g.label(lw)
    g.guard()
    g.e('global_load_dword v%d, v%d, %s sc1' % (W_T + 1, W_T, sr(S_DBG, 2)))
    g.e('s_waitcnt vmcnt(0)')
    g.e('v_readfirstlane_b32 %s, v%d' % (sr(S_X1), W_T + 1))
    g.nop(3)
    g.e('s_cmp_lt_u32 %s, 32' % sr(S_X1))
    g.e('s_cbranch_scc1 %s' % lw)
    g.e('s_mov_b32 %s, 1' % sr(S_INIT))
    g.label(ld)


def wait_ge(g, soff_expr_emit, target, sleep=8):
    ensure_init(g)
    l = g.newlabel('L_wait')
    g.e('v_mov_b32 v%d, 0' % W_T)
    g.label(l)
    g.guard()
    g.e('buffer_load_dword v%d, v%d, %s, %s offen sc1' % (W_T + 1, W_T, sr(SRD_WS, 4), sr(S_X0)))
    g.e('s_waitcnt vmcnt(0)')
    g.e('v_readfirstlane_b32 %s, v%d' % (sr(S_X1), W_T + 1))
    g.nop(3)
    g.e('s_cmp_ge_u32 %s, %s' % (sr(S_X1), target))
    d = g.newlabel('L_waitd')
    g.e('s_cbranch_scc1 %s' % d)
    g.e('s_sleep %d' % sleep)
    g.e('s_branch %s' % l)
    g.label(d)


def signal_add(g):
    g.e('s_waitcnt vmcnt(0)')
    g.e('s_barrier')
    l = wave0_begin(g)
    ensure_init(g)
    g.e('s_mov_b64 exec, 1')
    g.e('v_mov_b32 v%d, 0' % W_T)
    g.e('v_mov_b32 v%d, 1' % (W_T + 1))
    g.e('buffer_atomic_add v%d, v%d, %s, %s offen' % (W_T + 1, W_T, sr(SRD_WS, 4), sr(S_X0)))
    g.e('s_mov_b64 exec, -1')
    g.label(l)


def gemm_setup(g, strideA, strideB):
    L = W_LANE
    t = W_T
    g.e('v_lshrrev_b32 v%d, 3, v%d' % (t, L))
    g.e('s_mov_b32 %s, %d' % (sr(S_X0), strideA))
    g.e('v_mul_lo_u32 v%d, v%d, %s' % (t, t, sr(S_X0)))
    g.e('v_and_b32 v%d, 7, v%d' % (t + 1, L))
    g.e('v_lshrrev_b32 v%d, 4, v%d' % (t + 2, L))
    g.e('v_xor_b32 v%d, v%d, v%d' % (t + 1, t + 1, t + 2))
    g.e('v_lshl_add_u32 v%d, v%d, 4, v%d' % (t, t + 1, t))
    for i in range(4):
        g.e('v_xor_b32 v%d, %d, v%d' % (W_AD + i, (i & 1) * 64, t))
        if i:
            g.e('v_add_u32 v%d, %d, v%d' % (W_AD + i, 8 * i * strideA, W_AD + i))
    g.e('s_mov_b32 %s, %d' % (sr(S_X0), strideB))
    g.e('v_mul_lo_u32 v%d, v%d, %s' % (t, t + 2, sr(S_X0)))
    g.e('v_and_b32 v%d, 15, v%d' % (t + 1, L))
    g.e('v_lshlrev_b32 v%d, 2, v%d' % (t + 3, t + 2))
    g.e('v_xor_b32 v%d, v%d, v%d' % (t + 1, t + 1, t + 3))
    g.e('v_lshl_add_u32 v%d, v%d, 4, v%d' % (W_BD, t + 1, t))


def gemm_consts(g):
    L = W_LANE
    t = W_T
    g.e('v_and_b32 v%d, 31, v%d' % (t, L))
    g.e('v_bfe_u32 v%d, v%d, 1, 3' % (t + 1, L))
    g.e('v_lshrrev_b32 v%d, 5, v%d' % (t + 2, L))
    g.e('v_xor_b32 v%d, v%d, v%d' % (t + 1, t + 1, t + 2))
    g.e('v_lshlrev_b32 v%d, 7, v%d' % (t, t))
    g.e('v_lshl_add_u32 v%d, v%d, 4, v%d' % (t, t + 1, t))
    g.e('s_lshl_b32 %s, %s, 12' % (sr(S_X0), sr(S_WAVE)))
    g.e('v_add_u32 v%d, %s, v%d' % (t, sr(S_X0), t))
    for ks in range(4):
        g.e('v_xor_b32 v%d, %d, v%d' % (W_AR + ks, ks * 32, t))
    g.e('v_bfe_u32 v%d, v%d, 2, 2' % (t, L))
    g.e('v_lshl_add_u32 v%d, v%d, 3, v%d' % (t + 1, t + 2, t))
    g.e('v_lshlrev_b32 v%d, 8, v%d' % (t + 1, t + 1))
    g.e('v_bfe_u32 v%d, v%d, 4, 1' % (t + 3, L))
    g.e('v_bfe_u32 v%d, v%d, 1, 1' % (t + 4, L))
    g.e('v_lshl_add_u32 v%d, v%d, 1, v%d' % (t + 3, t + 3, t + 4))
    g.e('v_lshlrev_b32 v%d, 2, v%d' % (t + 4, t))
    g.e('v_xor_b32 v%d, v%d, v%d' % (t + 3, t + 3, t + 4))
    g.e('v_lshl_add_u32 v%d, v%d, 4, v%d' % (t + 1, t + 3, t + 1))
    g.e('v_and_b32 v%d, 1, v%d' % (t + 3, L))
    g.e('v_lshl_add_u32 v%d, v%d, 3, v%d' % (t + 1, t + 3, t + 1))
    g.e('v_add_u32 v%d, 16384, v%d' % (t + 1, t + 1))
    for tt in range(4):
        g.e('v_xor_b32 v%d, %d, v%d' % (W_BR + tt, tt * 64, t + 1))


def gemm_core(g, name, nb, nchunks, strideB, srdA, srdB, swap, asc1=False, warm=None):
    nt = 4 * nb
    NSTG = 2 if nb == 3 else 4
    STG = 65536 if nb == 3 else 32768
    nd = 4 + 4 * nb
    FB = [0, 64]
    FA = [48, 112]

    def dma(stage):
        base = stage * STG
        o = []
        pre = ['s_lshl_b32 %s, %s, 12' % (sr(S_X0), sr(S_WAVE)),
               's_lshl_b32 %s, %s, 7' % (sr(S_X1), sr(S_KC)),
               's_add_u32 %s, %s, %s' % (sr(S_X1), sr(S_X1), sr(S_AOFF))]
        for i in range(4):
            o.append(pre + ['s_add_u32 m0, %s, %d' % (sr(S_X0), base + i * 1024), 's_nop 0',
                            'buffer_load_dwordx4 v%d, %s, %s offen%s lds' % (W_AD + i, sr(srdA, 4), sr(S_X1), ' sc1' if asc1 else '')])
            pre = []
        pre = ['s_lshl_b32 %s, %s, 6' % (sr(S_X1), sr(S_KC)),
               's_lshl_b32 %s, %s, 4' % (sr(S_X2), sr(S_WAVE)),
               's_add_u32 %s, %s, %s' % (sr(S_X1), sr(S_X1), sr(S_X2)),
               's_mul_i32 %s, %s, %d' % (sr(S_X1), sr(S_X1), strideB)]
        for j in range(nb):
            pre = pre + ['s_add_u32 %s, %s, %s' % (sr(S_X2), sr(S_X1), sr(S_BOFF + j))]
            for i in range(4):
                o.append(pre + ['s_add_u32 m0, %s, %d' % (sr(S_X0), base + 16384 + j * 16384 + i * 1024),
                                's_add_u32 %s, %s, %d' % (sr(S_X3), sr(S_X2), 4 * i * strideB),
                                'buffer_load_dwordx4 v%d, %s, %s offen lds' % (W_BD, sr(srdB[j], 4), sr(S_X3))])
                pre = []
        return o

    def reads(ks, fs):
        o = ['ds_read_b128 %s, v%d' % (ar(FA[fs], 4), W_AR + ks)]
        for t in range(nt):
            j, tt = t >> 2, t & 3
            for s in range(2):
                o.append('ds_read_b64_tr_b16 %s, v%d offset:%d' % (ar(FB[fs] + t * 4 + s * 2, 2), W_BR + tt, (16 * ks + 4 * s) * 256 + j * 16384))
        return o

    def mfmas(fs, side, dq):
        nside = 0
        for t in range(nt):
            rem = 2 * (nt - 1 - t) + nside
            g.e('s_waitcnt lgkmcnt(%d)' % min(rem, 15))
            acc = vr(W_ACC + t * 16, 16)
            a, b = ar(FA[fs], 4), ar(FB[fs] + t * 4, 4)
            if swap[t >> 2]:
                a, b = b, a
            g.e('v_mfma_f32_32x32x16_bf16 %s, %s, %s, %s' % (acc, a, b, acc))
            k = 3 if t == 0 else 2
            for _ in range(k):
                if side:
                    g.e(side.pop(0))
                    nside += 1
            if dq and (t & 1) == 0:
                for s_ in dq.pop(0):
                    g.e(s_)

    for t in range(nt * 8):
        g.e('v_mov_b64 %s, 0' % vr(W_ACC + 2 * t, 2))
    for c in range(NSTG - 1):
        g.e('s_mov_b32 %s, %d' % (sr(S_KC), c))
        for grp in dma(c):
            for s_ in grp:
                g.e(s_)
    if warm is not None:
        strideA = warm
        t = W_T
        g.e('v_lshrrev_b32 v%d, 3, v%d' % (t, W_LANE))
        g.e('v_mul_u32_u24 v%d, %d, v%d' % (t, strideA, t))
        g.e('v_and_b32 v%d, 7, v%d' % (t + 1, W_LANE))
        g.e('v_lshl_add_u32 v%d, v%d, 7, v%d' % (t, t + 1, t))
        for i in range(4):
            g.e('s_add_u32 %s, %s, %d' % (sr(S_X0), sr(S_AOFF), 8 * i * strideA))
            g.e('buffer_load_dword v%d, v%d, %s, %s offen' % (t + 2, t, sr(srdA, 4), sr(S_X0)))
        g.e('v_lshrrev_b32 v%d, 1, v0' % t)
        g.e('v_mul_u32_u24 v%d, %d, v%d' % (t, strideB, t))
        g.e('v_and_b32 v%d, 1, v0' % (t + 1))
        g.e('v_lshl_add_u32 v%d, v%d, 7, v%d' % (t, t + 1, t))
        for i in range(4):
            for j in range(nb):
                g.e('s_add_u32 %s, %s, %d' % (sr(S_X0), sr(S_BOFF + j), 128 * i * strideB))
                g.e('buffer_load_dword v%d, v%d, %s, %s offen' % (t + 2, t, sr(srdB[j], 4), sr(S_X0)))
    g.e('s_mov_b32 %s, %d' % (sr(S_INIT + 2), NSTG - 2))
    loop = 'L_gl_%s' % name
    first = True
    if warm is not None:
        g.e('s_waitcnt vmcnt(%d)' % (4 + 4 * nb))
        g.e('s_branch %s_in' % loop)
    g.label(loop)
    for st in range(NSTG):
        g.e('s_waitcnt vmcnt(%d)' % ((NSTG - 2) * nd))
        if st == 0:
            g.label(loop + '_in')
        g.e('s_barrier')
        for s_ in reads(0, 0):
            g.e(s_)
        g.e('s_add_u32 %s, %s, 1' % (sr(S_INIT + 2), sr(S_INIT + 2)))
        g.e('s_min_u32 %s, %s, %d' % (sr(S_KC), sr(S_INIT + 2), nchunks - 1))
        dq = dma((st + NSTG - 1) % NSTG)
        for ks in range(4):
            mfmas(ks & 1, reads(ks + 1, (ks + 1) & 1) if ks < 3 else [], dq)
        assert not dq
        d = STG if st < NSTG - 1 else -(NSTG - 1) * STG
        for i in range(4):
            g.e('v_add_u32 v%d, 0x%x, v%d' % (W_AR + i, d & 0xffffffff, W_AR + i))
            g.e('v_add_u32 v%d, 0x%x, v%d' % (W_BR + i, d & 0xffffffff, W_BR + i))
    g.e('s_cmp_lt_u32 %s, %d' % (sr(S_INIT + 2), nchunks + NSTG - 2))
    g.e('s_cbranch_scc1 %s' % loop)
    g.e('s_waitcnt vmcnt(0)')
    g.nop(16)


def epi_ct_store(g, t, voff, srd, soff, ioff_fn, sc1):
    a = W_ACC + t * 16
    for gq in range(4):
        g.e('v_cvt_pk_bf16_f32 v%d, v%d, v%d' % (a + 4 * gq, a + 4 * gq, a + 4 * gq + 1))
        g.e('v_cvt_pk_bf16_f32 v%d, v%d, v%d' % (a + 4 * gq + 1, a + 4 * gq + 2, a + 4 * gq + 3))
    for gq in range(4):
        g.e('buffer_store_dwordx2 %s, v%d, %s, %s offen offset:%d%s' % (vr(a + 4 * gq, 2), voff, sr(srd, 4), soff, ioff_fn(gq), ' sc1' if sc1 else ''))


def epi_ct_store16(g, t, voff16, srd, soff, ioff_fn):
    a = W_ACC + t * 16
    for gq in range(4):
        g.e('v_cvt_pk_bf16_f32 v%d, v%d, v%d' % (a + 2 * gq, a + 4 * gq, a + 4 * gq + 1))
        g.e('v_cvt_pk_bf16_f32 v%d, v%d, v%d' % (a + 2 * gq + 1, a + 4 * gq + 2, a + 4 * gq + 3))
    g.nop(2)
    for j in range(2):
        g.e('v_permlane32_swap_b32 v%d, v%d' % (a + 4 * j, a + 4 * j + 2))
        g.e('v_permlane32_swap_b32 v%d, v%d' % (a + 4 * j + 1, a + 4 * j + 3))
    g.nop(1)
    for j in range(2):
        g.e('buffer_store_dwordx4 %s, v%d, %s, %s offen offset:%d sc1' % (vr(a + 4 * j, 4), voff16, sr(srd, 4), soff, ioff_fn(2 * j)))


def epi_v_store(g, t, voff, soff, ioff_fn):
    a = W_ACC + t * 16
    for q in range(2):
        d = W_T + 4 * q
        g.e('v_cvt_pk_bf16_f32 v%d, v%d, v%d' % (d, a + 4 * q, a + 4 * q + 1))
        g.e('v_cvt_pk_bf16_f32 v%d, v%d, v%d' % (d + 1, a + 4 * q + 2, a + 4 * q + 3))
        g.e('v_cvt_pk_bf16_f32 v%d, v%d, v%d' % (d + 2, a + 8 + 4 * q, a + 8 + 4 * q + 1))
        g.e('v_cvt_pk_bf16_f32 v%d, v%d, v%d' % (d + 3, a + 8 + 4 * q + 2, a + 8 + 4 * q + 3))
        for i in range(4):
            g.e('v_mov_b32 v%d, v%d' % (a + 4 * q + i if False else a + 8 * q + i, d + i)) if False else None
    for q in range(2):
        g.e('buffer_store_dwordx4 %s, v%d, %s, %s offen offset:%d sc1' % (vr(W_T + 4 * q, 4), voff, sr(SRD_WS, 4), soff, ioff_fn(q)))
    g.nop(2)


def task_bproj(g):
    g.label('L_t_bproj')
    g.e('s_lshr_b32 %s, %s, 5' % (sr(S_R), sr(S_TASK)))
    g.e('s_and_b32 %s, %s, 31' % (sr(S_H), sr(S_TASK)))
    make_srd(g, SRD_A, S_BX, 2 << 20)
    make_srd(g, SRD_B0, S_WQ, 4 << 20)
    make_srd(g, SRD_B1, S_WK, 4 << 20)
    make_srd(g, SRD_B2, S_WV, 4 << 20)
    gemm_setup(g, 1024, 8192)
    g.e('s_lshl_b32 %s, %s, 17' % (sr(S_AOFF), sr(S_R)))
    g.e('s_lshl_b32 %s, %s, 15' % (sr(S_X0), sr(S_WAVE)))
    g.e('s_add_u32 %s, %s, %s' % (sr(S_AOFF), sr(S_AOFF), sr(S_X0)))
    for j in range(3):
        g.e('s_lshl_b32 %s, %s, 8' % (sr(S_BOFF + j), sr(S_H)))
    gemm_core(g, 'bp', 3, 8, 8192, SRD_A, [SRD_B0, SRD_B1, SRD_B2], [1, 1, 0])
    t = W_T + 8
    L = W_LANE
    g.e('s_lshl_b32 %s, %s, 2' % (sr(S_X0), sr(S_R)))
    g.e('s_add_u32 %s, %s, %s' % (sr(S_X0), sr(S_X0), sr(S_WAVE)))
    g.e('s_lshl_b32 %s, %s, 5' % (sr(S_X0), sr(S_X0)))
    g.e('s_add_u32 %s, %s, %s' % (sr(S_X0), sr(S_X0), sr(S_H)))
    g.e('s_lshl_b32 %s, %s, 13' % (sr(S_X0), sr(S_X0)))
    g.e('s_add_u32 %s, %s, 0x%x' % (sr(S_X1), sr(S_X0), WS_QX))
    g.e('s_add_u32 %s, %s, 0x%x' % (sr(S_X2), sr(S_X0), WS_KX))
    g.e('s_add_u32 %s, %s, 0x%x' % (sr(S_X3), sr(S_X0), WS_VX))
    g.e('v_bfe_u32 v%d, v%d, 4, 1' % (t, L))
    g.e('v_lshlrev_b32 v%d, 12, v%d' % (t, t))
    g.e('v_and_b32 v%d, 15, v%d' % (t + 1, L))
    g.e('v_lshl_add_u32 v%d, v%d, 4, v%d' % (t, t + 1, t))
    g.e('v_lshrrev_b32 v%d, 5, v%d' % (t + 2, L))
    g.e('v_lshl_add_u32 v%d, v%d, 8, v%d' % (t, t + 2, t))
    g.e('v_bfe_u32 v%d, v%d, 4, 1' % (t + 3, L))
    g.e('v_lshl_add_u32 v%d, v%d, 2, v%d' % (t + 3, t + 3, t + 2))
    g.e('v_lshlrev_b32 v%d, 8, v%d' % (t + 3, t + 3))
    g.e('v_lshl_add_u32 v%d, v%d, 4, v%d' % (t + 3, t + 1, t + 3))
    for tt in range(4):
        epi_ct_store16(g, tt, t, SRD_WS, sr(S_X1), lambda gq, tt=tt: tt * 1024 + gq * 256)
        epi_ct_store16(g, 4 + tt, t, SRD_WS, sr(S_X2), lambda gq, tt=tt: tt * 1024 + gq * 256)
    for tt in range(4):
        if tt == 2:
            g.e('s_add_u32 %s, %s, 4096' % (sr(S_X3), sr(S_X3)))
        epi_v_store(g, 8 + tt, t + 3, sr(S_X3), lambda q, tt=tt: (tt & 1) * 2048 + q * 512)
    g.e('s_lshl_b32 %s, %s, 7' % (sr(S_X0), sr(S_H)))
    g.e('s_lshl_b32 %s, %s, 2' % (sr(S_X1), sr(S_R)))
    g.e('s_add_u32 %s, %s, %s' % (sr(S_X0), sr(S_X0), sr(S_X1)))
    g.e('s_add_u32 %s, %s, 0x%x' % (sr(S_X0), sr(S_X0), WS_FLAGS + F1_OFF))
    signal_add(g)
    g.e('s_branch L_next')


def task_aproj(g):
    g.label('L_t_aproj')
    g.e('s_sub_u32 %s, %s, %d' % (sr(S_X0), sr(S_TASK), T_AP))
    g.e('s_lshr_b32 %s, %s, 2' % (sr(S_R), sr(S_X0)))
    g.e('s_and_b32 %s, %s, 3' % (sr(S_H), sr(S_X0)))
    make_srd(g, SRD_A, S_AX, 2 << 20)
    make_srd(g, SRD_B0, S_AWQKV, 512 * 3072)
    gemm_setup(g, 1024, 3072)
    g.e('s_lshl_b32 %s, %s, 17' % (sr(S_AOFF), sr(S_R)))
    g.e('s_lshl_b32 %s, %s, 15' % (sr(S_X0), sr(S_WAVE)))
    g.e('s_add_u32 %s, %s, %s' % (sr(S_AOFF), sr(S_AOFF), sr(S_X0)))
    g.e('s_lshl_b32 %s, %s, 8' % (sr(S_BOFF), sr(S_H)))
    g.e('s_add_u32 %s, %s, 1024' % (sr(S_BOFF + 1), sr(S_BOFF)))
    g.e('s_add_u32 %s, %s, 2048' % (sr(S_BOFF + 2), sr(S_BOFF)))
    gemm_core(g, 'ap', 3, 8, 3072, SRD_A, [SRD_B0, SRD_B0, SRD_B0], [1, 1, 0])
    t = W_T + 8
    L = W_LANE
    g.e('v_and_b32 v%d, 31, v%d' % (t, L))
    g.e('v_lshlrev_b32 v%d, 5, v%d' % (t, t))
    g.e('v_lshrrev_b32 v%d, 5, v%d' % (t + 2, L))
    g.e('v_lshl_add_u32 v%d, v%d, 3, v%d' % (t, t + 2, t))
    g.e('v_add_u32 v%d, 65536, v%d' % (t + 4, t))
    g.e('s_lshl_b32 %s, %s, 2' % (sr(S_X0), sr(S_R)))
    g.e('s_add_u32 %s, %s, %s' % (sr(S_X0), sr(S_X0), sr(S_WAVE)))
    g.e('s_lshl_b32 %s, %s, 10' % (sr(S_X0), sr(S_X0)))
    g.e('s_lshl_b32 %s, %s, 19' % (sr(S_X1), sr(S_H)))
    g.e('s_add_u32 %s, %s, %s' % (sr(S_X0), sr(S_X0), sr(S_X1)))
    for tt in range(4):
        for blk, base in ((0, WS_QA), (1, WS_KA)):
            a = W_ACC + (4 * blk + tt) * 16
            g.e('s_add_u32 %s, %s, 0x%x' % (sr(S_X2), sr(S_X0), base + tt * 131072))
            for gq in range(4):
                g.e('v_cvt_pk_bf16_f32 v%d, v%d, v%d' % (a + 4 * gq, a + 4 * gq, a + 4 * gq + 1))
                g.e('v_cvt_pk_bf16_f32 v%d, v%d, v%d' % (a + 4 * gq + 1, a + 4 * gq + 2, a + 4 * gq + 3))
            for gq in range(4):
                g.e('buffer_store_dwordx2 %s, v%d, %s, %s offen offset:%d sc1' % (vr(a + 4 * gq, 2), t + 4 * (gq >> 1), sr(SRD_WS, 4), sr(S_X2), (gq & 1) * 16))
    g.e('v_bfe_u32 v%d, v%d, 4, 1' % (t + 3, L))
    g.e('v_lshlrev_b32 v%d, 16, v%d' % (t + 3, t + 3))
    g.e('v_lshl_add_u32 v%d, v%d, 8, v%d' % (t + 3, t + 2, t + 3))
    g.e('v_and_b32 v%d, 15, v%d' % (t + 1, L))
    g.e('v_lshl_add_u32 v%d, v%d, 4, v%d' % (t + 3, t + 1, t + 3))
    for tt in range(4):
        g.e('s_add_u32 %s, %s, 0x%x' % (sr(S_X3), sr(S_X0), WS_VA + tt * 131072))
        epi_v_store(g, 8 + tt, t + 3, sr(S_X3), lambda q: q * 512)
    g.e('s_lshl_b32 %s, %s, 7' % (sr(S_X0), sr(S_R)))
    g.e('s_add_u32 %s, %s, 0x%x' % (sr(S_X0), sr(S_X0), WS_FLAGS + CA_OFF))
    signal_add(g)
    g.e('s_branch L_next')


def task_out(g, name, label, a_base, a_stride, nchunks, w_ptr, w_bytes, out_col, cnt_off, cnt_target):
    g.label(label)
    l = wave0_begin(g)
    g.e('s_lshl_b32 %s, %s, 7' % (sr(S_X0), sr(S_R)))
    g.e('s_add_u32 %s, %s, 0x%x' % (sr(S_X0), sr(S_X0), WS_FLAGS + cnt_off))
    wait_ge(g, None, str(cnt_target), 16)
    g.label(l)
    g.e('s_barrier')
    make_srd(g, SRD_B0, w_ptr, w_bytes)
    make_srd(g, SRD_OUT, S_OUT, 2048 * 2048)
    gemm_setup(g, a_stride, 1024)
    g.e('s_lshl_b32 %s, %s, 2' % (sr(S_X0), sr(S_R)))
    g.e('s_add_u32 %s, %s, %s' % (sr(S_X0), sr(S_X0), sr(S_WAVE)))
    g.e('s_mul_i32 %s, %s, %d' % (sr(S_AOFF), sr(S_X0), 32 * a_stride))
    g.e('s_add_u32 %s, %s, 0x%x' % (sr(S_AOFF), sr(S_AOFF), a_base))
    g.e('s_lshl_b32 %s, %s, 8' % (sr(S_BOFF), sr(S_H)))
    gemm_core(g, name, 1, nchunks, 1024, SRD_WS, [SRD_B0], [1], asc1=True)
    t = W_T + 8
    L = W_LANE
    g.e('v_and_b32 v%d, 31, v%d' % (t, L))
    g.e('v_lshlrev_b32 v%d, 11, v%d' % (t, t))
    g.e('v_lshrrev_b32 v%d, 5, v%d' % (t + 2, L))
    g.e('v_lshl_add_u32 v%d, v%d, 3, v%d' % (t, t + 2, t))
    g.e('s_lshl_b32 %s, %s, 2' % (sr(S_X0), sr(S_R)))
    g.e('s_add_u32 %s, %s, %s' % (sr(S_X0), sr(S_X0), sr(S_WAVE)))
    g.e('s_lshl_b32 %s, %s, 16' % (sr(S_X0), sr(S_X0)))
    g.e('s_lshl_b32 %s, %s, 8' % (sr(S_X1), sr(S_H)))
    g.e('s_add_u32 %s, %s, %s' % (sr(S_X0), sr(S_X0), sr(S_X1)))
    g.e('s_add_u32 %s, %s, %d' % (sr(S_X0), sr(S_X0), out_col * 2))
    for tt in range(4):
        epi_ct_store(g, tt, t, SRD_OUT, sr(S_X0), lambda gq, tt=tt: tt * 64 + gq * 16, False)
    g.e('s_branch L_next')


def softmax_vals(g, S, C, MX, l2e_sgpr, xl, n_round2_scale=None):
    n = len(S)
    MT = MX + 1

    def rnd():
        for i in range(n // 2):
            c = C[i % len(C)]
            g.e('v_cvt_pk_bf16_f32 v%d, v%d, v%d' % (c, S[2 * i], S[2 * i + 1]))
            g.e('v_lshlrev_b32 v%d, 16, v%d' % (S[2 * i], c))
            g.e('v_and_b32 v%d, 0xffff0000, v%d' % (S[2 * i + 1], c))
    rnd()
    if n_round2_scale is not None:
        for i in range(n // 2):
            g.e('v_pk_mul_f32 %s, %s, %s' % (vr(S[2 * i], 2), vr(S[2 * i], 2), sr(n_round2_scale, 2)))
        rnd()


def softmax_rest(g, S, C, MX, l2e_sgpr, xl):
    n = len(S)
    MT = MX + 1
    g.e('v_max_f32 v%d, v%d, v%d' % (MX, S[0], S[1]))
    for i in range(2, n, 2):
        g.e('v_max3_f32 v%d, v%d, v%d, v%d' % (MX, MX, S[i], S[i + 1]))
    for sw in xl:
        g.e('v_mov_b32 v%d, v%d' % (MT, MX))
        g.nop(2)
        g.e('%s v%d, v%d' % (sw, MT, MX))
        g.nop(1)
        g.e('v_max_f32 v%d, v%d, v%d' % (MX, MX, MT))
    g.e('v_mov_b32 v%d, v%d' % (MT, MX))
    for i in range(n // 2):
        g.e('v_pk_add_f32 %s, %s, %s neg_lo:[0,1] neg_hi:[0,1]' % (vr(S[2 * i], 2), vr(S[2 * i], 2), vr(MX, 2)))
        g.e('v_pk_mul_f32 %s, %s, %s' % (vr(S[2 * i], 2), vr(S[2 * i], 2), sr(l2e_sgpr, 2)))
    for i in range(n):
        g.e('v_exp_f32 v%d, v%d' % (S[i], S[i]))
    g.nop(1)
    g.e('v_pk_add_f32 %s, %s, %s' % (vr(C[0], 2), vr(S[0], 2), vr(S[2], 2)))
    for i in range(2, n // 2):
        g.e('v_pk_add_f32 %s, %s, %s' % (vr(C[0], 2), vr(C[0], 2), vr(S[2 * i], 2)))
    g.e('v_add_f32 v%d, v%d, v%d' % (MX, C[0], C[0] + 1))
    for sw in xl:
        g.e('v_mov_b32 v%d, v%d' % (MT, MX))
        g.nop(2)
        g.e('%s v%d, v%d' % (sw, MT, MX))
        g.nop(1)
        g.e('v_add_f32 v%d, v%d, v%d' % (MX, MX, MT))
    g.e('v_rcp_f32 v%d, v%d' % (MX, MX))
    g.nop(1)
    g.e('v_mov_b32 v%d, v%d' % (MT, MX))
    for i in range(n // 2):
        g.e('v_pk_mul_f32 %s, %s, %s' % (vr(S[2 * i], 2), vr(S[2 * i], 2), vr(MX, 2)))


def task_aattn(g):
    g.label('L_t_aattn')
    g.e('s_sub_u32 %s, %s, %d' % (sr(S_X0), sr(S_TASK), T_AA))
    g.e('s_lshr_b32 %s, %s, 2' % (sr(S_AOFF), sr(S_X0)))
    g.e('s_and_b32 %s, %s, 3' % (sr(S_H), sr(S_X0)))
    g.e('s_lshr_b32 %s, %s, 1' % (sr(S_R), sr(S_AOFF)))
    l = wave0_begin(g)
    for back in range(3):
        g.e('s_sub_u32 %s, %s, %d' % (sr(S_X0), sr(S_R), back))
        g.e('s_max_i32 %s, %s, 0' % (sr(S_X0), sr(S_X0)))
        g.e('s_lshl_b32 %s, %s, 7' % (sr(S_X0), sr(S_X0)))
        g.e('s_add_u32 %s, %s, 0x%x' % (sr(S_X0), sr(S_X0), WS_FLAGS + CA_OFF))
        wait_ge(g, None, '4', 8)
    g.label(l)
    g.e('s_barrier')
    L = W_LANE
    S_QT, S_A, S_HH = S_BOFF, S_BOFF + 1, S_BOFF + 2
    g.e('s_lshl_b32 %s, %s, 2' % (sr(S_QT), sr(S_AOFF)))
    g.e('s_add_u32 %s, %s, %s' % (sr(S_QT), sr(S_QT), sr(S_WAVE)))
    g.e('s_lshr_b32 %s, %s, 1' % (sr(S_A), sr(S_QT)))
    VQK, VL16, VD, VO = 2, 3, 4, 5
    g.e('v_and_b32 v6, 15, v%d' % L)
    g.e('v_lshrrev_b32 v7, 4, v%d' % L)
    g.e('v_lshlrev_b32 v%d, 5, v6' % VQK)
    g.e('v_lshl_add_u32 v%d, v7, 3, v%d' % (VQK, VQK))
    g.e('v_lshlrev_b32 v%d, 4, v%d' % (VL16, L))
    g.e('s_and_b32 %s, %s, 1' % (sr(S_X0), sr(S_QT)))
    g.e('s_lshl_b32 %s, %s, 4' % (sr(S_X0), sr(S_X0)))
    g.e('s_add_u32 %s, %s, 256' % (sr(S_X0), sr(S_X0)))
    g.e('v_add_u32 v%d, %s, v6' % (VD, sr(S_X0)))
    g.e('v_lshlrev_b32 v8, 2, v7')
    g.e('v_sub_u32 v%d, v%d, v8' % (VD, VD))
    g.e('v_lshlrev_b32 v%d, 10, v6' % VO)
    g.e('v_lshl_add_u32 v%d, v7, 3, v%d' % (VO, VO))
    g.e('s_mov_b32 %s, 0x3eb8aa3b' % sr(S_L2E))
    g.e('s_mov_b32 %s, 0x3eb8aa3b' % sr(S_L2E + 1))
    g.e('s_lshl_b32 %s, %s, 3' % (sr(S_HH), sr(S_H)))
    g.e('s_mov_b32 %s, 0' % sr(S_KC))
    QF, KF, VF, SC, CB, PF, OC = 10, 12, 48, 84, 156, 192, 228
    NEG = 232
    lp = g.newlabel('L_aa')
    g.label(lp)
    g.e('s_lshl_b32 %s, %s, 16' % (sr(S_X0), sr(S_HH)))
    g.e('s_lshl_b32 %s, %s, 9' % (sr(S_X1), sr(S_QT)))
    g.e('s_add_u32 %s, %s, %s' % (sr(S_X1), sr(S_X1), sr(S_X0)))
    g.e('s_add_u32 %s, %s, 0x%x' % (sr(S_X1), sr(S_X1), WS_QA))
    g.e('buffer_load_dwordx2 %s, v%d, %s, %s offen sc1' % (vr(QF, 2), VQK, sr(SRD_WS, 4), sr(S_X1)))
    for b in range(9):
        g.e('s_add_i32 %s, %s, %d' % (sr(S_X1), sr(S_A), b - 8))
        g.e('s_max_i32 %s, %s, 0' % (sr(S_X1), sr(S_X1)))
        g.e('s_lshl_b32 %s, %s, 10' % (sr(S_X1), sr(S_X1)))
        g.e('s_add_u32 %s, %s, %s' % (sr(S_X1), sr(S_X1), sr(S_X0)))
        g.e('s_add_u32 %s, %s, 0x%x' % (sr(S_X2), sr(S_X1), WS_KA))
        g.e('s_add_u32 %s, %s, 0x%x' % (sr(S_X3), sr(S_X1), WS_VA))
        g.e('buffer_load_dwordx2 %s, v%d, %s, %s offen sc1' % (vr(KF + 4 * b, 2), VQK, sr(SRD_WS, 4), sr(S_X2)))
        g.e('buffer_load_dwordx2 %s, v%d, %s, %s offen offset:512 sc1' % (vr(KF + 4 * b + 2, 2), VQK, sr(SRD_WS, 4), sr(S_X2)))
        g.e('buffer_load_dwordx4 %s, v%d, %s, %s offen sc1' % (vr(VF + 4 * b, 4), VL16, sr(SRD_WS, 4), sr(S_X3)))
    for b in range(9):
        g.e('s_add_i32 %s, %s, %d' % (sr(S_X1), sr(S_A), b - 8))
        g.e('s_cmp_lt_i32 %s, 0' % sr(S_X1))
        g.e('s_cselect_b32 %s, 0xf149f2ca, 0' % sr(S_X1))
        for i in range(4):
            g.e('v_mov_b32 v%d, %s' % (CB + 4 * b + i, sr(S_X1)))
    g.e('v_mov_b32 v%d, 0xf149f2ca' % NEG)
    g.e('s_waitcnt vmcnt(0)')
    for b in range(9):
        for T in range(2):
            g.e('v_mfma_f32_16x16x16_bf16 %s, %s, %s, %s' % (vr(SC + 8 * b + 4 * T, 4), vr(KF + 4 * b + 2 * T, 2), vr(QF, 2), vr(CB + 4 * b, 4)))
    g.nop(8)
    S = [SC + i for i in range(72)]
    C = [KF + i for i in range(8)]
    softmax_vals(g, S, C, OC, None, None)
    for b in (0, 8):
        for T in range(2):
            for r in range(4):
                g.e('v_subrev_u32 v%d, %d, v%d' % (OC, 32 * b + 16 * T + r, VD))
                g.e('v_cmp_gt_u32 vcc, 0x100, v%d' % OC)
                g.nop(2)
                g.e('v_cndmask_b32 v%d, v%d, v%d, vcc' % (SC + 8 * b + 4 * T + r, NEG, SC + 8 * b + 4 * T + r))
    softmax_rest(g, S, C, OC, S_L2E, ['v_permlane16_swap_b32', 'v_permlane32_swap_b32'])
    for i in range(36):
        g.e('v_cvt_pk_bf16_f32 v%d, v%d, v%d' % (PF + i, S[2 * i], S[2 * i + 1]))
    g.nop(2)
    for b in range(9):
        g.e('v_mfma_f32_16x16x32_bf16 %s, %s, %s, %s' % (vr(OC, 4), vr(VF + 4 * b, 4), vr(PF + 4 * b, 4), '0' if b == 0 else vr(OC, 4)))
    g.nop(8)
    g.e('v_cvt_pk_bf16_f32 v%d, v%d, v%d' % (OC, OC, OC + 1))
    g.e('v_cvt_pk_bf16_f32 v%d, v%d, v%d' % (OC + 1, OC + 2, OC + 3))
    g.e('s_lshl_b32 %s, %s, 14' % (sr(S_X1), sr(S_QT)))
    g.e('s_lshl_b32 %s, %s, 5' % (sr(S_X2), sr(S_HH)))
    g.e('s_add_u32 %s, %s, %s' % (sr(S_X1), sr(S_X1), sr(S_X2)))
    g.e('s_add_u32 %s, %s, 0x%x' % (sr(S_X1), sr(S_X1), WS_OA))
    g.e('buffer_store_dwordx2 %s, v%d, %s, %s offen sc1' % (vr(OC, 2), VO, sr(SRD_WS, 4), sr(S_X1)))
    g.e('s_add_u32 %s, %s, 1' % (sr(S_HH), sr(S_HH)))
    g.e('s_add_u32 %s, %s, 1' % (sr(S_KC), sr(S_KC)))
    g.e('s_cmp_lt_u32 %s, 8' % sr(S_KC))
    g.nop(2)
    g.e('s_cbranch_scc1 %s' % lp)
    g.e('s_lshl_b32 %s, %s, 7' % (sr(S_X0), sr(S_R)))
    g.e('s_add_u32 %s, %s, 0x%x' % (sr(S_X0), sr(S_X0), WS_FLAGS + CB_OFF))
    signal_add(g)
    g.e('s_branch L_next_regs')


def task_battn(g):
    g.label('L_t_battn')
    S_SEGI, S_HD = S_AOFF, S_BOFF
    g.e('s_lshl_b32 %s, %s, 2' % (sr(S_HD), sr(S_H)))
    g.e('s_add_u32 %s, %s, %s' % (sr(S_HD), sr(S_HD), sr(S_WAVE)))
    g.e('s_lshl_b32 %s, %s, 7' % (sr(S_X0), sr(S_HD)))
    g.e('s_lshl_b32 %s, %s, 2' % (sr(S_X1), sr(S_R)))
    g.e('s_add_u32 %s, %s, %s' % (sr(S_X0), sr(S_X0), sr(S_X1)))
    g.e('s_add_u32 %s, %s, 0x%x' % (sr(S_X0), sr(S_X0), WS_FLAGS + F1_OFF))
    wait_ge(g, None, '1', 16)
    l = g.newlabel('L_wait')
    g.e('s_lshl_b32 %s, %s, 7' % (sr(S_X0), sr(S_HD)))
    g.e('s_add_u32 %s, %s, 0x%x' % (sr(S_X0), sr(S_X0), WS_FLAGS + F2_OFF))
    g.e('v_mov_b32 v%d, 0' % W_T)
    g.label(l)
    g.guard()
    g.e('buffer_load_dwordx4 %s, v%d, %s, %s offen sc1' % (vr(W_T + 4, 4), W_T, sr(SRD_WS, 4), sr(S_X0)))
    g.e('s_waitcnt vmcnt(0)')
    g.e('v_min3_u32 v%d, v%d, v%d, v%d' % (W_T + 4, W_T + 4, W_T + 5, W_T + 6))
    g.e('v_min_u32 v%d, v%d, v%d' % (W_T + 4, W_T + 4, W_T + 7))
    g.nop(1)
    g.e('v_readfirstlane_b32 %s, v%d' % (sr(S_X1), W_T + 4))
    g.nop(3)
    g.e('s_cmp_gt_u32 %s, %s' % (sr(S_X1), sr(S_SEGI)))
    d = g.newlabel('L_waitd')
    g.e('s_cbranch_scc1 %s' % d)
    g.e('s_sleep 16')
    g.e('s_branch %s' % l)
    g.label(d)
    L = W_LANE
    VK, VKM, VV, VVM, VO, VD = 2, 3, 4, 5, 6, 7
    g.e('v_bfe_u32 v8, v%d, 4, 1' % L)
    g.e('v_lshrrev_b32 v9, 5, v%d' % L)
    g.e('v_and_b32 v10, 15, v%d' % L)
    g.e('v_lshlrev_b32 v%d, 12, v8' % VK)
    g.e('v_lshl_add_u32 v%d, v9, 8, v%d' % (VK, VK))
    g.e('v_lshl_add_u32 v%d, v10, 4, v%d' % (VK, VK))
    g.e('v_and_b32 v11, 7, v%d' % L)
    g.e('v_lshlrev_b32 v%d, 7, v9' % VKM)
    g.e('v_lshl_add_u32 v%d, v11, 4, v%d' % (VKM, VKM))
    g.e('v_lshlrev_b32 v%d, 10, v8' % VV)
    g.e('v_lshl_add_u32 v%d, v9, 8, v%d' % (VV, VV))
    g.e('v_lshl_add_u32 v%d, v10, 4, v%d' % (VV, VV))
    g.e('v_and_b32 v11, 31, v%d' % L)
    g.e('v_lshlrev_b32 v%d, 4, v11' % VVM)
    g.e('v_lshl_add_u32 v%d, v9, 3, v%d' % (VVM, VVM))
    g.e('v_lshlrev_b32 v%d, 13, v11' % VO)
    g.e('v_lshl_add_u32 v%d, v9, 3, v%d' % (VO, VO))
    g.e('v_lshlrev_b32 v12, 2, v9')
    g.e('v_sub_u32 v%d, v11, v12' % VD)
    g.e('s_lshl_b32 %s, %s, 5' % (sr(S_X0), sr(S_SEGI)))
    g.e('s_add_u32 %s, %s, %s' % (sr(S_X0), sr(S_X0), sr(S_HD)))
    g.e('s_lshl_b32 %s, %s, 13' % (sr(S_X1), sr(S_X0)))
    g.e('s_lshl_b32 %s, %s, 12' % (sr(S_X0), sr(S_X0)))
    QF, KF, KM, VF, VMF = 16, 48, 80, 112, 144
    SX, SMm, PF, OC = 160, 176, 192, 208
    g.e('s_add_u32 %s, %s, 0x%x' % (sr(S_X2), sr(S_X1), WS_QX))
    g.e('s_add_u32 %s, %s, 0x%x' % (sr(S_X3), sr(S_X1), WS_KX))
    for ks in range(8):
        o = (ks >> 1) * 1024 + (ks & 1) * 512
        g.e('buffer_load_dwordx4 %s, v%d, %s, %s offen offset:%d sc1' % (vr(QF + 4 * ks, 4), VK, sr(SRD_WS, 4), sr(S_X2), o))
        g.e('buffer_load_dwordx4 %s, v%d, %s, %s offen offset:%d sc1' % (vr(KF + 4 * ks, 4), VK, sr(SRD_WS, 4), sr(S_X3), o))
    g.e('s_add_u32 %s, %s, 0x%x' % (sr(S_X2), sr(S_X0), WS_KM))
    for ks in range(8):
        g.e('buffer_load_dwordx4 %s, v%d, %s, %s offen offset:%d sc1' % (vr(KM + 4 * ks, 4), VKM, sr(SRD_WS, 4), sr(S_X2), ks * 256))
    g.e('s_add_u32 %s, %s, 0x%x' % (sr(S_X2), sr(S_X1), WS_VX))
    g.e('s_add_u32 %s, %s, 4096' % (sr(S_X3), sr(S_X2)))
    for ft in range(4):
        so = sr(S_X2) if ft < 2 else sr(S_X3)
        for ks in range(2):
            for e in range(2):
                g.e('buffer_load_dwordx2 %s, v%d, %s, %s offen offset:%d sc1' % (vr(VF + 8 * ft + 4 * ks + 2 * e, 2), VV, sr(SRD_WS, 4), so, (ft & 1) * 2048 + e * 512 + ks * 8))
    g.e('s_add_u32 %s, %s, 0x%x' % (sr(S_X2), sr(S_X0), WS_KM + 2048))
    for ft in range(4):
        g.e('buffer_load_dwordx2 %s, v%d, %s, %s offen offset:%d sc1' % (vr(VMF + 4 * ft, 2), VVM, sr(SRD_WS, 4), sr(S_X2), ft * 512))
        g.e('v_mov_b64 %s, 0' % vr(VMF + 4 * ft + 2, 2))
    g.e('s_mov_b32 %s, 0x3db504f3' % sr(S_SC))
    g.e('s_mov_b32 %s, 0x3db504f3' % sr(S_SC + 1))
    g.e('s_mov_b32 %s, 0x3fb8aa3b' % sr(S_L2E))
    g.e('s_mov_b32 %s, 0x3fb8aa3b' % sr(S_L2E + 1))
    g.e('s_waitcnt vmcnt(20)')
    for ks in range(8):
        g.e('v_mfma_f32_32x32x16_bf16 %s, %s, %s, %s' % (vr(SX, 16), vr(KF + 4 * ks, 4), vr(QF + 4 * ks, 4), '0' if ks == 0 else vr(SX, 16)))
        g.e('v_mfma_f32_32x32x16_bf16 %s, %s, %s, %s' % (vr(SMm, 16), vr(KM + 4 * ks, 4), vr(QF + 4 * ks, 4), '0' if ks == 0 else vr(SMm, 16)))
    g.nop(16)
    S = [SX + i for i in range(16)] + [SMm + i for i in range(4)]
    C = [QF + i for i in range(8)]
    MX = QF + 8
    softmax_vals(g, S, C, MX, None, None, S_SC)
    g.e('v_mov_b32 v%d, 0xf149f2ca' % (QF + 10))
    for r in range(16):
        key = 8 * (r >> 2) + (r & 3)
        g.e('v_cmp_le_i32 vcc, %d, v%d' % (key, VD))
        g.nop(2)
        g.e('v_cndmask_b32 v%d, v%d, v%d, vcc' % (SX + r, QF + 10, SX + r))
    softmax_rest(g, S, C, MX, S_L2E, ['v_permlane32_swap_b32'])
    for i in range(10):
        g.e('v_cvt_pk_bf16_f32 v%d, v%d, v%d' % (PF + i, S[2 * i], S[2 * i + 1]))
    g.e('v_mov_b64 %s, 0' % vr(PF + 10, 2))
    g.e('s_waitcnt vmcnt(0)')
    g.e('s_lshl_b32 %s, %s, 18' % (sr(S_X0), sr(S_SEGI)))
    g.e('s_lshl_b32 %s, %s, 8' % (sr(S_X1), sr(S_HD)))
    g.e('s_add_u32 %s, %s, %s' % (sr(S_X0), sr(S_X0), sr(S_X1)))
    g.e('s_add_u32 %s, %s, 0x%x' % (sr(S_X0), sr(S_X0), WS_OX))
    OCS = [OC, OC + 16, KF, KF + 16]
    for ft in range(4):
        oc = vr(OCS[ft], 16)
        g.e('v_mfma_f32_32x32x16_bf16 %s, %s, %s, 0' % (oc, vr(VF + 8 * ft, 4), vr(PF, 4)))
        g.e('v_mfma_f32_32x32x16_bf16 %s, %s, %s, %s' % (oc, vr(VF + 8 * ft + 4, 4), vr(PF + 4, 4), oc))
        g.e('v_mfma_f32_32x32x16_bf16 %s, %s, %s, %s' % (oc, vr(VMF + 4 * ft, 4), vr(PF + 8, 4), oc))
    g.nop(16)
    for ft in range(4):
        a = OCS[ft]
        for gq in range(4):
            g.e('v_cvt_pk_bf16_f32 v%d, v%d, v%d' % (a + 4 * gq, a + 4 * gq, a + 4 * gq + 1))
            g.e('v_cvt_pk_bf16_f32 v%d, v%d, v%d' % (a + 4 * gq + 1, a + 4 * gq + 2, a + 4 * gq + 3))
        for gq in range(4):
            g.e('buffer_store_dwordx2 %s, v%d, %s, %s offen offset:%d sc1' % (vr(a + 4 * gq, 2), VO, sr(SRD_WS, 4), sr(S_X0), ft * 64 + gq * 16))
    g.e('s_lshl_b32 %s, %s, 7' % (sr(S_X0), sr(S_R)))
    g.e('s_add_u32 %s, %s, 0x%x' % (sr(S_X0), sr(S_X0), WS_FLAGS + CO_OFF))
    g.e('s_lshl_b32 %s, %s, 7' % (sr(S_X1), sr(S_SEGI)))
    g.e('s_add_u32 %s, %s, 0x%x' % (sr(S_X1), sr(S_X1), WS_FLAGS + CS_OFF - 4 * NBIG * 128))
    g.e('s_cmp_ge_u32 %s, %d' % (sr(S_SEGI), 4 * NBIG))
    g.e('s_cselect_b32 %s, %s, %s' % (sr(S_X0), sr(S_X1), sr(S_X0)))
    signal_add(g)
    g.e('s_branch L_next_regs')


def task_boutf(g):
    g.label('L_t_boutf')
    S_SEGI = S_AOFF
    l = wave0_begin(g)
    g.e('s_lshl_b32 %s, %s, 7' % (sr(S_X0), sr(S_SEGI)))
    g.e('s_add_u32 %s, %s, 0x%x' % (sr(S_X0), sr(S_X0), WS_FLAGS + CS_OFF - 4 * NBIG * 128))
    wait_ge(g, None, '8', 4)
    g.label(l)
    make_srd(g, SRD_B0, S_WO, 4 << 20)
    make_srd(g, SRD_OUT, S_OUT, 2048 * 2048)
    gemm_setup(g, 8192, 1024)
    L = W_LANE
    t = W_T
    NS = 5
    SLOT = 8192
    g.e('v_lshrrev_b32 v%d, 2, v%d' % (t, L))
    g.e('v_lshlrev_b32 v%d, 10, v%d' % (t, t))
    g.e('v_and_b32 v%d, 3, v%d' % (t + 1, L))
    g.e('v_lshl_add_u32 v%d, v%d, 4, v%d' % (W_BD, t + 1, t))
    VA, VB = 20, 24
    g.e('s_mul_i32 %s, %s, %d' % (sr(S_BOFF + 2), sr(S_WAVE), NS * SLOT))
    g.e('v_and_b32 v%d, 31, v%d' % (t, L))
    g.e('v_bfe_u32 v%d, v%d, 1, 3' % (t + 1, L))
    g.e('v_lshrrev_b32 v%d, 5, v%d' % (t + 2, L))
    g.e('v_xor_b32 v%d, v%d, v%d' % (t + 1, t + 1, t + 2))
    g.e('v_lshlrev_b32 v%d, 7, v%d' % (t, t))
    g.e('v_lshl_add_u32 v%d, v%d, 4, v%d' % (t, t + 1, t))
    g.e('v_add_u32 v%d, %s, v%d' % (t, sr(S_BOFF + 2), t))
    for ks in range(4):
        g.e('v_xor_b32 v%d, %d, v%d' % (VA + ks, ks * 32, t))
    g.e('v_bfe_u32 v%d, v%d, 2, 2' % (t, L))
    g.e('v_lshl_add_u32 v%d, v%d, 3, v%d' % (t, t + 2, t))
    g.e('v_lshlrev_b32 v%d, 6, v%d' % (t, t))
    g.e('v_bfe_u32 v%d, v%d, 4, 1' % (t + 1, L))
    g.e('v_lshl_add_u32 v%d, v%d, 5, v%d' % (t, t + 1, t))
    g.e('v_and_b32 v%d, 3, v%d' % (t + 1, L))
    g.e('v_lshl_add_u32 v%d, v%d, 3, v%d' % (t, t + 1, t))
    g.e('v_add_u32 v%d, %s, v%d' % (t, sr(S_BOFF + 2), t))
    g.e('v_add_u32 v%d, 4096, v%d' % (VB, t))
    g.e('s_lshl_b32 %s, %s, 18' % (sr(S_BOFF), sr(S_SEGI)))
    g.e('s_lshl_b32 %s, %s, 11' % (sr(S_X0), sr(S_WAVE)))
    g.e('s_add_u32 %s, %s, %s' % (sr(S_BOFF), sr(S_BOFF), sr(S_X0)))
    g.e('s_add_u32 %s, %s, 0x%x' % (sr(S_BOFF), sr(S_BOFF), WS_OX))
    g.e('s_lshl_b32 %s, %s, 20' % (sr(S_BOFF + 1), sr(S_WAVE)))
    g.e('s_lshl_b32 %s, %s, 6' % (sr(S_X0), sr(S_H)))
    g.e('s_add_u32 %s, %s, %s' % (sr(S_BOFF + 1), sr(S_BOFF + 1), sr(S_X0)))

    def dmaB(blk):
        sl = blk % NS
        for i in range(4):
            g.e('s_add_u32 m0, %s, %d' % (sr(S_BOFF + 2), sl * SLOT + 4096 + i * 1024))
            g.e('s_add_u32 %s, %s, %d' % (sr(S_X0), sr(S_BOFF + 1), blk * 65536 + i * 16384))
            g.e('buffer_load_dwordx4 v%d, %s, %s offen lds' % (W_BD, sr(SRD_B0, 4), sr(S_X0)))

    def dmaA(blk):
        sl = blk % NS
        g.e('s_add_u32 %s, %s, %d' % (sr(S_X0), sr(S_BOFF), blk * 128))
        for i in range(4):
            g.e('s_add_u32 m0, %s, %d' % (sr(S_BOFF + 2), sl * SLOT + i * 1024))
            g.nop(1)
            g.e('buffer_load_dwordx4 v%d, %s, %s offen sc1 lds' % (W_AD + i, sr(SRD_WS, 4), sr(S_X0)))
    g.e('s_barrier')
    for blk in range(NS - 1):
        dmaA(blk)
        dmaB(blk)
    FAr, FBr = 32, 48
    for blk in range(16):
        sl = blk % NS
        infl = min(15 - blk, NS - 2)
        g.e('s_waitcnt vmcnt(%d)' % (8 * infl))
        for ks in range(4):
            g.e('ds_read_b128 %s, v%d offset:%d' % (vr(FAr + 4 * ks, 4), VA + ks, sl * SLOT))
            for s_ in range(2):
                g.e('ds_read_b64_tr_b16 %s, v%d offset:%d' % (vr(FBr + 4 * ks + 2 * s_, 2), VB, sl * SLOT + (16 * ks + 4 * s_) * 64))
        if blk + NS - 1 < 16:
            dmaA(blk + NS - 1)
            dmaB(blk + NS - 1)
        for ks in range(4):
            g.e('s_waitcnt lgkmcnt(%d)' % (3 * (3 - ks)))
            g.e('v_mfma_f32_32x32x16_bf16 %s, %s, %s, %s' % (vr(W_ACC, 16), vr(FBr + 4 * ks, 4), vr(FAr + 4 * ks, 4), '0' if (blk == 0 and ks == 0) else vr(W_ACC, 16)))
    g.nop(16)
    g.e('s_barrier')
    g.e('v_lshlrev_b32 v%d, 4, v%d' % (t, L))
    g.e('s_lshl_b32 %s, %s, 12' % (sr(S_X0), sr(S_WAVE)))
    g.e('v_add_u32 v%d, %s, v%d' % (t + 1, sr(S_X0), t))
    for gq in range(4):
        g.e('ds_write_b128 v%d, %s offset:%d' % (t + 1, vr(W_ACC + 4 * gq, 4), gq * 1024))
    g.e('s_lshl_b32 %s, %s, 10' % (sr(S_X0), sr(S_WAVE)))
    g.e('v_add_u32 v%d, %s, v%d' % (t + 1, sr(S_X0), t))
    g.e('s_waitcnt lgkmcnt(0)')
    g.e('s_barrier')
    for ww in range(4):
        g.e('ds_read_b128 %s, v%d offset:%d' % (vr(FAr + 4 * ww, 4), t + 1, ww * 4096))
    g.e('v_and_b32 v%d, 31, v%d' % (t, L))
    g.e('v_lshlrev_b32 v%d, 11, v%d' % (t, t))
    g.e('v_lshl_add_u32 v%d, v%d, 3, v%d' % (t, t + 2, t))
    g.e('s_lshl_b32 %s, %s, 16' % (sr(S_X0), sr(S_SEGI)))
    g.e('s_lshl_b32 %s, %s, 6' % (sr(S_X1), sr(S_H)))
    g.e('s_add_u32 %s, %s, %s' % (sr(S_X0), sr(S_X0), sr(S_X1)))
    g.e('s_lshl_b32 %s, %s, 4' % (sr(S_X1), sr(S_WAVE)))
    g.e('s_add_u32 %s, %s, %s' % (sr(S_X0), sr(S_X0), sr(S_X1)))
    g.e('s_waitcnt lgkmcnt(0)')
    for i in range(2):
        g.e('v_pk_add_f32 %s, %s, %s' % (vr(FAr + 2 * i, 2), vr(FAr + 2 * i, 2), vr(FAr + 4 + 2 * i, 2)))
        g.e('v_pk_add_f32 %s, %s, %s' % (vr(FAr + 8 + 2 * i, 2), vr(FAr + 8 + 2 * i, 2), vr(FAr + 12 + 2 * i, 2)))
    for i in range(2):
        g.e('v_pk_add_f32 %s, %s, %s' % (vr(FAr + 2 * i, 2), vr(FAr + 2 * i, 2), vr(FAr + 8 + 2 * i, 2)))
    g.e('v_cvt_pk_bf16_f32 v%d, v%d, v%d' % (FAr, FAr, FAr + 1))
    g.e('v_cvt_pk_bf16_f32 v%d, v%d, v%d' % (FAr + 1, FAr + 2, FAr + 3))
    g.e('buffer_store_dwordx2 %s, v%d, %s, %s offen offset:1024' % (vr(FAr, 2), t, sr(SRD_OUT, 4), sr(S_X0)))
    g.e('s_branch L_next')


def worker(g, opt):
    g.label('L_worker')
    g.e('v_and_b32 v%d, 63, v0' % W_LANE)
    g.e('s_mov_b32 %s, 0' % sr(S_INIT))
    g.e('s_mov_b32 %s, 0' % sr(S_LOG))
    g.e('s_mov_b32 %s, 0' % sr(S_QN))
    g.label('L_next_regs')
    gemm_consts(g)
    g.label('L_next')
    if opt.get('rt'):
        lg = g.newlabel('L_lg')
        g.e('s_cmp_eq_u32 %s, 0' % sr(S_LOG))
        g.e('s_cbranch_scc1 %s' % lg)
        g.e('s_memrealtime s[76:77]')
        g.e('s_waitcnt lgkmcnt(0)')
        g.e('v_mov_b32 v%d, s78' % W_T)
        g.e('v_mov_b32 v%d, s76' % (W_T + 1))
        g.e('v_mov_b32 v%d, 0' % (W_T + 2))
        g.e('s_lshl_b32 %s, %s, 4' % (sr(S_X0), sr(S_TASK)))
        g.e('s_add_u32 %s, %s, 0x%x' % (sr(S_X0), sr(S_X0), WS_TS + 0xA00000))
        g.e('buffer_store_dwordx2 %s, v%d, %s, %s offen' % (vr(W_T, 2), W_T + 2, sr(SRD_WS, 4), sr(S_X0)))
        g.label(lg)
    g.e('s_barrier')
    l = wave0_begin(g)
    g.e('s_mov_b64 exec, 1')
    lq = g.newlabel('L_q')
    lgq = g.newlabel('L_gq')
    lgot = g.newlabel('L_got')
    g.e('v_mov_b32 v%d, 1' % (W_T + 1))
    g.label(lq)
    g.e('s_cmp_ge_u32 %s, 7' % sr(S_QN))
    g.e('s_cbranch_scc1 %s' % lgq)
    g.e('s_lshl_b32 %s, %s, 2' % (sr(S_X0), sr(S_RANK)))
    g.e('s_add_u32 %s, %s, 192' % (sr(S_X0), sr(S_X0)))
    g.e('v_mov_b32 v%d, %s' % (W_T, sr(S_X0)))
    g.e('global_atomic_add v%d, v%d, v%d, %s sc0' % (W_T + 2, W_T, W_T + 1, sr(S_DBG, 2)))
    g.e('s_waitcnt vmcnt(0)')
    g.e('v_readfirstlane_b32 %s, v%d' % (sr(S_X0), W_T + 2))
    g.nop(3)
    g.e('s_cmp_lt_u32 %s, 80' % sr(S_X0))
    lok = g.newlabel('L_qok')
    g.e('s_cbranch_scc1 %s' % lok)
    g.e('s_add_u32 %s, %s, 1' % (sr(S_QN), sr(S_QN)))
    g.e('s_add_u32 %s, %s, 1' % (sr(S_RANK), sr(S_RANK)))
    g.e('s_cmp_ge_u32 %s, 7' % sr(S_RANK))
    g.e('s_cselect_b32 %s, 0, %s' % (sr(S_RANK), sr(S_RANK)))
    g.e('s_branch %s' % lq)
    g.label(lok)
    g.e('s_mul_i32 %s, %s, 205' % (sr(S_X1), sr(S_X0)))
    g.e('s_lshr_b32 %s, %s, 10' % (sr(S_X1), sr(S_X1)))
    g.e('s_mul_i32 %s, %s, 5' % (sr(S_X2), sr(S_X1)))
    g.e('s_sub_u32 %s, %s, %s' % (sr(S_X2), sr(S_X0), sr(S_X2)))
    g.e('s_mul_i32 %s, %s, 7' % (sr(S_X2), sr(S_X2)))
    g.e('s_add_u32 %s, %s, %s' % (sr(S_X2), sr(S_X2), sr(S_RANK)))
    g.e('s_lshl_b32 %s, %s, 5' % (sr(S_X0), sr(S_X1)))
    g.e('s_add_u32 %s, %s, %s' % (sr(S_X0), sr(S_X0), sr(S_X2)))
    g.e('s_lshl_b32 %s, %s, 2' % (sr(S_X3), sr(S_X1)))
    g.e('s_add_u32 %s, %s, %s' % (sr(S_X3), sr(S_X3), sr(S_X2)))
    g.e('s_add_u32 %s, %s, %d' % (sr(S_X3), sr(S_X3), T_AP - 32))
    g.e('s_cmp_lt_u32 %s, 32' % sr(S_X2))
    g.e('s_cselect_b32 %s, %s, %s' % (sr(S_X0), sr(S_X0), sr(S_X3)))
    g.e('v_mov_b32 v%d, %s' % (W_T + 2, sr(S_X0)))
    g.e('s_branch %s' % lgot)
    g.label(lgq)
    g.e('v_mov_b32 v%d, 224' % W_T)
    g.e('global_atomic_add v%d, v%d, v%d, %s sc0' % (W_T + 2, W_T, W_T + 1, sr(S_DBG, 2)))
    g.e('s_waitcnt vmcnt(0)')
    g.e('v_readfirstlane_b32 %s, v%d' % (sr(S_X0), W_T + 2))
    g.nop(3)
    g.e('s_lshl_b32 %s, %s, 2' % (sr(S_X1), sr(S_X0)))
    g.e('s_add_u32 %s, %s, %d' % (sr(S_X1), sr(S_X1), T_AP + 3))
    g.e('s_add_u32 %s, %s, %d' % (sr(S_X2), sr(S_X0), T_AA - 16))
    g.e('s_cmp_lt_u32 %s, 16' % sr(S_X0))
    g.e('s_cselect_b32 %s, %s, %s' % (sr(S_X0), sr(S_X1), sr(S_X2)))
    g.e('v_mov_b32 v%d, %s' % (W_T + 2, sr(S_X0)))
    g.label(lgot)
    g.e('s_mov_b32 %s, 1' % sr(S_LOG))
    g.e('s_waitcnt vmcnt(0)')
    g.e('v_mov_b32 v%d, %d' % (W_T, L_MISC))
    g.e('ds_write_b32 v%d, v%d' % (W_T, W_T + 2))
    g.e('s_waitcnt lgkmcnt(0)')
    g.e('s_mov_b64 exec, -1')
    g.label(l)
    g.e('s_barrier')
    g.e('v_mov_b32 v%d, %d' % (W_T, L_MISC))
    g.e('ds_read_b32 v%d, v%d' % (W_T + 1, W_T))
    g.e('s_waitcnt lgkmcnt(0)')
    g.e('v_readfirstlane_b32 %s, v%d' % (sr(S_TASK), W_T + 1))
    g.nop(3)
    if opt.get('rt'):
        g.e('s_memrealtime s[78:79]')
        g.e('s_waitcnt lgkmcnt(0)')
    g.e('s_cmp_lt_u32 %s, %d' % (sr(S_TASK), T_AP))
    g.e('s_cbranch_scc1 L_t_bproj')
    g.e('s_cmp_lt_u32 %s, %d' % (sr(S_TASK), T_AA))
    g.e('s_cbranch_scc1 L_t_aproj')
    g.e('s_cmp_lt_u32 %s, %d' % (sr(S_TASK), T_AO))
    g.e('s_cbranch_scc1 L_t_aattn')
    g.e('s_cmp_ge_u32 %s, %d' % (sr(S_TASK), T_END))
    g.e('s_cbranch_scc1 L_exit')
    g.e('s_cmp_ge_u32 %s, %d' % (sr(S_TASK), T_BF))
    g.e('s_cbranch_scc1 L_t_bf')
    g.e('s_cmp_ge_u32 %s, %d' % (sr(S_TASK), T_BT))
    g.e('s_cbranch_scc1 L_t_bt')
    g.e('s_sub_u32 %s, %s, %d' % (sr(S_X0), sr(S_TASK), T_AO))
    g.e('s_lshr_b32 %s, %s, 2' % (sr(S_R), sr(S_X0)))
    g.e('s_and_b32 %s, %s, 3' % (sr(S_H), sr(S_X0)))
    g.e('s_branch L_t_aout')
    g.label('L_t_bt')
    g.e('s_sub_u32 %s, %s, %d' % (sr(S_X0), sr(S_TASK), T_BT))
    g.e('s_mul_i32 %s, %s, 1821' % (sr(S_R), sr(S_X0)))
    g.e('s_lshr_b32 %s, %s, 16' % (sr(S_R), sr(S_R)))
    g.e('s_mul_i32 %s, %s, 36' % (sr(S_X1), sr(S_R)))
    g.e('s_sub_u32 %s, %s, %s' % (sr(S_X0), sr(S_X0), sr(S_X1)))
    g.e('s_cmp_ge_u32 %s, 32' % sr(S_X0))
    lb = g.newlabel('L_bo')
    g.e('s_cbranch_scc1 %s' % lb)
    g.e('s_lshr_b32 %s, %s, 3' % (sr(S_X1), sr(S_X0)))
    g.e('s_lshl_b32 %s, %s, 2' % (sr(S_AOFF), sr(S_R)))
    g.e('s_add_u32 %s, %s, %s' % (sr(S_AOFF), sr(S_AOFF), sr(S_X1)))
    g.e('s_and_b32 %s, %s, 7' % (sr(S_H), sr(S_X0)))
    g.e('s_branch L_t_battn')
    g.label(lb)
    g.e('s_sub_u32 %s, %s, 32' % (sr(S_H), sr(S_X0)))
    g.e('s_branch L_t_bout')
    g.label('L_t_bf')
    g.e('s_sub_u32 %s, %s, %d' % (sr(S_X0), sr(S_TASK), T_BF))
    g.e('s_mul_i32 %s, %s, 2731' % (sr(S_X1), sr(S_X0)))
    g.e('s_lshr_b32 %s, %s, 16' % (sr(S_X1), sr(S_X1)))
    g.e('s_add_u32 %s, %s, %d' % (sr(S_AOFF), sr(S_X1), 4 * NBIG))
    g.e('s_lshr_b32 %s, %s, 2' % (sr(S_R), sr(S_AOFF)))
    g.e('s_mul_i32 %s, %s, 24' % (sr(S_X1), sr(S_X1)))
    g.e('s_sub_u32 %s, %s, %s' % (sr(S_H), sr(S_X0), sr(S_X1)))
    g.e('s_cmp_lt_u32 %s, 8' % sr(S_H))
    g.e('s_cbranch_scc1 L_t_battn')
    g.e('s_sub_u32 %s, %s, 8' % (sr(S_H), sr(S_H)))
    g.e('s_branch L_t_boutf')
    task_boutf(g)
    task_bproj(g)
    task_aproj(g)
    task_aattn(g)
    task_out(g, 'ao', 'L_t_aout', WS_OA, 1024, 8, S_AWO, 512 * 1024, 0, CB_OFF, 8)
    task_battn(g)
    task_out(g, 'bo', 'L_t_bout', WS_OX, 8192, 64, S_WO, 4 << 20, 512, CO_OFF, 32)


for x in range(576):
    assert (x * 1821) >> 16 == x // 36
for x in range(1024):
    assert (x * 2731) >> 16 == x // 24
for x in range(80):
    assert (x * 205) >> 10 == x // 5
```

```python
import sys
sys.path.insert(0,'scratch')
import gen
opt={}
for a in sys.argv[2:]:
    if '=' in a:
        k,v=a.split('='); opt[k]=int(v)
    else: opt[a]=True
open(sys.argv[1],'w').write(gen.build(opt))
open(sys.argv[1]+'.names','w').write(' '.join(gen.TS_NAMES))
```

```python
from gen import *

C_KX = 0
C_VX = 8192
C_MST = 16384
C_Q = 24576
C_K = 26624
C_VM = 28672
C_O = 30720
C_W = 32768
C_RING = [0, 98304, 131072]
C_SEL = C_O

PB2_STRIDE = 8192 + 128
WS_KV = WS_KM

(V_L16, V_WL, V_AF, V_QW, V_QR, V_KR, V_OW, V_PS, V_MS, V_PLD, V_WM, V_IDX, V_VW, V_FL, V_WD, V_ONE) = range(16)
S_SELM = 86
S_H0, S_H1, S_H2 = 94, 95, 96
A0 = 16
ACC2 = 48
RG = 72
PM = 120
Q0, Q1, K0, K1, VT0, VT1 = ACC2, ACC2 + 4, ACC2 + 8, ACC2 + 12, ACC2 + 16, ACC2 + 20
A_Q0, A_K, A_V0 = 0, 64, 192
V_V1 = 128
V_WOL = 192
S_PL2 = 56
S_P1M = 84

S_W512 = 78
S_W1K = 79
S_U = 55
S_KVO = 62
S_LO8 = 82


class Sched:
    def __init__(self, g):
        self.g = g
        self.l = []
        self.v = []

    def ds(self, s, name=None):
        self.g.e(s)
        self.l.append(name)

    def vm(self, s, name=None):
        self.g.e(s)
        self.v.append(name)

    def wl(self, name):
        if name not in self.l:
            return
        i = len(self.l) - 1 - self.l[::-1].index(name)
        n = len(self.l) - 1 - i
        assert n <= 15, (name, n)
        self.g.e('s_waitcnt lgkmcnt(%d)' % n)
        del self.l[:i + 1]

    def wl_all(self):
        self.g.e('s_waitcnt lgkmcnt(0)')
        self.l = []


TS_PAIRS = [4, 6, 8, 10, 12, 14, 16, 18, 20, 22, 24, 36, 38, 40, 42, 98, 72, 30]


def ts2(g, opt, name, fine=False):
    if not opt.get('ts') or (fine and not opt.get('fine')):
        return
    if opt.get('only') is not None and name not in opt['only'] and name != 'start':
        return
    idx = len(TS_NAMES)
    TS_NAMES.append(str(name))
    g.e('s_memtime %s' % sr(TS_PAIRS[idx], 2))


def ts2_flush(g, opt, tmp):
    if not opt.get('ts'):
        return
    g.e('s_waitcnt lgkmcnt(0)')
    for i in range(len(TS_NAMES)):
        g.e('v_writelane_b32 v%d, s%d, %d' % (tmp + 1, TS_PAIRS[i], i))
    g.e('v_writelane_b32 v%d, s80, 62' % (tmp + 1))
    g.e('v_writelane_b32 v%d, s81, 63' % (tmp + 1))
    g.e('s_lshl_b32 %s, %s, 2' % (sr(S_T0), sr(S_RANK)))
    g.e('s_add_u32 %s, %s, %s' % (sr(S_T0), sr(S_T0), sr(S_WAVE)))
    g.e('s_lshl_b32 %s, %s, 6' % (sr(S_T0), sr(S_T0)))
    g.e('s_add_u32 %s, %s, %s' % (sr(S_T0), sr(S_T0), sr(S_STEP)))
    g.e('s_lshl_b32 %s, %s, 8' % (sr(S_T0), sr(S_T0)))
    g.e('s_add_u32 %s, %s, 0x%x' % (sr(S_T0), sr(S_T0), WS_TS))
    g.e('v_lshrrev_b32 v%d, 2, v%d' % (tmp, V_L16))
    g.e('buffer_store_dword v%d, v%d, %s, %s offen' % (tmp + 1, tmp, sr(SRD_WS, 4), sr(S_T0)))


def setup(g, opt):
    W = sr(S_WAVE)
    H = sr(S_RANK)
    g.e('v_mov_b32 v19, v0')
    g.e('v_and_b32 v20, 63, v19')
    g.e('v_and_b32 v21, 15, v19')
    g.e('v_bfe_u32 v22, v19, 4, 2')
    g.e('v_lshlrev_b32 v%d, 4, v20' % V_L16)
    g.e('s_lshl_b32 %s, %s, 9' % (sr(S_W512), W))
    g.e('s_lshl_b32 %s, %s, 10' % (sr(S_W1K), W))
    g.e('s_lshl_b32 %s, %s, 14' % (sr(S_T0), W))
    g.e('s_add_u32 %s, %s, %d' % (sr(S_T0), sr(S_T0), C_W))
    g.e('v_add_u32 v%d, %s, v%d' % (V_WL, sr(S_T0), V_L16))
    g.e('v_lshlrev_b32 v23, 8, v22')
    g.e('v_bfe_u32 v24, v21, 1, 1')
    g.e('v_lshl_add_u32 v23, v24, 7, v23')
    g.e('v_lshrrev_b32 v24, 2, v21')
    g.e('v_lshl_add_u32 v23, v24, 5, v23')
    g.e('v_and_b32 v24, 1, v21')
    g.e('v_lshl_add_u32 v%d, v24, 4, v23' % V_AF)
    g.e('v_lshrrev_b32 v23, 3, v21')
    g.e('v_lshlrev_b32 v23, 7, v23')
    g.e('v_lshl_add_u32 v23, v22, 5, v23')
    g.e('v_and_b32 v24, 7, v21')
    g.e('v_lshl_add_u32 v23, v24, 1, v23')
    g.e('v_add_u32 v%d, %s, v23' % (V_QW, sr(S_W512)))
    g.e('v_lshlrev_b32 v23, 7, v22')
    g.e('v_lshl_add_u32 v%d, v24, 4, v23' % V_QR)
    g.e('v_lshrrev_b32 v24, 2, v21')
    g.e('v_lshlrev_b32 v24, 1, v24')
    g.e('v_and_b32 v25, 1, v21')
    g.e('v_add_u32 v24, v24, v25')
    g.e('v_lshl_add_u32 v%d, v24, 4, v23' % V_KR)
    g.e('v_lshrrev_b32 v23, 1, v22')
    g.e('v_lshlrev_b32 v23, 7, v23')
    g.e('v_lshl_add_u32 v23, v21, 4, v23')
    g.e('v_and_b32 v24, 1, v22')
    g.e('v_lshl_add_u32 v23, v24, 3, v23')
    g.e('s_add_u32 %s, %s, %d' % (sr(S_T1), sr(S_W512), C_O))
    g.e('v_add_u32 v23, %s, v23' % sr(S_T1))
    g.e('v_lshlrev_b32 v24, 3, v19')
    g.e('v_add_u32 v24, %d, v24' % C_MST)
    g.e('v_cmp_gt_u32 vcc, 8, v21')
    g.nop(2)
    g.e('v_cndmask_b32 v%d, v24, v23, vcc' % V_OW)
    g.e('v_lshlrev_b32 v23, 4, v21')
    g.e('v_lshl_add_u32 v23, v22, 2, v23')
    g.e('v_add_u32 v%d, %s, v23' % (V_VW, sr(S_W512)))
    g.e('s_lshl_b32 %s, %s, 3' % (sr(S_T1), W))
    g.e('v_add_u32 v23, %s, v22' % sr(S_T1))
    g.e('v_mul_u32_u24 v23, %d, v23' % PB2_STRIDE)
    g.e('v_lshl_add_u32 v23, v21, 3, v23')
    g.e('s_lshl_b32 %s, %s, 8' % (sr(S_T1), H))
    g.e('s_add_u32 %s, %s, 0x%x' % (sr(S_T1), sr(S_T1), WS_PB))
    g.e('v_add_u32 v%d, %s, v23' % (V_PS, sr(S_T1)))
    g.e('s_mov_b32 %s, %d' % (sr(S_U), 4 * PB2_STRIDE))
    g.e('s_mul_i32 %s, %s, %d' % (sr(S_PL), H, PB2_STRIDE))
    g.e('s_lshl_b32 %s, %s, 6' % (sr(S_T1), W))
    g.e('s_add_u32 %s, %s, %s' % (sr(S_PL), sr(S_PL), sr(S_T1)))
    g.e('s_add_u32 %s, %s, 0x%x' % (sr(S_PL), sr(S_PL), WS_PB))
    g.e('s_add_u32 %s, %s, 4096' % (sr(S_PL2), sr(S_PL)))
    g.e('v_lshrrev_b32 v23, 2, v20')
    g.e('v_lshlrev_b32 v23, 8, v23')
    g.e('v_and_b32 v24, 3, v20')
    g.e('v_lshl_add_u32 v%d, v24, 4, v23' % V_PLD)
    g.e('s_lshr_b32 %s, %s, 2' % (sr(S_T2), H))
    g.e('s_lshl_b32 %s, %s, 10' % (sr(S_T2), sr(S_T2)))
    g.e('s_and_b32 %s, %s, 1' % (sr(S_T3), W))
    g.e('s_lshl_b32 %s, %s, 9' % (sr(S_T3), sr(S_T3)))
    g.e('s_add_u32 %s, %s, %s' % (sr(S_T2), sr(S_T2), sr(S_T3)))
    g.e('s_lshr_b32 %s, %s, 1' % (sr(S_T3), W))
    g.e('s_lshl_b32 %s, %s, 2' % (sr(S_T3), sr(S_T3)))
    g.e('s_add_u32 %s, %s, %s' % (sr(S_T2), sr(S_T2), sr(S_T3)))
    g.e('s_and_b32 %s, %s, 3' % (sr(S_T3), H))
    g.e('s_lshl_b32 %s, %s, 6' % (sr(S_T0), sr(S_T3)))
    g.e('s_add_u32 %s, %s, %s' % (sr(S_T2), sr(S_T2), sr(S_T0)))
    g.e('s_lshl_b32 %s, %s, 1' % (sr(S_T3), sr(S_T3)))
    g.e('v_bfe_u32 v25, v20, 2, 2')
    g.e('v_add_u32 v27, %s, v25' % sr(S_T3))
    g.e('v_lshrrev_b32 v23, 1, v24')
    g.e('v_lshlrev_b32 v23, 8, v23')
    g.e('v_and_b32 v26, 1, v24')
    g.e('v_lshl_add_u32 v23, v26, 5, v23')
    g.e('v_lshl_add_u32 v23, v25, 4, v23')
    g.e('v_lshl_add_u32 v23, v22, 3, v23')
    g.e('v_add_u32 v23, %s, v23' % sr(S_T2))
    g.e('v_and_b32 v26, 0x28, v20')
    g.e('v_cmp_eq_u32 vcc, 0, v26')
    g.e('v_mov_b32 v26, 0x%x' % OOB)
    g.nop(1)
    g.e('v_cndmask_b32 v%d, v26, v23, vcc' % V_MS)
    g.e('s_mov_b32 %s, 0x00f000f0' % sr(S_P1M))
    g.e('s_mov_b32 %s, 0x00f000f0' % sr(S_P1M + 1))
    g.e('v_and_b32 v23, 31, v20')
    g.e('v_lshlrev_b32 v23, 6, v23')
    g.e('v_lshrrev_b32 v24, 5, v20')
    g.e('v_lshl_add_u32 v%d, v24, 24, v23' % V_WM)
    g.e('v_and_b32 v23, 1, v20')
    g.e('v_lshlrev_b32 v23, 4, v23')
    g.e('v_mov_b32 v24, 0x3f80')
    g.e('v_lshlrev_b32 v%d, v23, v24' % V_ONE)
    for d in range(4):
        mk = (3 << (2 * d)) * 0x00010001
        g.e('s_mov_b32 %s, 0x%x' % (sr(S_SELM + 2 * d), mk))
        g.e('s_mov_b32 %s, 0x%x' % (sr(S_SELM + 2 * d + 1), mk))
    g.e('v_bfe_u32 v23, v20, 1, 1')
    g.e('v_mov_b32 v24, 0x4444')
    g.e('v_mov_b32 v25, 0xeeee')
    g.e('v_cmp_eq_u32 vcc, 1, v23')
    g.nop(2)
    g.e('v_cndmask_b32 v%d, v24, v25, vcc' % V_IDX)
    g.e('s_mov_b32 %s, 0x3db504f3' % sr(S_SC))
    g.e('s_mov_b32 %s, 0x3db504f3' % sr(S_SC + 1))
    import struct
    c = struct.unpack('<I', struct.pack('<f', (128 ** -0.5) * 1.4426950408889634))[0]
    g.e('s_mov_b32 %s, 0x%x' % (sr(S_L2E), c))
    g.e('s_mov_b32 %s, 0x%x' % (sr(S_L2E + 1), c))
    g.e('s_lshl_b32 %s, %s, 11' % (sr(S_T2), W))
    g.e('s_add_u32 %s, %s, %d' % (sr(S_M0KX), sr(S_T2), C_KX))
    g.e('s_add_u32 %s, %s, %d' % (sr(S_M0VX), sr(S_T2), C_VX))
    g.e('s_lshl_b32 %s, %s, 13' % (sr(S_T3), H))
    g.e('s_add_u32 %s, %s, %s' % (sr(S_KXO), sr(S_T3), sr(S_T2)))
    g.e('s_add_u32 %s, %s, 0x%x' % (sr(S_KXO), sr(S_KXO), WS_KX))
    g.e('s_lshl_b32 %s, %s, 12' % (sr(S_T3), H))
    g.e('s_add_u32 %s, %s, %s' % (sr(S_KVO), sr(S_T3), sr(S_W1K)))
    g.e('s_add_u32 %s, %s, 0x%x' % (sr(S_KVO), sr(S_KVO), WS_KV))
    g.e('s_lshl_b32 %s, %s, 7' % (sr(S_T2), H))
    g.e('s_add_u32 %s, %s, 0x%x' % (sr(S_F1), sr(S_T2), WS_FLAGS + F1_OFF))
    g.e('s_lshl_b32 %s, %s, 2' % (sr(S_T3), W))
    g.e('s_add_u32 %s, %s, %s' % (sr(S_F2), sr(S_T2), sr(S_T3)))
    g.e('s_add_u32 %s, %s, 0x%x' % (sr(S_F2), sr(S_F2), WS_FLAGS + F2_OFF))
    for i in range(4):
        g.e('v_mov_b32 v%d, 0' % (28 + i))
    g.e('buffer_store_dwordx4 v[28:31], v%d, %s, %s offen' % (V_PLD, sr(SRD_WS, 4), sr(S_PL)))
    g.e('buffer_store_dwordx4 v[28:31], v%d, %s, %s offen' % (V_PLD, sr(SRD_WS, 4), sr(S_PL2)))
    g.e('v_mov_b32 v32, -1')
    for slot in (1, 2):
        g.e('s_mov_b32 %s, 0x%x' % (sr(S_T0), WS_M2 + slot * 8192))
        g.e('buffer_store_dword v32, v%d, %s, %s offen' % (V_MS, sr(SRD_WS, 4), sr(S_T0)))
    make_srd(g, SRD_A, S_MEM0, 8192)
    g.e('s_lshr_b32 %s, %s, 2' % (sr(S_T2), H))
    g.e('s_lshl_b32 %s, %s, 7' % (sr(S_T2), sr(S_T2)))
    g.e('s_lshr_b32 %s, %s, 1' % (sr(S_T3), W))
    g.e('s_lshl_b32 %s, %s, 6' % (sr(S_T3), sr(S_T3)))
    g.e('s_add_u32 %s, %s, %s' % (sr(S_T2), sr(S_T2), sr(S_T3)))
    g.e('s_and_b32 %s, %s, 1' % (sr(S_T3), W))
    g.e('s_lshl_b32 %s, %s, 4' % (sr(S_T3), sr(S_T3)))
    g.e('s_add_u32 %s, %s, %s' % (sr(S_T2), sr(S_T2), sr(S_T3)))
    g.e('v_and_b32 v23, 3, v20')
    g.e('v_lshlrev_b32 v23, 2, v23')
    g.e('v_and_b32 v24, 1, v22')
    g.e('v_lshl_add_u32 v23, v24, 1, v23')
    g.e('v_and_b32 v24, 7, v27')
    g.e('v_lshl_add_u32 v23, v24, 10, v23')
    g.e('buffer_load_ushort v24, v23, %s, %s offen' % (sr(SRD_A, 4), sr(S_T2)))
    g.e('buffer_load_ushort v25, v23, %s, %s offen offset:32' % (sr(SRD_A, 4), sr(S_T2)))
    g.e('s_waitcnt vmcnt(0)')
    g.e('v_lshl_or_b32 v24, v25, 16, v24')
    g.e('v_min_u32 v24, -2, v24')
    g.e('s_mov_b32 %s, 0x%x' % (sr(S_T0), WS_M2))
    g.e('buffer_store_dword v24, v%d, %s, %s offen' % (V_MS, sr(SRD_WS, 4), sr(S_T0)))
    l = g.newlabel('L_if')
    g.e('s_cmp_lg_u32 %s, 0' % sr(S_WAVE))
    g.e('s_cbranch_scc1 %s' % l)
    g.e('v_and_b32 v33, 31, v20')
    g.e('v_lshlrev_b32 v33, 2, v33')
    g.e('v_lshrrev_b32 v34, 5, v20')
    g.e('v_lshl_add_u32 v33, v34, 12, v33')
    g.e('buffer_store_dword v28, v33, %s, %s offen sc1' % (sr(SRD_WS, 4), sr(S_F1)))
    g.e('v_lshlrev_b32 v33, 11, v20')
    g.e('s_and_b32 %s, %s, 15' % (sr(S_T0), sr(S_RANK)))
    g.e('s_lshl_b32 %s, %s, 7' % (sr(S_T0), sr(S_T0)))
    g.e('s_add_u32 %s, %s, 0x%x' % (sr(S_T0), sr(S_T0), WS_FLAGS + 8192))
    g.e('s_mov_b64 exec, 15')
    g.e('buffer_store_dword v28, v33, %s, %s offen sc1' % (sr(SRD_WS, 4), sr(S_T0)))
    g.e('s_mov_b64 exec, -1')
    g.label(l)
    g.e('s_waitcnt vmcnt(0)')
    g.e('s_barrier')
    l = g.newlabel('L_if')
    g.e('s_cmp_lg_u32 %s, 0' % sr(S_WAVE))
    g.e('s_cbranch_scc1 %s' % l)
    g.e('s_mov_b64 exec, 1')
    g.e('v_mov_b32 v28, 128')
    g.e('v_mov_b32 v29, 1')
    g.e('global_atomic_add v28, v29, %s' % sr(S_DBG, 2))
    g.e('s_mov_b64 exec, -1')
    g.label(l)


def load_weights(g, opt):
    W = sr(S_WAVE)
    H = sr(S_RANK)
    TB = 64
    g.e('s_lshr_b32 %s, %s, 1' % (sr(S_T0), W))
    g.e('s_lshl_b32 %s, %s, 6' % (sr(S_T0), sr(S_T0)))
    g.e('s_and_b32 %s, %s, 1' % (sr(S_T1), W))
    g.e('s_lshl_b32 %s, %s, 3' % (sr(S_T1), sr(S_T1)))
    g.e('s_add_u32 %s, %s, %s' % (sr(S_T0), sr(S_T0), sr(S_T1)))
    g.e('v_lshlrev_b32 v24, 4, v22')
    g.e('v_add_u32 v24, %s, v24' % sr(S_T0))
    g.e('v_lshlrev_b32 v24, 13, v24')
    g.e('v_bfe_u32 v23, v20, 4, 1')
    g.e('v_lshlrev_b32 v25, 1, v23')
    g.e('v_xor_b32 v25, v25, v21')
    g.e('v_lshl_add_u32 v30, v25, 4, v24')
    g.e('v_bfe_u32 v25, v20, 2, 2')
    g.e('v_lshl_add_u32 v30, v25, 20, v30')
    for i in range(1, 4):
        g.e('v_xor_b32 v%d, 0x%x, v30' % (30 + i, i * 64 + (i << 20)))
    g.e('s_and_b32 %s, %s, 1' % (sr(S_T0), W))
    g.e('s_lshl_b32 %s, %s, 7' % (sr(S_T0), sr(S_T0)))
    g.e('v_xor_b32 v34, %s, v%d' % (sr(S_T0), V_L16))
    g.e('s_lshl_b32 %s, %s, 13' % (sr(S_T0), W))
    g.e('v_add_u32 v34, %s, v34' % sr(S_T0))
    g.e('v_lshrrev_b32 v23, 2, v21')
    g.e('v_and_b32 v24, 3, v21')
    g.e('v_lshrrev_b32 v25, 1, v22')
    g.e('v_lshlrev_b32 v25, 4, v25')
    g.e('v_lshrrev_b32 v26, 1, v23')
    g.e('v_lshl_add_u32 v25, v26, 3, v25')
    g.e('v_and_b32 v27, 1, v22')
    g.e('v_lshl_add_u32 v25, v27, 2, v25')
    g.e('v_and_b32 v28, 1, v23')
    g.e('v_add_u32 v25, v25, v28')
    g.e('v_lshl_add_u32 v28, v27, 1, v28')
    g.e('v_lshl_add_u32 v28, v26, 2, v28')
    g.e('v_lshlrev_b32 v28, 1, v28')
    g.e('v_lshrrev_b32 v26, 1, v24')
    g.e('v_and_b32 v27, 1, v24')
    g.e('s_lshl_b32 %s, %s, 2' % (sr(S_T0), W))
    g.e('v_add_u32 v29, %s, v26' % sr(S_T0))
    g.e('v_xor_b32 v29, v29, v28')
    g.e('v_lshlrev_b32 v29, 4, v29')
    g.e('v_lshl_add_u32 v29, v27, 3, v29')
    g.e('v_lshl_add_u32 v35, v25, 8, v29')
    g.e('v_xor_b32 v36, 32, v35')
    g.e('v_xor_b32 v29, v26, v28')
    g.e('s_lshl_b32 %s, %s, 4' % (sr(S_T0), W))
    g.e('v_add_u32 v29, %s, v29' % sr(S_T0))
    g.e('v_lshlrev_b32 v29, 4, v29')
    g.e('v_lshl_add_u32 v29, v27, 3, v29')
    g.e('v_lshl_add_u32 v37, v25, 10, v29')

    chunks = [('V', c) for c in range(4)] + [('K', c) for c in range(4)] + [('Q', c) for c in range(4)] + [('O', c) for c in range(4)]
    ptr = {'V': S_WV, 'Q': S_WQ, 'K': S_WK, 'O': S_WO}
    srd = {'V': SRD_A, 'K': SRD_B, 'Q': SRD_A, 'O': SRD_B}

    def issue(ci):
        m, c = chunks[ci]
        ring = C_RING[ci % 3]
        if c == 0:
            make_srd(g, srd[m], ptr[m], 4 << 20)
        for i in range(8):
            g.e('s_lshl_b32 %s, %s, 13' % (sr(S_T0), W))
            g.e('s_add_u32 m0, %s, %d' % (sr(S_T0), ring + i * 1024))
            if m != 'O':
                g.e('s_lshl_b32 %s, %s, 8' % (sr(S_T1), H))
                g.e('s_add_u32 %s, %s, %d' % (sr(S_T1), sr(S_T1), i * 8192))
                g.e('v_xor_b32 v38, 0x%x, v%d' % (c << 20, 30 + (i & 3)))
                g.e('buffer_load_dwordx4 v38, %s, %s offen lds' % (sr(srd[m], 4), sr(S_T1)))
            else:
                x = ((i & 1) | (((i >> 2) & 1) << 1)) * 32
                g.e('v_xor_b32 v38, %d, v34' % x)
                g.e('s_lshl_b32 %s, %s, 17' % (sr(S_T1), H))
                g.e('s_add_u32 %s, %s, %d' % (sr(S_T1), sr(S_T1), (c * 32 + i) * 1024))
                g.e('buffer_load_dwordx4 v38, %s, %s offen lds' % (sr(srd[m], 4), sr(S_T1)))

    for ci in range(3):
        issue(ci)
    for ci in range(16):
        m, c = chunks[ci]
        ring = C_RING[ci % 3]
        g.e('s_waitcnt vmcnt(%d)' % (8 * min(15 - ci, 2)))
        g.e('s_barrier')
        if m != 'O':
            g.e('v_add_u32 v38, %d, v35' % ring)
            g.e('v_add_u32 v39, %d, v36' % ring)
            for ksl in range(2):
                ks = 2 * c + ksl
                for t in range(2):
                    for sq in range(4):
                        off = (64 * ksl + 32 * (sq >> 1) + 2 * (sq & 1)) * 256
                        if m == 'V':
                            dst = ar(A_V0 + ks * 8 + sq * 2, 2) if t == 0 else vr(V_V1 + ks * 8 + sq * 2, 2)
                        elif m == 'K':
                            dst = ar(A_K + (t * 8 + ks) * 8 + sq * 2, 2)
                        elif t == 0:
                            dst = ar(A_Q0 + ks * 8 + sq * 2, 2)
                        else:
                            dst = vr(TB + ksl * 8 + sq * 2, 2)
                        g.e('ds_read_b64_tr_b16 %s, v%d offset:%d' % (dst, 38 + t, off))
            g.e('s_waitcnt lgkmcnt(0)')
            if m == 'Q':
                for ksl in range(2):
                    ks = 2 * c + ksl
                    g.e('ds_write_b128 v%d, %s offset:%d' % (V_WL, vr(TB + ksl * 8, 4), ks * 2048))
                    g.e('ds_write_b128 v%d, %s offset:%d' % (V_WL, vr(TB + ksl * 8 + 4, 4), ks * 2048 + 1024))
                g.e('s_waitcnt lgkmcnt(0)')
        else:
            ks2, hf = c >> 1, c & 1
            for tp in range(8):
                g.e('v_xor_b32 v38, %d, v37' % (tp * 32))
                g.e('v_add_u32 v38, %d, v38' % ring)
                for s1 in range(2):
                    if tp < 4:
                        dst = vr(V_WOL + (tp * 2 + ks2) * 8 + hf * 4 + s1 * 2, 2)
                    else:
                        dst = vr(TB + ((tp - 4) * 2 + ks2) * 8 + hf * 4 + s1 * 2, 2)
                    g.e('ds_read_b64_tr_b16 %s, v38 offset:%d' % (dst, 2 * s1 * 1024))
            g.e('s_waitcnt lgkmcnt(0)')
        g.e('s_barrier')
        if ci + 3 < 16:
            issue(ci + 3)
    g.e('v_add_u32 v38, 65536, v%d' % V_WL)
    for f in range(8):
        g.e('ds_write_b128 v38, %s offset:%d' % (vr(TB + f * 8, 4), f * 2048))
        g.e('ds_write_b128 v38, %s offset:%d' % (vr(TB + f * 8 + 4, 4), f * 2048 + 1024))
    g.e('s_waitcnt lgkmcnt(0)')


def dma_kxvx2(g, sc):
    g.e('s_mov_b32 m0, %s' % sr(S_M0KX))
    g.e('s_add_u32 %s, %s, 0x%x' % (sr(S_T0), sr(S_KXO), WS_VX - WS_KX))
    sc.vm('buffer_load_dwordx4 v%d, %s, %s offen sc1 lds' % (V_L16, sr(SRD_WS, 4), sr(S_KXO)))
    sc.vm('buffer_load_dwordx4 v%d, %s, %s offen offset:1024 sc1 lds' % (V_L16, sr(SRD_WS, 4), sr(S_KXO)))
    g.e('s_mov_b32 m0, %s' % sr(S_M0VX))
    g.e('s_add_u32 %s, %s, 0x40000' % (sr(S_KXO), sr(S_KXO)))
    sc.vm('buffer_load_dwordx4 v%d, %s, %s offen sc1 lds' % (V_L16, sr(SRD_WS, 4), sr(S_T0)))
    sc.vm('buffer_load_dwordx4 v%d, %s, %s offen offset:1024 sc1 lds' % (V_L16, sr(SRD_WS, 4), sr(S_T0)))


def ring_load(sc, idx, VK1):
    slot = RG + (idx % 6) * 8
    base, f = (V_WL, idx) if idx < 8 else (VK1, idx - 8)
    sc.ds('ds_read_b128 %s, v%d offset:%d' % (vr(slot, 4), base, f * 2048), None)
    sc.ds('ds_read_b128 %s, v%d offset:%d' % (vr(slot + 4, 4), base, f * 2048 + 1024), 'R%d' % idx)


def smf2(g, d, a, b):
    g.e('v_smfmac_f32_16x16x64_bf16 %s, %s, %s, v%d' % (vr(d, 4), vr(a, 4), b, V_IDX))


def xlane(g, op, MX, MT):
    for sw in ('v_permlane16_swap_b32', 'v_permlane32_swap_b32'):
        g.e('v_mov_b32 v%d, v%d' % (MT, MX))
        g.nop(2)
        g.e('%s v%d, v%d' % (sw, MT, MX))
        g.nop(1)
        g.e('%s v%d, v%d, v%d' % (op, MX, MX, MT))


def poll(g, opt, name, issue_fn, check_fn, fillers, cnt_sgpr, depth=3):
    fd = opt.get('fd', 1)
    gap = opt.get('gap', 12)
    issue_fn()
    for grp in fillers:
        for s in grp:
            g.e(s)
    lp = g.newlabel('L_' + name)
    dn = g.newlabel('L_' + name + 'd')
    if opt.get('ts'):
        g.e('s_mov_b32 %s, 1' % cnt_sgpr)
    dbl = opt.get('dbl' + name[1], 0)
    for k_ in range(opt.get('nd', 1) if dbl else 0):
        g.nop(dbl)
        issue_fn()
    for k_ in range(opt.get('nd', 1) if dbl else 0):
        g.e('s_waitcnt vmcnt(%d)' % (2 * (opt.get('nd', 1) - k_)))
        check_fn()
        g.e('s_cbranch_vccz %s' % dn)
        if opt.get('ts'):
            g.e('s_add_u32 %s, %s, 1' % (cnt_sgpr, cnt_sgpr))
    g.e('s_waitcnt vmcnt(0)')
    check_fn()
    g.e('s_cbranch_vccz %s' % dn)
    g.e('s_mov_b64 exec, vcc')
    for d in range(fd - 1):
        issue_fn()
        g.nop(gap)
    g.label(lp)
    issue_fn()
    g.e('s_mov_b64 exec, -1')
    if opt.get('ts'):
        g.e('s_add_u32 %s, %s, 1' % (cnt_sgpr, cnt_sgpr))
    g.guard()
    g.e('s_waitcnt vmcnt(%d)' % (2 * (fd - 1)))
    check_fn()
    g.e('s_cbranch_vccz %s' % dn)
    g.e('s_mov_b64 exec, vcc')
    g.e('s_branch %s' % lp)
    g.label(dn)


def loop(g, opt):
    sc = Sched(g)

    def padd(a):
        if opt.get('sadd'):
            return ['v_add_f32 v%d, v%d, v%d' % (a, a, a + 2), 'v_add_f32 v%d, v%d, v%d' % (a + 1, a + 1, a + 3)]
        return ['v_pk_add_f32 %s, %s, %s' % (vr(a, 2), vr(a, 2), vr(a + 2, 2))]

    VK1 = V_WD
    g.e('v_add_u32 v%d, 65536, v%d' % (VK1, V_WL))
    g.e('s_mov_b32 %s, 0' % sr(S_STEP))
    g.e('s_mov_b32 %s, 1' % sr(S_PHASE))
    g.e('s_mov_b32 %s, 0x%x' % (sr(S_M2R), WS_M2))
    g.e('s_mov_b32 %s, 0x%x' % (sr(S_M2W), WS_M2 + 8192))
    g.e('s_mov_b32 %s, 0x%x' % (sr(S_M2Z), WS_M2 + 16384))
    l = g.newlabel('L_spin')
    g.e('v_mov_b32 v%d, 128' % PM)
    g.label(l)
    g.guard()
    g.e('global_load_dword v%d, v%d, %s sc1' % (PM + 1, PM, sr(S_DBG, 2)))
    g.e('s_waitcnt vmcnt(0)')
    g.e('v_readfirstlane_b32 %s, v%d' % (sr(S_T0), PM + 1))
    g.nop(3)
    g.e('s_cmp_lt_u32 %s, 32' % sr(S_T0))
    g.e('s_cbranch_scc1 %s' % l)

    def f1_spin(off_reg):
        l = g.newlabel('L_f1')
        g.e('v_mov_b32 v%d, 0' % (A0 + 24))
        g.label(l)
        g.guard()
        g.e('buffer_load_dword v%d, v%d, %s, %s offen sc1' % (V_FL, A0 + 24, sr(SRD_WS, 4), off_reg))
        g.e('s_waitcnt vmcnt(0)')
        g.e('v_readfirstlane_b32 %s, v%d' % (sr(S_T1), V_FL))
        g.nop(3)
        g.e('s_cmp_eq_u32 %s, 0' % sr(S_T1))
        g.e('s_cbranch_scc1 %s' % l)
    if not opt.get('nof1'):
        f1_spin(sr(S_F1))
    g.e('s_barrier')
    dma_kxvx2(g, sc)
    g.e('v_mov_b32 v%d, 1' % V_FL)
    if opt.get('rt'):
        g.e('s_memrealtime s[4:5]')
        g.e('s_waitcnt lgkmcnt(0)')
    for idx in range(6):
        ring_load(sc, idx, VK1)
    g.e('s_branch L_hop2')

    g.label('L_step')
    sc.l = []
    ts2(g, opt, 'start')
    HK = A0
    AD = A0 + 4
    AS = lambda j: PM + 4 * j if j < 2 else A0 + 4 * j
    SL = lambda i: RG + i * 8
    KXF = lambda T, k4: SL(2 + 2 * T + (k4 >> 1)) + (k4 & 1) * 4
    SX0, SX1, SM = SL(0), SL(0) + 4, SL(1)
    MXX, MTT = SL(1) + 4, SL(1) + 5

    def emit_fill(grp):
        for s in grp:
            if isinstance(s, tuple):
                if s[0] == 'ds':
                    sc.ds(s[1], s[2])
                elif s[0] == 'wl':
                    sc.wl(s[1])
                elif s[0] == 'bar':
                    g.e('s_barrier')
            else:
                g.e(s)

    def wsrc(mat, t, j):
        if mat == 'Q':
            return ar(A_Q0 + j * 8, 8) if t == 0 else vr(SL(j % 6), 8)
        if mat == 'K':
            return ar(A_K + (t * 8 + j) * 8, 8)
        return ar(A_V0 + j * 8, 8) if t == 0 else vr(V_V1 + j * 8, 8)
    accs = {'Q': (Q0, Q1), 'K': (K0, K1), 'V': (VT0, VT1)}
    sc.ds('ds_write_b128 v%d, %s offset:%d' % (AD, vr(PM, 4), C_MST), None)
    sc.ds('ds_write_b128 v%d, %s offset:%d' % (AD, vr(PM + 4, 4), C_MST + 1024), 'MW')

    def aread(j):
        return ('ds', 'ds_read_b128 %s, v%d offset:%d' % (vr(AS(j), 4), AD + (j >> 1), C_MST + (j & 1) * 1024), 'A%d' % j)
    rl = []
    for idx in (6, 7):
        rl.append(('ds', 'ds_read_b128 %s, v%d offset:%d' % (vr(SL(idx % 6), 4), V_WL, idx * 2048), None))
        rl.append(('ds', 'ds_read_b128 %s, v%d offset:%d' % (vr(SL(idx % 6) + 4, 4), V_WL, idx * 2048 + 1024), 'R%d' % idx))
    early = [(m_, t, j) for j in range(2) for m_ in 'QKV' for t in range(2)]
    early = [x for x in early if x[0] == 'Q'] + [x for x in early if x[0] != 'Q']
    eb = opt.get('eb', 5)
    fillE = {eb: [('wl', 'MW'), ('bar',)]}
    for i_, x_ in enumerate(rl[:3]):
        fillE[min(2 + i_ * 1 + 2, eb - 1) if False else (4 + i_ if 4 + i_ < eb else 100 + i_)] = [x_]
    rest = [aread(j) for j in range(2, 8)] + [x_ for i_, x_ in enumerate(rl[:3]) if 4 + i_ >= eb]
    n_ = eb + 1
    while rest:
        k_ = min(n_, 11)
        fillE.setdefault(k_, [])
        fillE[k_] = fillE[k_] + [rest.pop(0)]
        n_ += 1
    for n, (m_, t, j) in enumerate(early):
        smf2(g, accs[m_][t], AS(j), wsrc(m_, t, j))
        emit_fill(fillE.get(n, []))
    ts2(g, opt, 'early', True)
    fillQ = [
        [rl[3]],
        ['s_waitcnt vmcnt(0)', ('ds', 'ds_read_b128 %s, v%d offset:%d' % (vr(PM, 4), HK, C_K), 'PUB')],
        ['buffer_store_dword v%d, v%d, %s, %s offen' % (HK + 1, V_MS, sr(SRD_WS, 4), sr(S_M2Z))],
        ['buffer_load_dword v%d, v%d, %s, %s offen sc1' % (V_FL, V_WM, sr(SRD_WS, 4), sr(S_H0))],
        ([] if opt.get('nof1') else
         ['buffer_load_dword v%d, v%d, %s, %s offen sc1' % (V_FL, HK + 2, sr(SRD_WS, 4), sr(S_H1))]),
        ['buffer_store_dword v%d, v%d, %s, %s offen sc1' % (HK + 3, HK + 2, sr(SRD_WS, 4), sr(S_F2))],
    ]
    kxq = [('ds', 'ds_read_b128 %s, v%d offset:%d' % (vr(KXF(T, k4), 4), V_L16, C_KX + (T * 4 + k4) * 1024), 'KX%d_%d' % (T, k4))
           for T in range(2) for k4 in range(4)]
    for j in range(2, 8):
        sc.wl('A%d' % j)
        smf2(g, Q0, AS(j), wsrc('Q', 0, j))
        emit_fill(fillQ.pop(0))
        sc.wl('R%d' % j)
        smf2(g, Q1, AS(j), wsrc('Q', 1, j))
        if 2 <= j <= 5:
            emit_fill([kxq[2 * (j - 2)]])
        if j == 6:
            emit_fill([('wl', 'PUB'), 'buffer_store_dwordx4 %s, v%d, %s, %s offen sc1' % (vr(PM, 4), V_L16, sr(SRD_WS, 4), sr(S_H2))])
    assert not fillQ
    ts2(g, opt, 'q', True)
    QF = [Q0, Q1, PM, PM + 4]

    def fin(accs, base0, tag):
        o = []
        for acc, base in ((accs[0], base0), (accs[1], base0 + 256)):
            o.append(padd(acc) + ['v_cvt_pk_bf16_f32 v%d, v%d, v%d' % (acc, acc, acc + 1)])
            o.append([('ds', 'ds_write_b16 v%d, v%d offset:%d' % (V_QW, acc, base), None),
                      ('ds', 'ds_write_b16_d16_hi v%d, v%d offset:%d' % (V_QW, acc, base + 16), tag)])
        return o
    fin_q = fin((Q0, Q1), C_Q, 'QW')
    fillK = {
        (2, 0): [kxq[1], 's_nop 0'], (2, 1): [kxq[3], 's_nop 1'],
        (3, 0): fin_q[0], (3, 1): fin_q[1], (4, 0): fin_q[2], (4, 1): fin_q[3],
        (5, 0): [kxq[5]], (5, 1): [kxq[7], ('wl', 'QW'), ('bar',)],
        (6, 0): [('ds', 'ds_read_b128 %s, v%d offset:%d' % (vr(QF[k], 4), V_QR, C_Q + k * 512), 'QF%d' % k) for k in range(2)],
        (6, 1): [('ds', 'ds_read_b128 %s, v%d offset:%d' % (vr(QF[k], 4), V_QR, C_Q + k * 512), 'QF%d' % k) for k in range(2, 4)],
    }
    for j in range(2, 8):
        smf2(g, K0, AS(j), wsrc('K', 0, j))
        emit_fill(fillK.get((j, 0), []))
        smf2(g, K1, AS(j), wsrc('K', 1, j))
        emit_fill(fillK.get((j, 1), []))
    ts2(g, opt, 'k', True)
    fin_k = fin((K0, K1), C_K, 'KW')
    fillX = {1: ['s_nop 3'], 2: fin_k[0], 3: fin_k[1], 4: fin_k[2], 5: fin_k[3]}
    n = 0
    for T, S_ in ((0, SX0), (1, SX1)):
        for k4 in range(4):
            sc.wl('QF%d' % k4)
            sc.wl('KX%d_%d' % (T, k4))
            g.e('v_mfma_f32_16x16x32_bf16 %s, %s, %s, %s' % (vr(S_, 4), vr(KXF(T, k4), 4), vr(QF[k4], 4), '0' if k4 == 0 else vr(S_, 4)))
            emit_fill(fillX.get(n, []))
            n += 1
    vq = [(t, ks) for ks in range(2, 8) for t in range(2)]

    def vsmf(k=1, pad=False):
        for _ in range(k):
            if vq:
                t, ks = vq.pop(0)
                smf2(g, VT0 + 4 * t, AS(ks), wsrc('V', t, ks))
            elif pad:
                g.nop(1)

    WH = [SL(5), SL(2), SL(3), PM, SL(0), SL(1), SL(4), A0 + 16]

    def wh_load(f):
        sc.ds('ds_read_b128 %s, v%d offset:%d' % (vr(WH[f], 4), VK1, f * 2048), None)
        sc.ds('ds_read_b128 %s, v%d offset:%d' % (vr(WH[f] + 4, 4), VK1, f * 2048 + 1024), 'WH%d' % f)
    ts2(g, opt, 'xsc', True)
    vsmf(2)
    sc.wl('KW')
    g.e('s_barrier')
    ts2(g, opt, 'kbar', True)
    KMF = lambda k4: KXF(0, k4)
    for k4 in range(4):
        sc.ds('ds_read_b128 %s, v%d offset:%d' % (vr(KMF(k4), 4), V_KR, C_K + k4 * 512), 'KM%d' % k4)
    vsmf(1)
    VXF = SL(4)
    g.e('v_add_u32 v%d, %s, v%d' % (K0, sr(S_M0VX), V_L16))
    sc.ds('ds_read_b128 %s, v%d' % (vr(VXF, 4), K0), None)
    sc.ds('ds_read_b128 %s, v%d offset:1024' % (vr(VXF + 4, 4), K0), 'VX')
    vsmf(1)
    S = [SX0 + i for i in range(8)]
    g.e('s_mov_b32 m0, %s' % sr(S_M0KX))
    g.e('v_max3_f32 v%d, v%d, v%d, v%d' % (MXX, S[0], S[1], S[2]))
    g.e('buffer_load_dwordx4 v%d, %s, %s offen sc1 lds' % (V_L16, sr(SRD_WS, 4), sr(S_H0)))
    g.e('v_max3_f32 v%d, v%d, v%d, v%d' % (MTT, S[3], S[4], S[5]))
    vsmf(1)
    g.e('buffer_load_dwordx4 v%d, %s, %s offen offset:1024 sc1 lds' % (V_L16, sr(SRD_WS, 4), sr(S_H0)))
    g.e('v_max3_f32 v%d, v%d, v%d, v%d' % (MXX, MXX, S[6], S[7]))
    g.e('v_max_f32 v%d, v%d, v%d' % (MXX, MXX, MTT))
    vsmf(1)
    wh_load(0)
    g.e('v_mov_b32 v%d, 0x3f803f80' % K0)
    g.e('v_mov_b32 v%d, 0x3f803f80' % (K0 + 1))
    g.e('v_mov_b64 %s, %s' % (vr(K0 + 2, 2), vr(K0, 2)))
    for k4 in range(4):
        sc.wl('KM%d' % k4)
        g.e('v_mfma_f32_16x16x32_bf16 %s, %s, %s, %s' % (vr(SM, 4), vr(KMF(k4), 4), vr(QF[k4], 4), '0' if k4 == 0 else vr(SM, 4)))
    vsmf(1)
    wh_load(1)
    vsmf(1)
    wh_load(2)
    vsmf(1)
    g.nop(1)
    ts2(g, opt, 'msc', True)
    sc.wl('VX')
    g.e('s_mov_b32 m0, %s' % sr(S_M0VX))
    g.e('s_add_u32 %s, %s, 0x%x' % (sr(S_T0), sr(S_H0), WS_VX - WS_KX))
    g.e('v_max3_f32 v%d, v%d, v%d, v%d' % (MXX, MXX, SM, SM + 1))
    for i_, sw in enumerate(('v_permlane16_swap_b32', 'v_permlane32_swap_b32')):
        g.e('v_mov_b32 v%d, v%d' % (MTT, MXX))
        vsmf(1)
        g.e('buffer_load_dwordx4 v%d, %s, %s offen offset:%d sc1 lds' % (V_L16, sr(SRD_WS, 4), sr(S_T0), 1024 * i_))
        g.e('%s v%d, v%d' % (sw, MTT, MXX))
        g.nop(1)
        g.e('v_max_f32 v%d, v%d, v%d' % (MXX, MXX, MTT))
    ts2(g, opt, 'max', True)
    g.e('v_mul_f32 v%d, %s, v%d' % (MXX, sr(S_L2E), MXX))
    g.e('v_mov_b32 v%d, v%d' % (MTT, MXX))
    SA = S + [SM, SM + 1]
    for i in range(5):
        g.e('v_pk_fma_f32 %s, %s, %s, %s neg_lo:[0,0,1] neg_hi:[0,0,1]' % (vr(SA[2 * i], 2), vr(SA[2 * i], 2), sr(S_L2E, 2), vr(MXX, 2)))
        if i % 2 == 1:
            vsmf(1)
    for i in range(10):
        g.e('v_exp_f32 v%d, v%d' % (SA[i], SA[i]))
        if i % 3 == 1:
            vsmf(1)
    assert not vq, len(vq)
    ts2(g, opt, 'exp', True)
    VM0, VM1 = A0, A0 + 2
    PX, PMm, RINV = A0 + 4, A0 + 8, A0 + 10
    O0, O1, OP = A0 + 12, A0 + 16, A0 + 4
    ONES, SUMS = K0, K1
    for i in range(4):
        g.e('v_cvt_pk_bf16_f32 v%d, v%d, v%d' % (PX + i, SA[2 * i], SA[2 * i + 1]))
    g.e('v_cvt_pk_bf16_f32 v%d, v%d, v%d' % (PMm, SA[8], SA[9]))
    g.e('v_mov_b32 v%d, 0' % (PMm + 1))
    g.e('v_mfma_f32_16x16x32_bf16 %s, %s, %s, 0' % (vr(SUMS, 4), vr(ONES, 4), vr(PX, 4)))
    g.e('v_pk_add_f32 %s, %s, %s' % (vr(VT0, 2), vr(VT0, 2), vr(VT0 + 2, 2)))
    g.e('v_mfma_f32_16x16x16_bf16 %s, %s, %s, %s' % (vr(SUMS, 4), vr(ONES, 2), vr(PMm, 2), vr(SUMS, 4)))
    g.e('v_pk_add_f32 %s, %s, %s' % (vr(VT1, 2), vr(VT1, 2), vr(VT1 + 2, 2)))
    g.e('v_mfma_f32_16x16x32_bf16 %s, %s, %s, 0' % (vr(O0, 4), vr(VXF, 4), vr(PX, 4)))
    g.e('v_cvt_pk_bf16_f32 v%d, v%d, v%d' % (VM0, VT0, VT0 + 1))
    g.e('v_cvt_pk_bf16_f32 v%d, v%d, v%d' % (VM1, VT1, VT1 + 1))
    g.e('v_mfma_f32_16x16x32_bf16 %s, %s, %s, 0' % (vr(O1, 4), vr(VXF + 4, 4), vr(PX, 4)))
    g.e('v_mov_b32 v%d, 0' % (VM0 + 1))
    g.e('v_mov_b32 v%d, 0' % (VM1 + 1))
    sc.ds('ds_write_b32 v%d, v%d offset:%d' % (V_VW, VM0, C_VM), None)
    g.e('v_rcp_f32 v%d, v%d' % (RINV, SUMS))
    g.e('v_mfma_f32_16x16x16_bf16 %s, %s, %s, %s' % (vr(O0, 4), vr(VM0, 2), vr(PMm, 2), vr(O0, 4)))
    g.e('v_mfma_f32_16x16x16_bf16 %s, %s, %s, %s' % (vr(O1, 4), vr(VM1, 2), vr(PMm, 2), vr(O1, 4)))
    sc.ds('ds_write_b32 v%d, v%d offset:%d' % (V_VW, VM1, C_VM + 256), None)
    g.e('s_cmp_eq_u32 %s, 63' % sr(S_STEP))
    g.e('s_cbranch_scc1 L_chain_done')
    ts2(g, opt, 'pv', True)
    WA = [ACC2 + 4 * i for i in range(6)] + [A0 + 24, A0 + 28]
    zl = ['v_mov_b64 %s, 0' % vr(WA[i // 2] + 2 * (i & 1), 2) for i in range(16)]
    g.e('v_mov_b32 v%d, v%d' % (RINV + 1, RINV))
    for _ in range(4):
        g.e(zl.pop(0))
    for i in range(4):
        g.e('v_pk_mul_f32 %s, %s, %s' % (vr(O0 + 2 * i, 2), vr(O0 + 2 * i, 2), vr(RINV, 2)))
    for i in range(4):
        g.e('v_cvt_pk_bf16_f32 v%d, v%d, v%d' % (OP + i, O0 + 2 * i, O0 + 2 * i + 1))
    sc.ds('ds_write_b64 v%d, %s' % (V_OW, vr(OP, 2)), None)
    sc.ds('ds_write_b64 v%d, %s offset:256' % (V_OW, vr(OP + 2, 2)), 'OW')
    ts2(g, opt, 'smax')
    wh_load(3)
    wh_load(4)
    for _ in range(6):
        g.e(zl.pop(0))
    sc.wl('OW')
    g.e('s_barrier')
    ts2(g, opt, 'obar')
    OA = A0 + 8
    sc.ds('ds_read_b128 %s, v%d offset:%d' % (vr(OA, 4), V_AF, C_O), 'OA0')
    sc.ds('ds_read_b128 %s, v%d offset:%d' % (vr(OA + 4, 4), V_AF, C_O + 1024), 'OA1')
    while zl:
        g.e(zl.pop(0))
    ST = A0

    def post(pr):
        ops = []
        for d in range(2):
            a = WA[2 * pr + d]
            ops += padd(a) + ['v_cvt_pk_bf16_f32 v%d, v%d, v%d' % (ST + 2 * pr + d, a, a + 1)]
            if d == 0:
                ops.append('v_bfi_b32 v%d, 1, %s, v%d' % (ST + 2 * pr, sr(S_PHASE), ST + 2 * pr))
        ops.append('buffer_store_dwordx2 %s, v%d, %s, %s offen offset:%d' % (vr(ST + 2 * pr, 2), V_PS, sr(SRD_WS, 4), '0' if pr < 2 else sr(S_U), (pr & 1) * 128))
        return ops
    side = []
    for f in (5, 6, 7):
        side.append(('ds', 'ds_read_b128 %s, v%d offset:%d' % (vr(WH[f], 4), VK1, f * 2048), None))
        side.append(('ds', 'ds_read_b128 %s, v%d offset:%d' % (vr(WH[f] + 4, 4), VK1, f * 2048 + 1024), 'WH%d' % f))
    sc.wl('OA0')
    ts2(g, opt, 'oa', True)
    pend = []
    cnt = [0]

    def emit(s_):
        emit_fill([s_])
        cnt[0] += 1
    order = [(pr, ks2, d) for pr in range(4) for ks2 in range(2) for d in range(2)]
    for n, (pr, ks2, d) in enumerate(order):
        tp = 2 * pr + d
        if ks2 == 1:
            sc.wl('OA1')
        if tp >= 4:
            sc.wl('WH%d' % ((tp - 4) * 2 + ks2))
            bsrc = vr(WH[(tp - 4) * 2 + ks2], 8)
        else:
            bsrc = vr(V_WOL + (tp * 2 + ks2) * 8, 8)
        smf2(g, WA[tp], OA + 4 * ks2, bsrc)
        cnt[0] += 1
        if ks2 == 1 and d == 1:
            pend += [(cnt[0] + 8, o) for o in post(pr)]
        k = 0
        if side:
            emit(side.pop(0))
            k += 1
        while k < opt.get('wper', 2) and pend and pend[0][0] <= cnt[0]:
            emit(pend.pop(0)[1])
            k += 1
    ts2(g, opt, 'wo16', True)
    while pend:
        if pend[0][0] > cnt[0]:
            g.nop(pend[0][0] - cnt[0])
            cnt[0] = pend[0][0]
        emit(pend.pop(0)[1])
    g.e('s_add_u32 %s, %s, 0x40000' % (sr(S_KXO), sr(S_KXO)))
    ts2(g, opt, 'wo')
    if opt.get('ack'):
        g.e('s_waitcnt vmcnt(2)')
        ts2(g, opt, 'dmaack')
        g.e('s_waitcnt vmcnt(1)')
        ts2(g, opt, 'ack0')
        g.e('s_waitcnt vmcnt(0)')
        ts2(g, opt, 'ack1')
    SEL = A0 + 8
    RD = A0 + 12
    tt = 0
    for a in range(2):
        for b in range(2):
            for c_ in range(2):
                if (a ^ c_) | (b ^ c_):
                    tt |= 1 << (a * 4 + b * 2 + c_)
    PHV, CK = A0 + 16, A0 + 17

    def issue1():
        g.e('buffer_load_dwordx4 %s, v%d, %s, %s offen sc1' % (vr(PM, 4), V_PLD, sr(SRD_WS, 4), sr(S_PL)))
        g.e('buffer_load_dwordx4 %s, v%d, %s, %s offen sc1' % (vr(PM + 4, 4), V_PLD, sr(SRD_WS, 4), sr(S_PL2)))

    def check1():
        g.e('v_bitop3_b32 v%d, v%d, v%d, v%d bitop3:0x%x' % (CK, PM, PM + 4, PHV, tt))
        g.e('v_bitop3_b32 v%d, v%d, v%d, v%d bitop3:0x%x' % (CK + 1, PM + 2, PM + 6, PHV, tt))
        g.e('v_bitop3_b32 v%d, v%d, v%d, 1 bitop3:0xa8' % (CK, CK, CK + 1))
        g.e('v_cmp_ne_u32 vcc, 0, v%d' % CK)
    sel = ['v_mov_b32 v%d, %s' % (PHV, sr(S_PHASE))]
    for d in range(4):
        sel += ['v_cndmask_b32 v%d, 0, v%d, %s' % (SEL + d, V_ONE, sr(S_SELM + 2 * d, 2))]
    rp = []
    for idx in range(6):
        rp.append('ds_read_b128 %s, v%d offset:%d' % (vr(SL(idx), 4), V_WL, idx * 2048))
        rp.append('ds_read_b128 %s, v%d offset:%d' % (vr(SL(idx) + 4, 4), V_WL, idx * 2048 + 1024))
    if opt.get('pd', 1) == 1:
        for s_ in sel:
            g.e(s_)
        if opt.get('ack'):
            ts2(g, opt, 'sel')
            issue1()
            g.e('s_waitcnt vmcnt(0)')
            ts2(g, opt, 'ld1')
            issue1()
            g.e('s_waitcnt vmcnt(0)')
            ts2(g, opt, 'ld2')
        if opt.get('probe'):
            for s_ in rp[:opt.get('n1', 0)]:
                g.e(s_)
            rp = rp[opt.get('n1', 0):]
            ts2(g, opt, 'pre')
            issue1()
            g.e('s_waitcnt vmcnt(3)')
            ts2(g, opt, 'st0')
            g.e('s_waitcnt vmcnt(2)')
            ts2(g, opt, 'st1')
            g.e('s_waitcnt vmcnt(1)')
            ts2(g, opt, 'ld0')
            g.e('s_waitcnt vmcnt(0)')
            ts2(g, opt, 'ld1')
        if opt.get('aw1'):
            for s_ in rp[:opt.get('n1', 0)]:
                g.e(s_)
            rp = rp[opt.get('n1', 0):]
            g.e('s_waitcnt vmcnt(%d)' % (opt['aw1'] - 1))
        poll(g, opt, 'p1', issue1, check1, [], 's80', depth=1)
    elif opt.get('pd') == 2:
        for s_ in sel[:7]:
            g.e(s_)
        poll(g, opt, 'p1', issue1, check1, [sel[7:] + rp[:4], []], 's80', depth=2)
        rp = rp[4:]
    else:
        for s_ in sel[:7]:
            g.e(s_)
        poll(g, opt, 'p1', issue1, check1, [sel[7:] + rp[:1], rp[1:6], []], 's80', depth=3)
        rp = rp[6:]
    ts2(g, opt, 'hop1')
    g.e('v_mfma_f32_16x16x32_bf16 %s, %s, %s, 0' % (vr(RD, 4), vr(SEL, 4), vr(PM, 4)))
    g.e('v_mfma_f32_16x16x32_bf16 %s, %s, %s, %s' % (vr(RD, 4), vr(SEL, 4), vr(PM + 4, 4), vr(RD, 4)))
    g.e('s_add_u32 %s, %s, 1' % (sr(S_STEP), sr(S_STEP)))
    g.e('s_mov_b32 %s, %s' % (sr(S_T0), sr(S_M2R)))
    g.e('s_mov_b32 %s, %s' % (sr(S_M2R), sr(S_M2W)))
    g.e('s_mov_b32 %s, %s' % (sr(S_M2W), sr(S_M2Z)))
    g.e('s_mov_b32 %s, %s' % (sr(S_M2Z), sr(S_T0)))
    g.e('s_xor_b32 %s, %s, 1' % (sr(S_PHASE), sr(S_PHASE)))
    g.nop(2)
    for ror in (4, 8):
        for i in range(4):
            g.e('v_add_f32_dpp v%d, v%d, v%d row_ror:%d row_mask:0xf bank_mask:0xf' % (RD + i, RD + i, RD + i, ror))
    g.e('v_cvt_pk_bf16_f32 v%d, v%d, v%d' % (RD, RD, RD + 2))
    g.e('v_cvt_pk_bf16_f32 v%d, v%d, v%d' % (RD + 1, RD + 1, RD + 3))
    g.e('v_cndmask_b32 v%d, v%d, v%d, %s' % (RD, RD, RD + 1, sr(S_P1M, 2)))
    g.e('v_min_u32 v%d, -2, v%d' % (RD, RD))
    g.e('buffer_store_dword v%d, v%d, %s, %s offen' % (RD, V_MS, sr(SRD_WS, 4), sr(S_M2R)))
    ts2(g, opt, 'red')
    if opt.get('ack'):
        g.e('s_waitcnt vmcnt(0)')
        ts2(g, opt, 'ack2')
    rp2 = rp
    g.label('L_hop2')
    g.e('s_lshl_b32 %s, %s, 11' % (sr(S_T3), sr(S_WAVE)))
    g.e('s_add_u32 %s, %s, %s' % (sr(S_T3), sr(S_T3), sr(S_M2R)))

    def issue2():
        g.e('buffer_load_dwordx4 %s, v%d, %s, %s offen sc1' % (vr(PM, 4), V_L16, sr(SRD_WS, 4), sr(S_T3)))
        g.e('buffer_load_dwordx4 %s, v%d, %s, %s offen offset:1024 sc1' % (vr(PM + 4, 4), V_L16, sr(SRD_WS, 4), sr(S_T3)))

    def check2():
        g.e('v_max3_u32 v%d, v%d, v%d, v%d' % (CK, PM, PM + 1, PM + 2))
        g.e('v_max3_u32 v%d, v%d, v%d, v%d' % (CK + 1, PM + 3, PM + 4, PM + 5))
        g.e('v_max3_u32 v%d, v%d, v%d, v%d' % (CK, CK, PM + 6, PM + 7))
        g.e('v_max_u32 v%d, v%d, v%d' % (CK, CK, CK + 1))
        g.e('v_cmp_eq_u32 vcc, -1, v%d' % CK)
    zr = ['v_mov_b64 %s, 0' % vr(ACC2 + 2 * i, 2) for i in range(12)]
    HK = A0
    AD = A0 + 4
    zr += ['v_add_u32 v%d, %s, v%d' % (AD, sr(S_M0KX), V_L16)]
    zr += ['v_xor_b32 v%d, %d, v%d' % (AD + q_, q_ << 11, AD) for q_ in (1, 2, 3)]
    zr += ['v_add_u32 v%d, %s, v%d' % (HK, sr(S_W1K), V_L16),
           'v_mov_b32 v%d, -1' % (HK + 1),
           'v_mov_b32 v%d, 0' % (HK + 2),
           's_sub_u32 %s, %s, 1' % (sr(S_T0), sr(S_STEP)),
           's_max_i32 %s, %s, 0' % (sr(S_T0), sr(S_T0)),
           'v_mov_b32 v%d, %s' % (HK + 3, sr(S_T0)),
           's_cmp_ge_u32 %s, 63' % sr(S_STEP),
           's_cselect_b32 %s, 0x7ff00000, %s' % (sr(S_H0), sr(S_KXO)),
           's_add_u32 %s, %s, 2' % (sr(S_T0), sr(S_STEP)),
           's_min_u32 %s, %s, 63' % (sr(S_T0), sr(S_T0)),
           's_and_b32 %s, %s, 0xfffffffc' % (sr(S_T0), sr(S_T0)),
           's_add_u32 %s, %s, %s' % (sr(S_H1), sr(S_T0), sr(S_F1)),
           's_cmp_eq_u32 %s, 0' % sr(S_STEP),
           's_cselect_b32 %s, 0x7ff00000, %s' % (sr(S_H2), sr(S_KVO)),
           's_cselect_b32 %s, 0, 0x20000' % sr(S_T0),
           's_add_u32 %s, %s, %s' % (sr(S_KVO), sr(S_KVO), sr(S_T0))]
    lf = g.newlabel('L_flok')
    fl = ['v_readfirstlane_b32 %s, v%d' % (sr(S_T1), V_FL),
          's_nop 2',
          's_cmp_lg_u32 %s, 0' % sr(S_T1)]
    for s_ in rp2 + zr + fl:
        g.e(s_)
    if not opt.get('nof1'):
        g.e('s_cbranch_scc1 %s' % lf)
        g.e('s_add_u32 %s, %s, 1' % (sr(S_T0), sr(S_STEP)))
        g.e('s_min_u32 %s, %s, 63' % (sr(S_T0), sr(S_T0)))
        g.e('s_and_b32 %s, %s, 0xfffffffc' % (sr(S_T0), sr(S_T0)))
        g.e('s_add_u32 %s, %s, %s' % (sr(S_T2), sr(S_T0), sr(S_F1)))
        f1_spin(sr(S_T2))
        g.label(lf)
    ts2_flush(g, opt, A0 + 21)
    g.e('s_waitcnt vmcnt(0) lgkmcnt(0)')
    poll(g, opt, 'p2', issue2, check2, [], 's81', depth=1)
    g.e('s_branch L_step')
    g.label('L_chain_done')
    g.e('s_waitcnt lgkmcnt(0)')
    g.e('s_barrier')
    g.e('v_add_u32 v%d, %s, v%d' % (PM + 4, sr(S_W1K), V_L16))
    g.e('ds_read_b128 %s, v%d offset:%d' % (vr(PM, 4), PM + 4, C_K))
    g.e('s_waitcnt lgkmcnt(0)')
    g.e('buffer_store_dwordx4 %s, v%d, %s, %s offen sc1' % (vr(PM, 4), V_L16, sr(SRD_WS, 4), sr(S_KVO)))
    g.e('s_waitcnt vmcnt(0)')
    g.e('v_mov_b32 v%d, 64' % PM)
    g.e('v_mov_b32 v%d, 0' % (PM + 1))
    g.e('s_mov_b64 exec, 1')
    g.e('buffer_store_dword v%d, v%d, %s, %s offen sc1' % (PM, PM + 1, sr(SRD_WS, 4), sr(S_F2)))
    g.e('s_mov_b64 exec, -1')
    if opt.get('rt'):
        g.e('s_memrealtime s[98:99]')
        g.e('s_waitcnt lgkmcnt(0)')
        for i, r_ in enumerate((74, 76, 4, 98)):
            g.e('v_writelane_b32 v%d, s%d, %d' % (PM, r_, i))
        g.e('s_lshl_b32 %s, %s, 2' % (sr(S_T0), sr(S_RANK)))
        g.e('s_add_u32 %s, %s, %s' % (sr(S_T0), sr(S_T0), sr(S_WAVE)))
        g.e('s_lshl_b32 %s, %s, 8' % (sr(S_T0), sr(S_T0)))
        g.e('s_add_u32 %s, %s, 0x%x' % (sr(S_T0), sr(S_T0), WS_TS + 0x800000))
        g.e('v_lshrrev_b32 v%d, 2, v%d' % (PM + 1, V_L16))
        g.e('buffer_store_dword v%d, v%d, %s, %s offen' % (PM, PM + 1, sr(SRD_WS, 4), sr(S_T0)))
    g.e('s_branch L_exit')
```

```python
from gen import *

WS_QA = 0x6000000
WS_KA = 0x6200000
WS_VA = 0x6400000
WS_OA = 0x6600000
CA_OFF = 8192
CB_OFF = 8192 + 2048
CO_OFF = 8192 + 4096
FLAG_ZERO_BYTES = 8192 + 6144

N_BP = 512
N_AP = 64
N_AA = 128
N_AO = 64
NBIG = 12
N_BT = NBIG * 36
NX = 4
N_BF = 0
N_BX = NX * 32 + (64 - 4 * NBIG) * 8
CS_OFF = 8192 + 6144
T_AP = N_BP
T_AA = T_AP + N_AP
T_AO = T_AA + N_AA
T_BT = T_AO + N_AO
T_BF = T_BT + N_BT
T_BX = T_BF + N_BF
T_END = T_BX + N_BX

S_TASK = 52
S_R = 53
S_H = 54
S_AOFF = 55
S_BOFF = 56
S_KC = 59
S_X0, S_X1, S_X2, S_X3 = 60, 61, 62, 63
SRD_B0, SRD_B1, SRD_B2 = 80, 84, 88
SRD_OUT = 92
S_RET = 96
S_INIT = 98
S_LOG = 75
S_QN = 74

W_LANE = 1
W_AD = 2
W_BD = 6
W_AR = 8
W_BR = 12
W_T = 16
W_ACC = 64
STAGE = 65536


def wave0_begin(g):
    l = g.newlabel('L_w0')
    g.e('s_cmp_lg_u32 %s, 0' % sr(S_WAVE))
    g.e('s_cbranch_scc1 %s' % l)
    return l


def ensure_init(g):
    lw = g.newlabel('L_iw')
    ld = g.newlabel('L_id')
    g.e('s_cmp_lg_u32 %s, 0' % sr(S_INIT))
    g.e('s_cbranch_scc1 %s' % ld)
    g.e('v_mov_b32 v%d, 128' % W_T)
    g.label(lw)
    g.guard()
    g.e('global_load_dword v%d, v%d, %s sc1' % (W_T + 1, W_T, sr(S_DBG, 2)))
    g.e('s_waitcnt vmcnt(0)')
    g.e('v_readfirstlane_b32 %s, v%d' % (sr(S_X1), W_T + 1))
    g.nop(3)
    g.e('s_cmp_lt_u32 %s, 32' % sr(S_X1))
    g.e('s_cbranch_scc1 %s' % lw)
    g.e('s_mov_b32 %s, 1' % sr(S_INIT))
    g.label(ld)


def wait_ge(g, soff_expr_emit, target, sleep=8):
    ensure_init(g)
    l = g.newlabel('L_wait')
    g.e('v_mov_b32 v%d, 0' % W_T)
    g.label(l)
    g.guard()
    g.e('buffer_load_dword v%d, v%d, %s, %s offen sc1' % (W_T + 1, W_T, sr(SRD_WS, 4), sr(S_X0)))
    g.e('s_waitcnt vmcnt(0)')
    g.e('v_readfirstlane_b32 %s, v%d' % (sr(S_X1), W_T + 1))
    g.nop(3)
    g.e('s_cmp_ge_u32 %s, %s' % (sr(S_X1), target))
    d = g.newlabel('L_waitd')
    g.e('s_cbranch_scc1 %s' % d)
    g.e('s_sleep %d' % sleep)
    g.e('s_branch %s' % l)
    g.label(d)


def signal_add(g):
    g.e('s_waitcnt vmcnt(0)')
    g.e('s_barrier')
    l = wave0_begin(g)
    ensure_init(g)
    g.e('s_mov_b64 exec, 1')
    g.e('v_mov_b32 v%d, 0' % W_T)
    g.e('v_mov_b32 v%d, 1' % (W_T + 1))
    g.e('buffer_atomic_add v%d, v%d, %s, %s offen' % (W_T + 1, W_T, sr(SRD_WS, 4), sr(S_X0)))
    g.e('s_mov_b64 exec, -1')
    g.label(l)


def gemm_setup(g, strideA, strideB):
    L = W_LANE
    t = W_T
    g.e('v_lshrrev_b32 v%d, 3, v%d' % (t, L))
    g.e('s_mov_b32 %s, %d' % (sr(S_X0), strideA))
    g.e('v_mul_lo_u32 v%d, v%d, %s' % (t, t, sr(S_X0)))
    g.e('v_and_b32 v%d, 7, v%d' % (t + 1, L))
    g.e('v_lshrrev_b32 v%d, 4, v%d' % (t + 2, L))
    g.e('v_xor_b32 v%d, v%d, v%d' % (t + 1, t + 1, t + 2))
    g.e('v_lshl_add_u32 v%d, v%d, 4, v%d' % (t, t + 1, t))
    for i in range(4):
        g.e('v_xor_b32 v%d, %d, v%d' % (W_AD + i, (i & 1) * 64, t))
        if i:
            g.e('v_add_u32 v%d, %d, v%d' % (W_AD + i, 8 * i * strideA, W_AD + i))
    g.e('s_mov_b32 %s, %d' % (sr(S_X0), strideB))
    g.e('v_mul_lo_u32 v%d, v%d, %s' % (t, t + 2, sr(S_X0)))
    g.e('v_and_b32 v%d, 15, v%d' % (t + 1, L))
    g.e('v_lshlrev_b32 v%d, 2, v%d' % (t + 3, t + 2))
    g.e('v_xor_b32 v%d, v%d, v%d' % (t + 1, t + 1, t + 3))
    g.e('v_lshl_add_u32 v%d, v%d, 4, v%d' % (W_BD, t + 1, t))


def gemm_consts(g):
    L = W_LANE
    t = W_T
    g.e('v_and_b32 v%d, 31, v%d' % (t, L))
    g.e('v_bfe_u32 v%d, v%d, 1, 3' % (t + 1, L))
    g.e('v_lshrrev_b32 v%d, 5, v%d' % (t + 2, L))
    g.e('v_xor_b32 v%d, v%d, v%d' % (t + 1, t + 1, t + 2))
    g.e('v_lshlrev_b32 v%d, 7, v%d' % (t, t))
    g.e('v_lshl_add_u32 v%d, v%d, 4, v%d' % (t, t + 1, t))
    g.e('s_lshl_b32 %s, %s, 12' % (sr(S_X0), sr(S_WAVE)))
    g.e('v_add_u32 v%d, %s, v%d' % (t, sr(S_X0), t))
    for ks in range(4):
        g.e('v_xor_b32 v%d, %d, v%d' % (W_AR + ks, ks * 32, t))
    g.e('v_bfe_u32 v%d, v%d, 2, 2' % (t, L))
    g.e('v_lshl_add_u32 v%d, v%d, 3, v%d' % (t + 1, t + 2, t))
    g.e('v_lshlrev_b32 v%d, 8, v%d' % (t + 1, t + 1))
    g.e('v_bfe_u32 v%d, v%d, 4, 1' % (t + 3, L))
    g.e('v_bfe_u32 v%d, v%d, 1, 1' % (t + 4, L))
    g.e('v_lshl_add_u32 v%d, v%d, 1, v%d' % (t + 3, t + 3, t + 4))
    g.e('v_lshlrev_b32 v%d, 2, v%d' % (t + 4, t))
    g.e('v_xor_b32 v%d, v%d, v%d' % (t + 3, t + 3, t + 4))
    g.e('v_lshl_add_u32 v%d, v%d, 4, v%d' % (t + 1, t + 3, t + 1))
    g.e('v_and_b32 v%d, 1, v%d' % (t + 3, L))
    g.e('v_lshl_add_u32 v%d, v%d, 3, v%d' % (t + 1, t + 3, t + 1))
    g.e('v_add_u32 v%d, 16384, v%d' % (t + 1, t + 1))
    for tt in range(4):
        g.e('v_xor_b32 v%d, %d, v%d' % (W_BR + tt, tt * 64, t + 1))


def gemm_core(g, name, nb, nchunks, strideB, srdA, srdB, swap, asc1=False, warm=None):
    nt = 4 * nb
    NSTG = 2 if nb == 3 else 4
    STG = 65536 if nb == 3 else 32768
    nd = 4 + 4 * nb
    FB = [0, 64]
    FA = [48, 112]

    def dma(stage):
        base = stage * STG
        o = []
        pre = ['s_lshl_b32 %s, %s, 12' % (sr(S_X0), sr(S_WAVE)),
               's_lshl_b32 %s, %s, 7' % (sr(S_X1), sr(S_KC)),
               's_add_u32 %s, %s, %s' % (sr(S_X1), sr(S_X1), sr(S_AOFF))]
        for i in range(4):
            o.append(pre + ['s_add_u32 m0, %s, %d' % (sr(S_X0), base + i * 1024), 's_nop 0',
                            'buffer_load_dwordx4 v%d, %s, %s offen%s lds' % (W_AD + i, sr(srdA, 4), sr(S_X1), ' sc1' if asc1 else '')])
            pre = []
        pre = ['s_lshl_b32 %s, %s, 6' % (sr(S_X1), sr(S_KC)),
               's_lshl_b32 %s, %s, 4' % (sr(S_X2), sr(S_WAVE)),
               's_add_u32 %s, %s, %s' % (sr(S_X1), sr(S_X1), sr(S_X2)),
               's_mul_i32 %s, %s, %d' % (sr(S_X1), sr(S_X1), strideB)]
        for j in range(nb):
            pre = pre + ['s_add_u32 %s, %s, %s' % (sr(S_X2), sr(S_X1), sr(S_BOFF + j))]
            for i in range(4):
                o.append(pre + ['s_add_u32 m0, %s, %d' % (sr(S_X0), base + 16384 + j * 16384 + i * 1024),
                                's_add_u32 %s, %s, %d' % (sr(S_X3), sr(S_X2), 4 * i * strideB),
                                'buffer_load_dwordx4 v%d, %s, %s offen lds' % (W_BD, sr(srdB[j], 4), sr(S_X3))])
                pre = []
        return o

    def reads(ks, fs):
        o = ['ds_read_b128 %s, v%d' % (ar(FA[fs], 4), W_AR + ks)]
        for t in range(nt):
            j, tt = t >> 2, t & 3
            for s in range(2):
                o.append('ds_read_b64_tr_b16 %s, v%d offset:%d' % (ar(FB[fs] + t * 4 + s * 2, 2), W_BR + tt, (16 * ks + 4 * s) * 256 + j * 16384))
        return o

    def mfmas(fs, side, dq):
        nside = 0
        for t in range(nt):
            rem = 2 * (nt - 1 - t) + nside
            g.e('s_waitcnt lgkmcnt(%d)' % min(rem, 15))
            acc = vr(W_ACC + t * 16, 16)
            a, b = ar(FA[fs], 4), ar(FB[fs] + t * 4, 4)
            if swap[t >> 2]:
                a, b = b, a
            g.e('v_mfma_f32_32x32x16_bf16 %s, %s, %s, %s' % (acc, a, b, acc))
            k = 3 if t == 0 else 2
            for _ in range(k):
                if side:
                    g.e(side.pop(0))
                    nside += 1
            if dq and (t & 1) == 0:
                for s_ in dq.pop(0):
                    g.e(s_)

    for t in range(nt * 8):
        g.e('v_mov_b64 %s, 0' % vr(W_ACC + 2 * t, 2))
    for c in range(NSTG - 1):
        g.e('s_mov_b32 %s, %d' % (sr(S_KC), c))
        for grp in dma(c):
            for s_ in grp:
                g.e(s_)
    if warm is not None:
        strideA = warm
        t = W_T
        g.e('v_lshrrev_b32 v%d, 3, v%d' % (t, W_LANE))
        g.e('v_mul_u32_u24 v%d, %d, v%d' % (t, strideA, t))
        g.e('v_and_b32 v%d, 7, v%d' % (t + 1, W_LANE))
        g.e('v_lshl_add_u32 v%d, v%d, 7, v%d' % (t, t + 1, t))
        for i in range(4):
            g.e('s_add_u32 %s, %s, %d' % (sr(S_X0), sr(S_AOFF), 8 * i * strideA))
            g.e('buffer_load_dword v%d, v%d, %s, %s offen' % (t + 2, t, sr(srdA, 4), sr(S_X0)))
        g.e('v_lshrrev_b32 v%d, 1, v0' % t)
        g.e('v_mul_u32_u24 v%d, %d, v%d' % (t, strideB, t))
        g.e('v_and_b32 v%d, 1, v0' % (t + 1))
        g.e('v_lshl_add_u32 v%d, v%d, 7, v%d' % (t, t + 1, t))
        for i in range(4):
            for j in range(nb):
                g.e('s_add_u32 %s, %s, %d' % (sr(S_X0), sr(S_BOFF + j), 128 * i * strideB))
                g.e('buffer_load_dword v%d, v%d, %s, %s offen' % (t + 2, t, sr(srdB[j], 4), sr(S_X0)))
    g.e('s_mov_b32 %s, %d' % (sr(S_INIT + 2), NSTG - 2))
    loop = 'L_gl_%s' % name
    first = True
    if warm is not None:
        g.e('s_waitcnt vmcnt(%d)' % (4 + 4 * nb))
        g.e('s_branch %s_in' % loop)
    g.label(loop)
    for st in range(NSTG):
        g.e('s_waitcnt vmcnt(%d)' % ((NSTG - 2) * nd))
        if st == 0:
            g.label(loop + '_in')
        g.e('s_barrier')
        for s_ in reads(0, 0):
            g.e(s_)
        g.e('s_add_u32 %s, %s, 1' % (sr(S_INIT + 2), sr(S_INIT + 2)))
        g.e('s_min_u32 %s, %s, %d' % (sr(S_KC), sr(S_INIT + 2), nchunks - 1))
        dq = dma((st + NSTG - 1) % NSTG)
        for ks in range(4):
            mfmas(ks & 1, reads(ks + 1, (ks + 1) & 1) if ks < 3 else [], dq)
        assert not dq
        d = STG if st < NSTG - 1 else -(NSTG - 1) * STG
        for i in range(4):
            g.e('v_add_u32 v%d, 0x%x, v%d' % (W_AR + i, d & 0xffffffff, W_AR + i))
            g.e('v_add_u32 v%d, 0x%x, v%d' % (W_BR + i, d & 0xffffffff, W_BR + i))
    g.e('s_cmp_lt_u32 %s, %d' % (sr(S_INIT + 2), nchunks + NSTG - 2))
    g.e('s_cbranch_scc1 %s' % loop)
    g.e('s_waitcnt vmcnt(0)')
    g.nop(16)


def epi_ct_store(g, t, voff, srd, soff, ioff_fn, sc1):
    a = W_ACC + t * 16
    for gq in range(4):
        g.e('v_cvt_pk_bf16_f32 v%d, v%d, v%d' % (a + 4 * gq, a + 4 * gq, a + 4 * gq + 1))
        g.e('v_cvt_pk_bf16_f32 v%d, v%d, v%d' % (a + 4 * gq + 1, a + 4 * gq + 2, a + 4 * gq + 3))
    for gq in range(4):
        g.e('buffer_store_dwordx2 %s, v%d, %s, %s offen offset:%d%s' % (vr(a + 4 * gq, 2), voff, sr(srd, 4), soff, ioff_fn(gq), ' sc1' if sc1 else ''))


def epi_ct_store16(g, t, voff16, srd, soff, ioff_fn):
    a = W_ACC + t * 16
    for gq in range(4):
        g.e('v_cvt_pk_bf16_f32 v%d, v%d, v%d' % (a + 2 * gq, a + 4 * gq, a + 4 * gq + 1))
        g.e('v_cvt_pk_bf16_f32 v%d, v%d, v%d' % (a + 2 * gq + 1, a + 4 * gq + 2, a + 4 * gq + 3))
    g.nop(2)
    for j in range(2):
        g.e('v_permlane32_swap_b32 v%d, v%d' % (a + 4 * j, a + 4 * j + 2))
        g.e('v_permlane32_swap_b32 v%d, v%d' % (a + 4 * j + 1, a + 4 * j + 3))
    g.nop(1)
    for j in range(2):
        g.e('buffer_store_dwordx4 %s, v%d, %s, %s offen offset:%d sc1' % (vr(a + 4 * j, 4), voff16, sr(srd, 4), soff, ioff_fn(2 * j)))


def epi_v_store(g, t, voff, soff, ioff_fn):
    a = W_ACC + t * 16
    for q in range(2):
        d = W_T + 4 * q
        g.e('v_cvt_pk_bf16_f32 v%d, v%d, v%d' % (d, a + 4 * q, a + 4 * q + 1))
        g.e('v_cvt_pk_bf16_f32 v%d, v%d, v%d' % (d + 1, a + 4 * q + 2, a + 4 * q + 3))
        g.e('v_cvt_pk_bf16_f32 v%d, v%d, v%d' % (d + 2, a + 8 + 4 * q, a + 8 + 4 * q + 1))
        g.e('v_cvt_pk_bf16_f32 v%d, v%d, v%d' % (d + 3, a + 8 + 4 * q + 2, a + 8 + 4 * q + 3))
        for i in range(4):
            g.e('v_mov_b32 v%d, v%d' % (a + 4 * q + i if False else a + 8 * q + i, d + i)) if False else None
    for q in range(2):
        g.e('buffer_store_dwordx4 %s, v%d, %s, %s offen offset:%d sc1' % (vr(W_T + 4 * q, 4), voff, sr(SRD_WS, 4), soff, ioff_fn(q)))
    g.nop(2)


def task_bproj(g):
    g.label('L_t_bproj')
    g.e('s_lshr_b32 %s, %s, 5' % (sr(S_R), sr(S_TASK)))
    g.e('s_and_b32 %s, %s, 31' % (sr(S_H), sr(S_TASK)))
    lg_ = g.newlabel('L_gate')
    g.e('s_cmp_eq_u32 %s, 0' % sr(S_R))
    g.e('s_cbranch_scc1 %s' % lg_)
    l = wave0_begin(g)
    g.e('s_lshl_b32 %s, %s, 7' % (sr(S_X0), sr(S_H)))
    g.e('s_add_u32 %s, %s, 0x%x' % (sr(S_X0), sr(S_X0), WS_FLAGS + F1_OFF))
    wait_ge(g, None, '1', 8)
    g.label(l)
    g.e('s_barrier')
    g.label(lg_)
    make_srd(g, SRD_A, S_BX, 2 << 20)
    make_srd(g, SRD_B0, S_WQ, 4 << 20)
    make_srd(g, SRD_B1, S_WK, 4 << 20)
    make_srd(g, SRD_B2, S_WV, 4 << 20)
    gemm_setup(g, 1024, 8192)
    g.e('s_lshl_b32 %s, %s, 17' % (sr(S_AOFF), sr(S_R)))
    g.e('s_lshl_b32 %s, %s, 15' % (sr(S_X0), sr(S_WAVE)))
    g.e('s_add_u32 %s, %s, %s' % (sr(S_AOFF), sr(S_AOFF), sr(S_X0)))
    for j in range(3):
        g.e('s_lshl_b32 %s, %s, 8' % (sr(S_BOFF + j), sr(S_H)))
    gemm_core(g, 'bp', 3, 8, 8192, SRD_A, [SRD_B0, SRD_B1, SRD_B2], [1, 1, 0])
    t = W_T + 8
    L = W_LANE
    g.e('s_lshl_b32 %s, %s, 2' % (sr(S_X0), sr(S_R)))
    g.e('s_add_u32 %s, %s, %s' % (sr(S_X0), sr(S_X0), sr(S_WAVE)))
    g.e('s_lshl_b32 %s, %s, 5' % (sr(S_X0), sr(S_X0)))
    g.e('s_add_u32 %s, %s, %s' % (sr(S_X0), sr(S_X0), sr(S_H)))
    g.e('s_lshl_b32 %s, %s, 13' % (sr(S_X0), sr(S_X0)))
    g.e('s_add_u32 %s, %s, 0x%x' % (sr(S_X1), sr(S_X0), WS_QX))
    g.e('s_add_u32 %s, %s, 0x%x' % (sr(S_X2), sr(S_X0), WS_KX))
    g.e('s_add_u32 %s, %s, 0x%x' % (sr(S_X3), sr(S_X0), WS_VX))
    g.e('v_bfe_u32 v%d, v%d, 4, 1' % (t, L))
    g.e('v_lshlrev_b32 v%d, 12, v%d' % (t, t))
    g.e('v_and_b32 v%d, 15, v%d' % (t + 1, L))
    g.e('v_lshl_add_u32 v%d, v%d, 4, v%d' % (t, t + 1, t))
    g.e('v_lshrrev_b32 v%d, 5, v%d' % (t + 2, L))
    g.e('v_lshl_add_u32 v%d, v%d, 8, v%d' % (t, t + 2, t))
    g.e('v_bfe_u32 v%d, v%d, 4, 1' % (t + 3, L))
    g.e('v_lshl_add_u32 v%d, v%d, 2, v%d' % (t + 3, t + 3, t + 2))
    g.e('v_lshlrev_b32 v%d, 8, v%d' % (t + 3, t + 3))
    g.e('v_lshl_add_u32 v%d, v%d, 4, v%d' % (t + 3, t + 1, t + 3))
    for tt in range(4):
        epi_ct_store16(g, tt, t, SRD_WS, sr(S_X1), lambda gq, tt=tt: tt * 1024 + gq * 256)
        epi_ct_store16(g, 4 + tt, t, SRD_WS, sr(S_X2), lambda gq, tt=tt: tt * 1024 + gq * 256)
    for tt in range(4):
        if tt == 2:
            g.e('s_add_u32 %s, %s, 4096' % (sr(S_X3), sr(S_X3)))
        epi_v_store(g, 8 + tt, t + 3, sr(S_X3), lambda q, tt=tt: (tt & 1) * 2048 + q * 512)
    g.e('s_lshl_b32 %s, %s, 7' % (sr(S_X0), sr(S_H)))
    g.e('s_lshl_b32 %s, %s, 2' % (sr(S_X1), sr(S_R)))
    g.e('s_add_u32 %s, %s, %s' % (sr(S_X0), sr(S_X0), sr(S_X1)))
    g.e('s_add_u32 %s, %s, 0x%x' % (sr(S_X0), sr(S_X0), WS_FLAGS + F1_OFF))
    signal_add(g)
    g.e('s_branch L_next')


def task_aproj(g):
    g.label('L_t_aproj')
    g.e('s_sub_u32 %s, %s, %d' % (sr(S_X0), sr(S_TASK), T_AP))
    g.e('s_lshr_b32 %s, %s, 2' % (sr(S_R), sr(S_X0)))
    g.e('s_and_b32 %s, %s, 3' % (sr(S_H), sr(S_X0)))
    l = wave0_begin(g)
    g.e('s_mov_b32 %s, 0x%x' % (sr(S_X0), WS_FLAGS + F1_OFF + 4 * 128))
    wait_ge(g, None, '1', 8)
    g.label(l)
    g.e('s_barrier')
    make_srd(g, SRD_A, S_AX, 2 << 20)
    make_srd(g, SRD_B0, S_AWQKV, 512 * 3072)
    gemm_setup(g, 1024, 3072)
    g.e('s_lshl_b32 %s, %s, 17' % (sr(S_AOFF), sr(S_R)))
    g.e('s_lshl_b32 %s, %s, 15' % (sr(S_X0), sr(S_WAVE)))
    g.e('s_add_u32 %s, %s, %s' % (sr(S_AOFF), sr(S_AOFF), sr(S_X0)))
    g.e('s_lshl_b32 %s, %s, 8' % (sr(S_BOFF), sr(S_H)))
    g.e('s_add_u32 %s, %s, 1024' % (sr(S_BOFF + 1), sr(S_BOFF)))
    g.e('s_add_u32 %s, %s, 2048' % (sr(S_BOFF + 2), sr(S_BOFF)))
    gemm_core(g, 'ap', 3, 8, 3072, SRD_A, [SRD_B0, SRD_B0, SRD_B0], [1, 1, 0])
    t = W_T + 8
    L = W_LANE
    g.e('v_and_b32 v%d, 31, v%d' % (t, L))
    g.e('v_lshlrev_b32 v%d, 5, v%d' % (t, t))
    g.e('v_lshrrev_b32 v%d, 5, v%d' % (t + 2, L))
    g.e('v_lshl_add_u32 v%d, v%d, 3, v%d' % (t, t + 2, t))
    g.e('v_add_u32 v%d, 65536, v%d' % (t + 4, t))
    g.e('s_lshl_b32 %s, %s, 2' % (sr(S_X0), sr(S_R)))
    g.e('s_add_u32 %s, %s, %s' % (sr(S_X0), sr(S_X0), sr(S_WAVE)))
    g.e('s_lshl_b32 %s, %s, 10' % (sr(S_X0), sr(S_X0)))
    g.e('s_lshl_b32 %s, %s, 19' % (sr(S_X1), sr(S_H)))
    g.e('s_add_u32 %s, %s, %s' % (sr(S_X0), sr(S_X0), sr(S_X1)))
    for tt in range(4):
        for blk, base in ((0, WS_QA), (1, WS_KA)):
            a = W_ACC + (4 * blk + tt) * 16
            g.e('s_add_u32 %s, %s, 0x%x' % (sr(S_X2), sr(S_X0), base + tt * 131072))
            for gq in range(4):
                g.e('v_cvt_pk_bf16_f32 v%d, v%d, v%d' % (a + 4 * gq, a + 4 * gq, a + 4 * gq + 1))
                g.e('v_cvt_pk_bf16_f32 v%d, v%d, v%d' % (a + 4 * gq + 1, a + 4 * gq + 2, a + 4 * gq + 3))
            for gq in range(4):
                g.e('buffer_store_dwordx2 %s, v%d, %s, %s offen offset:%d sc1' % (vr(a + 4 * gq, 2), t + 4 * (gq >> 1), sr(SRD_WS, 4), sr(S_X2), (gq & 1) * 16))
    g.e('v_bfe_u32 v%d, v%d, 4, 1' % (t + 3, L))
    g.e('v_lshlrev_b32 v%d, 16, v%d' % (t + 3, t + 3))
    g.e('v_lshl_add_u32 v%d, v%d, 8, v%d' % (t + 3, t + 2, t + 3))
    g.e('v_and_b32 v%d, 15, v%d' % (t + 1, L))
    g.e('v_lshl_add_u32 v%d, v%d, 4, v%d' % (t + 3, t + 1, t + 3))
    for tt in range(4):
        g.e('s_add_u32 %s, %s, 0x%x' % (sr(S_X3), sr(S_X0), WS_VA + tt * 131072))
        epi_v_store(g, 8 + tt, t + 3, sr(S_X3), lambda q: q * 512)
    g.e('s_lshl_b32 %s, %s, 7' % (sr(S_X0), sr(S_R)))
    g.e('s_add_u32 %s, %s, 0x%x' % (sr(S_X0), sr(S_X0), WS_FLAGS + CA_OFF))
    signal_add(g)
    g.e('s_branch L_next')


def task_out(g, name, label, a_base, a_stride, nchunks, w_ptr, w_bytes, out_col, cnt_off, cnt_target):
    g.label(label)
    l = wave0_begin(g)
    g.e('s_lshl_b32 %s, %s, 7' % (sr(S_X0), sr(S_R)))
    g.e('s_add_u32 %s, %s, 0x%x' % (sr(S_X0), sr(S_X0), WS_FLAGS + cnt_off))
    wait_ge(g, None, str(cnt_target), 16)
    g.label(l)
    g.e('s_barrier')
    make_srd(g, SRD_B0, w_ptr, w_bytes)
    make_srd(g, SRD_OUT, S_OUT, 2048 * 2048)
    gemm_setup(g, a_stride, 1024)
    g.e('s_lshl_b32 %s, %s, 2' % (sr(S_X0), sr(S_R)))
    g.e('s_add_u32 %s, %s, %s' % (sr(S_X0), sr(S_X0), sr(S_WAVE)))
    g.e('s_mul_i32 %s, %s, %d' % (sr(S_AOFF), sr(S_X0), 32 * a_stride))
    g.e('s_add_u32 %s, %s, 0x%x' % (sr(S_AOFF), sr(S_AOFF), a_base))
    g.e('s_lshl_b32 %s, %s, 8' % (sr(S_BOFF), sr(S_H)))
    gemm_core(g, name, 1, nchunks, 1024, SRD_WS, [SRD_B0], [1], asc1=True)
    t = W_T + 8
    L = W_LANE
    g.e('v_and_b32 v%d, 31, v%d' % (t, L))
    g.e('v_lshlrev_b32 v%d, 11, v%d' % (t, t))
    g.e('v_lshrrev_b32 v%d, 5, v%d' % (t + 2, L))
    g.e('v_lshl_add_u32 v%d, v%d, 3, v%d' % (t, t + 2, t))
    g.e('s_lshl_b32 %s, %s, 2' % (sr(S_X0), sr(S_R)))
    g.e('s_add_u32 %s, %s, %s' % (sr(S_X0), sr(S_X0), sr(S_WAVE)))
    g.e('s_lshl_b32 %s, %s, 16' % (sr(S_X0), sr(S_X0)))
    g.e('s_lshl_b32 %s, %s, 8' % (sr(S_X1), sr(S_H)))
    g.e('s_add_u32 %s, %s, %s' % (sr(S_X0), sr(S_X0), sr(S_X1)))
    g.e('s_add_u32 %s, %s, %d' % (sr(S_X0), sr(S_X0), out_col * 2))
    for tt in range(4):
        epi_ct_store(g, tt, t, SRD_OUT, sr(S_X0), lambda gq, tt=tt: tt * 64 + gq * 16, False)
    g.e('s_branch L_next')


def softmax_vals(g, S, C, MX, l2e_sgpr, xl, n_round2_scale=None):
    n = len(S)
    MT = MX + 1

    def rnd():
        for i in range(n // 2):
            c = C[i % len(C)]
            g.e('v_cvt_pk_bf16_f32 v%d, v%d, v%d' % (c, S[2 * i], S[2 * i + 1]))
            g.e('v_lshlrev_b32 v%d, 16, v%d' % (S[2 * i], c))
            g.e('v_and_b32 v%d, 0xffff0000, v%d' % (S[2 * i + 1], c))
    rnd()
    if n_round2_scale is not None:
        for i in range(n // 2):
            g.e('v_pk_mul_f32 %s, %s, %s' % (vr(S[2 * i], 2), vr(S[2 * i], 2), sr(n_round2_scale, 2)))
        rnd()


def softmax_rest(g, S, C, MX, l2e_sgpr, xl):
    n = len(S)
    MT = MX + 1
    g.e('v_max_f32 v%d, v%d, v%d' % (MX, S[0], S[1]))
    for i in range(2, n, 2):
        g.e('v_max3_f32 v%d, v%d, v%d, v%d' % (MX, MX, S[i], S[i + 1]))
    for sw in xl:
        g.e('v_mov_b32 v%d, v%d' % (MT, MX))
        g.nop(2)
        g.e('%s v%d, v%d' % (sw, MT, MX))
        g.nop(1)
        g.e('v_max_f32 v%d, v%d, v%d' % (MX, MX, MT))
    g.e('v_mov_b32 v%d, v%d' % (MT, MX))
    for i in range(n // 2):
        g.e('v_pk_add_f32 %s, %s, %s neg_lo:[0,1] neg_hi:[0,1]' % (vr(S[2 * i], 2), vr(S[2 * i], 2), vr(MX, 2)))
        g.e('v_pk_mul_f32 %s, %s, %s' % (vr(S[2 * i], 2), vr(S[2 * i], 2), sr(l2e_sgpr, 2)))
    for i in range(n):
        g.e('v_exp_f32 v%d, v%d' % (S[i], S[i]))
    g.nop(1)
    g.e('v_pk_add_f32 %s, %s, %s' % (vr(C[0], 2), vr(S[0], 2), vr(S[2], 2)))
    for i in range(2, n // 2):
        g.e('v_pk_add_f32 %s, %s, %s' % (vr(C[0], 2), vr(C[0], 2), vr(S[2 * i], 2)))
    g.e('v_add_f32 v%d, v%d, v%d' % (MX, C[0], C[0] + 1))
    for sw in xl:
        g.e('v_mov_b32 v%d, v%d' % (MT, MX))
        g.nop(2)
        g.e('%s v%d, v%d' % (sw, MT, MX))
        g.nop(1)
        g.e('v_add_f32 v%d, v%d, v%d' % (MX, MX, MT))
    g.e('v_rcp_f32 v%d, v%d' % (MX, MX))
    g.nop(1)
    g.e('v_mov_b32 v%d, v%d' % (MT, MX))
    for i in range(n // 2):
        g.e('v_pk_mul_f32 %s, %s, %s' % (vr(S[2 * i], 2), vr(S[2 * i], 2), vr(MX, 2)))


def task_aattn(g):
    g.label('L_t_aattn')
    g.e('s_sub_u32 %s, %s, %d' % (sr(S_X0), sr(S_TASK), T_AA))
    g.e('s_lshr_b32 %s, %s, 2' % (sr(S_AOFF), sr(S_X0)))
    g.e('s_and_b32 %s, %s, 3' % (sr(S_H), sr(S_X0)))
    g.e('s_lshr_b32 %s, %s, 1' % (sr(S_R), sr(S_AOFF)))
    l = wave0_begin(g)
    for back in range(3):
        g.e('s_sub_u32 %s, %s, %d' % (sr(S_X0), sr(S_R), back))
        g.e('s_max_i32 %s, %s, 0' % (sr(S_X0), sr(S_X0)))
        g.e('s_lshl_b32 %s, %s, 7' % (sr(S_X0), sr(S_X0)))
        g.e('s_add_u32 %s, %s, 0x%x' % (sr(S_X0), sr(S_X0), WS_FLAGS + CA_OFF))
        wait_ge(g, None, '4', 8)
    g.label(l)
    g.e('s_barrier')
    L = W_LANE
    S_QT, S_A, S_HH = S_BOFF, S_BOFF + 1, S_BOFF + 2
    g.e('s_lshl_b32 %s, %s, 2' % (sr(S_QT), sr(S_AOFF)))
    g.e('s_add_u32 %s, %s, %s' % (sr(S_QT), sr(S_QT), sr(S_WAVE)))
    g.e('s_lshr_b32 %s, %s, 1' % (sr(S_A), sr(S_QT)))
    VQK, VL16, VD, VO = 2, 3, 4, 5
    g.e('v_and_b32 v6, 15, v%d' % L)
    g.e('v_lshrrev_b32 v7, 4, v%d' % L)
    g.e('v_lshlrev_b32 v%d, 5, v6' % VQK)
    g.e('v_lshl_add_u32 v%d, v7, 3, v%d' % (VQK, VQK))
    g.e('v_lshlrev_b32 v%d, 4, v%d' % (VL16, L))
    g.e('s_and_b32 %s, %s, 1' % (sr(S_X0), sr(S_QT)))
    g.e('s_lshl_b32 %s, %s, 4' % (sr(S_X0), sr(S_X0)))
    g.e('s_add_u32 %s, %s, 256' % (sr(S_X0), sr(S_X0)))
    g.e('v_add_u32 v%d, %s, v6' % (VD, sr(S_X0)))
    g.e('v_lshlrev_b32 v8, 2, v7')
    g.e('v_sub_u32 v%d, v%d, v8' % (VD, VD))
    g.e('v_lshlrev_b32 v%d, 10, v6' % VO)
    g.e('v_lshl_add_u32 v%d, v7, 3, v%d' % (VO, VO))
    g.e('s_mov_b32 %s, 0x3eb8aa3b' % sr(S_L2E))
    g.e('s_mov_b32 %s, 0x3eb8aa3b' % sr(S_L2E + 1))
    g.e('s_lshl_b32 %s, %s, 3' % (sr(S_HH), sr(S_H)))
    g.e('s_mov_b32 %s, 0' % sr(S_KC))
    QF, KF, VF, SC, CB, PF, OC = 10, 12, 48, 84, 156, 192, 228
    NEG = 232
    lp = g.newlabel('L_aa')
    g.label(lp)
    g.e('s_lshl_b32 %s, %s, 16' % (sr(S_X0), sr(S_HH)))
    g.e('s_lshl_b32 %s, %s, 9' % (sr(S_X1), sr(S_QT)))
    g.e('s_add_u32 %s, %s, %s' % (sr(S_X1), sr(S_X1), sr(S_X0)))
    g.e('s_add_u32 %s, %s, 0x%x' % (sr(S_X1), sr(S_X1), WS_QA))
    g.e('buffer_load_dwordx2 %s, v%d, %s, %s offen sc1' % (vr(QF, 2), VQK, sr(SRD_WS, 4), sr(S_X1)))
    for b in range(9):
        g.e('s_add_i32 %s, %s, %d' % (sr(S_X1), sr(S_A), b - 8))
        g.e('s_max_i32 %s, %s, 0' % (sr(S_X1), sr(S_X1)))
        g.e('s_lshl_b32 %s, %s, 10' % (sr(S_X1), sr(S_X1)))
        g.e('s_add_u32 %s, %s, %s' % (sr(S_X1), sr(S_X1), sr(S_X0)))
        g.e('s_add_u32 %s, %s, 0x%x' % (sr(S_X2), sr(S_X1), WS_KA))
        g.e('s_add_u32 %s, %s, 0x%x' % (sr(S_X3), sr(S_X1), WS_VA))
        g.e('buffer_load_dwordx2 %s, v%d, %s, %s offen sc1' % (vr(KF + 4 * b, 2), VQK, sr(SRD_WS, 4), sr(S_X2)))
        g.e('buffer_load_dwordx2 %s, v%d, %s, %s offen offset:512 sc1' % (vr(KF + 4 * b + 2, 2), VQK, sr(SRD_WS, 4), sr(S_X2)))
        g.e('buffer_load_dwordx4 %s, v%d, %s, %s offen sc1' % (vr(VF + 4 * b, 4), VL16, sr(SRD_WS, 4), sr(S_X3)))
    for b in range(9):
        g.e('s_add_i32 %s, %s, %d' % (sr(S_X1), sr(S_A), b - 8))
        g.e('s_cmp_lt_i32 %s, 0' % sr(S_X1))
        g.e('s_cselect_b32 %s, 0xf149f2ca, 0' % sr(S_X1))
        for i in range(4):
            g.e('v_mov_b32 v%d, %s' % (CB + 4 * b + i, sr(S_X1)))
    g.e('v_mov_b32 v%d, 0xf149f2ca' % NEG)
    g.e('s_waitcnt vmcnt(0)')
    for b in range(9):
        for T in range(2):
            g.e('v_mfma_f32_16x16x16_bf16 %s, %s, %s, %s' % (vr(SC + 8 * b + 4 * T, 4), vr(KF + 4 * b + 2 * T, 2), vr(QF, 2), vr(CB + 4 * b, 4)))
    g.nop(8)
    S = [SC + i for i in range(72)]
    C = [KF + i for i in range(8)]
    softmax_vals(g, S, C, OC, None, None)
    for b in (0, 8):
        for T in range(2):
            for r in range(4):
                g.e('v_subrev_u32 v%d, %d, v%d' % (OC, 32 * b + 16 * T + r, VD))
                g.e('v_cmp_gt_u32 vcc, 0x100, v%d' % OC)
                g.nop(2)
                g.e('v_cndmask_b32 v%d, v%d, v%d, vcc' % (SC + 8 * b + 4 * T + r, NEG, SC + 8 * b + 4 * T + r))
    softmax_rest(g, S, C, OC, S_L2E, ['v_permlane16_swap_b32', 'v_permlane32_swap_b32'])
    for i in range(36):
        g.e('v_cvt_pk_bf16_f32 v%d, v%d, v%d' % (PF + i, S[2 * i], S[2 * i + 1]))
    g.nop(2)
    for b in range(9):
        g.e('v_mfma_f32_16x16x32_bf16 %s, %s, %s, %s' % (vr(OC, 4), vr(VF + 4 * b, 4), vr(PF + 4 * b, 4), '0' if b == 0 else vr(OC, 4)))
    g.nop(8)
    g.e('v_cvt_pk_bf16_f32 v%d, v%d, v%d' % (OC, OC, OC + 1))
    g.e('v_cvt_pk_bf16_f32 v%d, v%d, v%d' % (OC + 1, OC + 2, OC + 3))
    g.e('s_lshl_b32 %s, %s, 14' % (sr(S_X1), sr(S_QT)))
    g.e('s_lshl_b32 %s, %s, 5' % (sr(S_X2), sr(S_HH)))
    g.e('s_add_u32 %s, %s, %s' % (sr(S_X1), sr(S_X1), sr(S_X2)))
    g.e('s_add_u32 %s, %s, 0x%x' % (sr(S_X1), sr(S_X1), WS_OA))
    g.e('buffer_store_dwordx2 %s, v%d, %s, %s offen sc1' % (vr(OC, 2), VO, sr(SRD_WS, 4), sr(S_X1)))
    g.e('s_add_u32 %s, %s, 1' % (sr(S_HH), sr(S_HH)))
    g.e('s_add_u32 %s, %s, 1' % (sr(S_KC), sr(S_KC)))
    g.e('s_cmp_lt_u32 %s, 8' % sr(S_KC))
    g.nop(2)
    g.e('s_cbranch_scc1 %s' % lp)
    g.e('s_lshl_b32 %s, %s, 7' % (sr(S_X0), sr(S_R)))
    g.e('s_add_u32 %s, %s, 0x%x' % (sr(S_X0), sr(S_X0), WS_FLAGS + CB_OFF))
    signal_add(g)
    g.e('s_branch L_next_regs')


def task_battn(g):
    g.label('L_t_battn')
    S_SEGI, S_HD = S_AOFF, S_BOFF
    g.e('s_lshl_b32 %s, %s, 2' % (sr(S_HD), sr(S_H)))
    g.e('s_add_u32 %s, %s, %s' % (sr(S_HD), sr(S_HD), sr(S_WAVE)))
    g.e('s_lshl_b32 %s, %s, 7' % (sr(S_X0), sr(S_HD)))
    g.e('s_lshl_b32 %s, %s, 2' % (sr(S_X1), sr(S_R)))
    g.e('s_add_u32 %s, %s, %s' % (sr(S_X0), sr(S_X0), sr(S_X1)))
    g.e('s_add_u32 %s, %s, 0x%x' % (sr(S_X0), sr(S_X0), WS_FLAGS + F1_OFF))
    wait_ge(g, None, '1', 16)
    L = W_LANE
    VK, VKM, VV, VVM, VO, VD = 2, 3, 4, 5, 6, 7
    g.e('v_bfe_u32 v8, v%d, 4, 1' % L)
    g.e('v_lshrrev_b32 v9, 5, v%d' % L)
    g.e('v_and_b32 v10, 15, v%d' % L)
    g.e('v_lshlrev_b32 v%d, 12, v8' % VK)
    g.e('v_lshl_add_u32 v%d, v9, 8, v%d' % (VK, VK))
    g.e('v_lshl_add_u32 v%d, v10, 4, v%d' % (VK, VK))
    g.e('v_and_b32 v11, 7, v%d' % L)
    g.e('v_lshlrev_b32 v%d, 7, v9' % VKM)
    g.e('v_lshl_add_u32 v%d, v11, 4, v%d' % (VKM, VKM))
    g.e('v_lshlrev_b32 v%d, 10, v8' % VV)
    g.e('v_lshl_add_u32 v%d, v9, 8, v%d' % (VV, VV))
    g.e('v_lshl_add_u32 v%d, v10, 4, v%d' % (VV, VV))
    g.e('v_and_b32 v11, 31, v%d' % L)
    g.e('v_lshlrev_b32 v%d, 4, v11' % VVM)
    g.e('v_lshl_add_u32 v%d, v9, 3, v%d' % (VVM, VVM))
    g.e('v_lshlrev_b32 v%d, 13, v11' % VO)
    g.e('v_lshl_add_u32 v%d, v9, 4, v%d' % (VO, VO))
    g.e('v_lshlrev_b32 v12, 2, v9')
    g.e('v_sub_u32 v%d, v11, v12' % VD)
    g.e('s_lshl_b32 %s, %s, 5' % (sr(S_X0), sr(S_SEGI)))
    g.e('s_add_u32 %s, %s, %s' % (sr(S_X0), sr(S_X0), sr(S_HD)))
    g.e('s_lshl_b32 %s, %s, 13' % (sr(S_X1), sr(S_X0)))
    g.e('s_lshl_b32 %s, %s, 12' % (sr(S_X0), sr(S_X0)))
    QF, KF, KM, VF, VMF = 16, 48, 80, 112, 144
    SX, SMm, PF, OC = 160, 176, 192, 208
    g.e('s_add_u32 %s, %s, 0x%x' % (sr(S_X2), sr(S_X1), WS_QX))
    g.e('s_add_u32 %s, %s, 0x%x' % (sr(S_X3), sr(S_X1), WS_KX))
    for ks in range(8):
        o = (ks >> 1) * 1024 + (ks & 1) * 512
        g.e('buffer_load_dwordx4 %s, v%d, %s, %s offen offset:%d sc1' % (vr(QF + 4 * ks, 4), VK, sr(SRD_WS, 4), sr(S_X2), o))
        g.e('buffer_load_dwordx4 %s, v%d, %s, %s offen offset:%d sc1' % (vr(KF + 4 * ks, 4), VK, sr(SRD_WS, 4), sr(S_X3), o))
    g.e('s_add_u32 %s, %s, 0x%x' % (sr(S_X2), sr(S_X1), WS_VX))
    g.e('s_add_u32 %s, %s, 4096' % (sr(S_X3), sr(S_X2)))
    for ft in range(4):
        so = sr(S_X2) if ft < 2 else sr(S_X3)
        for ks in range(2):
            for e in range(2):
                g.e('buffer_load_dwordx2 %s, v%d, %s, %s offen offset:%d sc1' % (vr(VF + 8 * ft + 4 * ks + 2 * e, 2), VV, sr(SRD_WS, 4), so, (ft & 1) * 2048 + e * 512 + ks * 8))
    l = g.newlabel('L_wait')
    g.e('s_lshl_b32 %s, %s, 7' % (sr(S_BOFF + 1), sr(S_HD)))
    g.e('s_add_u32 %s, %s, 0x%x' % (sr(S_BOFF + 1), sr(S_BOFF + 1), WS_FLAGS + F2_OFF))
    g.e('v_mov_b32 v%d, 0' % (OC + 4))
    g.label(l)
    g.guard()
    g.e('buffer_load_dwordx4 %s, v%d, %s, %s offen sc1' % (vr(OC, 4), OC + 4, sr(SRD_WS, 4), sr(S_BOFF + 1)))
    g.e('s_waitcnt vmcnt(0)')
    g.e('v_min3_u32 v%d, v%d, v%d, v%d' % (OC, OC, OC + 1, OC + 2))
    g.e('v_min_u32 v%d, v%d, v%d' % (OC, OC, OC + 3))
    g.nop(1)
    g.e('v_readfirstlane_b32 %s, v%d' % (sr(S_X1), OC))
    g.nop(3)
    g.e('s_cmp_gt_u32 %s, %s' % (sr(S_X1), sr(S_SEGI)))
    d = g.newlabel('L_waitd')
    g.e('s_cbranch_scc1 %s' % d)
    g.e('s_sleep 4')
    g.e('s_branch %s' % l)
    g.label(d)
    g.e('s_add_u32 %s, %s, 0x%x' % (sr(S_X2), sr(S_X0), WS_KM))
    for ks in range(8):
        g.e('buffer_load_dwordx4 %s, v%d, %s, %s offen offset:%d sc1' % (vr(KM + 4 * ks, 4), VKM, sr(SRD_WS, 4), sr(S_X2), ks * 256))
    g.e('s_add_u32 %s, %s, 0x%x' % (sr(S_X2), sr(S_X0), WS_KM + 2048))
    for ft in range(4):
        g.e('buffer_load_dwordx2 %s, v%d, %s, %s offen offset:%d sc1' % (vr(VMF + 4 * ft, 2), VVM, sr(SRD_WS, 4), sr(S_X2), ft * 512))
        g.e('v_mov_b64 %s, 0' % vr(VMF + 4 * ft + 2, 2))
    g.e('s_mov_b32 %s, 0x3db504f3' % sr(S_SC))
    g.e('s_mov_b32 %s, 0x3db504f3' % sr(S_SC + 1))
    g.e('s_mov_b32 %s, 0x3fb8aa3b' % sr(S_L2E))
    g.e('s_mov_b32 %s, 0x3fb8aa3b' % sr(S_L2E + 1))
    for ks in range(8):
        g.e('v_mfma_f32_32x32x16_bf16 %s, %s, %s, %s' % (vr(SX, 16), vr(KF + 4 * ks, 4), vr(QF + 4 * ks, 4), '0' if ks == 0 else vr(SX, 16)))
    g.e('s_waitcnt vmcnt(4)')
    for ks in range(8):
        g.e('v_mfma_f32_32x32x16_bf16 %s, %s, %s, %s' % (vr(SMm, 16), vr(KM + 4 * ks, 4), vr(QF + 4 * ks, 4), '0' if ks == 0 else vr(SMm, 16)))
    g.nop(16)
    S = [SX + i for i in range(16)] + [SMm + i for i in range(4)]
    C = [QF + i for i in range(8)]
    MX = QF + 8
    softmax_vals(g, S, C, MX, None, None, S_SC)
    g.e('v_mov_b32 v%d, 0xf149f2ca' % (QF + 10))
    for r in range(16):
        key = 8 * (r >> 2) + (r & 3)
        g.e('v_cmp_le_i32 vcc, %d, v%d' % (key, VD))
        g.nop(2)
        g.e('v_cndmask_b32 v%d, v%d, v%d, vcc' % (SX + r, QF + 10, SX + r))
    softmax_rest(g, S, C, MX, S_L2E, ['v_permlane32_swap_b32'])
    for i in range(10):
        g.e('v_cvt_pk_bf16_f32 v%d, v%d, v%d' % (PF + i, S[2 * i], S[2 * i + 1]))
    g.e('v_mov_b64 %s, 0' % vr(PF + 10, 2))
    g.e('s_waitcnt vmcnt(0)')
    g.e('s_lshl_b32 %s, %s, 18' % (sr(S_X0), sr(S_SEGI)))
    g.e('s_lshl_b32 %s, %s, 8' % (sr(S_X1), sr(S_HD)))
    g.e('s_add_u32 %s, %s, %s' % (sr(S_X0), sr(S_X0), sr(S_X1)))
    g.e('s_add_u32 %s, %s, 0x%x' % (sr(S_X0), sr(S_X0), WS_OX))
    OCS = [OC, OC + 16, KF, KF + 16]
    for ft in range(4):
        oc = vr(OCS[ft], 16)
        g.e('v_mfma_f32_32x32x16_bf16 %s, %s, %s, 0' % (oc, vr(VF + 8 * ft, 4), vr(PF, 4)))
        g.e('v_mfma_f32_32x32x16_bf16 %s, %s, %s, %s' % (oc, vr(VF + 8 * ft + 4, 4), vr(PF + 4, 4), oc))
        g.e('v_mfma_f32_32x32x16_bf16 %s, %s, %s, %s' % (oc, vr(VMF + 4 * ft, 4), vr(PF + 8, 4), oc))
    g.nop(16)
    for ft in range(4):
        a = OCS[ft]
        for gq in range(4):
            g.e('v_cvt_pk_bf16_f32 v%d, v%d, v%d' % (a + 2 * gq, a + 4 * gq, a + 4 * gq + 1))
            g.e('v_cvt_pk_bf16_f32 v%d, v%d, v%d' % (a + 2 * gq + 1, a + 4 * gq + 2, a + 4 * gq + 3))
        g.nop(2)
        for j in range(2):
            g.e('v_permlane32_swap_b32 v%d, v%d' % (a + 4 * j, a + 4 * j + 2))
            g.e('v_permlane32_swap_b32 v%d, v%d' % (a + 4 * j + 1, a + 4 * j + 3))
        g.nop(1)
        for j in range(2):
            g.e('buffer_store_dwordx4 %s, v%d, %s, %s offen offset:%d sc1' % (vr(a + 4 * j, 4), VO, sr(SRD_WS, 4), sr(S_X0), ft * 64 + j * 32))
    g.e('s_lshl_b32 %s, %s, 7' % (sr(S_X0), sr(S_R)))
    g.e('s_add_u32 %s, %s, 0x%x' % (sr(S_X0), sr(S_X0), WS_FLAGS + CO_OFF))
    g.e('s_lshl_b32 %s, %s, 7' % (sr(S_X1), sr(S_SEGI)))
    g.e('s_add_u32 %s, %s, 0x%x' % (sr(S_X1), sr(S_X1), WS_FLAGS + CS_OFF - 4 * NBIG * 128))
    g.e('s_cmp_ge_u32 %s, %d' % (sr(S_SEGI), 4 * NBIG))
    g.e('s_cselect_b32 %s, %s, %s' % (sr(S_X0), sr(S_X1), sr(S_X0)))
    signal_add(g)
    g.e('s_branch L_next_regs')


def task_boutf(g):
    g.label('L_t_boutf')
    S_SEGI = S_AOFF
    l = wave0_begin(g)
    g.e('s_lshl_b32 %s, %s, 7' % (sr(S_X0), sr(S_SEGI)))
    g.e('s_add_u32 %s, %s, 0x%x' % (sr(S_X0), sr(S_X0), WS_FLAGS + CS_OFF - 4 * NBIG * 128))
    wait_ge(g, None, '8', 4)
    g.label(l)
    make_srd(g, SRD_B0, S_WO, 4 << 20)
    make_srd(g, SRD_OUT, S_OUT, 2048 * 2048)
    gemm_setup(g, 8192, 1024)
    L = W_LANE
    t = W_T
    NS = 5
    SLOT = 8192
    g.e('v_lshrrev_b32 v%d, 2, v%d' % (t, L))
    g.e('v_lshlrev_b32 v%d, 10, v%d' % (t, t))
    g.e('v_and_b32 v%d, 3, v%d' % (t + 1, L))
    g.e('v_lshl_add_u32 v%d, v%d, 4, v%d' % (W_BD, t + 1, t))
    VA, VB = 20, 24
    g.e('s_mul_i32 %s, %s, %d' % (sr(S_BOFF + 2), sr(S_WAVE), NS * SLOT))
    g.e('v_and_b32 v%d, 31, v%d' % (t, L))
    g.e('v_bfe_u32 v%d, v%d, 1, 3' % (t + 1, L))
    g.e('v_lshrrev_b32 v%d, 5, v%d' % (t + 2, L))
    g.e('v_xor_b32 v%d, v%d, v%d' % (t + 1, t + 1, t + 2))
    g.e('v_lshlrev_b32 v%d, 7, v%d' % (t, t))
    g.e('v_lshl_add_u32 v%d, v%d, 4, v%d' % (t, t + 1, t))
    g.e('v_add_u32 v%d, %s, v%d' % (t, sr(S_BOFF + 2), t))
    for ks in range(4):
        g.e('v_xor_b32 v%d, %d, v%d' % (VA + ks, ks * 32, t))
    g.e('v_bfe_u32 v%d, v%d, 2, 2' % (t, L))
    g.e('v_lshl_add_u32 v%d, v%d, 3, v%d' % (t, t + 2, t))
    g.e('v_lshlrev_b32 v%d, 6, v%d' % (t, t))
    g.e('v_bfe_u32 v%d, v%d, 4, 1' % (t + 1, L))
    g.e('v_lshl_add_u32 v%d, v%d, 5, v%d' % (t, t + 1, t))
    g.e('v_and_b32 v%d, 3, v%d' % (t + 1, L))
    g.e('v_lshl_add_u32 v%d, v%d, 3, v%d' % (t, t + 1, t))
    g.e('v_add_u32 v%d, %s, v%d' % (t, sr(S_BOFF + 2), t))
    g.e('v_add_u32 v%d, 4096, v%d' % (VB, t))
    g.e('s_lshl_b32 %s, %s, 18' % (sr(S_BOFF), sr(S_SEGI)))
    g.e('s_lshl_b32 %s, %s, 11' % (sr(S_X0), sr(S_WAVE)))
    g.e('s_add_u32 %s, %s, %s' % (sr(S_BOFF), sr(S_BOFF), sr(S_X0)))
    g.e('s_add_u32 %s, %s, 0x%x' % (sr(S_BOFF), sr(S_BOFF), WS_OX))
    g.e('s_lshl_b32 %s, %s, 20' % (sr(S_BOFF + 1), sr(S_WAVE)))
    g.e('s_lshl_b32 %s, %s, 6' % (sr(S_X0), sr(S_H)))
    g.e('s_add_u32 %s, %s, %s' % (sr(S_BOFF + 1), sr(S_BOFF + 1), sr(S_X0)))

    def dmaB(blk):
        sl = blk % NS
        for i in range(4):
            g.e('s_add_u32 m0, %s, %d' % (sr(S_BOFF + 2), sl * SLOT + 4096 + i * 1024))
            g.e('s_add_u32 %s, %s, %d' % (sr(S_X0), sr(S_BOFF + 1), blk * 65536 + i * 16384))
            g.e('buffer_load_dwordx4 v%d, %s, %s offen lds' % (W_BD, sr(SRD_B0, 4), sr(S_X0)))

    def dmaA(blk):
        sl = blk % NS
        g.e('s_add_u32 %s, %s, %d' % (sr(S_X0), sr(S_BOFF), blk * 128))
        for i in range(4):
            g.e('s_add_u32 m0, %s, %d' % (sr(S_BOFF + 2), sl * SLOT + i * 1024))
            g.nop(1)
            g.e('buffer_load_dwordx4 v%d, %s, %s offen sc1 lds' % (W_AD + i, sr(SRD_WS, 4), sr(S_X0)))
    g.e('s_barrier')
    for blk in range(NS - 1):
        dmaA(blk)
        dmaB(blk)
    FAr, FBr = 32, 48
    for blk in range(16):
        sl = blk % NS
        infl = min(15 - blk, NS - 2)
        g.e('s_waitcnt vmcnt(%d)' % (8 * infl))
        for ks in range(4):
            g.e('ds_read_b128 %s, v%d offset:%d' % (vr(FAr + 4 * ks, 4), VA + ks, sl * SLOT))
            for s_ in range(2):
                g.e('ds_read_b64_tr_b16 %s, v%d offset:%d' % (vr(FBr + 4 * ks + 2 * s_, 2), VB, sl * SLOT + (16 * ks + 4 * s_) * 64))
        if blk + NS - 1 < 16:
            dmaA(blk + NS - 1)
            dmaB(blk + NS - 1)
        for ks in range(4):
            g.e('s_waitcnt lgkmcnt(%d)' % (3 * (3 - ks)))
            g.e('v_mfma_f32_32x32x16_bf16 %s, %s, %s, %s' % (vr(W_ACC, 16), vr(FBr + 4 * ks, 4), vr(FAr + 4 * ks, 4), '0' if (blk == 0 and ks == 0) else vr(W_ACC, 16)))
    g.nop(16)
    g.e('s_barrier')
    g.e('v_lshlrev_b32 v%d, 4, v%d' % (t, L))
    g.e('s_lshl_b32 %s, %s, 12' % (sr(S_X0), sr(S_WAVE)))
    g.e('v_add_u32 v%d, %s, v%d' % (t + 1, sr(S_X0), t))
    for gq in range(4):
        g.e('ds_write_b128 v%d, %s offset:%d' % (t + 1, vr(W_ACC + 4 * gq, 4), gq * 1024))
    g.e('s_lshl_b32 %s, %s, 10' % (sr(S_X0), sr(S_WAVE)))
    g.e('v_add_u32 v%d, %s, v%d' % (t + 1, sr(S_X0), t))
    g.e('s_waitcnt lgkmcnt(0)')
    g.e('s_barrier')
    for ww in range(4):
        g.e('ds_read_b128 %s, v%d offset:%d' % (vr(FAr + 4 * ww, 4), t + 1, ww * 4096))
    g.e('v_and_b32 v%d, 31, v%d' % (t, L))
    g.e('v_lshlrev_b32 v%d, 11, v%d' % (t, t))
    g.e('v_lshl_add_u32 v%d, v%d, 3, v%d' % (t, t + 2, t))
    g.e('s_lshl_b32 %s, %s, 16' % (sr(S_X0), sr(S_SEGI)))
    g.e('s_lshl_b32 %s, %s, 6' % (sr(S_X1), sr(S_H)))
    g.e('s_add_u32 %s, %s, %s' % (sr(S_X0), sr(S_X0), sr(S_X1)))
    g.e('s_lshl_b32 %s, %s, 4' % (sr(S_X1), sr(S_WAVE)))
    g.e('s_add_u32 %s, %s, %s' % (sr(S_X0), sr(S_X0), sr(S_X1)))
    g.e('s_waitcnt lgkmcnt(0)')
    for i in range(2):
        g.e('v_pk_add_f32 %s, %s, %s' % (vr(FAr + 2 * i, 2), vr(FAr + 2 * i, 2), vr(FAr + 4 + 2 * i, 2)))
        g.e('v_pk_add_f32 %s, %s, %s' % (vr(FAr + 8 + 2 * i, 2), vr(FAr + 8 + 2 * i, 2), vr(FAr + 12 + 2 * i, 2)))
    for i in range(2):
        g.e('v_pk_add_f32 %s, %s, %s' % (vr(FAr + 2 * i, 2), vr(FAr + 2 * i, 2), vr(FAr + 8 + 2 * i, 2)))
    g.e('v_cvt_pk_bf16_f32 v%d, v%d, v%d' % (FAr, FAr, FAr + 1))
    g.e('v_cvt_pk_bf16_f32 v%d, v%d, v%d' % (FAr + 1, FAr + 2, FAr + 3))
    g.e('buffer_store_dwordx2 %s, v%d, %s, %s offen offset:1024' % (vr(FAr, 2), t, sr(SRD_OUT, 4), sr(S_X0)))
    g.e('s_branch L_next')


def task_boutx(g):
    g.label('L_t_boutx')
    S_SEGI = S_AOFF
    L = W_LANE
    t = W_T
    make_srd(g, SRD_B0, S_WO, 4 << 20)
    make_srd(g, SRD_OUT, S_OUT, 2048 * 2048)
    g.e('v_lshrrev_b32 v%d, 2, v%d' % (t, L))
    g.e('v_lshlrev_b32 v%d, 10, v%d' % (t, t))
    g.e('v_and_b32 v%d, 3, v%d' % (t + 3, L))
    g.e('v_lshl_add_u32 v%d, v%d, 4, v%d' % (t, t + 3, t))
    g.e('s_and_b32 %s, %s, 15' % (sr(S_BOFF), sr(S_H)))
    g.e('s_lshr_b32 %s, %s, 4' % (sr(S_BOFF + 1), sr(S_H)))
    g.e('s_lshl_b32 %s, %s, 20' % (sr(S_X1), sr(S_WAVE)))
    g.e('s_lshl_b32 %s, %s, 6' % (sr(S_X0), sr(S_BOFF)))
    g.e('s_add_u32 %s, %s, %s' % (sr(S_X1), sr(S_X1), sr(S_X0)))
    g.e('s_lshl_b32 %s, %s, 15' % (sr(S_BOFF + 2), sr(S_WAVE)))
    g.e('v_lshrrev_b32 v%d, 4, v%d' % (t + 2, L))
    g.e('v_bfe_u32 v%d, v%d, 2, 2' % (t + 1, L))
    g.e('v_lshl_add_u32 v%d, v%d, 3, v%d' % (t + 1, t + 2, t + 1))
    g.e('v_lshlrev_b32 v%d, 6, v%d' % (t + 1, t + 1))
    g.e('v_lshl_add_u32 v%d, v%d, 3, v%d' % (t + 1, t + 3, t + 1))
    g.e('v_add_u32 v%d, %s, v%d' % (t + 1, sr(S_BOFF + 2), t + 1))
    g.e('v_and_b32 v%d, 15, v%d' % (t + 3, L))
    g.e('v_lshlrev_b32 v%d, 13, v%d' % (t + 4, t + 3))
    g.e('v_lshl_add_u32 v%d, v%d, 4, v%d' % (t + 4, t + 2, t + 4))
    g.e('v_lshlrev_b32 v%d, 11, v%d' % (t + 5, t + 3))
    g.e('v_lshl_add_u32 v%d, v%d, 3, v%d' % (t + 5, t + 2, t + 5))
    for p in range(2):
        for i in range(32):
            g.e('s_add_u32 m0, %s, %d' % (sr(S_BOFF + 2), i * 1024))
            g.e('s_add_u32 %s, %s, %d' % (sr(S_X0), sr(S_X1), (512 * p + 16 * i) * 1024))
            g.e('buffer_load_dwordx4 v%d, %s, %s offen lds' % (t, sr(SRD_B0, 4), sr(S_X0)))
        g.e('s_waitcnt vmcnt(0)')
        for ksl in range(16):
            for tt in range(2):
                for s_ in range(2):
                    g.e('ds_read_b64_tr_b16 %s, v%d offset:%d' % (ar(128 * tt + 4 * (16 * p + ksl) + 2 * s_, 2), t + 1, (32 * ksl + 4 * s_) * 64 + tt * 32))
        g.e('s_waitcnt lgkmcnt(0)')
    g.e('v_lshlrev_b32 v%d, 4, v%d' % (t + 6, L))
    g.e('v_add_u32 v%d, %s, v%d' % (t + 7, sr(S_BOFF + 2), t + 6))
    g.e('s_lshl_b32 %s, %s, 10' % (sr(S_X0), sr(S_WAVE)))
    g.e('v_add_u32 v%d, %s, v%d' % (t + 6, sr(S_X0), t + 6))
    g.e('v_add_u32 v%d, 65536, v%d' % (t + 8, t + 6))
    g.label('L_bx_loop')
    g.e('s_lshl_b32 %s, %s, 7' % (sr(S_X0), sr(S_SEGI)))
    g.e('s_add_u32 %s, %s, 0x%x' % (sr(S_X0), sr(S_X0), WS_FLAGS + CS_OFF - 4 * NBIG * 128))
    wait_ge(g, None, '8', 4)
    g.e('s_lshl_b32 %s, %s, 1' % (sr(S_X0), sr(S_SEGI)))
    g.e('s_add_u32 %s, %s, %s' % (sr(S_X0), sr(S_X0), sr(S_BOFF + 1)))
    g.e('s_lshl_b32 %s, %s, 17' % (sr(S_X1), sr(S_X0)))
    g.e('s_lshl_b32 %s, %s, 11' % (sr(S_X2), sr(S_WAVE)))
    g.e('s_add_u32 %s, %s, %s' % (sr(S_X1), sr(S_X1), sr(S_X2)))
    g.e('s_add_u32 %s, %s, 0x%x' % (sr(S_X1), sr(S_X1), WS_OX))
    for ks in range(32):
        g.e('buffer_load_dwordx4 %s, v%d, %s, %s offen offset:%d sc1' % (vr(W_ACC + 4 * ks, 4), t + 4, sr(SRD_WS, 4), sr(S_X1), ks * 64))
    AC = 32
    for ks in range(32):
        g.e('s_waitcnt vmcnt(%d)' % (31 - ks))
        for tt in range(2):
            g.e('v_mfma_f32_16x16x32_bf16 %s, %s, %s, %s' % (vr(AC + 4 * tt, 4), ar(128 * tt + 4 * ks, 4), vr(W_ACC + 4 * ks, 4), '0' if ks == 0 else vr(AC + 4 * tt, 4)))
    g.nop(8)
    g.e('ds_write_b128 v%d, %s' % (t + 7, vr(AC, 4)))
    g.e('ds_write_b128 v%d, %s offset:1024' % (t + 7, vr(AC + 4, 4)))
    g.e('s_waitcnt lgkmcnt(0)')
    g.e('s_barrier')
    l = g.newlabel('L_bxs')
    g.e('s_cmp_ge_u32 %s, 2' % sr(S_WAVE))
    g.e('s_cbranch_scc1 %s' % l)
    for ww in range(4):
        g.e('ds_read_b128 %s, v%d offset:%d' % (vr(AC + 4 * ww, 4), t + 6 if ww < 2 else t + 8, (ww & 1) * 32768))
    g.e('s_lshl_b32 %s, %s, 15' % (sr(S_X0), sr(S_X0)))
    g.e('s_lshl_b32 %s, %s, 6' % (sr(S_X1), sr(S_BOFF)))
    g.e('s_add_u32 %s, %s, %s' % (sr(S_X0), sr(S_X0), sr(S_X1)))
    g.e('s_lshl_b32 %s, %s, 5' % (sr(S_X1), sr(S_WAVE)))
    g.e('s_add_u32 %s, %s, %s' % (sr(S_X0), sr(S_X0), sr(S_X1)))
    g.e('s_waitcnt lgkmcnt(0)')
    for i in range(2):
        g.e('v_pk_add_f32 %s, %s, %s' % (vr(AC + 2 * i, 2), vr(AC + 2 * i, 2), vr(AC + 4 + 2 * i, 2)))
        g.e('v_pk_add_f32 %s, %s, %s' % (vr(AC + 8 + 2 * i, 2), vr(AC + 8 + 2 * i, 2), vr(AC + 12 + 2 * i, 2)))
    for i in range(2):
        g.e('v_pk_add_f32 %s, %s, %s' % (vr(AC + 2 * i, 2), vr(AC + 2 * i, 2), vr(AC + 8 + 2 * i, 2)))
    g.e('v_cvt_pk_bf16_f32 v%d, v%d, v%d' % (AC, AC, AC + 1))
    g.e('v_cvt_pk_bf16_f32 v%d, v%d, v%d' % (AC + 1, AC + 2, AC + 3))
    g.e('buffer_store_dwordx2 %s, v%d, %s, %s offen offset:1024' % (vr(AC, 2), t + 5, sr(SRD_OUT, 4), sr(S_X0)))
    g.label(l)
    g.e('s_barrier')
    g.e('s_add_u32 %s, %s, %d' % (sr(S_SEGI), sr(S_SEGI), NX))
    g.e('s_cmp_lt_u32 %s, 64' % sr(S_SEGI))
    g.e('s_cbranch_scc1 L_bx_loop')
    g.e('s_branch L_next')


def worker(g, opt):
    g.label('L_worker')
    g.e('v_and_b32 v%d, 63, v0' % W_LANE)
    g.e('s_mov_b32 %s, 0' % sr(S_INIT))
    g.e('s_mov_b32 %s, 0' % sr(S_LOG))
    g.e('s_mov_b32 %s, 0' % sr(S_QN))
    g.label('L_next_regs')
    gemm_consts(g)
    g.label('L_next')
    if opt.get('rt'):
        lg = g.newlabel('L_lg')
        g.e('s_cmp_eq_u32 %s, 0' % sr(S_LOG))
        g.e('s_cbranch_scc1 %s' % lg)
        g.e('s_memrealtime s[76:77]')
        g.e('s_waitcnt lgkmcnt(0)')
        g.e('v_mov_b32 v%d, s78' % W_T)
        g.e('v_mov_b32 v%d, s76' % (W_T + 1))
        g.e('v_mov_b32 v%d, 0' % (W_T + 2))
        g.e('s_lshl_b32 %s, %s, 4' % (sr(S_X0), sr(S_TASK)))
        g.e('s_add_u32 %s, %s, 0x%x' % (sr(S_X0), sr(S_X0), WS_TS + 0xA00000))
        g.e('buffer_store_dwordx2 %s, v%d, %s, %s offen' % (vr(W_T, 2), W_T + 2, sr(SRD_WS, 4), sr(S_X0)))
        g.label(lg)
    g.e('s_barrier')
    l = wave0_begin(g)
    g.e('s_mov_b64 exec, 1')
    lq = g.newlabel('L_q')
    lgq = g.newlabel('L_gq')
    lgot = g.newlabel('L_got')
    g.e('v_mov_b32 v%d, 1' % (W_T + 1))
    g.label(lq)
    g.e('s_cmp_ge_u32 %s, 7' % sr(S_QN))
    g.e('s_cbranch_scc1 %s' % lgq)
    g.e('s_lshl_b32 %s, %s, 2' % (sr(S_X0), sr(S_RANK)))
    g.e('s_add_u32 %s, %s, 192' % (sr(S_X0), sr(S_X0)))
    g.e('v_mov_b32 v%d, %s' % (W_T, sr(S_X0)))
    g.e('global_atomic_add v%d, v%d, v%d, %s sc0' % (W_T + 2, W_T, W_T + 1, sr(S_DBG, 2)))
    g.e('s_waitcnt vmcnt(0)')
    g.e('v_readfirstlane_b32 %s, v%d' % (sr(S_X0), W_T + 2))
    g.nop(3)
    g.e('s_cmp_lt_u32 %s, 80' % sr(S_X0))
    lok = g.newlabel('L_qok')
    g.e('s_cbranch_scc1 %s' % lok)
    g.e('s_add_u32 %s, %s, 1' % (sr(S_QN), sr(S_QN)))
    g.e('s_add_u32 %s, %s, 1' % (sr(S_RANK), sr(S_RANK)))
    g.e('s_cmp_ge_u32 %s, 7' % sr(S_RANK))
    g.e('s_cselect_b32 %s, 0, %s' % (sr(S_RANK), sr(S_RANK)))
    g.e('s_branch %s' % lq)
    g.label(lok)
    g.e('s_mul_i32 %s, %s, 205' % (sr(S_X1), sr(S_X0)))
    g.e('s_lshr_b32 %s, %s, 10' % (sr(S_X1), sr(S_X1)))
    g.e('s_mul_i32 %s, %s, 5' % (sr(S_X2), sr(S_X1)))
    g.e('s_sub_u32 %s, %s, %s' % (sr(S_X2), sr(S_X0), sr(S_X2)))
    g.e('s_mul_i32 %s, %s, 7' % (sr(S_X2), sr(S_X2)))
    g.e('s_add_u32 %s, %s, %s' % (sr(S_X2), sr(S_X2), sr(S_RANK)))
    g.e('s_lshl_b32 %s, %s, 5' % (sr(S_X0), sr(S_X1)))
    g.e('s_add_u32 %s, %s, %s' % (sr(S_X0), sr(S_X0), sr(S_X2)))
    g.e('s_lshl_b32 %s, %s, 2' % (sr(S_X3), sr(S_X1)))
    g.e('s_add_u32 %s, %s, %s' % (sr(S_X3), sr(S_X3), sr(S_X2)))
    g.e('s_add_u32 %s, %s, %d' % (sr(S_X3), sr(S_X3), T_AP - 32))
    g.e('s_cmp_lt_u32 %s, 32' % sr(S_X2))
    g.e('s_cselect_b32 %s, %s, %s' % (sr(S_X0), sr(S_X0), sr(S_X3)))
    g.e('v_mov_b32 v%d, %s' % (W_T + 2, sr(S_X0)))
    g.e('s_branch %s' % lgot)
    g.label(lgq)
    g.e('v_mov_b32 v%d, 224' % W_T)
    g.e('global_atomic_add v%d, v%d, v%d, %s sc0' % (W_T + 2, W_T, W_T + 1, sr(S_DBG, 2)))
    g.e('s_waitcnt vmcnt(0)')
    g.e('v_readfirstlane_b32 %s, v%d' % (sr(S_X0), W_T + 2))
    g.nop(3)
    g.e('s_lshl_b32 %s, %s, 2' % (sr(S_X1), sr(S_X0)))
    g.e('s_add_u32 %s, %s, %d' % (sr(S_X1), sr(S_X1), T_AP + 3))
    g.e('s_add_u32 %s, %s, %d' % (sr(S_X2), sr(S_X0), T_AA - 16))
    g.e('s_cmp_lt_u32 %s, 16' % sr(S_X0))
    g.e('s_cselect_b32 %s, %s, %s' % (sr(S_X0), sr(S_X1), sr(S_X2)))
    g.e('v_mov_b32 v%d, %s' % (W_T + 2, sr(S_X0)))
    g.label(lgot)
    g.e('s_mov_b32 %s, 1' % sr(S_LOG))
    g.e('s_waitcnt vmcnt(0)')
    g.e('v_mov_b32 v%d, %d' % (W_T, L_MISC))
    g.e('ds_write_b32 v%d, v%d' % (W_T, W_T + 2))
    g.e('s_waitcnt lgkmcnt(0)')
    g.e('s_mov_b64 exec, -1')
    g.label(l)
    g.e('s_barrier')
    g.e('v_mov_b32 v%d, %d' % (W_T, L_MISC))
    g.e('ds_read_b32 v%d, v%d' % (W_T + 1, W_T))
    g.e('s_waitcnt lgkmcnt(0)')
    g.e('v_readfirstlane_b32 %s, v%d' % (sr(S_TASK), W_T + 1))
    g.nop(3)
    if opt.get('rt'):
        g.e('s_memrealtime s[78:79]')
        g.e('s_waitcnt lgkmcnt(0)')
    g.e('s_cmp_lt_u32 %s, %d' % (sr(S_TASK), T_AP))
    g.e('s_cbranch_scc1 L_t_bproj')
    g.e('s_cmp_lt_u32 %s, %d' % (sr(S_TASK), T_AA))
    g.e('s_cbranch_scc1 L_t_aproj')
    g.e('s_cmp_lt_u32 %s, %d' % (sr(S_TASK), T_AO))
    g.e('s_cbranch_scc1 L_t_aattn')
    g.e('s_cmp_ge_u32 %s, %d' % (sr(S_TASK), T_END))
    g.e('s_cbranch_scc1 L_exit')
    g.e('s_cmp_ge_u32 %s, %d' % (sr(S_TASK), T_BX))
    g.e('s_cbranch_scc1 L_t_bx')
    g.e('s_cmp_ge_u32 %s, %d' % (sr(S_TASK), T_BF))
    g.e('s_cbranch_scc1 L_t_bf')
    g.e('s_cmp_ge_u32 %s, %d' % (sr(S_TASK), T_BT))
    g.e('s_cbranch_scc1 L_t_bt')
    g.e('s_sub_u32 %s, %s, %d' % (sr(S_X0), sr(S_TASK), T_AO))
    g.e('s_lshr_b32 %s, %s, 2' % (sr(S_R), sr(S_X0)))
    g.e('s_and_b32 %s, %s, 3' % (sr(S_H), sr(S_X0)))
    g.e('s_branch L_t_aout')
    g.label('L_t_bt')
    g.e('s_sub_u32 %s, %s, %d' % (sr(S_X0), sr(S_TASK), T_BT))
    g.e('s_mul_i32 %s, %s, 1821' % (sr(S_R), sr(S_X0)))
    g.e('s_lshr_b32 %s, %s, 16' % (sr(S_R), sr(S_R)))
    g.e('s_mul_i32 %s, %s, 36' % (sr(S_X1), sr(S_R)))
    g.e('s_sub_u32 %s, %s, %s' % (sr(S_X0), sr(S_X0), sr(S_X1)))
    g.e('s_cmp_ge_u32 %s, 32' % sr(S_X0))
    lb = g.newlabel('L_bo')
    g.e('s_cbranch_scc1 %s' % lb)
    g.e('s_lshr_b32 %s, %s, 3' % (sr(S_X1), sr(S_X0)))
    g.e('s_lshl_b32 %s, %s, 2' % (sr(S_AOFF), sr(S_R)))
    g.e('s_add_u32 %s, %s, %s' % (sr(S_AOFF), sr(S_AOFF), sr(S_X1)))
    g.e('s_and_b32 %s, %s, 7' % (sr(S_H), sr(S_X0)))
    g.e('s_branch L_t_battn')
    g.label(lb)
    g.e('s_sub_u32 %s, %s, 32' % (sr(S_H), sr(S_X0)))
    g.e('s_branch L_t_bout')
    g.label('L_t_bf')
    g.e('s_sub_u32 %s, %s, %d' % (sr(S_X0), sr(S_TASK), T_BF))
    g.e('s_mul_i32 %s, %s, 2731' % (sr(S_X1), sr(S_X0)))
    g.e('s_lshr_b32 %s, %s, 16' % (sr(S_X1), sr(S_X1)))
    g.e('s_add_u32 %s, %s, %d' % (sr(S_AOFF), sr(S_X1), 4 * NBIG))
    g.e('s_lshr_b32 %s, %s, 2' % (sr(S_R), sr(S_AOFF)))
    g.e('s_mul_i32 %s, %s, 24' % (sr(S_X1), sr(S_X1)))
    g.e('s_sub_u32 %s, %s, %s' % (sr(S_H), sr(S_X0), sr(S_X1)))
    g.e('s_cmp_lt_u32 %s, 8' % sr(S_H))
    g.e('s_cbranch_scc1 L_t_battn')
    g.e('s_sub_u32 %s, %s, 8' % (sr(S_H), sr(S_H)))
    g.e('s_branch L_t_boutf')
    g.label('L_t_bx')
    g.e('s_sub_u32 %s, %s, %d' % (sr(S_X0), sr(S_TASK), T_BX))
    g.e('s_lshr_b32 %s, %s, 5' % (sr(S_X1), sr(S_X0)))
    g.e('s_add_u32 %s, %s, %d' % (sr(S_AOFF), sr(S_X1), 4 * NBIG))
    g.e('s_and_b32 %s, %s, 31' % (sr(S_H), sr(S_X0)))
    g.e('s_cmp_lt_u32 %s, %d' % (sr(S_X0), 32 * NX))
    g.e('s_cbranch_scc1 L_t_boutx')
    g.e('s_sub_u32 %s, %s, %d' % (sr(S_X0), sr(S_X0), 32 * NX))
    g.e('s_lshr_b32 %s, %s, 3' % (sr(S_X1), sr(S_X0)))
    g.e('s_add_u32 %s, %s, %d' % (sr(S_AOFF), sr(S_X1), 4 * NBIG))
    g.e('s_lshr_b32 %s, %s, 2' % (sr(S_R), sr(S_AOFF)))
    g.e('s_and_b32 %s, %s, 7' % (sr(S_H), sr(S_X0)))
    g.e('s_branch L_t_battn')
    task_boutf(g)
    task_boutx(g)
    task_bproj(g)
    task_aproj(g)
    task_aattn(g)
    task_out(g, 'ao', 'L_t_aout', WS_OA, 1024, 8, S_AWO, 512 * 1024, 0, CB_OFF, 8)
    task_battn(g)
    task_out(g, 'bo', 'L_t_bout', WS_OX, 8192, 64, S_WO, 4 << 20, 512, CO_OFF, 32)


for x in range(576):
    assert (x * 1821) >> 16 == x // 36
for x in range(1024):
    assert (x * 2731) >> 16 == x // 24
for x in range(80):
    assert (x * 205) >> 10 == x // 5
```

```python
from gen import *

C_KX = 0
C_VX = 8192
C_MST = 16384
C_Q = 24576
C_K = 26624
C_VM = 28672
C_O = 30720
C_W = 32768
C_RING = [0, 98304, 131072]
C_SEL = C_O

PB2_STRIDE = 8192 + 128
WS_KV = WS_KM

(V_L16, V_WL, V_AF, V_QW, V_QR, V_KR, V_OW, V_PS, V_MS, V_PLD, V_WM, V_IDX, V_VW, V_FL, V_WD, V_ONE) = range(16)
S_SELM = 86
S_H0, S_H1, S_H2 = 94, 95, 96
A0 = 16
ACC2 = 48
RG = 72
PM = 120
Q0, Q1, K0, K1, VT0, VT1 = ACC2, ACC2 + 4, ACC2 + 8, ACC2 + 12, ACC2 + 16, ACC2 + 20
A_Q0, A_K, A_V0 = 0, 64, 192
V_V1 = 128
V_WOL = 192
S_PL2 = 56
S_P1M = 84

S_W512 = 78
S_W1K = 79
S_U = 55
S_KVO = 62
S_LO8 = 82


class Sched:
    def __init__(self, g):
        self.g = g
        self.l = []
        self.v = []

    def ds(self, s, name=None):
        self.g.e(s)
        self.l.append(name)

    def vm(self, s, name=None):
        self.g.e(s)
        self.v.append(name)

    def wl(self, name):
        if name not in self.l:
            return
        i = len(self.l) - 1 - self.l[::-1].index(name)
        n = len(self.l) - 1 - i
        assert n <= 15, (name, n)
        self.g.e('s_waitcnt lgkmcnt(%d)' % n)
        del self.l[:i + 1]

    def wl_all(self):
        self.g.e('s_waitcnt lgkmcnt(0)')
        self.l = []


TS_PAIRS = [4, 6, 8, 10, 12, 14, 16, 18, 20, 22, 24, 36, 38, 40, 42, 98, 72, 30]


def ts2(g, opt, name, fine=False):
    if not opt.get('ts') or (fine and not opt.get('fine')):
        return
    if opt.get('only') is not None and name not in opt['only'] and name != 'start':
        return
    idx = len(TS_NAMES)
    TS_NAMES.append(str(name))
    g.e('s_memtime %s' % sr(TS_PAIRS[idx], 2))


def ts2_flush(g, opt, tmp):
    if not opt.get('ts'):
        return
    g.e('s_waitcnt lgkmcnt(0)')
    for i in range(len(TS_NAMES)):
        g.e('v_writelane_b32 v%d, s%d, %d' % (tmp + 1, TS_PAIRS[i], i))
    g.e('v_writelane_b32 v%d, s80, 62' % (tmp + 1))
    g.e('v_writelane_b32 v%d, s81, 63' % (tmp + 1))
    g.e('s_lshl_b32 %s, %s, 2' % (sr(S_T0), sr(S_RANK)))
    g.e('s_add_u32 %s, %s, %s' % (sr(S_T0), sr(S_T0), sr(S_WAVE)))
    g.e('s_lshl_b32 %s, %s, 6' % (sr(S_T0), sr(S_T0)))
    g.e('s_add_u32 %s, %s, %s' % (sr(S_T0), sr(S_T0), sr(S_STEP)))
    g.e('s_lshl_b32 %s, %s, 8' % (sr(S_T0), sr(S_T0)))
    g.e('s_add_u32 %s, %s, 0x%x' % (sr(S_T0), sr(S_T0), WS_TS))
    g.e('v_lshrrev_b32 v%d, 2, v%d' % (tmp, V_L16))
    g.e('buffer_store_dword v%d, v%d, %s, %s offen' % (tmp + 1, tmp, sr(SRD_WS, 4), sr(S_T0)))


def setup(g, opt):
    W = sr(S_WAVE)
    H = sr(S_RANK)
    g.e('v_mov_b32 v19, v0')
    g.e('v_and_b32 v20, 63, v19')
    g.e('v_and_b32 v21, 15, v19')
    g.e('v_bfe_u32 v22, v19, 4, 2')
    g.e('v_lshlrev_b32 v%d, 4, v20' % V_L16)
    g.e('s_lshl_b32 %s, %s, 9' % (sr(S_W512), W))
    g.e('s_lshl_b32 %s, %s, 10' % (sr(S_W1K), W))
    g.e('s_lshl_b32 %s, %s, 14' % (sr(S_T0), W))
    g.e('s_add_u32 %s, %s, %d' % (sr(S_T0), sr(S_T0), C_W))
    g.e('v_add_u32 v%d, %s, v%d' % (V_WL, sr(S_T0), V_L16))
    g.e('v_lshlrev_b32 v23, 8, v22')
    g.e('v_bfe_u32 v24, v21, 1, 1')
    g.e('v_lshl_add_u32 v23, v24, 7, v23')
    g.e('v_lshrrev_b32 v24, 2, v21')
    g.e('v_lshl_add_u32 v23, v24, 5, v23')
    g.e('v_and_b32 v24, 1, v21')
    g.e('v_lshl_add_u32 v%d, v24, 4, v23' % V_AF)
    g.e('v_lshrrev_b32 v23, 3, v21')
    g.e('v_lshlrev_b32 v23, 7, v23')
    g.e('v_lshl_add_u32 v23, v22, 5, v23')
    g.e('v_and_b32 v24, 7, v21')
    g.e('v_lshl_add_u32 v23, v24, 1, v23')
    g.e('v_add_u32 v%d, %s, v23' % (V_QW, sr(S_W512)))
    g.e('v_lshlrev_b32 v23, 7, v22')
    g.e('v_lshl_add_u32 v%d, v24, 4, v23' % V_QR)
    g.e('v_lshrrev_b32 v24, 2, v21')
    g.e('v_lshlrev_b32 v24, 1, v24')
    g.e('v_and_b32 v25, 1, v21')
    g.e('v_add_u32 v24, v24, v25')
    g.e('v_lshl_add_u32 v%d, v24, 4, v23' % V_KR)
    g.e('v_lshrrev_b32 v23, 1, v22')
    g.e('v_lshlrev_b32 v23, 7, v23')
    g.e('v_lshl_add_u32 v23, v21, 4, v23')
    g.e('v_and_b32 v24, 1, v22')
    g.e('v_lshl_add_u32 v23, v24, 3, v23')
    g.e('s_add_u32 %s, %s, %d' % (sr(S_T1), sr(S_W512), C_O))
    g.e('v_add_u32 v23, %s, v23' % sr(S_T1))
    g.e('v_lshlrev_b32 v24, 3, v19')
    g.e('v_add_u32 v24, %d, v24' % C_MST)
    g.e('v_cmp_gt_u32 vcc, 8, v21')
    g.nop(2)
    g.e('v_cndmask_b32 v%d, v24, v23, vcc' % V_OW)
    g.e('v_lshlrev_b32 v23, 4, v21')
    g.e('v_lshl_add_u32 v23, v22, 2, v23')
    g.e('v_add_u32 v%d, %s, v23' % (V_VW, sr(S_W512)))
    g.e('s_lshl_b32 %s, %s, 3' % (sr(S_T1), W))
    g.e('v_add_u32 v23, %s, v22' % sr(S_T1))
    g.e('v_mul_u32_u24 v23, %d, v23' % PB2_STRIDE)
    g.e('v_lshl_add_u32 v23, v21, 3, v23')
    g.e('s_lshl_b32 %s, %s, 8' % (sr(S_T1), H))
    g.e('s_add_u32 %s, %s, 0x%x' % (sr(S_T1), sr(S_T1), WS_PB))
    g.e('v_add_u32 v%d, %s, v23' % (V_PS, sr(S_T1)))
    g.e('s_mov_b32 %s, %d' % (sr(S_U), 4 * PB2_STRIDE))
    g.e('s_mul_i32 %s, %s, %d' % (sr(S_PL), H, PB2_STRIDE))
    g.e('s_lshl_b32 %s, %s, 6' % (sr(S_T1), W))
    g.e('s_add_u32 %s, %s, %s' % (sr(S_PL), sr(S_PL), sr(S_T1)))
    g.e('s_add_u32 %s, %s, 0x%x' % (sr(S_PL), sr(S_PL), WS_PB))
    g.e('s_add_u32 %s, %s, 4096' % (sr(S_PL2), sr(S_PL)))
    g.e('v_lshrrev_b32 v23, 2, v20')
    g.e('v_lshlrev_b32 v23, 8, v23')
    g.e('v_and_b32 v24, 3, v20')
    g.e('v_lshl_add_u32 v%d, v24, 4, v23' % V_PLD)
    g.e('s_lshr_b32 %s, %s, 2' % (sr(S_T2), H))
    g.e('s_lshl_b32 %s, %s, 10' % (sr(S_T2), sr(S_T2)))
    g.e('s_and_b32 %s, %s, 1' % (sr(S_T3), W))
    g.e('s_lshl_b32 %s, %s, 9' % (sr(S_T3), sr(S_T3)))
    g.e('s_add_u32 %s, %s, %s' % (sr(S_T2), sr(S_T2), sr(S_T3)))
    g.e('s_lshr_b32 %s, %s, 1' % (sr(S_T3), W))
    g.e('s_lshl_b32 %s, %s, 2' % (sr(S_T3), sr(S_T3)))
    g.e('s_add_u32 %s, %s, %s' % (sr(S_T2), sr(S_T2), sr(S_T3)))
    g.e('s_and_b32 %s, %s, 3' % (sr(S_T3), H))
    g.e('s_lshl_b32 %s, %s, 6' % (sr(S_T0), sr(S_T3)))
    g.e('s_add_u32 %s, %s, %s' % (sr(S_T2), sr(S_T2), sr(S_T0)))
    g.e('s_lshl_b32 %s, %s, 1' % (sr(S_T3), sr(S_T3)))
    g.e('v_bfe_u32 v25, v20, 2, 2')
    g.e('v_add_u32 v27, %s, v25' % sr(S_T3))
    g.e('v_lshrrev_b32 v23, 1, v24')
    g.e('v_lshlrev_b32 v23, 8, v23')
    g.e('v_and_b32 v26, 1, v24')
    g.e('v_lshl_add_u32 v23, v26, 5, v23')
    g.e('v_lshl_add_u32 v23, v25, 4, v23')
    g.e('v_lshl_add_u32 v23, v22, 3, v23')
    g.e('v_add_u32 v23, %s, v23' % sr(S_T2))
    g.e('v_and_b32 v26, 0x28, v20')
    g.e('v_cmp_eq_u32 vcc, 0, v26')
    g.e('v_mov_b32 v26, 0x%x' % OOB)
    g.nop(1)
    g.e('v_cndmask_b32 v%d, v26, v23, vcc' % V_MS)
    g.e('s_mov_b32 %s, 0x00f000f0' % sr(S_P1M))
    g.e('s_mov_b32 %s, 0x00f000f0' % sr(S_P1M + 1))
    g.e('v_and_b32 v23, 31, v20')
    g.e('v_lshlrev_b32 v23, 6, v23')
    g.e('v_lshrrev_b32 v24, 5, v20')
    g.e('v_lshl_add_u32 v%d, v24, 24, v23' % V_WM)
    g.e('v_and_b32 v23, 1, v20')
    g.e('v_lshlrev_b32 v23, 4, v23')
    g.e('v_mov_b32 v24, 0x3f80')
    g.e('v_lshlrev_b32 v%d, v23, v24' % V_ONE)
    for d in range(4):
        mk = (3 << (2 * d)) * 0x00010001
        g.e('s_mov_b32 %s, 0x%x' % (sr(S_SELM + 2 * d), mk))
        g.e('s_mov_b32 %s, 0x%x' % (sr(S_SELM + 2 * d + 1), mk))
    g.e('v_bfe_u32 v23, v20, 1, 1')
    g.e('v_mov_b32 v24, 0x4444')
    g.e('v_mov_b32 v25, 0xeeee')
    g.e('v_cmp_eq_u32 vcc, 1, v23')
    g.nop(2)
    g.e('v_cndmask_b32 v%d, v24, v25, vcc' % V_IDX)
    g.e('s_mov_b32 %s, 0x3db504f3' % sr(S_SC))
    g.e('s_mov_b32 %s, 0x3db504f3' % sr(S_SC + 1))
    import struct
    c = struct.unpack('<I', struct.pack('<f', (128 ** -0.5) * 1.4426950408889634))[0]
    g.e('s_mov_b32 %s, 0x%x' % (sr(S_L2E), c))
    g.e('s_mov_b32 %s, 0x%x' % (sr(S_L2E + 1), c))
    g.e('s_lshl_b32 %s, %s, 11' % (sr(S_T2), W))
    g.e('s_add_u32 %s, %s, %d' % (sr(S_M0KX), sr(S_T2), C_KX))
    g.e('s_add_u32 %s, %s, %d' % (sr(S_M0VX), sr(S_T2), C_VX))
    g.e('s_lshl_b32 %s, %s, 13' % (sr(S_T3), H))
    g.e('s_add_u32 %s, %s, %s' % (sr(S_KXO), sr(S_T3), sr(S_T2)))
    g.e('s_add_u32 %s, %s, 0x%x' % (sr(S_KXO), sr(S_KXO), WS_KX))
    g.e('s_lshl_b32 %s, %s, 12' % (sr(S_T3), H))
    g.e('s_add_u32 %s, %s, %s' % (sr(S_KVO), sr(S_T3), sr(S_W1K)))
    g.e('s_add_u32 %s, %s, 0x%x' % (sr(S_KVO), sr(S_KVO), WS_KV))
    g.e('s_lshl_b32 %s, %s, 7' % (sr(S_T2), H))
    g.e('s_add_u32 %s, %s, 0x%x' % (sr(S_F1), sr(S_T2), WS_FLAGS + F1_OFF))
    g.e('s_lshl_b32 %s, %s, 2' % (sr(S_T3), W))
    g.e('s_add_u32 %s, %s, %s' % (sr(S_F2), sr(S_T2), sr(S_T3)))
    g.e('s_add_u32 %s, %s, 0x%x' % (sr(S_F2), sr(S_F2), WS_FLAGS + F2_OFF))
    g.e('v_mov_b32 v41, v27')


def init_a(g):
    W = sr(S_WAVE)
    H = sr(S_RANK)
    make_srd(g, 4, S_MEM0, 8192)
    g.e('s_lshr_b32 %s, %s, 2' % (sr(S_T2), H))
    g.e('s_lshl_b32 %s, %s, 7' % (sr(S_T2), sr(S_T2)))
    g.e('s_lshr_b32 %s, %s, 1' % (sr(S_T3), W))
    g.e('s_lshl_b32 %s, %s, 6' % (sr(S_T3), sr(S_T3)))
    g.e('s_add_u32 %s, %s, %s' % (sr(S_T2), sr(S_T2), sr(S_T3)))
    g.e('s_and_b32 %s, %s, 1' % (sr(S_T3), W))
    g.e('s_lshl_b32 %s, %s, 4' % (sr(S_T3), sr(S_T3)))
    g.e('s_add_u32 %s, %s, %s' % (sr(S_T2), sr(S_T2), sr(S_T3)))
    g.e('v_and_b32 v40, 3, v20')
    g.e('v_lshlrev_b32 v40, 2, v40')
    g.e('v_and_b32 v42, 1, v22')
    g.e('v_lshl_add_u32 v40, v42, 1, v40')
    g.e('v_and_b32 v42, 7, v41')
    g.e('v_lshl_add_u32 v40, v42, 10, v40')
    g.e('buffer_load_ushort v42, v40, s[4:7], %s offen' % sr(S_T2))
    g.e('buffer_load_ushort v43, v40, s[4:7], %s offen offset:32' % sr(S_T2))


def init_b(g):
    for i in range(4):
        g.e('v_mov_b32 v%d, 0' % (44 + i))
    g.e('buffer_store_dwordx4 v[44:47], v%d, %s, %s offen' % (V_PLD, sr(SRD_WS, 4), sr(S_PL)))
    g.e('buffer_store_dwordx4 v[44:47], v%d, %s, %s offen' % (V_PLD, sr(SRD_WS, 4), sr(S_PL2)))
    g.e('v_mov_b32 v40, -1')
    for slot in (1, 2):
        g.e('s_mov_b32 %s, 0x%x' % (sr(S_T0), WS_M2 + slot * 8192))
        g.e('buffer_store_dword v40, v%d, %s, %s offen' % (V_MS, sr(SRD_WS, 4), sr(S_T0)))
    g.e('v_lshl_or_b32 v42, v43, 16, v42')
    g.e('v_min_u32 v42, -2, v42')
    g.e('s_mov_b32 %s, 0x%x' % (sr(S_T0), WS_M2))
    g.e('buffer_store_dword v42, v%d, %s, %s offen' % (V_MS, sr(SRD_WS, 4), sr(S_T0)))
    l = g.newlabel('L_if')
    g.e('s_cmp_lg_u32 %s, 0' % sr(S_WAVE))
    g.e('s_cbranch_scc1 %s' % l)
    g.e('v_and_b32 v41, 31, v20')
    g.e('v_lshlrev_b32 v41, 2, v41')
    g.e('v_lshrrev_b32 v43, 5, v20')
    g.e('v_lshl_add_u32 v41, v43, 12, v41')
    g.e('buffer_store_dword v44, v41, %s, %s offen sc1' % (sr(SRD_WS, 4), sr(S_F1)))
    g.e('v_lshlrev_b32 v43, 11, v20')
    g.e('s_and_b32 %s, %s, 15' % (sr(S_T0), sr(S_RANK)))
    g.e('s_lshl_b32 %s, %s, 7' % (sr(S_T0), sr(S_T0)))
    g.e('s_add_u32 %s, %s, 0x%x' % (sr(S_T0), sr(S_T0), WS_FLAGS + 8192))
    g.e('s_mov_b64 exec, 15')
    g.e('buffer_store_dword v44, v43, %s, %s offen sc1' % (sr(SRD_WS, 4), sr(S_T0)))
    g.e('s_mov_b64 exec, -1')
    g.label(l)


def init_c(g):
    l = g.newlabel('L_if')
    g.e('s_cmp_lg_u32 %s, 0' % sr(S_WAVE))
    g.e('s_cbranch_scc1 %s' % l)
    g.e('s_mov_b64 exec, 1')
    g.e('v_mov_b32 v40, 128')
    g.e('v_mov_b32 v41, 1')
    g.e('global_atomic_add v40, v41, %s' % sr(S_DBG, 2))
    g.e('s_mov_b64 exec, -1')
    g.label(l)


def load_weights(g, opt):
    W = sr(S_WAVE)
    H = sr(S_RANK)
    TB = 64
    g.e('s_lshr_b32 %s, %s, 1' % (sr(S_T0), W))
    g.e('s_lshl_b32 %s, %s, 6' % (sr(S_T0), sr(S_T0)))
    g.e('s_and_b32 %s, %s, 1' % (sr(S_T1), W))
    g.e('s_lshl_b32 %s, %s, 3' % (sr(S_T1), sr(S_T1)))
    g.e('s_add_u32 %s, %s, %s' % (sr(S_T0), sr(S_T0), sr(S_T1)))
    g.e('v_lshlrev_b32 v24, 4, v22')
    g.e('v_add_u32 v24, %s, v24' % sr(S_T0))
    g.e('v_lshlrev_b32 v24, 13, v24')
    g.e('v_bfe_u32 v23, v20, 4, 1')
    g.e('v_lshlrev_b32 v25, 1, v23')
    g.e('v_xor_b32 v25, v25, v21')
    g.e('v_lshl_add_u32 v30, v25, 4, v24')
    g.e('v_bfe_u32 v25, v20, 2, 2')
    g.e('v_lshl_add_u32 v30, v25, 20, v30')
    for i in range(1, 4):
        g.e('v_xor_b32 v%d, 0x%x, v30' % (30 + i, i * 64 + (i << 20)))
    g.e('s_and_b32 %s, %s, 1' % (sr(S_T0), W))
    g.e('s_lshl_b32 %s, %s, 7' % (sr(S_T0), sr(S_T0)))
    g.e('v_xor_b32 v34, %s, v%d' % (sr(S_T0), V_L16))
    g.e('s_lshl_b32 %s, %s, 13' % (sr(S_T0), W))
    g.e('v_add_u32 v34, %s, v34' % sr(S_T0))
    g.e('v_lshrrev_b32 v23, 2, v21')
    g.e('v_and_b32 v24, 3, v21')
    g.e('v_lshrrev_b32 v25, 1, v22')
    g.e('v_lshlrev_b32 v25, 4, v25')
    g.e('v_lshrrev_b32 v26, 1, v23')
    g.e('v_lshl_add_u32 v25, v26, 3, v25')
    g.e('v_and_b32 v27, 1, v22')
    g.e('v_lshl_add_u32 v25, v27, 2, v25')
    g.e('v_and_b32 v28, 1, v23')
    g.e('v_add_u32 v25, v25, v28')
    g.e('v_lshl_add_u32 v28, v27, 1, v28')
    g.e('v_lshl_add_u32 v28, v26, 2, v28')
    g.e('v_lshlrev_b32 v28, 1, v28')
    g.e('v_lshrrev_b32 v26, 1, v24')
    g.e('v_and_b32 v27, 1, v24')
    g.e('s_lshl_b32 %s, %s, 2' % (sr(S_T0), W))
    g.e('v_add_u32 v29, %s, v26' % sr(S_T0))
    g.e('v_xor_b32 v29, v29, v28')
    g.e('v_lshlrev_b32 v29, 4, v29')
    g.e('v_lshl_add_u32 v29, v27, 3, v29')
    g.e('v_lshl_add_u32 v35, v25, 8, v29')
    g.e('v_xor_b32 v36, 32, v35')
    g.e('v_xor_b32 v29, v26, v28')
    g.e('s_lshl_b32 %s, %s, 4' % (sr(S_T0), W))
    g.e('v_add_u32 v29, %s, v29' % sr(S_T0))
    g.e('v_lshlrev_b32 v29, 4, v29')
    g.e('v_lshl_add_u32 v29, v27, 3, v29')
    g.e('v_lshl_add_u32 v37, v25, 10, v29')

    chunks = [('V', c) for c in range(4)] + [('K', c) for c in range(4)] + [('Q', c) for c in range(4)] + [('O', c) for c in range(4)]
    ptr = {'V': S_WV, 'Q': S_WQ, 'K': S_WK, 'O': S_WO}
    srd = {'V': SRD_A, 'K': SRD_B, 'Q': SRD_A, 'O': SRD_B}

    def issue(ci):
        m, c = chunks[ci]
        ring = C_RING[ci % 3]
        if c == 0:
            make_srd(g, srd[m], ptr[m], 4 << 20)
        for i in range(8):
            g.e('s_lshl_b32 %s, %s, 13' % (sr(S_T0), W))
            g.e('s_add_u32 m0, %s, %d' % (sr(S_T0), ring + i * 1024))
            if m != 'O':
                g.e('s_lshl_b32 %s, %s, 8' % (sr(S_T1), H))
                g.e('s_add_u32 %s, %s, %d' % (sr(S_T1), sr(S_T1), i * 8192))
                g.e('v_xor_b32 v38, 0x%x, v%d' % (c << 20, 30 + (i & 3)))
                g.e('buffer_load_dwordx4 v38, %s, %s offen lds' % (sr(srd[m], 4), sr(S_T1)))
            else:
                x = ((i & 1) | (((i >> 2) & 1) << 1)) * 32
                g.e('v_xor_b32 v38, %d, v34' % x)
                g.e('s_lshl_b32 %s, %s, 17' % (sr(S_T1), H))
                g.e('s_add_u32 %s, %s, %d' % (sr(S_T1), sr(S_T1), (c * 32 + i) * 1024))
                g.e('buffer_load_dwordx4 v38, %s, %s offen lds' % (sr(srd[m], 4), sr(S_T1)))

    init_a(g)
    for ci in range(3):
        issue(ci)
    for ci in range(16):
        m, c = chunks[ci]
        ring = C_RING[ci % 3]
        g.e('s_waitcnt vmcnt(%d)' % (8 * min(15 - ci, 2)))
        g.e('s_barrier')
        if ci == 3:
            init_c(g)
        if m != 'O':
            g.e('v_add_u32 v38, %d, v35' % ring)
            g.e('v_add_u32 v39, %d, v36' % ring)
            for ksl in range(2):
                ks = 2 * c + ksl
                for t in range(2):
                    for sq in range(4):
                        off = (64 * ksl + 32 * (sq >> 1) + 2 * (sq & 1)) * 256
                        if m == 'V':
                            dst = ar(A_V0 + ks * 8 + sq * 2, 2) if t == 0 else vr(V_V1 + ks * 8 + sq * 2, 2)
                        elif m == 'K':
                            dst = ar(A_K + (t * 8 + ks) * 8 + sq * 2, 2)
                        elif t == 0:
                            dst = ar(A_Q0 + ks * 8 + sq * 2, 2)
                        else:
                            dst = vr(TB + ksl * 8 + sq * 2, 2)
                        g.e('ds_read_b64_tr_b16 %s, v%d offset:%d' % (dst, 38 + t, off))
            g.e('s_waitcnt lgkmcnt(0)')
            if m == 'Q':
                for ksl in range(2):
                    ks = 2 * c + ksl
                    g.e('ds_write_b128 v%d, %s offset:%d' % (V_WL, vr(TB + ksl * 8, 4), ks * 2048))
                    g.e('ds_write_b128 v%d, %s offset:%d' % (V_WL, vr(TB + ksl * 8 + 4, 4), ks * 2048 + 1024))
                g.e('s_waitcnt lgkmcnt(0)')
        else:
            ks2, hf = c >> 1, c & 1
            for tp in range(8):
                g.e('v_xor_b32 v38, %d, v37' % (tp * 32))
                g.e('v_add_u32 v38, %d, v38' % ring)
                for s1 in range(2):
                    if tp < 4:
                        dst = vr(V_WOL + (tp * 2 + ks2) * 8 + hf * 4 + s1 * 2, 2)
                    else:
                        dst = vr(TB + ((tp - 4) * 2 + ks2) * 8 + hf * 4 + s1 * 2, 2)
                    g.e('ds_read_b64_tr_b16 %s, v38 offset:%d' % (dst, 2 * s1 * 1024))
            g.e('s_waitcnt lgkmcnt(0)')
        g.e('s_barrier')
        if ci == 0:
            init_b(g)
        if ci + 3 < 16:
            issue(ci + 3)
    g.e('v_add_u32 v38, 65536, v%d' % V_WL)
    for f in range(8):
        g.e('ds_write_b128 v38, %s offset:%d' % (vr(TB + f * 8, 4), f * 2048))
        g.e('ds_write_b128 v38, %s offset:%d' % (vr(TB + f * 8 + 4, 4), f * 2048 + 1024))
    g.e('s_waitcnt lgkmcnt(0)')


def dma_kxvx2(g, sc):
    g.e('s_mov_b32 m0, %s' % sr(S_M0KX))
    g.e('s_add_u32 %s, %s, 0x%x' % (sr(S_T0), sr(S_KXO), WS_VX - WS_KX))
    sc.vm('buffer_load_dwordx4 v%d, %s, %s offen sc1 lds' % (V_L16, sr(SRD_WS, 4), sr(S_KXO)))
    sc.vm('buffer_load_dwordx4 v%d, %s, %s offen offset:1024 sc1 lds' % (V_L16, sr(SRD_WS, 4), sr(S_KXO)))
    g.e('s_mov_b32 m0, %s' % sr(S_M0VX))
    g.e('s_add_u32 %s, %s, 0x40000' % (sr(S_KXO), sr(S_KXO)))
    sc.vm('buffer_load_dwordx4 v%d, %s, %s offen sc1 lds' % (V_L16, sr(SRD_WS, 4), sr(S_T0)))
    sc.vm('buffer_load_dwordx4 v%d, %s, %s offen offset:1024 sc1 lds' % (V_L16, sr(SRD_WS, 4), sr(S_T0)))


def ring_load(sc, idx, VK1):
    slot = RG + (idx % 6) * 8
    base, f = (V_WL, idx) if idx < 8 else (VK1, idx - 8)
    sc.ds('ds_read_b128 %s, v%d offset:%d' % (vr(slot, 4), base, f * 2048), None)
    sc.ds('ds_read_b128 %s, v%d offset:%d' % (vr(slot + 4, 4), base, f * 2048 + 1024), 'R%d' % idx)


def smf2(g, d, a, b):
    g.e('v_smfmac_f32_16x16x64_bf16 %s, %s, %s, v%d' % (vr(d, 4), vr(a, 4), b, V_IDX))


def xlane(g, op, MX, MT):
    for sw in ('v_permlane16_swap_b32', 'v_permlane32_swap_b32'):
        g.e('v_mov_b32 v%d, v%d' % (MT, MX))
        g.nop(2)
        g.e('%s v%d, v%d' % (sw, MT, MX))
        g.nop(1)
        g.e('%s v%d, v%d, v%d' % (op, MX, MX, MT))


def poll(g, opt, name, issue_fn, check_fn, fillers, cnt_sgpr, depth=3):
    fd = opt.get('fd', 1)
    gap = opt.get('gap', 12)
    issue_fn()
    for grp in fillers:
        for s in grp:
            g.e(s)
    lp = g.newlabel('L_' + name)
    dn = g.newlabel('L_' + name + 'd')
    if opt.get('ts'):
        g.e('s_mov_b32 %s, 1' % cnt_sgpr)
    dbl = opt.get('dbl' + name[1], 0)
    for k_ in range(opt.get('nd', 1) if dbl else 0):
        g.nop(dbl)
        issue_fn()
    for k_ in range(opt.get('nd', 1) if dbl else 0):
        g.e('s_waitcnt vmcnt(%d)' % (2 * (opt.get('nd', 1) - k_)))
        check_fn()
        g.e('s_cbranch_vccz %s' % dn)
        if opt.get('ts'):
            g.e('s_add_u32 %s, %s, 1' % (cnt_sgpr, cnt_sgpr))
    g.e('s_waitcnt vmcnt(0)')
    check_fn()
    g.e('s_cbranch_vccz %s' % dn)
    g.e('s_mov_b64 exec, vcc')
    for d in range(fd - 1):
        issue_fn()
        g.nop(gap)
    g.label(lp)
    issue_fn()
    g.e('s_mov_b64 exec, -1')
    if opt.get('ts'):
        g.e('s_add_u32 %s, %s, 1' % (cnt_sgpr, cnt_sgpr))
    g.guard()
    g.e('s_waitcnt vmcnt(%d)' % (2 * (fd - 1)))
    check_fn()
    g.e('s_cbranch_vccz %s' % dn)
    g.e('s_mov_b64 exec, vcc')
    g.e('s_branch %s' % lp)
    g.label(dn)


def loop(g, opt):
    sc = Sched(g)

    def padd(a):
        if opt.get('sadd'):
            return ['v_add_f32 v%d, v%d, v%d' % (a, a, a + 2), 'v_add_f32 v%d, v%d, v%d' % (a + 1, a + 1, a + 3)]
        return ['v_pk_add_f32 %s, %s, %s' % (vr(a, 2), vr(a, 2), vr(a + 2, 2))]

    VK1 = V_WD
    g.e('v_add_u32 v%d, 65536, v%d' % (VK1, V_WL))
    g.e('s_mov_b32 %s, 0' % sr(S_STEP))
    g.e('s_mov_b32 %s, 1' % sr(S_PHASE))
    g.e('s_mov_b32 %s, 0x%x' % (sr(S_M2R), WS_M2))
    g.e('s_mov_b32 %s, 0x%x' % (sr(S_M2W), WS_M2 + 8192))
    g.e('s_mov_b32 %s, 0x%x' % (sr(S_M2Z), WS_M2 + 16384))
    l = g.newlabel('L_spin')
    g.e('v_mov_b32 v%d, 128' % PM)
    g.label(l)
    g.guard()
    g.e('global_load_dword v%d, v%d, %s sc1' % (PM + 1, PM, sr(S_DBG, 2)))
    g.e('s_waitcnt vmcnt(0)')
    g.e('v_readfirstlane_b32 %s, v%d' % (sr(S_T0), PM + 1))
    g.nop(3)
    g.e('s_cmp_lt_u32 %s, 32' % sr(S_T0))
    g.e('s_cbranch_scc1 %s' % l)

    def f1_spin(off_reg):
        l = g.newlabel('L_f1')
        g.e('v_mov_b32 v%d, 0' % (A0 + 24))
        g.label(l)
        g.guard()
        g.e('buffer_load_dword v%d, v%d, %s, %s offen sc1' % (V_FL, A0 + 24, sr(SRD_WS, 4), off_reg))
        g.e('s_waitcnt vmcnt(0)')
        g.e('v_readfirstlane_b32 %s, v%d' % (sr(S_T1), V_FL))
        g.nop(3)
        g.e('s_cmp_eq_u32 %s, 0' % sr(S_T1))
        g.e('s_cbranch_scc1 %s' % l)
    if not opt.get('nof1'):
        f1_spin(sr(S_F1))
    g.e('s_barrier')
    dma_kxvx2(g, sc)
    g.e('v_mov_b32 v%d, 1' % V_FL)
    if opt.get('rt'):
        g.e('s_memrealtime s[4:5]')
        g.e('s_waitcnt lgkmcnt(0)')
    for idx in range(6):
        ring_load(sc, idx, VK1)
    g.e('s_branch L_hop2')

    g.label('L_step')
    sc.l = []
    ts2(g, opt, 'start')
    HK = A0
    AD = A0 + 4
    AS = lambda j: PM + 4 * j if j < 2 else A0 + 4 * j
    SL = lambda i: RG + i * 8
    KXF = lambda T, k4: SL(2 + 2 * T + (k4 >> 1)) + (k4 & 1) * 4
    SX0, SX1, SM = SL(0), SL(0) + 4, SL(1)
    MXX, MTT = SL(1) + 4, SL(1) + 5

    def emit_fill(grp):
        for s in grp:
            if isinstance(s, tuple):
                if s[0] == 'ds':
                    sc.ds(s[1], s[2])
                elif s[0] == 'wl':
                    sc.wl(s[1])
                elif s[0] == 'bar':
                    g.e('s_barrier')
            else:
                g.e(s)

    def wsrc(mat, t, j):
        if mat == 'Q':
            return ar(A_Q0 + j * 8, 8) if t == 0 else vr(SL(j % 6), 8)
        if mat == 'K':
            return ar(A_K + (t * 8 + j) * 8, 8)
        return ar(A_V0 + j * 8, 8) if t == 0 else vr(V_V1 + j * 8, 8)
    accs = {'Q': (Q0, Q1), 'K': (K0, K1), 'V': (VT0, VT1)}
    sc.ds('ds_write_b128 v%d, %s offset:%d' % (AD, vr(PM, 4), C_MST), None)
    sc.ds('ds_write_b128 v%d, %s offset:%d' % (AD, vr(PM + 4, 4), C_MST + 1024), 'MW')

    def aread(j):
        return ('ds', 'ds_read_b128 %s, v%d offset:%d' % (vr(AS(j), 4), AD + (j >> 1), C_MST + (j & 1) * 1024), 'A%d' % j)
    rl = []
    for idx in (6, 7):
        rl.append(('ds', 'ds_read_b128 %s, v%d offset:%d' % (vr(SL(idx % 6), 4), V_WL, idx * 2048), None))
        rl.append(('ds', 'ds_read_b128 %s, v%d offset:%d' % (vr(SL(idx % 6) + 4, 4), V_WL, idx * 2048 + 1024), 'R%d' % idx))
    early = [(m_, t, j) for j in range(2) for m_ in 'QKV' for t in range(2)]
    early = [x for x in early if x[0] == 'Q'] + [x for x in early if x[0] != 'Q']
    eb = opt.get('eb', 5)
    fillE = {eb: [('wl', 'MW'), ('bar',)]}
    for i_, x_ in enumerate(rl[:3]):
        fillE[min(2 + i_ * 1 + 2, eb - 1) if False else (4 + i_ if 4 + i_ < eb else 100 + i_)] = [x_]
    rest = [aread(j) for j in range(2, 8)] + [x_ for i_, x_ in enumerate(rl[:3]) if 4 + i_ >= eb]
    n_ = eb + 1
    while rest:
        k_ = min(n_, 11)
        fillE.setdefault(k_, [])
        fillE[k_] = fillE[k_] + [rest.pop(0)]
        n_ += 1
    for n, (m_, t, j) in enumerate(early):
        smf2(g, accs[m_][t], AS(j), wsrc(m_, t, j))
        emit_fill(fillE.get(n, []))
    ts2(g, opt, 'early', True)
    fillQ = [
        [rl[3]],
        ['s_waitcnt vmcnt(0)', ('ds', 'ds_read_b128 %s, v%d offset:%d' % (vr(PM, 4), HK, C_K), 'PUB')],
        ['buffer_store_dword v%d, v%d, %s, %s offen' % (HK + 1, V_MS, sr(SRD_WS, 4), sr(S_M2Z))],
        ['buffer_load_dword v%d, v%d, %s, %s offen sc1' % (V_FL, V_WM, sr(SRD_WS, 4), sr(S_H0))],
        ([] if opt.get('nof1') else
         ['buffer_load_dword v%d, v%d, %s, %s offen sc1' % (V_FL, HK + 2, sr(SRD_WS, 4), sr(S_H1))]),
        ['buffer_store_dword v%d, v%d, %s, %s offen sc1' % (HK + 3, HK + 2, sr(SRD_WS, 4), sr(S_F2))],
    ]
    kxq = [('ds', 'ds_read_b128 %s, v%d offset:%d' % (vr(KXF(T, k4), 4), V_L16, C_KX + (T * 4 + k4) * 1024), 'KX%d_%d' % (T, k4))
           for T in range(2) for k4 in range(4)]
    for j in range(2, 8):
        sc.wl('A%d' % j)
        smf2(g, Q0, AS(j), wsrc('Q', 0, j))
        emit_fill(fillQ.pop(0))
        sc.wl('R%d' % j)
        smf2(g, Q1, AS(j), wsrc('Q', 1, j))
        if 2 <= j <= 5:
            emit_fill([kxq[2 * (j - 2)]])
        if j == 6:
            emit_fill([('wl', 'PUB'), 'buffer_store_dwordx4 %s, v%d, %s, %s offen sc1' % (vr(PM, 4), V_L16, sr(SRD_WS, 4), sr(S_H2))])
    assert not fillQ
    ts2(g, opt, 'q', True)
    QF = [Q0, Q1, PM, PM + 4]

    def fin(accs, base0, tag):
        o = []
        for acc, base in ((accs[0], base0), (accs[1], base0 + 256)):
            o.append(padd(acc) + ['v_cvt_pk_bf16_f32 v%d, v%d, v%d' % (acc, acc, acc + 1)])
            o.append([('ds', 'ds_write_b16 v%d, v%d offset:%d' % (V_QW, acc, base), None),
                      ('ds', 'ds_write_b16_d16_hi v%d, v%d offset:%d' % (V_QW, acc, base + 16), tag)])
        return o
    fin_q = fin((Q0, Q1), C_Q, 'QW')
    fillK = {
        (2, 0): [kxq[1], 's_nop 0'], (2, 1): [kxq[3], 's_nop 1'],
        (3, 0): fin_q[0], (3, 1): fin_q[1], (4, 0): fin_q[2], (4, 1): fin_q[3],
        (5, 0): [kxq[5]], (5, 1): [kxq[7], ('wl', 'QW'), ('bar',)],
        (6, 0): [('ds', 'ds_read_b128 %s, v%d offset:%d' % (vr(QF[k], 4), V_QR, C_Q + k * 512), 'QF%d' % k) for k in range(2)],
        (6, 1): [('ds', 'ds_read_b128 %s, v%d offset:%d' % (vr(QF[k], 4), V_QR, C_Q + k * 512), 'QF%d' % k) for k in range(2, 4)],
    }
    for j in range(2, 8):
        smf2(g, K0, AS(j), wsrc('K', 0, j))
        emit_fill(fillK.get((j, 0), []))
        smf2(g, K1, AS(j), wsrc('K', 1, j))
        emit_fill(fillK.get((j, 1), []))
    ts2(g, opt, 'k', True)
    fin_k = fin((K0, K1), C_K, 'KW')
    fillX = {1: ['s_nop 3'], 2: fin_k[0], 3: fin_k[1], 4: fin_k[2], 5: fin_k[3]}
    n = 0
    for T, S_ in ((0, SX0), (1, SX1)):
        for k4 in range(4):
            sc.wl('QF%d' % k4)
            sc.wl('KX%d_%d' % (T, k4))
            g.e('v_mfma_f32_16x16x32_bf16 %s, %s, %s, %s' % (vr(S_, 4), vr(KXF(T, k4), 4), vr(QF[k4], 4), '0' if k4 == 0 else vr(S_, 4)))
            emit_fill(fillX.get(n, []))
            n += 1
    vq = [(t, ks) for ks in range(2, 8) for t in range(2)]

    def vsmf(k=1, pad=False):
        for _ in range(k):
            if vq:
                t, ks = vq.pop(0)
                smf2(g, VT0 + 4 * t, AS(ks), wsrc('V', t, ks))
            elif pad:
                g.nop(1)

    WH = [SL(5), SL(2), SL(3), PM, SL(0), SL(1), SL(4), A0 + 16]

    def wh_load(f):
        sc.ds('ds_read_b128 %s, v%d offset:%d' % (vr(WH[f], 4), VK1, f * 2048), None)
        sc.ds('ds_read_b128 %s, v%d offset:%d' % (vr(WH[f] + 4, 4), VK1, f * 2048 + 1024), 'WH%d' % f)
    ts2(g, opt, 'xsc', True)
    vsmf(2)
    sc.wl('KW')
    g.e('s_barrier')
    ts2(g, opt, 'kbar', True)
    KMF = lambda k4: KXF(0, k4)
    for k4 in range(4):
        sc.ds('ds_read_b128 %s, v%d offset:%d' % (vr(KMF(k4), 4), V_KR, C_K + k4 * 512), 'KM%d' % k4)
    vsmf(1)
    VXF = SL(4)
    g.e('v_add_u32 v%d, %s, v%d' % (K0, sr(S_M0VX), V_L16))
    sc.ds('ds_read_b128 %s, v%d' % (vr(VXF, 4), K0), None)
    sc.ds('ds_read_b128 %s, v%d offset:1024' % (vr(VXF + 4, 4), K0), 'VX')
    vsmf(1)
    S = [SX0 + i for i in range(8)]
    g.e('s_mov_b32 m0, %s' % sr(S_M0KX))
    g.e('v_max3_f32 v%d, v%d, v%d, v%d' % (MXX, S[0], S[1], S[2]))
    g.e('buffer_load_dwordx4 v%d, %s, %s offen sc1 lds' % (V_L16, sr(SRD_WS, 4), sr(S_H0)))
    g.e('v_max3_f32 v%d, v%d, v%d, v%d' % (MTT, S[3], S[4], S[5]))
    vsmf(1)
    g.e('buffer_load_dwordx4 v%d, %s, %s offen offset:1024 sc1 lds' % (V_L16, sr(SRD_WS, 4), sr(S_H0)))
    g.e('v_max3_f32 v%d, v%d, v%d, v%d' % (MXX, MXX, S[6], S[7]))
    g.e('v_max_f32 v%d, v%d, v%d' % (MXX, MXX, MTT))
    vsmf(1)
    wh_load(0)
    g.e('v_mov_b32 v%d, 0x3f803f80' % K0)
    g.e('v_mov_b32 v%d, 0x3f803f80' % (K0 + 1))
    g.e('v_mov_b64 %s, %s' % (vr(K0 + 2, 2), vr(K0, 2)))
    for k4 in range(4):
        sc.wl('KM%d' % k4)
        g.e('v_mfma_f32_16x16x32_bf16 %s, %s, %s, %s' % (vr(SM, 4), vr(KMF(k4), 4), vr(QF[k4], 4), '0' if k4 == 0 else vr(SM, 4)))
    vsmf(1)
    wh_load(1)
    vsmf(1)
    wh_load(2)
    vsmf(1)
    g.nop(1)
    ts2(g, opt, 'msc', True)
    sc.wl('VX')
    g.e('s_mov_b32 m0, %s' % sr(S_M0VX))
    g.e('s_add_u32 %s, %s, 0x%x' % (sr(S_T0), sr(S_H0), WS_VX - WS_KX))
    g.e('v_max3_f32 v%d, v%d, v%d, v%d' % (MXX, MXX, SM, SM + 1))
    for i_, sw in enumerate(('v_permlane16_swap_b32', 'v_permlane32_swap_b32')):
        g.e('v_mov_b32 v%d, v%d' % (MTT, MXX))
        vsmf(1)
        g.e('buffer_load_dwordx4 v%d, %s, %s offen offset:%d sc1 lds' % (V_L16, sr(SRD_WS, 4), sr(S_T0), 1024 * i_))
        g.e('%s v%d, v%d' % (sw, MTT, MXX))
        g.nop(1)
        g.e('v_max_f32 v%d, v%d, v%d' % (MXX, MXX, MTT))
    ts2(g, opt, 'max', True)
    g.e('v_mul_f32 v%d, %s, v%d' % (MXX, sr(S_L2E), MXX))
    g.e('v_mov_b32 v%d, v%d' % (MTT, MXX))
    SA = S + [SM, SM + 1]
    for i in range(5):
        g.e('v_pk_fma_f32 %s, %s, %s, %s neg_lo:[0,0,1] neg_hi:[0,0,1]' % (vr(SA[2 * i], 2), vr(SA[2 * i], 2), sr(S_L2E, 2), vr(MXX, 2)))
        if i % 2 == 1:
            vsmf(1)
    for i in range(10):
        g.e('v_exp_f32 v%d, v%d' % (SA[i], SA[i]))
        if i % 3 == 1:
            vsmf(1)
    assert not vq, len(vq)
    ts2(g, opt, 'exp', True)
    VM0, VM1 = A0, A0 + 2
    PX, PMm, RINV = A0 + 4, A0 + 8, A0 + 10
    O0, O1, OP = A0 + 12, A0 + 16, A0 + 4
    ONES, SUMS = K0, K1
    for i in range(4):
        g.e('v_cvt_pk_bf16_f32 v%d, v%d, v%d' % (PX + i, SA[2 * i], SA[2 * i + 1]))
    g.e('v_cvt_pk_bf16_f32 v%d, v%d, v%d' % (PMm, SA[8], SA[9]))
    g.e('v_mov_b32 v%d, 0' % (PMm + 1))
    g.e('v_mfma_f32_16x16x32_bf16 %s, %s, %s, 0' % (vr(SUMS, 4), vr(ONES, 4), vr(PX, 4)))
    g.e('v_pk_add_f32 %s, %s, %s' % (vr(VT0, 2), vr(VT0, 2), vr(VT0 + 2, 2)))
    g.e('v_mfma_f32_16x16x16_bf16 %s, %s, %s, %s' % (vr(SUMS, 4), vr(ONES, 2), vr(PMm, 2), vr(SUMS, 4)))
    g.e('v_pk_add_f32 %s, %s, %s' % (vr(VT1, 2), vr(VT1, 2), vr(VT1 + 2, 2)))
    g.e('v_mfma_f32_16x16x32_bf16 %s, %s, %s, 0' % (vr(O0, 4), vr(VXF, 4), vr(PX, 4)))
    g.e('v_cvt_pk_bf16_f32 v%d, v%d, v%d' % (VM0, VT0, VT0 + 1))
    g.e('v_cvt_pk_bf16_f32 v%d, v%d, v%d' % (VM1, VT1, VT1 + 1))
    g.e('v_mfma_f32_16x16x32_bf16 %s, %s, %s, 0' % (vr(O1, 4), vr(VXF + 4, 4), vr(PX, 4)))
    g.e('v_mov_b32 v%d, 0' % (VM0 + 1))
    g.e('v_mov_b32 v%d, 0' % (VM1 + 1))
    sc.ds('ds_write_b32 v%d, v%d offset:%d' % (V_VW, VM0, C_VM), None)
    g.e('v_rcp_f32 v%d, v%d' % (RINV, SUMS))
    g.e('v_mfma_f32_16x16x16_bf16 %s, %s, %s, %s' % (vr(O0, 4), vr(VM0, 2), vr(PMm, 2), vr(O0, 4)))
    g.e('v_mfma_f32_16x16x16_bf16 %s, %s, %s, %s' % (vr(O1, 4), vr(VM1, 2), vr(PMm, 2), vr(O1, 4)))
    sc.ds('ds_write_b32 v%d, v%d offset:%d' % (V_VW, VM1, C_VM + 256), None)
    g.e('s_cmp_eq_u32 %s, 63' % sr(S_STEP))
    g.e('s_cbranch_scc1 L_chain_done')
    ts2(g, opt, 'pv', True)
    WA = [ACC2 + 4 * i for i in range(6)] + [A0 + 24, A0 + 28]
    zl = ['v_mov_b64 %s, 0' % vr(WA[i // 2] + 2 * (i & 1), 2) for i in range(16)]
    g.e('v_mov_b32 v%d, v%d' % (RINV + 1, RINV))
    for _ in range(4):
        g.e(zl.pop(0))
    for i in range(4):
        g.e('v_pk_mul_f32 %s, %s, %s' % (vr(O0 + 2 * i, 2), vr(O0 + 2 * i, 2), vr(RINV, 2)))
    for i in range(4):
        g.e('v_cvt_pk_bf16_f32 v%d, v%d, v%d' % (OP + i, O0 + 2 * i, O0 + 2 * i + 1))
    sc.ds('ds_write_b64 v%d, %s' % (V_OW, vr(OP, 2)), None)
    sc.ds('ds_write_b64 v%d, %s offset:256' % (V_OW, vr(OP + 2, 2)), 'OW')
    ts2(g, opt, 'smax')
    wh_load(3)
    wh_load(4)
    for _ in range(6):
        g.e(zl.pop(0))
    sc.wl('OW')
    g.e('s_barrier')
    ts2(g, opt, 'obar')
    OA = A0 + 8
    sc.ds('ds_read_b128 %s, v%d offset:%d' % (vr(OA, 4), V_AF, C_O), 'OA0')
    sc.ds('ds_read_b128 %s, v%d offset:%d' % (vr(OA + 4, 4), V_AF, C_O + 1024), 'OA1')
    while zl:
        g.e(zl.pop(0))
    ST = A0

    def post(pr):
        ops = []
        for d in range(2):
            a = WA[2 * pr + d]
            ops += padd(a) + ['v_cvt_pk_bf16_f32 v%d, v%d, v%d' % (ST + 2 * pr + d, a, a + 1)]
            if d == 0:
                ops.append('v_bfi_b32 v%d, 1, %s, v%d' % (ST + 2 * pr, sr(S_PHASE), ST + 2 * pr))
        ops.append('buffer_store_dwordx2 %s, v%d, %s, %s offen offset:%d' % (vr(ST + 2 * pr, 2), V_PS, sr(SRD_WS, 4), '0' if pr < 2 else sr(S_U), (pr & 1) * 128))
        return ops
    side = []
    for f in (5, 6, 7):
        side.append(('ds', 'ds_read_b128 %s, v%d offset:%d' % (vr(WH[f], 4), VK1, f * 2048), None))
        side.append(('ds', 'ds_read_b128 %s, v%d offset:%d' % (vr(WH[f] + 4, 4), VK1, f * 2048 + 1024), 'WH%d' % f))
    sc.wl('OA0')
    ts2(g, opt, 'oa', True)
    pend = []
    cnt = [0]

    def emit(s_):
        emit_fill([s_])
        cnt[0] += 1
    order = [(pr, ks2, d) for pr in range(4) for ks2 in range(2) for d in range(2)]
    for n, (pr, ks2, d) in enumerate(order):
        tp = 2 * pr + d
        if ks2 == 1:
            sc.wl('OA1')
        if tp >= 4:
            sc.wl('WH%d' % ((tp - 4) * 2 + ks2))
            bsrc = vr(WH[(tp - 4) * 2 + ks2], 8)
        else:
            bsrc = vr(V_WOL + (tp * 2 + ks2) * 8, 8)
        smf2(g, WA[tp], OA + 4 * ks2, bsrc)
        cnt[0] += 1
        if ks2 == 1 and d == 1:
            pend += [(cnt[0] + 8, o) for o in post(pr)]
        k = 0
        if side:
            emit(side.pop(0))
            k += 1
        while k < opt.get('wper', 2) and pend and pend[0][0] <= cnt[0]:
            emit(pend.pop(0)[1])
            k += 1
    ts2(g, opt, 'wo16', True)
    while pend:
        if pend[0][0] > cnt[0]:
            g.nop(pend[0][0] - cnt[0])
            cnt[0] = pend[0][0]
        emit(pend.pop(0)[1])
    g.e('s_add_u32 %s, %s, 0x40000' % (sr(S_KXO), sr(S_KXO)))
    ts2(g, opt, 'wo')
    if opt.get('ack'):
        g.e('s_waitcnt vmcnt(2)')
        ts2(g, opt, 'dmaack')
        g.e('s_waitcnt vmcnt(1)')
        ts2(g, opt, 'ack0')
        g.e('s_waitcnt vmcnt(0)')
        ts2(g, opt, 'ack1')
    SEL = A0 + 8
    RD = A0 + 12
    tt = 0
    for a in range(2):
        for b in range(2):
            for c_ in range(2):
                if (a ^ c_) | (b ^ c_):
                    tt |= 1 << (a * 4 + b * 2 + c_)
    PHV, CK = A0 + 16, A0 + 17

    def issue1():
        g.e('buffer_load_dwordx4 %s, v%d, %s, %s offen sc1' % (vr(PM, 4), V_PLD, sr(SRD_WS, 4), sr(S_PL)))
        g.e('buffer_load_dwordx4 %s, v%d, %s, %s offen sc1' % (vr(PM + 4, 4), V_PLD, sr(SRD_WS, 4), sr(S_PL2)))

    def check1():
        g.e('v_bitop3_b32 v%d, v%d, v%d, v%d bitop3:0x%x' % (CK, PM, PM + 4, PHV, tt))
        g.e('v_bitop3_b32 v%d, v%d, v%d, v%d bitop3:0x%x' % (CK + 1, PM + 2, PM + 6, PHV, tt))
        g.e('v_bitop3_b32 v%d, v%d, v%d, 1 bitop3:0xa8' % (CK, CK, CK + 1))
        g.e('v_cmp_ne_u32 vcc, 0, v%d' % CK)
    sel = ['v_mov_b32 v%d, %s' % (PHV, sr(S_PHASE))]
    for d in range(4):
        sel += ['v_cndmask_b32 v%d, 0, v%d, %s' % (SEL + d, V_ONE, sr(S_SELM + 2 * d, 2))]
    rp = []
    for idx in range(6):
        rp.append('ds_read_b128 %s, v%d offset:%d' % (vr(SL(idx), 4), V_WL, idx * 2048))
        rp.append('ds_read_b128 %s, v%d offset:%d' % (vr(SL(idx) + 4, 4), V_WL, idx * 2048 + 1024))
    if opt.get('pd', 1) == 1:
        for s_ in sel:
            g.e(s_)
        if opt.get('ack'):
            ts2(g, opt, 'sel')
            issue1()
            g.e('s_waitcnt vmcnt(0)')
            ts2(g, opt, 'ld1')
            issue1()
            g.e('s_waitcnt vmcnt(0)')
            ts2(g, opt, 'ld2')
        if opt.get('probe'):
            for s_ in rp[:opt.get('n1', 0)]:
                g.e(s_)
            rp = rp[opt.get('n1', 0):]
            ts2(g, opt, 'pre')
            issue1()
            g.e('s_waitcnt vmcnt(3)')
            ts2(g, opt, 'st0')
            g.e('s_waitcnt vmcnt(2)')
            ts2(g, opt, 'st1')
            g.e('s_waitcnt vmcnt(1)')
            ts2(g, opt, 'ld0')
            g.e('s_waitcnt vmcnt(0)')
            ts2(g, opt, 'ld1')
        if opt.get('aw1'):
            for s_ in rp[:opt.get('n1', 0)]:
                g.e(s_)
            rp = rp[opt.get('n1', 0):]
            g.e('s_waitcnt vmcnt(%d)' % (opt['aw1'] - 1))
        poll(g, opt, 'p1', issue1, check1, [], 's80', depth=1)
    elif opt.get('pd') == 2:
        for s_ in sel[:7]:
            g.e(s_)
        poll(g, opt, 'p1', issue1, check1, [sel[7:] + rp[:4], []], 's80', depth=2)
        rp = rp[4:]
    else:
        for s_ in sel[:7]:
            g.e(s_)
        poll(g, opt, 'p1', issue1, check1, [sel[7:] + rp[:1], rp[1:6], []], 's80', depth=3)
        rp = rp[6:]
    ts2(g, opt, 'hop1')
    g.e('v_mfma_f32_16x16x32_bf16 %s, %s, %s, 0' % (vr(RD, 4), vr(SEL, 4), vr(PM, 4)))
    g.e('v_mfma_f32_16x16x32_bf16 %s, %s, %s, %s' % (vr(RD, 4), vr(SEL, 4), vr(PM + 4, 4), vr(RD, 4)))
    g.e('s_add_u32 %s, %s, 1' % (sr(S_STEP), sr(S_STEP)))
    g.e('s_mov_b32 %s, %s' % (sr(S_T0), sr(S_M2R)))
    g.e('s_mov_b32 %s, %s' % (sr(S_M2R), sr(S_M2W)))
    g.e('s_mov_b32 %s, %s' % (sr(S_M2W), sr(S_M2Z)))
    g.e('s_mov_b32 %s, %s' % (sr(S_M2Z), sr(S_T0)))
    g.e('s_xor_b32 %s, %s, 1' % (sr(S_PHASE), sr(S_PHASE)))
    g.nop(2)
    for ror in (4, 8):
        for i in range(4):
            g.e('v_add_f32_dpp v%d, v%d, v%d row_ror:%d row_mask:0xf bank_mask:0xf' % (RD + i, RD + i, RD + i, ror))
    g.e('v_cvt_pk_bf16_f32 v%d, v%d, v%d' % (RD, RD, RD + 2))
    g.e('v_cvt_pk_bf16_f32 v%d, v%d, v%d' % (RD + 1, RD + 1, RD + 3))
    g.e('v_cndmask_b32 v%d, v%d, v%d, %s' % (RD, RD, RD + 1, sr(S_P1M, 2)))
    g.e('v_min_u32 v%d, -2, v%d' % (RD, RD))
    g.e('buffer_store_dword v%d, v%d, %s, %s offen' % (RD, V_MS, sr(SRD_WS, 4), sr(S_M2R)))
    ts2(g, opt, 'red')
    if opt.get('ack'):
        g.e('s_waitcnt vmcnt(0)')
        ts2(g, opt, 'ack2')
    rp2 = rp
    g.label('L_hop2')
    g.e('s_lshl_b32 %s, %s, 11' % (sr(S_T3), sr(S_WAVE)))
    g.e('s_add_u32 %s, %s, %s' % (sr(S_T3), sr(S_T3), sr(S_M2R)))

    def issue2():
        g.e('buffer_load_dwordx4 %s, v%d, %s, %s offen sc1' % (vr(PM, 4), V_L16, sr(SRD_WS, 4), sr(S_T3)))
        g.e('buffer_load_dwordx4 %s, v%d, %s, %s offen offset:1024 sc1' % (vr(PM + 4, 4), V_L16, sr(SRD_WS, 4), sr(S_T3)))

    def check2():
        g.e('v_max3_u32 v%d, v%d, v%d, v%d' % (CK, PM, PM + 1, PM + 2))
        g.e('v_max3_u32 v%d, v%d, v%d, v%d' % (CK + 1, PM + 3, PM + 4, PM + 5))
        g.e('v_max3_u32 v%d, v%d, v%d, v%d' % (CK, CK, PM + 6, PM + 7))
        g.e('v_max_u32 v%d, v%d, v%d' % (CK, CK, CK + 1))
        g.e('v_cmp_eq_u32 vcc, -1, v%d' % CK)
    zr = ['v_mov_b64 %s, 0' % vr(ACC2 + 2 * i, 2) for i in range(12)]
    HK = A0
    AD = A0 + 4
    zr += ['v_add_u32 v%d, %s, v%d' % (AD, sr(S_M0KX), V_L16)]
    zr += ['v_xor_b32 v%d, %d, v%d' % (AD + q_, q_ << 11, AD) for q_ in (1, 2, 3)]
    zr += ['v_add_u32 v%d, %s, v%d' % (HK, sr(S_W1K), V_L16),
           'v_mov_b32 v%d, -1' % (HK + 1),
           'v_mov_b32 v%d, 0' % (HK + 2),
           's_sub_u32 %s, %s, 1' % (sr(S_T0), sr(S_STEP)),
           's_max_i32 %s, %s, 0' % (sr(S_T0), sr(S_T0)),
           'v_mov_b32 v%d, %s' % (HK + 3, sr(S_T0)),
           's_cmp_ge_u32 %s, 63' % sr(S_STEP),
           's_cselect_b32 %s, 0x7ff00000, %s' % (sr(S_H0), sr(S_KXO)),
           's_add_u32 %s, %s, 2' % (sr(S_T0), sr(S_STEP)),
           's_min_u32 %s, %s, 63' % (sr(S_T0), sr(S_T0)),
           's_and_b32 %s, %s, 0xfffffffc' % (sr(S_T0), sr(S_T0)),
           's_add_u32 %s, %s, %s' % (sr(S_H1), sr(S_T0), sr(S_F1)),
           's_cmp_eq_u32 %s, 0' % sr(S_STEP),
           's_cselect_b32 %s, 0x7ff00000, %s' % (sr(S_H2), sr(S_KVO)),
           's_cselect_b32 %s, 0, 0x20000' % sr(S_T0),
           's_add_u32 %s, %s, %s' % (sr(S_KVO), sr(S_KVO), sr(S_T0))]
    lf = g.newlabel('L_flok')
    fl = ['v_readfirstlane_b32 %s, v%d' % (sr(S_T1), V_FL),
          's_nop 2',
          's_cmp_lg_u32 %s, 0' % sr(S_T1)]
    nz = opt.get('nz', 99)
    post_fill = zr[nz:]
    for s_ in rp2 + zr[:nz] + fl:
        g.e(s_)
    if not opt.get('nof1'):
        g.e('s_cbranch_scc1 %s' % lf)
        g.e('s_add_u32 %s, %s, 1' % (sr(S_T0), sr(S_STEP)))
        g.e('s_min_u32 %s, %s, 63' % (sr(S_T0), sr(S_T0)))
        g.e('s_and_b32 %s, %s, 0xfffffffc' % (sr(S_T0), sr(S_T0)))
        g.e('s_add_u32 %s, %s, %s' % (sr(S_T2), sr(S_T0), sr(S_F1)))
        f1_spin(sr(S_T2))
        g.label(lf)
    ts2_flush(g, opt, A0 + 21)
    if not opt.get('noaw2'):
        g.e('s_waitcnt vmcnt(0)')
    poll(g, opt, 'p2', issue2, check2, [post_fill + ['s_waitcnt lgkmcnt(0)']], 's81', depth=1)
    g.e('s_branch L_step')
    g.label('L_chain_done')
    g.e('s_waitcnt lgkmcnt(0)')
    g.e('s_barrier')
    g.e('v_add_u32 v%d, %s, v%d' % (PM + 4, sr(S_W1K), V_L16))
    g.e('ds_read_b128 %s, v%d offset:%d' % (vr(PM, 4), PM + 4, C_K))
    g.e('s_waitcnt lgkmcnt(0)')
    g.e('buffer_store_dwordx4 %s, v%d, %s, %s offen sc1' % (vr(PM, 4), V_L16, sr(SRD_WS, 4), sr(S_KVO)))
    g.e('s_waitcnt vmcnt(0)')
    g.e('v_mov_b32 v%d, 64' % PM)
    g.e('v_mov_b32 v%d, 0' % (PM + 1))
    g.e('s_mov_b64 exec, 1')
    g.e('buffer_store_dword v%d, v%d, %s, %s offen sc1' % (PM, PM + 1, sr(SRD_WS, 4), sr(S_F2)))
    g.e('s_mov_b64 exec, -1')
    if opt.get('rt'):
        g.e('s_memrealtime s[98:99]')
        g.e('s_waitcnt lgkmcnt(0)')
        for i, r_ in enumerate((74, 76, 4, 98)):
            g.e('v_writelane_b32 v%d, s%d, %d' % (PM, r_, i))
        g.e('s_lshl_b32 %s, %s, 2' % (sr(S_T0), sr(S_RANK)))
        g.e('s_add_u32 %s, %s, %s' % (sr(S_T0), sr(S_T0), sr(S_WAVE)))
        g.e('s_lshl_b32 %s, %s, 8' % (sr(S_T0), sr(S_T0)))
        g.e('s_add_u32 %s, %s, 0x%x' % (sr(S_T0), sr(S_T0), WS_TS + 0x800000))
        g.e('v_lshrrev_b32 v%d, 2, v%d' % (PM + 1, V_L16))
        g.e('buffer_store_dword v%d, v%d, %s, %s offen' % (PM, PM + 1, sr(SRD_WS, 4), sr(S_T0)))
    g.e('s_branch L_exit')
```

```python
from gen import *

WS_QA = 0x6000000
WS_KA = 0x6200000
WS_VA = 0x6400000
WS_OA = 0x6600000
CA_OFF = 8192
CB_OFF = 8192 + 2048
CO_OFF = 8192 + 4096
FLAG_ZERO_BYTES = 8192 + 6144

N_BP = 512
N_AP = 64
N_AA = 128
N_AO = 64
GATE = 2
NBIG = 12
N_BT = NBIG * 36
NX = 4
N_BF = 0
N_BX = NX * 32 + (64 - 4 * NBIG) * 8
CS_OFF = 8192 + 6144
T_AP = N_BP
T_AA = T_AP + N_AP
T_AO = T_AA + N_AA
T_BT = T_AO + N_AO
T_BF = T_BT + N_BT
T_BX = T_BF + N_BF
T_END = T_BX + N_BX

S_TASK = 52
S_R = 53
S_H = 54
S_AOFF = 55
S_BOFF = 56
S_KC = 59
S_X0, S_X1, S_X2, S_X3 = 60, 61, 62, 63
SRD_B0, SRD_B1, SRD_B2 = 80, 84, 88
SRD_OUT = 92
S_RET = 96
S_INIT = 98
S_LOG = 75
S_QN = 74

W_LANE = 1
W_AD = 2
W_BD = 6
W_AR = 8
W_BR = 12
W_T = 16
W_ACC = 64
STAGE = 65536


def wave0_begin(g):
    l = g.newlabel('L_w0')
    g.e('s_cmp_lg_u32 %s, 0' % sr(S_WAVE))
    g.e('s_cbranch_scc1 %s' % l)
    return l


def ensure_init(g):
    lw = g.newlabel('L_iw')
    ld = g.newlabel('L_id')
    g.e('s_cmp_lg_u32 %s, 0' % sr(S_INIT))
    g.e('s_cbranch_scc1 %s' % ld)
    g.e('v_mov_b32 v%d, 128' % W_T)
    g.label(lw)
    g.guard()
    g.e('global_load_dword v%d, v%d, %s sc1' % (W_T + 1, W_T, sr(S_DBG, 2)))
    g.e('s_waitcnt vmcnt(0)')
    g.e('v_readfirstlane_b32 %s, v%d' % (sr(S_X1), W_T + 1))
    g.nop(3)
    g.e('s_cmp_lt_u32 %s, 32' % sr(S_X1))
    g.e('s_cbranch_scc1 %s' % lw)
    g.e('s_mov_b32 %s, 1' % sr(S_INIT))
    g.label(ld)


def wait_ge(g, soff_expr_emit, target, sleep=8):
    ensure_init(g)
    l = g.newlabel('L_wait')
    g.e('v_mov_b32 v%d, 0' % W_T)
    g.label(l)
    g.guard()
    g.e('buffer_load_dword v%d, v%d, %s, %s offen sc1' % (W_T + 1, W_T, sr(SRD_WS, 4), sr(S_X0)))
    g.e('s_waitcnt vmcnt(0)')
    g.e('v_readfirstlane_b32 %s, v%d' % (sr(S_X1), W_T + 1))
    g.nop(3)
    g.e('s_cmp_ge_u32 %s, %s' % (sr(S_X1), target))
    d = g.newlabel('L_waitd')
    g.e('s_cbranch_scc1 %s' % d)
    g.e('s_sleep %d' % sleep)
    g.e('s_branch %s' % l)
    g.label(d)


def signal_add(g):
    g.e('s_waitcnt vmcnt(0)')
    g.e('s_barrier')
    l = wave0_begin(g)
    ensure_init(g)
    g.e('s_mov_b64 exec, 1')
    g.e('v_mov_b32 v%d, 0' % W_T)
    g.e('v_mov_b32 v%d, 1' % (W_T + 1))
    g.e('buffer_atomic_add v%d, v%d, %s, %s offen' % (W_T + 1, W_T, sr(SRD_WS, 4), sr(S_X0)))
    g.e('s_mov_b64 exec, -1')
    g.label(l)


def gemm_setup(g, strideA, strideB):
    L = W_LANE
    t = W_T
    g.e('v_lshrrev_b32 v%d, 3, v%d' % (t, L))
    g.e('s_mov_b32 %s, %d' % (sr(S_X0), strideA))
    g.e('v_mul_lo_u32 v%d, v%d, %s' % (t, t, sr(S_X0)))
    g.e('v_and_b32 v%d, 7, v%d' % (t + 1, L))
    g.e('v_lshrrev_b32 v%d, 4, v%d' % (t + 2, L))
    g.e('v_xor_b32 v%d, v%d, v%d' % (t + 1, t + 1, t + 2))
    g.e('v_lshl_add_u32 v%d, v%d, 4, v%d' % (t, t + 1, t))
    for i in range(4):
        g.e('v_xor_b32 v%d, %d, v%d' % (W_AD + i, (i & 1) * 64, t))
        if i:
            g.e('v_add_u32 v%d, %d, v%d' % (W_AD + i, 8 * i * strideA, W_AD + i))
    g.e('s_mov_b32 %s, %d' % (sr(S_X0), strideB))
    g.e('v_mul_lo_u32 v%d, v%d, %s' % (t, t + 2, sr(S_X0)))
    g.e('v_and_b32 v%d, 15, v%d' % (t + 1, L))
    g.e('v_lshlrev_b32 v%d, 2, v%d' % (t + 3, t + 2))
    g.e('v_xor_b32 v%d, v%d, v%d' % (t + 1, t + 1, t + 3))
    g.e('v_lshl_add_u32 v%d, v%d, 4, v%d' % (W_BD, t + 1, t))


def gemm_consts(g):
    L = W_LANE
    t = W_T
    g.e('v_and_b32 v%d, 31, v%d' % (t, L))
    g.e('v_bfe_u32 v%d, v%d, 1, 3' % (t + 1, L))
    g.e('v_lshrrev_b32 v%d, 5, v%d' % (t + 2, L))
    g.e('v_xor_b32 v%d, v%d, v%d' % (t + 1, t + 1, t + 2))
    g.e('v_lshlrev_b32 v%d, 7, v%d' % (t, t))
    g.e('v_lshl_add_u32 v%d, v%d, 4, v%d' % (t, t + 1, t))
    g.e('s_lshl_b32 %s, %s, 12' % (sr(S_X0), sr(S_WAVE)))
    g.e('v_add_u32 v%d, %s, v%d' % (t, sr(S_X0), t))
    for ks in range(4):
        g.e('v_xor_b32 v%d, %d, v%d' % (W_AR + ks, ks * 32, t))
    g.e('v_bfe_u32 v%d, v%d, 2, 2' % (t, L))
    g.e('v_lshl_add_u32 v%d, v%d, 3, v%d' % (t + 1, t + 2, t))
    g.e('v_lshlrev_b32 v%d, 8, v%d' % (t + 1, t + 1))
    g.e('v_bfe_u32 v%d, v%d, 4, 1' % (t + 3, L))
    g.e('v_bfe_u32 v%d, v%d, 1, 1' % (t + 4, L))
    g.e('v_lshl_add_u32 v%d, v%d, 1, v%d' % (t + 3, t + 3, t + 4))
    g.e('v_lshlrev_b32 v%d, 2, v%d' % (t + 4, t))
    g.e('v_xor_b32 v%d, v%d, v%d' % (t + 3, t + 3, t + 4))
    g.e('v_lshl_add_u32 v%d, v%d, 4, v%d' % (t + 1, t + 3, t + 1))
    g.e('v_and_b32 v%d, 1, v%d' % (t + 3, L))
    g.e('v_lshl_add_u32 v%d, v%d, 3, v%d' % (t + 1, t + 3, t + 1))
    g.e('v_add_u32 v%d, 16384, v%d' % (t + 1, t + 1))
    for tt in range(4):
        g.e('v_xor_b32 v%d, %d, v%d' % (W_BR + tt, tt * 64, t + 1))


def gemm_core(g, name, nb, nchunks, strideB, srdA, srdB, swap, asc1=False, warm=None):
    nt = 4 * nb
    NSTG = 2 if nb == 3 else 4
    STG = 65536 if nb == 3 else 32768
    nd = 4 + 4 * nb
    FB = [0, 64]
    FA = [48, 112]

    def dma(stage):
        base = stage * STG
        o = []
        pre = ['s_lshl_b32 %s, %s, 12' % (sr(S_X0), sr(S_WAVE)),
               's_lshl_b32 %s, %s, 7' % (sr(S_X1), sr(S_KC)),
               's_add_u32 %s, %s, %s' % (sr(S_X1), sr(S_X1), sr(S_AOFF))]
        for i in range(4):
            o.append(pre + ['s_add_u32 m0, %s, %d' % (sr(S_X0), base + i * 1024), 's_nop 0',
                            'buffer_load_dwordx4 v%d, %s, %s offen%s lds' % (W_AD + i, sr(srdA, 4), sr(S_X1), ' sc1' if asc1 else '')])
            pre = []
        pre = ['s_lshl_b32 %s, %s, 6' % (sr(S_X1), sr(S_KC)),
               's_lshl_b32 %s, %s, 4' % (sr(S_X2), sr(S_WAVE)),
               's_add_u32 %s, %s, %s' % (sr(S_X1), sr(S_X1), sr(S_X2)),
               's_mul_i32 %s, %s, %d' % (sr(S_X1), sr(S_X1), strideB)]
        for j in range(nb):
            pre = pre + ['s_add_u32 %s, %s, %s' % (sr(S_X2), sr(S_X1), sr(S_BOFF + j))]
            for i in range(4):
                o.append(pre + ['s_add_u32 m0, %s, %d' % (sr(S_X0), base + 16384 + j * 16384 + i * 1024),
                                's_add_u32 %s, %s, %d' % (sr(S_X3), sr(S_X2), 4 * i * strideB),
                                'buffer_load_dwordx4 v%d, %s, %s offen lds' % (W_BD, sr(srdB[j], 4), sr(S_X3))])
                pre = []
        return o

    def reads(ks, fs):
        o = ['ds_read_b128 %s, v%d' % (ar(FA[fs], 4), W_AR + ks)]
        for t in range(nt):
            j, tt = t >> 2, t & 3
            for s in range(2):
                o.append('ds_read_b64_tr_b16 %s, v%d offset:%d' % (ar(FB[fs] + t * 4 + s * 2, 2), W_BR + tt, (16 * ks + 4 * s) * 256 + j * 16384))
        return o

    def mfmas(fs, side, dq):
        nside = 0
        for t in range(nt):
            rem = 2 * (nt - 1 - t) + nside
            g.e('s_waitcnt lgkmcnt(%d)' % min(rem, 15))
            acc = vr(W_ACC + t * 16, 16)
            a, b = ar(FA[fs], 4), ar(FB[fs] + t * 4, 4)
            if swap[t >> 2]:
                a, b = b, a
            g.e('v_mfma_f32_32x32x16_bf16 %s, %s, %s, %s' % (acc, a, b, acc))
            k = 3 if t == 0 else 2
            for _ in range(k):
                if side:
                    g.e(side.pop(0))
                    nside += 1
            if dq and (t & 1) == 0:
                for s_ in dq.pop(0):
                    g.e(s_)

    for t in range(nt * 8):
        g.e('v_mov_b64 %s, 0' % vr(W_ACC + 2 * t, 2))
    for c in range(NSTG - 1):
        g.e('s_mov_b32 %s, %d' % (sr(S_KC), c))
        for grp in dma(c):
            for s_ in grp:
                g.e(s_)
    if warm is not None:
        strideA = warm
        t = W_T
        g.e('v_lshrrev_b32 v%d, 3, v%d' % (t, W_LANE))
        g.e('v_mul_u32_u24 v%d, %d, v%d' % (t, strideA, t))
        g.e('v_and_b32 v%d, 7, v%d' % (t + 1, W_LANE))
        g.e('v_lshl_add_u32 v%d, v%d, 7, v%d' % (t, t + 1, t))
        for i in range(4):
            g.e('s_add_u32 %s, %s, %d' % (sr(S_X0), sr(S_AOFF), 8 * i * strideA))
            g.e('buffer_load_dword v%d, v%d, %s, %s offen' % (t + 2, t, sr(srdA, 4), sr(S_X0)))
        g.e('v_lshrrev_b32 v%d, 1, v0' % t)
        g.e('v_mul_u32_u24 v%d, %d, v%d' % (t, strideB, t))
        g.e('v_and_b32 v%d, 1, v0' % (t + 1))
        g.e('v_lshl_add_u32 v%d, v%d, 7, v%d' % (t, t + 1, t))
        for i in range(4):
            for j in range(nb):
                g.e('s_add_u32 %s, %s, %d' % (sr(S_X0), sr(S_BOFF + j), 128 * i * strideB))
                g.e('buffer_load_dword v%d, v%d, %s, %s offen' % (t + 2, t, sr(srdB[j], 4), sr(S_X0)))
    g.e('s_mov_b32 %s, %d' % (sr(S_INIT + 2), NSTG - 2))
    loop = 'L_gl_%s' % name
    first = True
    if warm is not None:
        g.e('s_waitcnt vmcnt(%d)' % (4 + 4 * nb))
        g.e('s_branch %s_in' % loop)
    g.label(loop)
    for st in range(NSTG):
        g.e('s_waitcnt vmcnt(%d)' % ((NSTG - 2) * nd))
        if st == 0:
            g.label(loop + '_in')
        g.e('s_barrier')
        for s_ in reads(0, 0):
            g.e(s_)
        g.e('s_add_u32 %s, %s, 1' % (sr(S_INIT + 2), sr(S_INIT + 2)))
        g.e('s_min_u32 %s, %s, %d' % (sr(S_KC), sr(S_INIT + 2), nchunks - 1))
        dq = dma((st + NSTG - 1) % NSTG)
        for ks in range(4):
            mfmas(ks & 1, reads(ks + 1, (ks + 1) & 1) if ks < 3 else [], dq)
        assert not dq
        d = STG if st < NSTG - 1 else -(NSTG - 1) * STG
        for i in range(4):
            g.e('v_add_u32 v%d, 0x%x, v%d' % (W_AR + i, d & 0xffffffff, W_AR + i))
            g.e('v_add_u32 v%d, 0x%x, v%d' % (W_BR + i, d & 0xffffffff, W_BR + i))
    g.e('s_cmp_lt_u32 %s, %d' % (sr(S_INIT + 2), nchunks + NSTG - 2))
    g.e('s_cbranch_scc1 %s' % loop)
    g.e('s_waitcnt vmcnt(0)')
    g.nop(16)


def epi_ct_store(g, t, voff, srd, soff, ioff_fn, sc1):
    a = W_ACC + t * 16
    for gq in range(4):
        g.e('v_cvt_pk_bf16_f32 v%d, v%d, v%d' % (a + 4 * gq, a + 4 * gq, a + 4 * gq + 1))
        g.e('v_cvt_pk_bf16_f32 v%d, v%d, v%d' % (a + 4 * gq + 1, a + 4 * gq + 2, a + 4 * gq + 3))
    for gq in range(4):
        g.e('buffer_store_dwordx2 %s, v%d, %s, %s offen offset:%d%s' % (vr(a + 4 * gq, 2), voff, sr(srd, 4), soff, ioff_fn(gq), ' sc1' if sc1 else ''))


def epi_ct_store16(g, t, voff16, srd, soff, ioff_fn):
    a = W_ACC + t * 16
    for gq in range(4):
        g.e('v_cvt_pk_bf16_f32 v%d, v%d, v%d' % (a + 2 * gq, a + 4 * gq, a + 4 * gq + 1))
        g.e('v_cvt_pk_bf16_f32 v%d, v%d, v%d' % (a + 2 * gq + 1, a + 4 * gq + 2, a + 4 * gq + 3))
    g.nop(2)
    for j in range(2):
        g.e('v_permlane32_swap_b32 v%d, v%d' % (a + 4 * j, a + 4 * j + 2))
        g.e('v_permlane32_swap_b32 v%d, v%d' % (a + 4 * j + 1, a + 4 * j + 3))
    g.nop(1)
    for j in range(2):
        g.e('buffer_store_dwordx4 %s, v%d, %s, %s offen offset:%d sc1' % (vr(a + 4 * j, 4), voff16, sr(srd, 4), soff, ioff_fn(2 * j)))


def epi_v_store(g, t, voff, soff, ioff_fn):
    a = W_ACC + t * 16
    for q in range(2):
        d = W_T + 4 * q
        g.e('v_cvt_pk_bf16_f32 v%d, v%d, v%d' % (d, a + 4 * q, a + 4 * q + 1))
        g.e('v_cvt_pk_bf16_f32 v%d, v%d, v%d' % (d + 1, a + 4 * q + 2, a + 4 * q + 3))
        g.e('v_cvt_pk_bf16_f32 v%d, v%d, v%d' % (d + 2, a + 8 + 4 * q, a + 8 + 4 * q + 1))
        g.e('v_cvt_pk_bf16_f32 v%d, v%d, v%d' % (d + 3, a + 8 + 4 * q + 2, a + 8 + 4 * q + 3))
        for i in range(4):
            g.e('v_mov_b32 v%d, v%d' % (a + 4 * q + i if False else a + 8 * q + i, d + i)) if False else None
    for q in range(2):
        g.e('buffer_store_dwordx4 %s, v%d, %s, %s offen offset:%d sc1' % (vr(W_T + 4 * q, 4), voff, sr(SRD_WS, 4), soff, ioff_fn(q)))
    g.nop(2)


def task_bproj(g):
    g.label('L_t_bproj')
    g.e('s_lshr_b32 %s, %s, 5' % (sr(S_R), sr(S_TASK)))
    g.e('s_and_b32 %s, %s, 31' % (sr(S_H), sr(S_TASK)))
    lg_ = g.newlabel('L_gate')
    g.e('s_cmp_lt_u32 %s, %d' % (sr(S_R), GATE))
    g.e('s_cbranch_scc1 %s' % lg_)
    l = wave0_begin(g)
    g.e('s_lshl_b32 %s, %s, 7' % (sr(S_X0), sr(S_H)))
    g.e('s_add_u32 %s, %s, 0x%x' % (sr(S_X0), sr(S_X0), WS_FLAGS + F1_OFF))
    wait_ge(g, None, '1', 8)
    g.label(l)
    g.e('s_barrier')
    g.label(lg_)
    make_srd(g, SRD_A, S_BX, 2 << 20)
    make_srd(g, SRD_B0, S_WQ, 4 << 20)
    make_srd(g, SRD_B1, S_WK, 4 << 20)
    make_srd(g, SRD_B2, S_WV, 4 << 20)
    gemm_setup(g, 1024, 8192)
    g.e('s_lshl_b32 %s, %s, 17' % (sr(S_AOFF), sr(S_R)))
    g.e('s_lshl_b32 %s, %s, 15' % (sr(S_X0), sr(S_WAVE)))
    g.e('s_add_u32 %s, %s, %s' % (sr(S_AOFF), sr(S_AOFF), sr(S_X0)))
    for j in range(3):
        g.e('s_lshl_b32 %s, %s, 8' % (sr(S_BOFF + j), sr(S_H)))
    gemm_core(g, 'bp', 3, 8, 8192, SRD_A, [SRD_B0, SRD_B1, SRD_B2], [1, 1, 0])
    t = W_T + 8
    L = W_LANE
    g.e('s_lshl_b32 %s, %s, 2' % (sr(S_X0), sr(S_R)))
    g.e('s_add_u32 %s, %s, %s' % (sr(S_X0), sr(S_X0), sr(S_WAVE)))
    g.e('s_lshl_b32 %s, %s, 5' % (sr(S_X0), sr(S_X0)))
    g.e('s_add_u32 %s, %s, %s' % (sr(S_X0), sr(S_X0), sr(S_H)))
    g.e('s_lshl_b32 %s, %s, 13' % (sr(S_X0), sr(S_X0)))
    g.e('s_add_u32 %s, %s, 0x%x' % (sr(S_X1), sr(S_X0), WS_QX))
    g.e('s_add_u32 %s, %s, 0x%x' % (sr(S_X2), sr(S_X0), WS_KX))
    g.e('s_add_u32 %s, %s, 0x%x' % (sr(S_X3), sr(S_X0), WS_VX))
    g.e('v_bfe_u32 v%d, v%d, 4, 1' % (t, L))
    g.e('v_lshlrev_b32 v%d, 12, v%d' % (t, t))
    g.e('v_and_b32 v%d, 15, v%d' % (t + 1, L))
    g.e('v_lshl_add_u32 v%d, v%d, 4, v%d' % (t, t + 1, t))
    g.e('v_lshrrev_b32 v%d, 5, v%d' % (t + 2, L))
    g.e('v_lshl_add_u32 v%d, v%d, 8, v%d' % (t, t + 2, t))
    g.e('v_bfe_u32 v%d, v%d, 4, 1' % (t + 3, L))
    g.e('v_lshl_add_u32 v%d, v%d, 2, v%d' % (t + 3, t + 3, t + 2))
    g.e('v_lshlrev_b32 v%d, 8, v%d' % (t + 3, t + 3))
    g.e('v_lshl_add_u32 v%d, v%d, 4, v%d' % (t + 3, t + 1, t + 3))
    for tt in range(4):
        epi_ct_store16(g, tt, t, SRD_WS, sr(S_X1), lambda gq, tt=tt: tt * 1024 + gq * 256)
        epi_ct_store16(g, 4 + tt, t, SRD_WS, sr(S_X2), lambda gq, tt=tt: tt * 1024 + gq * 256)
    for tt in range(4):
        if tt == 2:
            g.e('s_add_u32 %s, %s, 4096' % (sr(S_X3), sr(S_X3)))
        epi_v_store(g, 8 + tt, t + 3, sr(S_X3), lambda q, tt=tt: (tt & 1) * 2048 + q * 512)
    g.e('s_lshl_b32 %s, %s, 7' % (sr(S_X0), sr(S_H)))
    g.e('s_lshl_b32 %s, %s, 2' % (sr(S_X1), sr(S_R)))
    g.e('s_add_u32 %s, %s, %s' % (sr(S_X0), sr(S_X0), sr(S_X1)))
    g.e('s_add_u32 %s, %s, 0x%x' % (sr(S_X0), sr(S_X0), WS_FLAGS + F1_OFF))
    signal_add(g)
    g.e('s_branch L_next')


def task_aproj(g):
    g.label('L_t_aproj')
    g.e('s_sub_u32 %s, %s, %d' % (sr(S_X0), sr(S_TASK), T_AP))
    g.e('s_lshr_b32 %s, %s, 2' % (sr(S_R), sr(S_X0)))
    g.e('s_and_b32 %s, %s, 3' % (sr(S_H), sr(S_X0)))
    l = wave0_begin(g)
    g.e('s_mov_b32 %s, 0x%x' % (sr(S_X0), WS_FLAGS + F1_OFF + 4 * 128))
    wait_ge(g, None, '1', 8)
    g.label(l)
    g.e('s_barrier')
    make_srd(g, SRD_A, S_AX, 2 << 20)
    make_srd(g, SRD_B0, S_AWQKV, 512 * 3072)
    gemm_setup(g, 1024, 3072)
    g.e('s_lshl_b32 %s, %s, 17' % (sr(S_AOFF), sr(S_R)))
    g.e('s_lshl_b32 %s, %s, 15' % (sr(S_X0), sr(S_WAVE)))
    g.e('s_add_u32 %s, %s, %s' % (sr(S_AOFF), sr(S_AOFF), sr(S_X0)))
    g.e('s_lshl_b32 %s, %s, 8' % (sr(S_BOFF), sr(S_H)))
    g.e('s_add_u32 %s, %s, 1024' % (sr(S_BOFF + 1), sr(S_BOFF)))
    g.e('s_add_u32 %s, %s, 2048' % (sr(S_BOFF + 2), sr(S_BOFF)))
    gemm_core(g, 'ap', 3, 8, 3072, SRD_A, [SRD_B0, SRD_B0, SRD_B0], [1, 1, 0])
    t = W_T + 8
    L = W_LANE
    g.e('v_and_b32 v%d, 31, v%d' % (t, L))
    g.e('v_lshlrev_b32 v%d, 5, v%d' % (t, t))
    g.e('v_lshrrev_b32 v%d, 5, v%d' % (t + 2, L))
    g.e('v_lshl_add_u32 v%d, v%d, 3, v%d' % (t, t + 2, t))
    g.e('v_add_u32 v%d, 65536, v%d' % (t + 4, t))
    g.e('s_lshl_b32 %s, %s, 2' % (sr(S_X0), sr(S_R)))
    g.e('s_add_u32 %s, %s, %s' % (sr(S_X0), sr(S_X0), sr(S_WAVE)))
    g.e('s_lshl_b32 %s, %s, 10' % (sr(S_X0), sr(S_X0)))
    g.e('s_lshl_b32 %s, %s, 19' % (sr(S_X1), sr(S_H)))
    g.e('s_add_u32 %s, %s, %s' % (sr(S_X0), sr(S_X0), sr(S_X1)))
    for tt in range(4):
        for blk, base in ((0, WS_QA), (1, WS_KA)):
            a = W_ACC + (4 * blk + tt) * 16
            g.e('s_add_u32 %s, %s, 0x%x' % (sr(S_X2), sr(S_X0), base + tt * 131072))
            for gq in range(4):
                g.e('v_cvt_pk_bf16_f32 v%d, v%d, v%d' % (a + 4 * gq, a + 4 * gq, a + 4 * gq + 1))
                g.e('v_cvt_pk_bf16_f32 v%d, v%d, v%d' % (a + 4 * gq + 1, a + 4 * gq + 2, a + 4 * gq + 3))
            for gq in range(4):
                g.e('buffer_store_dwordx2 %s, v%d, %s, %s offen offset:%d sc1' % (vr(a + 4 * gq, 2), t + 4 * (gq >> 1), sr(SRD_WS, 4), sr(S_X2), (gq & 1) * 16))
    g.e('v_bfe_u32 v%d, v%d, 4, 1' % (t + 3, L))
    g.e('v_lshlrev_b32 v%d, 16, v%d' % (t + 3, t + 3))
    g.e('v_lshl_add_u32 v%d, v%d, 8, v%d' % (t + 3, t + 2, t + 3))
    g.e('v_and_b32 v%d, 15, v%d' % (t + 1, L))
    g.e('v_lshl_add_u32 v%d, v%d, 4, v%d' % (t + 3, t + 1, t + 3))
    for tt in range(4):
        g.e('s_add_u32 %s, %s, 0x%x' % (sr(S_X3), sr(S_X0), WS_VA + tt * 131072))
        epi_v_store(g, 8 + tt, t + 3, sr(S_X3), lambda q: q * 512)
    g.e('s_lshl_b32 %s, %s, 7' % (sr(S_X0), sr(S_R)))
    g.e('s_add_u32 %s, %s, 0x%x' % (sr(S_X0), sr(S_X0), WS_FLAGS + CA_OFF))
    signal_add(g)
    g.e('s_branch L_next')


def task_out(g, name, label, a_base, a_stride, nchunks, w_ptr, w_bytes, out_col, cnt_off, cnt_target):
    g.label(label)
    l = wave0_begin(g)
    g.e('s_lshl_b32 %s, %s, 7' % (sr(S_X0), sr(S_R)))
    g.e('s_add_u32 %s, %s, 0x%x' % (sr(S_X0), sr(S_X0), WS_FLAGS + cnt_off))
    wait_ge(g, None, str(cnt_target), 16)
    g.label(l)
    g.e('s_barrier')
    make_srd(g, SRD_B0, w_ptr, w_bytes)
    make_srd(g, SRD_OUT, S_OUT, 2048 * 2048)
    gemm_setup(g, a_stride, 1024)
    g.e('s_lshl_b32 %s, %s, 2' % (sr(S_X0), sr(S_R)))
    g.e('s_add_u32 %s, %s, %s' % (sr(S_X0), sr(S_X0), sr(S_WAVE)))
    g.e('s_mul_i32 %s, %s, %d' % (sr(S_AOFF), sr(S_X0), 32 * a_stride))
    g.e('s_add_u32 %s, %s, 0x%x' % (sr(S_AOFF), sr(S_AOFF), a_base))
    g.e('s_lshl_b32 %s, %s, 8' % (sr(S_BOFF), sr(S_H)))
    gemm_core(g, name, 1, nchunks, 1024, SRD_WS, [SRD_B0], [1], asc1=True)
    t = W_T + 8
    L = W_LANE
    g.e('v_and_b32 v%d, 31, v%d' % (t, L))
    g.e('v_lshlrev_b32 v%d, 11, v%d' % (t, t))
    g.e('v_lshrrev_b32 v%d, 5, v%d' % (t + 2, L))
    g.e('v_lshl_add_u32 v%d, v%d, 3, v%d' % (t, t + 2, t))
    g.e('s_lshl_b32 %s, %s, 2' % (sr(S_X0), sr(S_R)))
    g.e('s_add_u32 %s, %s, %s' % (sr(S_X0), sr(S_X0), sr(S_WAVE)))
    g.e('s_lshl_b32 %s, %s, 16' % (sr(S_X0), sr(S_X0)))
    g.e('s_lshl_b32 %s, %s, 8' % (sr(S_X1), sr(S_H)))
    g.e('s_add_u32 %s, %s, %s' % (sr(S_X0), sr(S_X0), sr(S_X1)))
    g.e('s_add_u32 %s, %s, %d' % (sr(S_X0), sr(S_X0), out_col * 2))
    for tt in range(4):
        epi_ct_store(g, tt, t, SRD_OUT, sr(S_X0), lambda gq, tt=tt: tt * 64 + gq * 16, False)
    g.e('s_branch L_next')


def softmax_vals(g, S, C, MX, l2e_sgpr, xl, n_round2_scale=None):
    n = len(S)
    MT = MX + 1

    def rnd():
        for i in range(n // 2):
            c = C[i % len(C)]
            g.e('v_cvt_pk_bf16_f32 v%d, v%d, v%d' % (c, S[2 * i], S[2 * i + 1]))
            g.e('v_lshlrev_b32 v%d, 16, v%d' % (S[2 * i], c))
            g.e('v_and_b32 v%d, 0xffff0000, v%d' % (S[2 * i + 1], c))
    rnd()
    if n_round2_scale is not None:
        for i in range(n // 2):
            g.e('v_pk_mul_f32 %s, %s, %s' % (vr(S[2 * i], 2), vr(S[2 * i], 2), sr(n_round2_scale, 2)))
        rnd()


def softmax_rest(g, S, C, MX, l2e_sgpr, xl):
    n = len(S)
    MT = MX + 1
    g.e('v_max_f32 v%d, v%d, v%d' % (MX, S[0], S[1]))
    for i in range(2, n, 2):
        g.e('v_max3_f32 v%d, v%d, v%d, v%d' % (MX, MX, S[i], S[i + 1]))
    for sw in xl:
        g.e('v_mov_b32 v%d, v%d' % (MT, MX))
        g.nop(2)
        g.e('%s v%d, v%d' % (sw, MT, MX))
        g.nop(1)
        g.e('v_max_f32 v%d, v%d, v%d' % (MX, MX, MT))
    g.e('v_mov_b32 v%d, v%d' % (MT, MX))
    for i in range(n // 2):
        g.e('v_pk_add_f32 %s, %s, %s neg_lo:[0,1] neg_hi:[0,1]' % (vr(S[2 * i], 2), vr(S[2 * i], 2), vr(MX, 2)))
        g.e('v_pk_mul_f32 %s, %s, %s' % (vr(S[2 * i], 2), vr(S[2 * i], 2), sr(l2e_sgpr, 2)))
    for i in range(n):
        g.e('v_exp_f32 v%d, v%d' % (S[i], S[i]))
    g.nop(1)
    g.e('v_pk_add_f32 %s, %s, %s' % (vr(C[0], 2), vr(S[0], 2), vr(S[2], 2)))
    for i in range(2, n // 2):
        g.e('v_pk_add_f32 %s, %s, %s' % (vr(C[0], 2), vr(C[0], 2), vr(S[2 * i], 2)))
    g.e('v_add_f32 v%d, v%d, v%d' % (MX, C[0], C[0] + 1))
    for sw in xl:
        g.e('v_mov_b32 v%d, v%d' % (MT, MX))
        g.nop(2)
        g.e('%s v%d, v%d' % (sw, MT, MX))
        g.nop(1)
        g.e('v_add_f32 v%d, v%d, v%d' % (MX, MX, MT))
    g.e('v_rcp_f32 v%d, v%d' % (MX, MX))
    g.nop(1)
    g.e('v_mov_b32 v%d, v%d' % (MT, MX))
    for i in range(n // 2):
        g.e('v_pk_mul_f32 %s, %s, %s' % (vr(S[2 * i], 2), vr(S[2 * i], 2), vr(MX, 2)))


def task_aattn(g):
    g.label('L_t_aattn')
    g.e('s_sub_u32 %s, %s, %d' % (sr(S_X0), sr(S_TASK), T_AA))
    g.e('s_lshr_b32 %s, %s, 2' % (sr(S_AOFF), sr(S_X0)))
    g.e('s_and_b32 %s, %s, 3' % (sr(S_H), sr(S_X0)))
    g.e('s_lshr_b32 %s, %s, 1' % (sr(S_R), sr(S_AOFF)))
    l = wave0_begin(g)
    for back in range(3):
        g.e('s_sub_u32 %s, %s, %d' % (sr(S_X0), sr(S_R), back))
        g.e('s_max_i32 %s, %s, 0' % (sr(S_X0), sr(S_X0)))
        g.e('s_lshl_b32 %s, %s, 7' % (sr(S_X0), sr(S_X0)))
        g.e('s_add_u32 %s, %s, 0x%x' % (sr(S_X0), sr(S_X0), WS_FLAGS + CA_OFF))
        wait_ge(g, None, '4', 8)
    g.label(l)
    g.e('s_barrier')
    L = W_LANE
    S_QT, S_A, S_HH = S_BOFF, S_BOFF + 1, S_BOFF + 2
    g.e('s_lshl_b32 %s, %s, 2' % (sr(S_QT), sr(S_AOFF)))
    g.e('s_add_u32 %s, %s, %s' % (sr(S_QT), sr(S_QT), sr(S_WAVE)))
    g.e('s_lshr_b32 %s, %s, 1' % (sr(S_A), sr(S_QT)))
    VQK, VL16, VD, VO = 2, 3, 4, 5
    g.e('v_and_b32 v6, 15, v%d' % L)
    g.e('v_lshrrev_b32 v7, 4, v%d' % L)
    g.e('v_lshlrev_b32 v%d, 5, v6' % VQK)
    g.e('v_lshl_add_u32 v%d, v7, 3, v%d' % (VQK, VQK))
    g.e('v_lshlrev_b32 v%d, 4, v%d' % (VL16, L))
    g.e('s_and_b32 %s, %s, 1' % (sr(S_X0), sr(S_QT)))
    g.e('s_lshl_b32 %s, %s, 4' % (sr(S_X0), sr(S_X0)))
    g.e('s_add_u32 %s, %s, 256' % (sr(S_X0), sr(S_X0)))
    g.e('v_add_u32 v%d, %s, v6' % (VD, sr(S_X0)))
    g.e('v_lshlrev_b32 v8, 2, v7')
    g.e('v_sub_u32 v%d, v%d, v8' % (VD, VD))
    g.e('v_lshlrev_b32 v%d, 10, v6' % VO)
    g.e('v_lshl_add_u32 v%d, v7, 3, v%d' % (VO, VO))
    g.e('s_mov_b32 %s, 0x3eb8aa3b' % sr(S_L2E))
    g.e('s_mov_b32 %s, 0x3eb8aa3b' % sr(S_L2E + 1))
    g.e('s_lshl_b32 %s, %s, 3' % (sr(S_HH), sr(S_H)))
    g.e('s_mov_b32 %s, 0' % sr(S_KC))
    QF, KF, VF, SC, CB, PF, OC = 10, 12, 48, 84, 156, 192, 228
    NEG = 232
    lp = g.newlabel('L_aa')
    g.label(lp)
    g.e('s_lshl_b32 %s, %s, 16' % (sr(S_X0), sr(S_HH)))
    g.e('s_lshl_b32 %s, %s, 9' % (sr(S_X1), sr(S_QT)))
    g.e('s_add_u32 %s, %s, %s' % (sr(S_X1), sr(S_X1), sr(S_X0)))
    g.e('s_add_u32 %s, %s, 0x%x' % (sr(S_X1), sr(S_X1), WS_QA))
    g.e('buffer_load_dwordx2 %s, v%d, %s, %s offen sc1' % (vr(QF, 2), VQK, sr(SRD_WS, 4), sr(S_X1)))
    for b in range(9):
        g.e('s_add_i32 %s, %s, %d' % (sr(S_X1), sr(S_A), b - 8))
        g.e('s_max_i32 %s, %s, 0' % (sr(S_X1), sr(S_X1)))
        g.e('s_lshl_b32 %s, %s, 10' % (sr(S_X1), sr(S_X1)))
        g.e('s_add_u32 %s, %s, %s' % (sr(S_X1), sr(S_X1), sr(S_X0)))
        g.e('s_add_u32 %s, %s, 0x%x' % (sr(S_X2), sr(S_X1), WS_KA))
        g.e('s_add_u32 %s, %s, 0x%x' % (sr(S_X3), sr(S_X1), WS_VA))
        g.e('buffer_load_dwordx2 %s, v%d, %s, %s offen sc1' % (vr(KF + 4 * b, 2), VQK, sr(SRD_WS, 4), sr(S_X2)))
        g.e('buffer_load_dwordx2 %s, v%d, %s, %s offen offset:512 sc1' % (vr(KF + 4 * b + 2, 2), VQK, sr(SRD_WS, 4), sr(S_X2)))
        g.e('buffer_load_dwordx4 %s, v%d, %s, %s offen sc1' % (vr(VF + 4 * b, 4), VL16, sr(SRD_WS, 4), sr(S_X3)))
    for b in range(9):
        g.e('s_add_i32 %s, %s, %d' % (sr(S_X1), sr(S_A), b - 8))
        g.e('s_cmp_lt_i32 %s, 0' % sr(S_X1))
        g.e('s_cselect_b32 %s, 0xf149f2ca, 0' % sr(S_X1))
        for i in range(4):
            g.e('v_mov_b32 v%d, %s' % (CB + 4 * b + i, sr(S_X1)))
    g.e('v_mov_b32 v%d, 0xf149f2ca' % NEG)
    g.e('s_waitcnt vmcnt(0)')
    for b in range(9):
        for T in range(2):
            g.e('v_mfma_f32_16x16x16_bf16 %s, %s, %s, %s' % (vr(SC + 8 * b + 4 * T, 4), vr(KF + 4 * b + 2 * T, 2), vr(QF, 2), vr(CB + 4 * b, 4)))
    g.nop(8)
    S = [SC + i for i in range(72)]
    C = [KF + i for i in range(8)]
    softmax_vals(g, S, C, OC, None, None)
    for b in (0, 8):
        for T in range(2):
            for r in range(4):
                g.e('v_subrev_u32 v%d, %d, v%d' % (OC, 32 * b + 16 * T + r, VD))
                g.e('v_cmp_gt_u32 vcc, 0x100, v%d' % OC)
                g.nop(2)
                g.e('v_cndmask_b32 v%d, v%d, v%d, vcc' % (SC + 8 * b + 4 * T + r, NEG, SC + 8 * b + 4 * T + r))
    softmax_rest(g, S, C, OC, S_L2E, ['v_permlane16_swap_b32', 'v_permlane32_swap_b32'])
    for i in range(36):
        g.e('v_cvt_pk_bf16_f32 v%d, v%d, v%d' % (PF + i, S[2 * i], S[2 * i + 1]))
    g.nop(2)
    for b in range(9):
        g.e('v_mfma_f32_16x16x32_bf16 %s, %s, %s, %s' % (vr(OC, 4), vr(VF + 4 * b, 4), vr(PF + 4 * b, 4), '0' if b == 0 else vr(OC, 4)))
    g.nop(8)
    g.e('v_cvt_pk_bf16_f32 v%d, v%d, v%d' % (OC, OC, OC + 1))
    g.e('v_cvt_pk_bf16_f32 v%d, v%d, v%d' % (OC + 1, OC + 2, OC + 3))
    g.e('s_lshl_b32 %s, %s, 14' % (sr(S_X1), sr(S_QT)))
    g.e('s_lshl_b32 %s, %s, 5' % (sr(S_X2), sr(S_HH)))
    g.e('s_add_u32 %s, %s, %s' % (sr(S_X1), sr(S_X1), sr(S_X2)))
    g.e('s_add_u32 %s, %s, 0x%x' % (sr(S_X1), sr(S_X1), WS_OA))
    g.e('buffer_store_dwordx2 %s, v%d, %s, %s offen sc1' % (vr(OC, 2), VO, sr(SRD_WS, 4), sr(S_X1)))
    g.e('s_add_u32 %s, %s, 1' % (sr(S_HH), sr(S_HH)))
    g.e('s_add_u32 %s, %s, 1' % (sr(S_KC), sr(S_KC)))
    g.e('s_cmp_lt_u32 %s, 8' % sr(S_KC))
    g.nop(2)
    g.e('s_cbranch_scc1 %s' % lp)
    g.e('s_lshl_b32 %s, %s, 7' % (sr(S_X0), sr(S_R)))
    g.e('s_add_u32 %s, %s, 0x%x' % (sr(S_X0), sr(S_X0), WS_FLAGS + CB_OFF))
    signal_add(g)
    g.e('s_branch L_next_regs')


def task_battn(g):
    g.label('L_t_battn')
    S_SEGI, S_HD = S_AOFF, S_BOFF
    g.e('s_lshl_b32 %s, %s, 2' % (sr(S_HD), sr(S_H)))
    g.e('s_add_u32 %s, %s, %s' % (sr(S_HD), sr(S_HD), sr(S_WAVE)))
    g.e('s_lshl_b32 %s, %s, 7' % (sr(S_X0), sr(S_HD)))
    g.e('s_lshl_b32 %s, %s, 2' % (sr(S_X1), sr(S_R)))
    g.e('s_add_u32 %s, %s, %s' % (sr(S_X0), sr(S_X0), sr(S_X1)))
    g.e('s_add_u32 %s, %s, 0x%x' % (sr(S_X0), sr(S_X0), WS_FLAGS + F1_OFF))
    wait_ge(g, None, '1', 16)
    L = W_LANE
    VK, VKM, VV, VVM, VO, VD = 2, 3, 4, 5, 6, 7
    g.e('v_bfe_u32 v8, v%d, 4, 1' % L)
    g.e('v_lshrrev_b32 v9, 5, v%d' % L)
    g.e('v_and_b32 v10, 15, v%d' % L)
    g.e('v_lshlrev_b32 v%d, 12, v8' % VK)
    g.e('v_lshl_add_u32 v%d, v9, 8, v%d' % (VK, VK))
    g.e('v_lshl_add_u32 v%d, v10, 4, v%d' % (VK, VK))
    g.e('v_and_b32 v11, 7, v%d' % L)
    g.e('v_lshlrev_b32 v%d, 7, v9' % VKM)
    g.e('v_lshl_add_u32 v%d, v11, 4, v%d' % (VKM, VKM))
    g.e('v_lshlrev_b32 v%d, 10, v8' % VV)
    g.e('v_lshl_add_u32 v%d, v9, 8, v%d' % (VV, VV))
    g.e('v_lshl_add_u32 v%d, v10, 4, v%d' % (VV, VV))
    g.e('v_and_b32 v11, 31, v%d' % L)
    g.e('v_lshlrev_b32 v%d, 4, v11' % VVM)
    g.e('v_lshl_add_u32 v%d, v9, 3, v%d' % (VVM, VVM))
    g.e('v_lshlrev_b32 v%d, 13, v11' % VO)
    g.e('v_lshl_add_u32 v%d, v9, 4, v%d' % (VO, VO))
    g.e('v_lshlrev_b32 v12, 2, v9')
    g.e('v_sub_u32 v%d, v11, v12' % VD)
    g.e('s_lshl_b32 %s, %s, 5' % (sr(S_X0), sr(S_SEGI)))
    g.e('s_add_u32 %s, %s, %s' % (sr(S_X0), sr(S_X0), sr(S_HD)))
    g.e('s_lshl_b32 %s, %s, 13' % (sr(S_X1), sr(S_X0)))
    g.e('s_lshl_b32 %s, %s, 12' % (sr(S_X0), sr(S_X0)))
    QF, KF, KM, VF, VMF = 16, 48, 80, 112, 144
    SX, SMm, PF, OC = 160, 176, 192, 208
    g.e('s_add_u32 %s, %s, 0x%x' % (sr(S_X2), sr(S_X1), WS_QX))
    g.e('s_add_u32 %s, %s, 0x%x' % (sr(S_X3), sr(S_X1), WS_KX))
    for ks in range(8):
        o = (ks >> 1) * 1024 + (ks & 1) * 512
        g.e('buffer_load_dwordx4 %s, v%d, %s, %s offen offset:%d sc1' % (vr(QF + 4 * ks, 4), VK, sr(SRD_WS, 4), sr(S_X2), o))
        g.e('buffer_load_dwordx4 %s, v%d, %s, %s offen offset:%d sc1' % (vr(KF + 4 * ks, 4), VK, sr(SRD_WS, 4), sr(S_X3), o))
    g.e('s_add_u32 %s, %s, 0x%x' % (sr(S_X2), sr(S_X1), WS_VX))
    g.e('s_add_u32 %s, %s, 4096' % (sr(S_X3), sr(S_X2)))
    for ft in range(4):
        so = sr(S_X2) if ft < 2 else sr(S_X3)
        for ks in range(2):
            for e in range(2):
                g.e('buffer_load_dwordx2 %s, v%d, %s, %s offen offset:%d sc1' % (vr(VF + 8 * ft + 4 * ks + 2 * e, 2), VV, sr(SRD_WS, 4), so, (ft & 1) * 2048 + e * 512 + ks * 8))
    l = g.newlabel('L_wait')
    g.e('s_lshl_b32 %s, %s, 7' % (sr(S_BOFF + 1), sr(S_HD)))
    g.e('s_add_u32 %s, %s, 0x%x' % (sr(S_BOFF + 1), sr(S_BOFF + 1), WS_FLAGS + F2_OFF))
    g.e('v_mov_b32 v%d, 0' % (OC + 4))
    g.label(l)
    g.guard()
    g.e('buffer_load_dwordx4 %s, v%d, %s, %s offen sc1' % (vr(OC, 4), OC + 4, sr(SRD_WS, 4), sr(S_BOFF + 1)))
    g.e('s_waitcnt vmcnt(0)')
    g.e('v_min3_u32 v%d, v%d, v%d, v%d' % (OC, OC, OC + 1, OC + 2))
    g.e('v_min_u32 v%d, v%d, v%d' % (OC, OC, OC + 3))
    g.nop(1)
    g.e('v_readfirstlane_b32 %s, v%d' % (sr(S_X1), OC))
    g.nop(3)
    g.e('s_cmp_gt_u32 %s, %s' % (sr(S_X1), sr(S_SEGI)))
    d = g.newlabel('L_waitd')
    g.e('s_cbranch_scc1 %s' % d)
    g.e('s_sleep 4')
    g.e('s_branch %s' % l)
    g.label(d)
    g.e('s_add_u32 %s, %s, 0x%x' % (sr(S_X2), sr(S_X0), WS_KM))
    for ks in range(8):
        g.e('buffer_load_dwordx4 %s, v%d, %s, %s offen offset:%d sc1' % (vr(KM + 4 * ks, 4), VKM, sr(SRD_WS, 4), sr(S_X2), ks * 256))
    g.e('s_add_u32 %s, %s, 0x%x' % (sr(S_X2), sr(S_X0), WS_KM + 2048))
    for ft in range(4):
        g.e('buffer_load_dwordx2 %s, v%d, %s, %s offen offset:%d sc1' % (vr(VMF + 4 * ft, 2), VVM, sr(SRD_WS, 4), sr(S_X2), ft * 512))
        g.e('v_mov_b64 %s, 0' % vr(VMF + 4 * ft + 2, 2))
    g.e('s_mov_b32 %s, 0x3db504f3' % sr(S_SC))
    g.e('s_mov_b32 %s, 0x3db504f3' % sr(S_SC + 1))
    g.e('s_mov_b32 %s, 0x3fb8aa3b' % sr(S_L2E))
    g.e('s_mov_b32 %s, 0x3fb8aa3b' % sr(S_L2E + 1))
    for ks in range(8):
        g.e('v_mfma_f32_32x32x16_bf16 %s, %s, %s, %s' % (vr(SX, 16), vr(KF + 4 * ks, 4), vr(QF + 4 * ks, 4), '0' if ks == 0 else vr(SX, 16)))
    g.e('s_waitcnt vmcnt(4)')
    for ks in range(8):
        g.e('v_mfma_f32_32x32x16_bf16 %s, %s, %s, %s' % (vr(SMm, 16), vr(KM + 4 * ks, 4), vr(QF + 4 * ks, 4), '0' if ks == 0 else vr(SMm, 16)))
    g.nop(16)
    S = [SX + i for i in range(16)] + [SMm + i for i in range(4)]
    C = [QF + i for i in range(8)]
    MX = QF + 8
    softmax_vals(g, S, C, MX, None, None, S_SC)
    g.e('v_mov_b32 v%d, 0xf149f2ca' % (QF + 10))
    for r in range(16):
        key = 8 * (r >> 2) + (r & 3)
        g.e('v_cmp_le_i32 vcc, %d, v%d' % (key, VD))
        g.nop(2)
        g.e('v_cndmask_b32 v%d, v%d, v%d, vcc' % (SX + r, QF + 10, SX + r))
    softmax_rest(g, S, C, MX, S_L2E, ['v_permlane32_swap_b32'])
    for i in range(10):
        g.e('v_cvt_pk_bf16_f32 v%d, v%d, v%d' % (PF + i, S[2 * i], S[2 * i + 1]))
    g.e('v_mov_b64 %s, 0' % vr(PF + 10, 2))
    g.e('s_waitcnt vmcnt(0)')
    g.e('s_lshl_b32 %s, %s, 18' % (sr(S_X0), sr(S_SEGI)))
    g.e('s_lshl_b32 %s, %s, 8' % (sr(S_X1), sr(S_HD)))
    g.e('s_add_u32 %s, %s, %s' % (sr(S_X0), sr(S_X0), sr(S_X1)))
    g.e('s_add_u32 %s, %s, 0x%x' % (sr(S_X0), sr(S_X0), WS_OX))
    OCS = [OC, OC + 16, KF, KF + 16]
    for ft in range(4):
        oc = vr(OCS[ft], 16)
        g.e('v_mfma_f32_32x32x16_bf16 %s, %s, %s, 0' % (oc, vr(VF + 8 * ft, 4), vr(PF, 4)))
        g.e('v_mfma_f32_32x32x16_bf16 %s, %s, %s, %s' % (oc, vr(VF + 8 * ft + 4, 4), vr(PF + 4, 4), oc))
        g.e('v_mfma_f32_32x32x16_bf16 %s, %s, %s, %s' % (oc, vr(VMF + 4 * ft, 4), vr(PF + 8, 4), oc))
    g.nop(16)
    for ft in range(4):
        a = OCS[ft]
        for gq in range(4):
            g.e('v_cvt_pk_bf16_f32 v%d, v%d, v%d' % (a + 2 * gq, a + 4 * gq, a + 4 * gq + 1))
            g.e('v_cvt_pk_bf16_f32 v%d, v%d, v%d' % (a + 2 * gq + 1, a + 4 * gq + 2, a + 4 * gq + 3))
        g.nop(2)
        for j in range(2):
            g.e('v_permlane32_swap_b32 v%d, v%d' % (a + 4 * j, a + 4 * j + 2))
            g.e('v_permlane32_swap_b32 v%d, v%d' % (a + 4 * j + 1, a + 4 * j + 3))
        g.nop(1)
        for j in range(2):
            g.e('buffer_store_dwordx4 %s, v%d, %s, %s offen offset:%d sc1' % (vr(a + 4 * j, 4), VO, sr(SRD_WS, 4), sr(S_X0), ft * 64 + j * 32))
    g.e('s_lshl_b32 %s, %s, 7' % (sr(S_X0), sr(S_R)))
    g.e('s_add_u32 %s, %s, 0x%x' % (sr(S_X0), sr(S_X0), WS_FLAGS + CO_OFF))
    g.e('s_lshl_b32 %s, %s, 7' % (sr(S_X1), sr(S_SEGI)))
    g.e('s_add_u32 %s, %s, 0x%x' % (sr(S_X1), sr(S_X1), WS_FLAGS + CS_OFF - 4 * NBIG * 128))
    g.e('s_cmp_ge_u32 %s, %d' % (sr(S_SEGI), 4 * NBIG))
    g.e('s_cselect_b32 %s, %s, %s' % (sr(S_X0), sr(S_X1), sr(S_X0)))
    signal_add(g)
    g.e('s_branch L_next_regs')


def task_boutf(g):
    g.label('L_t_boutf')
    S_SEGI = S_AOFF
    l = wave0_begin(g)
    g.e('s_lshl_b32 %s, %s, 7' % (sr(S_X0), sr(S_SEGI)))
    g.e('s_add_u32 %s, %s, 0x%x' % (sr(S_X0), sr(S_X0), WS_FLAGS + CS_OFF - 4 * NBIG * 128))
    wait_ge(g, None, '8', 4)
    g.label(l)
    make_srd(g, SRD_B0, S_WO, 4 << 20)
    make_srd(g, SRD_OUT, S_OUT, 2048 * 2048)
    gemm_setup(g, 8192, 1024)
    L = W_LANE
    t = W_T
    NS = 5
    SLOT = 8192
    g.e('v_lshrrev_b32 v%d, 2, v%d' % (t, L))
    g.e('v_lshlrev_b32 v%d, 10, v%d' % (t, t))
    g.e('v_and_b32 v%d, 3, v%d' % (t + 1, L))
    g.e('v_lshl_add_u32 v%d, v%d, 4, v%d' % (W_BD, t + 1, t))
    VA, VB = 20, 24
    g.e('s_mul_i32 %s, %s, %d' % (sr(S_BOFF + 2), sr(S_WAVE), NS * SLOT))
    g.e('v_and_b32 v%d, 31, v%d' % (t, L))
    g.e('v_bfe_u32 v%d, v%d, 1, 3' % (t + 1, L))
    g.e('v_lshrrev_b32 v%d, 5, v%d' % (t + 2, L))
    g.e('v_xor_b32 v%d, v%d, v%d' % (t + 1, t + 1, t + 2))
    g.e('v_lshlrev_b32 v%d, 7, v%d' % (t, t))
    g.e('v_lshl_add_u32 v%d, v%d, 4, v%d' % (t, t + 1, t))
    g.e('v_add_u32 v%d, %s, v%d' % (t, sr(S_BOFF + 2), t))
    for ks in range(4):
        g.e('v_xor_b32 v%d, %d, v%d' % (VA + ks, ks * 32, t))
    g.e('v_bfe_u32 v%d, v%d, 2, 2' % (t, L))
    g.e('v_lshl_add_u32 v%d, v%d, 3, v%d' % (t, t + 2, t))
    g.e('v_lshlrev_b32 v%d, 6, v%d' % (t, t))
    g.e('v_bfe_u32 v%d, v%d, 4, 1' % (t + 1, L))
    g.e('v_lshl_add_u32 v%d, v%d, 5, v%d' % (t, t + 1, t))
    g.e('v_and_b32 v%d, 3, v%d' % (t + 1, L))
    g.e('v_lshl_add_u32 v%d, v%d, 3, v%d' % (t, t + 1, t))
    g.e('v_add_u32 v%d, %s, v%d' % (t, sr(S_BOFF + 2), t))
    g.e('v_add_u32 v%d, 4096, v%d' % (VB, t))
    g.e('s_lshl_b32 %s, %s, 18' % (sr(S_BOFF), sr(S_SEGI)))
    g.e('s_lshl_b32 %s, %s, 11' % (sr(S_X0), sr(S_WAVE)))
    g.e('s_add_u32 %s, %s, %s' % (sr(S_BOFF), sr(S_BOFF), sr(S_X0)))
    g.e('s_add_u32 %s, %s, 0x%x' % (sr(S_BOFF), sr(S_BOFF), WS_OX))
    g.e('s_lshl_b32 %s, %s, 20' % (sr(S_BOFF + 1), sr(S_WAVE)))
    g.e('s_lshl_b32 %s, %s, 6' % (sr(S_X0), sr(S_H)))
    g.e('s_add_u32 %s, %s, %s' % (sr(S_BOFF + 1), sr(S_BOFF + 1), sr(S_X0)))

    def dmaB(blk):
        sl = blk % NS
        for i in range(4):
            g.e('s_add_u32 m0, %s, %d' % (sr(S_BOFF + 2), sl * SLOT + 4096 + i * 1024))
            g.e('s_add_u32 %s, %s, %d' % (sr(S_X0), sr(S_BOFF + 1), blk * 65536 + i * 16384))
            g.e('buffer_load_dwordx4 v%d, %s, %s offen lds' % (W_BD, sr(SRD_B0, 4), sr(S_X0)))

    def dmaA(blk):
        sl = blk % NS
        g.e('s_add_u32 %s, %s, %d' % (sr(S_X0), sr(S_BOFF), blk * 128))
        for i in range(4):
            g.e('s_add_u32 m0, %s, %d' % (sr(S_BOFF + 2), sl * SLOT + i * 1024))
            g.nop(1)
            g.e('buffer_load_dwordx4 v%d, %s, %s offen sc1 lds' % (W_AD + i, sr(SRD_WS, 4), sr(S_X0)))
    g.e('s_barrier')
    for blk in range(NS - 1):
        dmaA(blk)
        dmaB(blk)
    FAr, FBr = 32, 48
    for blk in range(16):
        sl = blk % NS
        infl = min(15 - blk, NS - 2)
        g.e('s_waitcnt vmcnt(%d)' % (8 * infl))
        for ks in range(4):
            g.e('ds_read_b128 %s, v%d offset:%d' % (vr(FAr + 4 * ks, 4), VA + ks, sl * SLOT))
            for s_ in range(2):
                g.e('ds_read_b64_tr_b16 %s, v%d offset:%d' % (vr(FBr + 4 * ks + 2 * s_, 2), VB, sl * SLOT + (16 * ks + 4 * s_) * 64))
        if blk + NS - 1 < 16:
            dmaA(blk + NS - 1)
            dmaB(blk + NS - 1)
        for ks in range(4):
            g.e('s_waitcnt lgkmcnt(%d)' % (3 * (3 - ks)))
            g.e('v_mfma_f32_32x32x16_bf16 %s, %s, %s, %s' % (vr(W_ACC, 16), vr(FBr + 4 * ks, 4), vr(FAr + 4 * ks, 4), '0' if (blk == 0 and ks == 0) else vr(W_ACC, 16)))
    g.nop(16)
    g.e('s_barrier')
    g.e('v_lshlrev_b32 v%d, 4, v%d' % (t, L))
    g.e('s_lshl_b32 %s, %s, 12' % (sr(S_X0), sr(S_WAVE)))
    g.e('v_add_u32 v%d, %s, v%d' % (t + 1, sr(S_X0), t))
    for gq in range(4):
        g.e('ds_write_b128 v%d, %s offset:%d' % (t + 1, vr(W_ACC + 4 * gq, 4), gq * 1024))
    g.e('s_lshl_b32 %s, %s, 10' % (sr(S_X0), sr(S_WAVE)))
    g.e('v_add_u32 v%d, %s, v%d' % (t + 1, sr(S_X0), t))
    g.e('s_waitcnt lgkmcnt(0)')
    g.e('s_barrier')
    for ww in range(4):
        g.e('ds_read_b128 %s, v%d offset:%d' % (vr(FAr + 4 * ww, 4), t + 1, ww * 4096))
    g.e('v_and_b32 v%d, 31, v%d' % (t, L))
    g.e('v_lshlrev_b32 v%d, 11, v%d' % (t, t))
    g.e('v_lshl_add_u32 v%d, v%d, 3, v%d' % (t, t + 2, t))
    g.e('s_lshl_b32 %s, %s, 16' % (sr(S_X0), sr(S_SEGI)))
    g.e('s_lshl_b32 %s, %s, 6' % (sr(S_X1), sr(S_H)))
    g.e('s_add_u32 %s, %s, %s' % (sr(S_X0), sr(S_X0), sr(S_X1)))
    g.e('s_lshl_b32 %s, %s, 4' % (sr(S_X1), sr(S_WAVE)))
    g.e('s_add_u32 %s, %s, %s' % (sr(S_X0), sr(S_X0), sr(S_X1)))
    g.e('s_waitcnt lgkmcnt(0)')
    for i in range(2):
        g.e('v_pk_add_f32 %s, %s, %s' % (vr(FAr + 2 * i, 2), vr(FAr + 2 * i, 2), vr(FAr + 4 + 2 * i, 2)))
        g.e('v_pk_add_f32 %s, %s, %s' % (vr(FAr + 8 + 2 * i, 2), vr(FAr + 8 + 2 * i, 2), vr(FAr + 12 + 2 * i, 2)))
    for i in range(2):
        g.e('v_pk_add_f32 %s, %s, %s' % (vr(FAr + 2 * i, 2), vr(FAr + 2 * i, 2), vr(FAr + 8 + 2 * i, 2)))
    g.e('v_cvt_pk_bf16_f32 v%d, v%d, v%d' % (FAr, FAr, FAr + 1))
    g.e('v_cvt_pk_bf16_f32 v%d, v%d, v%d' % (FAr + 1, FAr + 2, FAr + 3))
    g.e('buffer_store_dwordx2 %s, v%d, %s, %s offen offset:1024' % (vr(FAr, 2), t, sr(SRD_OUT, 4), sr(S_X0)))
    g.e('s_branch L_next')


def task_boutx(g):
    g.label('L_t_boutx')
    S_SEGI = S_AOFF
    L = W_LANE
    t = W_T
    make_srd(g, SRD_B0, S_WO, 4 << 20)
    make_srd(g, SRD_OUT, S_OUT, 2048 * 2048)
    g.e('v_lshrrev_b32 v%d, 2, v%d' % (t, L))
    g.e('v_lshlrev_b32 v%d, 10, v%d' % (t, t))
    g.e('v_and_b32 v%d, 3, v%d' % (t + 3, L))
    g.e('v_lshl_add_u32 v%d, v%d, 4, v%d' % (t, t + 3, t))
    g.e('s_and_b32 %s, %s, 15' % (sr(S_BOFF), sr(S_H)))
    g.e('s_lshr_b32 %s, %s, 4' % (sr(S_BOFF + 1), sr(S_H)))
    g.e('s_lshl_b32 %s, %s, 20' % (sr(S_X1), sr(S_WAVE)))
    g.e('s_lshl_b32 %s, %s, 6' % (sr(S_X0), sr(S_BOFF)))
    g.e('s_add_u32 %s, %s, %s' % (sr(S_X1), sr(S_X1), sr(S_X0)))
    g.e('s_lshl_b32 %s, %s, 15' % (sr(S_BOFF + 2), sr(S_WAVE)))
    g.e('v_lshrrev_b32 v%d, 4, v%d' % (t + 2, L))
    g.e('v_bfe_u32 v%d, v%d, 2, 2' % (t + 1, L))
    g.e('v_lshl_add_u32 v%d, v%d, 3, v%d' % (t + 1, t + 2, t + 1))
    g.e('v_lshlrev_b32 v%d, 6, v%d' % (t + 1, t + 1))
    g.e('v_lshl_add_u32 v%d, v%d, 3, v%d' % (t + 1, t + 3, t + 1))
    g.e('v_add_u32 v%d, %s, v%d' % (t + 1, sr(S_BOFF + 2), t + 1))
    g.e('v_and_b32 v%d, 15, v%d' % (t + 3, L))
    g.e('v_lshlrev_b32 v%d, 13, v%d' % (t + 4, t + 3))
    g.e('v_lshl_add_u32 v%d, v%d, 4, v%d' % (t + 4, t + 2, t + 4))
    g.e('v_lshlrev_b32 v%d, 11, v%d' % (t + 5, t + 3))
    g.e('v_lshl_add_u32 v%d, v%d, 3, v%d' % (t + 5, t + 2, t + 5))
    for p in range(2):
        for i in range(32):
            g.e('s_add_u32 m0, %s, %d' % (sr(S_BOFF + 2), i * 1024))
            g.e('s_add_u32 %s, %s, %d' % (sr(S_X0), sr(S_X1), (512 * p + 16 * i) * 1024))
            g.e('buffer_load_dwordx4 v%d, %s, %s offen lds' % (t, sr(SRD_B0, 4), sr(S_X0)))
        g.e('s_waitcnt vmcnt(0)')
        for ksl in range(16):
            for tt in range(2):
                for s_ in range(2):
                    g.e('ds_read_b64_tr_b16 %s, v%d offset:%d' % (ar(128 * tt + 4 * (16 * p + ksl) + 2 * s_, 2), t + 1, (32 * ksl + 4 * s_) * 64 + tt * 32))
        g.e('s_waitcnt lgkmcnt(0)')
    g.e('v_lshlrev_b32 v%d, 4, v%d' % (t + 6, L))
    g.e('v_add_u32 v%d, %s, v%d' % (t + 7, sr(S_BOFF + 2), t + 6))
    g.e('s_lshl_b32 %s, %s, 10' % (sr(S_X0), sr(S_WAVE)))
    g.e('v_add_u32 v%d, %s, v%d' % (t + 6, sr(S_X0), t + 6))
    g.e('v_add_u32 v%d, 65536, v%d' % (t + 8, t + 6))
    g.label('L_bx_loop')
    g.e('s_lshl_b32 %s, %s, 7' % (sr(S_X0), sr(S_SEGI)))
    g.e('s_add_u32 %s, %s, 0x%x' % (sr(S_X0), sr(S_X0), WS_FLAGS + CS_OFF - 4 * NBIG * 128))
    wait_ge(g, None, '8', 4)
    g.e('s_lshl_b32 %s, %s, 1' % (sr(S_X0), sr(S_SEGI)))
    g.e('s_add_u32 %s, %s, %s' % (sr(S_X0), sr(S_X0), sr(S_BOFF + 1)))
    g.e('s_lshl_b32 %s, %s, 17' % (sr(S_X1), sr(S_X0)))
    g.e('s_lshl_b32 %s, %s, 11' % (sr(S_X2), sr(S_WAVE)))
    g.e('s_add_u32 %s, %s, %s' % (sr(S_X1), sr(S_X1), sr(S_X2)))
    g.e('s_add_u32 %s, %s, 0x%x' % (sr(S_X1), sr(S_X1), WS_OX))
    for ks in range(32):
        g.e('buffer_load_dwordx4 %s, v%d, %s, %s offen offset:%d sc1' % (vr(W_ACC + 4 * ks, 4), t + 4, sr(SRD_WS, 4), sr(S_X1), ks * 64))
    AC = 32
    for ks in range(32):
        g.e('s_waitcnt vmcnt(%d)' % (31 - ks))
        for tt in range(2):
            g.e('v_mfma_f32_16x16x32_bf16 %s, %s, %s, %s' % (vr(AC + 4 * tt, 4), ar(128 * tt + 4 * ks, 4), vr(W_ACC + 4 * ks, 4), '0' if ks == 0 else vr(AC + 4 * tt, 4)))
    g.nop(8)
    g.e('ds_write_b128 v%d, %s' % (t + 7, vr(AC, 4)))
    g.e('ds_write_b128 v%d, %s offset:1024' % (t + 7, vr(AC + 4, 4)))
    g.e('s_waitcnt lgkmcnt(0)')
    g.e('s_barrier')
    l = g.newlabel('L_bxs')
    g.e('s_cmp_ge_u32 %s, 2' % sr(S_WAVE))
    g.e('s_cbranch_scc1 %s' % l)
    for ww in range(4):
        g.e('ds_read_b128 %s, v%d offset:%d' % (vr(AC + 4 * ww, 4), t + 6 if ww < 2 else t + 8, (ww & 1) * 32768))
    g.e('s_lshl_b32 %s, %s, 15' % (sr(S_X0), sr(S_X0)))
    g.e('s_lshl_b32 %s, %s, 6' % (sr(S_X1), sr(S_BOFF)))
    g.e('s_add_u32 %s, %s, %s' % (sr(S_X0), sr(S_X0), sr(S_X1)))
    g.e('s_lshl_b32 %s, %s, 5' % (sr(S_X1), sr(S_WAVE)))
    g.e('s_add_u32 %s, %s, %s' % (sr(S_X0), sr(S_X0), sr(S_X1)))
    g.e('s_waitcnt lgkmcnt(0)')
    for i in range(2):
        g.e('v_pk_add_f32 %s, %s, %s' % (vr(AC + 2 * i, 2), vr(AC + 2 * i, 2), vr(AC + 4 + 2 * i, 2)))
        g.e('v_pk_add_f32 %s, %s, %s' % (vr(AC + 8 + 2 * i, 2), vr(AC + 8 + 2 * i, 2), vr(AC + 12 + 2 * i, 2)))
    for i in range(2):
        g.e('v_pk_add_f32 %s, %s, %s' % (vr(AC + 2 * i, 2), vr(AC + 2 * i, 2), vr(AC + 8 + 2 * i, 2)))
    g.e('v_cvt_pk_bf16_f32 v%d, v%d, v%d' % (AC, AC, AC + 1))
    g.e('v_cvt_pk_bf16_f32 v%d, v%d, v%d' % (AC + 1, AC + 2, AC + 3))
    g.e('buffer_store_dwordx2 %s, v%d, %s, %s offen offset:1024' % (vr(AC, 2), t + 5, sr(SRD_OUT, 4), sr(S_X0)))
    g.label(l)
    g.e('s_barrier')
    g.e('s_add_u32 %s, %s, %d' % (sr(S_SEGI), sr(S_SEGI), NX))
    g.e('s_cmp_lt_u32 %s, 64' % sr(S_SEGI))
    g.e('s_cbranch_scc1 L_bx_loop')
    g.e('s_branch L_next')


def worker(g, opt):
    global GATE
    GATE = opt.get('gate', 2)
    g.label('L_worker')
    g.e('v_and_b32 v%d, 63, v0' % W_LANE)
    g.e('s_mov_b32 %s, 0' % sr(S_INIT))
    g.e('s_mov_b32 %s, 0' % sr(S_LOG))
    g.e('s_mov_b32 %s, 0' % sr(S_QN))
    g.label('L_next_regs')
    gemm_consts(g)
    g.label('L_next')
    if opt.get('rt'):
        lg = g.newlabel('L_lg')
        g.e('s_cmp_eq_u32 %s, 0' % sr(S_LOG))
        g.e('s_cbranch_scc1 %s' % lg)
        g.e('s_memrealtime s[76:77]')
        g.e('s_waitcnt lgkmcnt(0)')
        g.e('v_mov_b32 v%d, s78' % W_T)
        g.e('v_mov_b32 v%d, s76' % (W_T + 1))
        g.e('v_mov_b32 v%d, 0' % (W_T + 2))
        g.e('s_lshl_b32 %s, %s, 4' % (sr(S_X0), sr(S_TASK)))
        g.e('s_add_u32 %s, %s, 0x%x' % (sr(S_X0), sr(S_X0), WS_TS + 0xA00000))
        g.e('buffer_store_dwordx2 %s, v%d, %s, %s offen' % (vr(W_T, 2), W_T + 2, sr(SRD_WS, 4), sr(S_X0)))
        g.label(lg)
    g.e('s_barrier')
    l = wave0_begin(g)
    g.e('s_mov_b64 exec, 1')
    lq = g.newlabel('L_q')
    lgq = g.newlabel('L_gq')
    lgot = g.newlabel('L_got')
    g.e('v_mov_b32 v%d, 1' % (W_T + 1))
    g.label(lq)
    g.e('s_cmp_ge_u32 %s, 7' % sr(S_QN))
    g.e('s_cbranch_scc1 %s' % lgq)
    g.e('s_lshl_b32 %s, %s, 2' % (sr(S_X0), sr(S_RANK)))
    g.e('s_add_u32 %s, %s, 192' % (sr(S_X0), sr(S_X0)))
    g.e('v_mov_b32 v%d, %s' % (W_T, sr(S_X0)))
    g.e('global_atomic_add v%d, v%d, v%d, %s sc0' % (W_T + 2, W_T, W_T + 1, sr(S_DBG, 2)))
    g.e('s_waitcnt vmcnt(0)')
    g.e('v_readfirstlane_b32 %s, v%d' % (sr(S_X0), W_T + 2))
    g.nop(3)
    g.e('s_cmp_lt_u32 %s, 80' % sr(S_X0))
    lok = g.newlabel('L_qok')
    g.e('s_cbranch_scc1 %s' % lok)
    g.e('s_add_u32 %s, %s, 1' % (sr(S_QN), sr(S_QN)))
    g.e('s_add_u32 %s, %s, 1' % (sr(S_RANK), sr(S_RANK)))
    g.e('s_cmp_ge_u32 %s, 7' % sr(S_RANK))
    g.e('s_cselect_b32 %s, 0, %s' % (sr(S_RANK), sr(S_RANK)))
    g.e('s_branch %s' % lq)
    g.label(lok)
    g.e('s_mul_i32 %s, %s, 205' % (sr(S_X1), sr(S_X0)))
    g.e('s_lshr_b32 %s, %s, 10' % (sr(S_X1), sr(S_X1)))
    g.e('s_mul_i32 %s, %s, 5' % (sr(S_X2), sr(S_X1)))
    g.e('s_sub_u32 %s, %s, %s' % (sr(S_X2), sr(S_X0), sr(S_X2)))
    g.e('s_mul_i32 %s, %s, 7' % (sr(S_X2), sr(S_X2)))
    g.e('s_add_u32 %s, %s, %s' % (sr(S_X2), sr(S_X2), sr(S_RANK)))
    g.e('s_lshl_b32 %s, %s, 5' % (sr(S_X0), sr(S_X1)))
    g.e('s_add_u32 %s, %s, %s' % (sr(S_X0), sr(S_X0), sr(S_X2)))
    g.e('s_lshl_b32 %s, %s, 2' % (sr(S_X3), sr(S_X1)))
    g.e('s_add_u32 %s, %s, %s' % (sr(S_X3), sr(S_X3), sr(S_X2)))
    g.e('s_add_u32 %s, %s, %d' % (sr(S_X3), sr(S_X3), T_AP - 32))
    g.e('s_cmp_lt_u32 %s, 32' % sr(S_X2))
    g.e('s_cselect_b32 %s, %s, %s' % (sr(S_X0), sr(S_X0), sr(S_X3)))
    g.e('v_mov_b32 v%d, %s' % (W_T + 2, sr(S_X0)))
    g.e('s_branch %s' % lgot)
    g.label(lgq)
    g.e('v_mov_b32 v%d, 224' % W_T)
    g.e('global_atomic_add v%d, v%d, v%d, %s sc0' % (W_T + 2, W_T, W_T + 1, sr(S_DBG, 2)))
    g.e('s_waitcnt vmcnt(0)')
    g.e('v_readfirstlane_b32 %s, v%d' % (sr(S_X0), W_T + 2))
    g.nop(3)
    g.e('s_lshl_b32 %s, %s, 2' % (sr(S_X1), sr(S_X0)))
    g.e('s_add_u32 %s, %s, %d' % (sr(S_X1), sr(S_X1), T_AP + 3))
    g.e('s_add_u32 %s, %s, %d' % (sr(S_X2), sr(S_X0), T_AA - 16))
    g.e('s_cmp_lt_u32 %s, 16' % sr(S_X0))
    g.e('s_cselect_b32 %s, %s, %s' % (sr(S_X0), sr(S_X1), sr(S_X2)))
    g.e('v_mov_b32 v%d, %s' % (W_T + 2, sr(S_X0)))
    g.label(lgot)
    g.e('s_mov_b32 %s, 1' % sr(S_LOG))
    g.e('s_waitcnt vmcnt(0)')
    g.e('v_mov_b32 v%d, %d' % (W_T, L_MISC))
    g.e('ds_write_b32 v%d, v%d' % (W_T, W_T + 2))
    g.e('s_waitcnt lgkmcnt(0)')
    g.e('s_mov_b64 exec, -1')
    g.label(l)
    g.e('s_barrier')
    g.e('v_mov_b32 v%d, %d' % (W_T, L_MISC))
    g.e('ds_read_b32 v%d, v%d' % (W_T + 1, W_T))
    g.e('s_waitcnt lgkmcnt(0)')
    g.e('v_readfirstlane_b32 %s, v%d' % (sr(S_TASK), W_T + 1))
    g.nop(3)
    if opt.get('rt'):
        g.e('s_memrealtime s[78:79]')
        g.e('s_waitcnt lgkmcnt(0)')
    g.e('s_cmp_lt_u32 %s, %d' % (sr(S_TASK), T_AP))
    g.e('s_cbranch_scc1 L_t_bproj')
    g.e('s_cmp_lt_u32 %s, %d' % (sr(S_TASK), T_AA))
    g.e('s_cbranch_scc1 L_t_aproj')
    g.e('s_cmp_lt_u32 %s, %d' % (sr(S_TASK), T_AO))
    g.e('s_cbranch_scc1 L_t_aattn')
    g.e('s_cmp_ge_u32 %s, %d' % (sr(S_TASK), T_END))
    g.e('s_cbranch_scc1 L_exit')
    g.e('s_cmp_ge_u32 %s, %d' % (sr(S_TASK), T_BX))
    g.e('s_cbranch_scc1 L_t_bx')
    g.e('s_cmp_ge_u32 %s, %d' % (sr(S_TASK), T_BF))
    g.e('s_cbranch_scc1 L_t_bf')
    g.e('s_cmp_ge_u32 %s, %d' % (sr(S_TASK), T_BT))
    g.e('s_cbranch_scc1 L_t_bt')
    g.e('s_sub_u32 %s, %s, %d' % (sr(S_X0), sr(S_TASK), T_AO))
    g.e('s_lshr_b32 %s, %s, 2' % (sr(S_R), sr(S_X0)))
    g.e('s_and_b32 %s, %s, 3' % (sr(S_H), sr(S_X0)))
    g.e('s_branch L_t_aout')
    g.label('L_t_bt')
    g.e('s_sub_u32 %s, %s, %d' % (sr(S_X0), sr(S_TASK), T_BT))
    g.e('s_mul_i32 %s, %s, 1821' % (sr(S_R), sr(S_X0)))
    g.e('s_lshr_b32 %s, %s, 16' % (sr(S_R), sr(S_R)))
    g.e('s_mul_i32 %s, %s, 36' % (sr(S_X1), sr(S_R)))
    g.e('s_sub_u32 %s, %s, %s' % (sr(S_X0), sr(S_X0), sr(S_X1)))
    g.e('s_cmp_ge_u32 %s, 32' % sr(S_X0))
    lb = g.newlabel('L_bo')
    g.e('s_cbranch_scc1 %s' % lb)
    g.e('s_lshr_b32 %s, %s, 3' % (sr(S_X1), sr(S_X0)))
    g.e('s_lshl_b32 %s, %s, 2' % (sr(S_AOFF), sr(S_R)))
    g.e('s_add_u32 %s, %s, %s' % (sr(S_AOFF), sr(S_AOFF), sr(S_X1)))
    g.e('s_and_b32 %s, %s, 7' % (sr(S_H), sr(S_X0)))
    g.e('s_branch L_t_battn')
    g.label(lb)
    g.e('s_sub_u32 %s, %s, 32' % (sr(S_H), sr(S_X0)))
    g.e('s_branch L_t_bout')
    g.label('L_t_bf')
    g.e('s_sub_u32 %s, %s, %d' % (sr(S_X0), sr(S_TASK), T_BF))
    g.e('s_mul_i32 %s, %s, 2731' % (sr(S_X1), sr(S_X0)))
    g.e('s_lshr_b32 %s, %s, 16' % (sr(S_X1), sr(S_X1)))
    g.e('s_add_u32 %s, %s, %d' % (sr(S_AOFF), sr(S_X1), 4 * NBIG))
    g.e('s_lshr_b32 %s, %s, 2' % (sr(S_R), sr(S_AOFF)))
    g.e('s_mul_i32 %s, %s, 24' % (sr(S_X1), sr(S_X1)))
    g.e('s_sub_u32 %s, %s, %s' % (sr(S_H), sr(S_X0), sr(S_X1)))
    g.e('s_cmp_lt_u32 %s, 8' % sr(S_H))
    g.e('s_cbranch_scc1 L_t_battn')
    g.e('s_sub_u32 %s, %s, 8' % (sr(S_H), sr(S_H)))
    g.e('s_branch L_t_boutf')
    g.label('L_t_bx')
    g.e('s_sub_u32 %s, %s, %d' % (sr(S_X0), sr(S_TASK), T_BX))
    g.e('s_lshr_b32 %s, %s, 5' % (sr(S_X1), sr(S_X0)))
    g.e('s_add_u32 %s, %s, %d' % (sr(S_AOFF), sr(S_X1), 4 * NBIG))
    g.e('s_and_b32 %s, %s, 31' % (sr(S_H), sr(S_X0)))
    g.e('s_cmp_lt_u32 %s, %d' % (sr(S_X0), 32 * NX))
    g.e('s_cbranch_scc1 L_t_boutx')
    g.e('s_sub_u32 %s, %s, %d' % (sr(S_X0), sr(S_X0), 32 * NX))
    g.e('s_lshr_b32 %s, %s, 3' % (sr(S_X1), sr(S_X0)))
    g.e('s_add_u32 %s, %s, %d' % (sr(S_AOFF), sr(S_X1), 4 * NBIG))
    g.e('s_lshr_b32 %s, %s, 2' % (sr(S_R), sr(S_AOFF)))
    g.e('s_and_b32 %s, %s, 7' % (sr(S_H), sr(S_X0)))
    g.e('s_branch L_t_battn')
    task_boutf(g)
    task_boutx(g)
    task_bproj(g)
    task_aproj(g)
    task_aattn(g)
    task_out(g, 'ao', 'L_t_aout', WS_OA, 1024, 8, S_AWO, 512 * 1024, 0, CB_OFF, 8)
    task_battn(g)
    task_out(g, 'bo', 'L_t_bout', WS_OX, 8192, 64, S_WO, 4 << 20, 512, CO_OFF, 32)


for x in range(576):
    assert (x * 1821) >> 16 == x // 36
for x in range(1024):
    assert (x * 2731) >> 16 == x // 24
for x in range(80):
    assert (x * 205) >> 10 == x // 5
```

```python
import sys

NAME = 'concat_heads__sliding_block__memory_aug_recurrent_mem_tr__prompt'

WS_FLAGS = 0x0000000
WS_M2 = 0x0020000
WS_PB = 0x0100000
PB_STRIDE = 4224
WS_KX = 0x1000000
WS_VX = 0x2000000
WS_QX = 0x3000000
WS_KM = 0x4000000
WS_VM = 0x4400000
WS_OX = 0x5000000
WS_QKVA = 0x6000000
WS_TS = 0x7000000
WS_SIZE = 268435456
F1_OFF = 0
F2_OFF = 4096

L_WLV = 0
L_WLO = 65536
L_KX = 131072
L_VX = 139264
L_MST = 147456
L_QK = 155648
L_O = 159744
L_MISC = 161792
LDS_SIZE = 163840
RING = [65536, 98304, 131072]

OOB = 0x7FFFFF00


class G:
    def __init__(self):
        self.lines = []
        self.uid = 0

    def e(self, s):
        self.lines.append('    ' + s)

    def c(self, s):
        self.lines.append('    ; ' + s)

    def label(self, l):
        self.lines.append(l + ':')

    def newlabel(self, p='L'):
        self.uid += 1
        return '%s_%d' % (p, self.uid)

    def nop(self, n):
        while n > 0:
            k = min(n, 16)
            self.e('s_nop %d' % (k - 1))
            n -= k

    def guard(self):
        self.e('s_add_u32 s101, s101, 1')
        self.e('s_cmp_gt_u32 s101, 0x200000')
        self.e('s_cbranch_scc1 L_exit')

    def text(self):
        return '\n'.join(self.lines) + '\n'


def vr(a, n=1):
    return 'v%d' % a if n == 1 else 'v[%d:%d]' % (a, a + n - 1)


def ar(a, n=1):
    return 'a%d' % a if n == 1 else 'a[%d:%d]' % (a, a + n - 1)


def sr(a, n=1):
    return 's%d' % a if n == 1 else 's[%d:%d]' % (a, a + n - 1)


S_AX, S_AWQKV, S_AWO, S_BX, S_MEM0, S_WQ, S_WK, S_WV, S_WO, S_SEG, S_OUT, S_DBG, S_WS = 4, 6, 8, 10, 12, 14, 16, 18, 20, 22, 24, 26, 28
SRD_WS = 32
SRD_A = 36
SRD_B = 40
S_XCC = 44
S_WAVE = 45
S_RANK = 46
S_ROLE = 47
S_T0, S_T1, S_T2, S_T3 = 48, 49, 50, 51
S_STEP = 52
S_PHASE = 53
S_PL = 54
S_U1, S_U2, S_U3 = 55, 56, 57
S_M2R = 58
S_M2W = 59
S_M2Z = 60
S_KXO = 61
S_KMO = 62
S_SC = 64
S_L2E = 66
S_M0KX = 68
S_M0VX = 69
S_F1 = 70
S_F2 = 71
S_TS = 72
S_TSI = 74

V_L16, V_WL, V_WO, V_HI, V_HIW, V_AF, V_QW, V_QR, V_KR, V_OW, V_PS, V_MS, V_KS, V_VS, V_WM, V_IDX, V_ONES, V_WD, V_FD = range(1, 20)
ACC = 20
AR = 44
TMP = 60
BUF = 64
V_WV0 = 128
V_WOL = 192
A_WQ = 0
A_WK = 128


def make_srd(g, srd, ptr, nbytes):
    g.e('s_mov_b32 %s, %s' % (sr(srd), sr(ptr)))
    g.e('s_and_b32 %s, %s, 0xffff' % (sr(srd + 1), sr(ptr + 1)))
    g.e('s_mov_b32 %s, 0x%x' % (sr(srd + 2), nbytes))
    g.e('s_mov_b32 %s, 0x00020000' % sr(srd + 3))


def prologue(g, opt):
    g.e('s_cmp_ge_u32 s2, 256')
    g.e('s_cbranch_scc1 L_exit')
    g.e('s_mov_b32 s101, 0')
    if opt.get('rt'):
        g.e('s_memrealtime s[74:75]')
    g.e('s_load_dwordx16 s[4:19], s[0:1], 0')
    g.e('s_load_dwordx8 s[20:27], s[0:1], 64')
    g.e('s_load_dwordx2 s[28:29], s[0:1], 96')
    g.e('s_getreg_b32 %s, hwreg(HW_REG_XCC_ID)' % sr(S_XCC))
    g.e('s_and_b32 %s, %s, 7' % (sr(S_XCC), sr(S_XCC)))
    g.e('v_lshrrev_b32 v1, 6, v0')
    g.nop(1)
    g.e('v_readfirstlane_b32 %s, v1' % sr(S_WAVE))
    g.e('s_waitcnt lgkmcnt(0)')
    make_srd(g, SRD_WS, S_WS, WS_SIZE)
    g.e('s_cmp_lg_u32 %s, 0' % sr(S_WAVE))
    g.e('s_cbranch_scc1 L_elect_done')
    g.e('s_mov_b64 s[76:77], exec')
    g.e('s_mov_b64 exec, 1')
    g.e('s_and_b32 %s, %s, 3' % (sr(S_T0), sr(S_XCC)))
    g.e('s_lshl_b32 %s, %s, 6' % (sr(S_T0), sr(S_T0)))
    g.e('s_and_b32 %s, %s, 4' % (sr(S_T1), sr(S_XCC)))
    g.e('s_add_u32 %s, %s, %s' % (sr(S_T0), sr(S_T0), sr(S_T1)))
    g.e('s_add_u32 %s, %s, 48' % (sr(S_T0), sr(S_T0)))
    g.e('v_mov_b32 v2, %s' % sr(S_T0))
    g.e('v_mov_b32 v3, 1')
    g.e('global_atomic_add v4, v2, v3, %s sc0' % sr(S_DBG, 2))
    g.e('s_waitcnt vmcnt(0)')
    g.e('v_readfirstlane_b32 %s, v4' % sr(S_RANK))
    g.nop(3)
    g.e('s_cmp_lg_u32 %s, 31' % sr(S_RANK))
    g.e('s_cbranch_scc1 L_elect_wait')
    g.e('s_add_u32 %s, %s, 1' % (sr(S_T0), sr(S_XCC)))
    g.e('v_mov_b32 v4, %s' % sr(S_T0))
    g.e('v_mov_b32 v5, 0')
    g.e('v_mov_b32 v2, 64')
    g.e('global_atomic_cmpswap v2, v[4:5], %s' % sr(S_DBG, 2))
    g.e('s_waitcnt vmcnt(0)')
    g.label('L_elect_wait')
    g.e('v_mov_b32 v2, 64')
    g.label('L_elect_spin')
    g.guard()
    g.e('global_load_dword v4, v2, %s sc1' % sr(S_DBG, 2))
    g.e('s_waitcnt vmcnt(0)')
    g.e('v_readfirstlane_b32 %s, v4' % sr(S_T0))
    g.nop(3)
    g.e('s_cmp_eq_u32 %s, 0' % sr(S_T0))
    g.e('s_cbranch_scc1 L_elect_spin')
    g.e('s_sub_u32 %s, %s, 1' % (sr(S_T0), sr(S_T0)))
    g.e('s_mov_b32 %s, 1' % sr(S_ROLE))
    g.e('s_cmp_lg_u32 %s, %s' % (sr(S_T0), sr(S_XCC)))
    g.e('s_cbranch_scc1 L_elect_worker')
    g.e('s_cmp_lt_u32 %s, 32' % sr(S_RANK))
    g.e('s_cbranch_scc1 L_elect_pub')
    g.label('L_elect_worker')
    g.e('s_mov_b32 %s, 0' % sr(S_ROLE))
    g.e('s_cmp_gt_u32 %s, %s' % (sr(S_XCC), sr(S_T0)))
    g.e('s_cselect_b32 %s, 1, 0' % sr(S_T1))
    g.e('s_sub_u32 %s, %s, %s' % (sr(S_RANK), sr(S_XCC), sr(S_T1)))
    g.e('s_min_u32 %s, %s, 6' % (sr(S_RANK), sr(S_RANK)))
    g.label('L_elect_pub')
    g.e('v_mov_b32 v2, %d' % L_MISC)
    g.e('v_mov_b32 v4, %s' % sr(S_ROLE))
    g.e('v_mov_b32 v5, %s' % sr(S_RANK))
    g.e('ds_write_b64 v2, v[4:5]')
    g.e('s_waitcnt lgkmcnt(0)')
    g.e('s_mov_b64 exec, s[76:77]')
    g.label('L_elect_done')
    g.e('s_barrier')
    g.e('v_mov_b32 v2, %d' % L_MISC)
    g.e('ds_read_b64 v[4:5], v2')
    g.e('s_waitcnt lgkmcnt(0)')
    g.e('v_readfirstlane_b32 %s, v4' % sr(S_ROLE))
    g.e('v_readfirstlane_b32 %s, v5' % sr(S_RANK))
    g.nop(3)
    g.e('s_barrier')
    g.e('s_cmp_eq_u32 %s, 0' % sr(S_ROLE))
    g.e('s_cbranch_scc1 L_worker')


TS_NAMES = []


def ts(g, opt, name, fine=False):
    if not opt.get('ts') or (fine and not opt.get('fine')):
        return
    idx = len(TS_NAMES)
    TS_NAMES.append(str(name))
    g.e('s_memtime %s' % sr(S_TS, 2))
    g.e('s_waitcnt lgkmcnt(0)')
    g.e('v_writelane_b32 v%d, %s, %d' % (V_FD, sr(S_TS), idx))


def ts_flush(g, opt):
    if not opt.get('ts'):
        return
    g.e('v_writelane_b32 v%d, s80, 62' % V_FD)
    g.e('v_writelane_b32 v%d, s81, 63' % V_FD)
    g.e('s_lshl_b32 %s, %s, 2' % (sr(S_T0), sr(S_RANK)))
    g.e('s_add_u32 %s, %s, %s' % (sr(S_T0), sr(S_T0), sr(S_WAVE)))
    g.e('s_lshl_b32 %s, %s, 6' % (sr(S_T0), sr(S_T0)))
    g.e('s_add_u32 %s, %s, %s' % (sr(S_T0), sr(S_T0), sr(S_STEP)))
    g.e('s_lshl_b32 %s, %s, 8' % (sr(S_T0), sr(S_T0)))
    g.e('s_add_u32 %s, %s, 0x%x' % (sr(S_T0), sr(S_T0), WS_TS))
    g.e('v_lshrrev_b32 v%d, 2, v%d' % (TMP, V_L16))
    g.e('buffer_store_dword v%d, v%d, %s, %s offen' % (V_FD, TMP, sr(SRD_WS, 4), sr(S_T0)))


def chain_setup(g, opt):
    W = sr(S_WAVE)
    H = sr(S_RANK)
    g.e('v_and_b32 v20, 63, v0')
    g.e('v_and_b32 v21, 15, v0')
    g.e('v_bfe_u32 v22, v0, 4, 2')
    g.e('v_lshlrev_b32 v%d, 4, v20' % V_L16)
    g.e('s_lshl_b32 %s, %s, 14' % (sr(S_T0), W))
    g.e('v_add_u32 v%d, %s, v%d' % (V_WL, sr(S_T0), V_L16))
    g.e('v_add_u32 v%d, 0x%x, v%d' % (V_WO, L_WLO, V_WL))
    g.e('v_add_u32 v%d, 0x%x, v%d' % (V_HI, L_KX, V_L16))
    g.e('s_lshl_b32 %s, %s, 11' % (sr(S_T0), W))
    g.e('v_add_u32 v%d, %s, v%d' % (V_HIW, sr(S_T0), V_HI))
    g.e('v_lshlrev_b32 v23, 8, v22')
    g.e('v_and_b32 v24, 1, v20')
    g.e('v_lshl_add_u32 v23, v24, 7, v23')
    g.e('v_lshrrev_b32 v24, 1, v21')
    g.e('v_lshl_add_u32 v23, v24, 4, v23')
    g.e('v_add_u32 v%d, 0x%x, v23' % (V_AF, L_MST))
    g.e('v_lshrrev_b32 v23, 3, v21')
    g.e('v_lshlrev_b32 v23, 7, v23')
    g.e('v_lshl_add_u32 v23, v22, 5, v23')
    g.e('v_and_b32 v24, 7, v21')
    g.e('v_lshl_add_u32 v23, v24, 1, v23')
    g.e('s_lshl_b32 %s, %s, 9' % (sr(S_T0), W))
    g.e('s_add_u32 %s, %s, 0x%x' % (sr(S_T1), sr(S_T0), L_QK))
    g.e('v_add_u32 v%d, %s, v23' % (V_QW, sr(S_T1)))
    g.e('v_lshlrev_b32 v23, 7, v22')
    g.e('v_lshl_add_u32 v25, v24, 4, v23')
    g.e('v_add_u32 v%d, 0x%x, v25' % (V_QR, L_QK))
    g.e('v_lshrrev_b32 v24, 2, v21')
    g.e('v_lshlrev_b32 v24, 1, v24')
    g.e('v_and_b32 v25, 1, v21')
    g.e('v_add_u32 v24, v24, v25')
    g.e('v_lshl_add_u32 v25, v24, 4, v23')
    g.e('v_add_u32 v%d, 0x%x, v25' % (V_KR, L_QK + 2048))
    g.e('v_add_u32 v25, %s, v25' % sr(S_T0))
    g.e('v_and_b32 v26, 2, v21')
    g.e('v_cmp_eq_u32 vcc, 0, v26')
    g.e('v_mov_b32 v26, 0x%x' % OOB)
    g.nop(1)
    g.e('v_cndmask_b32 v%d, v26, v25, vcc' % V_KS)
    g.e('v_lshrrev_b32 v23, 1, v22')
    g.e('v_lshlrev_b32 v23, 7, v23')
    g.e('v_lshl_add_u32 v23, v21, 4, v23')
    g.e('v_and_b32 v24, 1, v22')
    g.e('v_lshl_add_u32 v23, v24, 3, v23')
    g.e('s_add_u32 %s, %s, 0x%x' % (sr(S_T1), sr(S_T0), L_O))
    g.e('v_add_u32 v23, %s, v23' % sr(S_T1))
    g.e('v_lshlrev_b32 v24, 3, v20')
    g.e('v_add_u32 v24, 0x%x, v24' % (L_MISC + 1024))
    g.e('v_cmp_gt_u32 vcc, 8, v21')
    g.nop(2)
    g.e('v_cndmask_b32 v%d, v24, v23, vcc' % V_OW)
    g.e('v_lshrrev_b32 v23, 1, v21')
    g.e('s_lshl_b32 %s, %s, 5' % (sr(S_T1), W))
    g.e('v_add_u32 v23, %s, v23' % sr(S_T1))
    g.e('v_mul_u32_u24 v23, %d, v23' % PB_STRIDE)
    g.e('v_and_b32 v24, 1, v21')
    g.e('v_lshl_add_u32 v24, v24, 2, v22')
    g.e('v_lshl_add_u32 v23, v24, 4, v23')
    g.e('s_lshl_b32 %s, %s, 7' % (sr(S_T1), H))
    g.e('s_add_u32 %s, %s, 0x%x' % (sr(S_T1), sr(S_T1), WS_PB))
    g.e('v_add_u32 v%d, %s, v23' % (V_PS, sr(S_T1)))
    for u, s in ((1, S_U1), (2, S_U2), (3, S_U3)):
        g.e('s_mov_b32 %s, %d' % (sr(s), u * 8 * PB_STRIDE))
    g.e('s_lshl_b32 %s, %s, 2' % (sr(S_T1), H))
    g.e('s_add_u32 %s, %s, %s' % (sr(S_T1), sr(S_T1), W))
    g.e('s_mul_i32 %s, %s, %d' % (sr(S_PL), sr(S_T1), PB_STRIDE))
    g.e('s_add_u32 %s, %s, 0x%x' % (sr(S_PL), sr(S_PL), WS_PB))
    g.e('s_lshr_b32 %s, %s, 1' % (sr(S_T2), sr(S_T1)))
    g.e('s_lshl_b32 %s, %s, 7' % (sr(S_T2), sr(S_T2)))
    g.e('s_and_b32 %s, %s, 1' % (sr(S_T3), sr(S_T1)))
    g.e('s_lshl_b32 %s, %s, 3' % (sr(S_T3), sr(S_T3)))
    g.e('s_add_u32 %s, %s, %s' % (sr(S_T2), sr(S_T2), sr(S_T3)))
    g.e('v_and_b32 v23, 3, v20')
    g.e('v_lshlrev_b32 v23, 1, v23')
    g.e('v_lshrrev_b32 v24, 5, v20')
    g.e('v_add_u32 v23, v23, v24')
    g.e('v_lshlrev_b32 v23, 4, v23')
    g.e('v_bfe_u32 v24, v20, 2, 1')
    g.e('v_lshl_add_u32 v23, v24, 2, v23')
    g.e('v_add_u32 v23, %s, v23' % sr(S_T2))
    g.e('v_and_b32 v24, 24, v20')
    g.e('v_cmp_eq_u32 vcc, 0, v24')
    g.e('v_mov_b32 v26, 0x%x' % OOB)
    g.nop(1)
    g.e('v_cndmask_b32 v%d, v26, v23, vcc' % V_MS)
    g.e('v_lshlrev_b32 v23, 4, v21')
    g.e('v_lshl_add_u32 v23, v22, 2, v23')
    g.e('v_add_u32 v%d, %s, v23' % (V_VS, sr(S_T0)))
    g.e('v_and_b32 v23, 31, v20')
    g.e('v_lshlrev_b32 v23, 6, v23')
    g.e('v_lshrrev_b32 v24, 5, v20')
    g.e('v_lshl_add_u32 v%d, v24, 24, v23' % V_WM)
    assert WS_VX - WS_KX == 1 << 24
    g.e('v_and_b32 v23, 1, v20')
    g.e('v_mov_b32 v24, 0x4444')
    g.e('v_mov_b32 v25, 0xeeee')
    g.e('v_cmp_eq_u32 vcc, 1, v23')
    g.nop(2)
    g.e('v_cndmask_b32 v%d, v24, v25, vcc' % V_IDX)
    g.e('v_mov_b32 v%d, -1' % V_ONES)
    g.e('s_mov_b32 %s, 0x3db504f3' % sr(S_SC))
    g.e('s_mov_b32 %s, 0x3db504f3' % sr(S_SC + 1))
    g.e('s_mov_b32 %s, 0x3fb8aa3b' % sr(S_L2E))
    g.e('s_mov_b32 %s, 0x3fb8aa3b' % sr(S_L2E + 1))
    g.e('s_lshl_b32 %s, %s, 11' % (sr(S_T1), W))
    g.e('s_add_u32 %s, %s, 0x%x' % (sr(S_M0KX), sr(S_T1), L_KX))
    g.e('s_add_u32 %s, %s, 0x%x' % (sr(S_M0VX), sr(S_T1), L_VX))
    g.e('s_lshl_b32 %s, %s, 13' % (sr(S_T2), H))
    g.e('s_add_u32 %s, %s, %s' % (sr(S_KXO), sr(S_T2), sr(S_T1)))
    g.e('s_add_u32 %s, %s, 0x%x' % (sr(S_KXO), sr(S_KXO), WS_KX))
    g.e('s_lshl_b32 %s, %s, 11' % (sr(S_T2), H))
    g.e('s_add_u32 %s, %s, 0x%x' % (sr(S_KMO), sr(S_T2), WS_KM))
    g.e('s_lshl_b32 %s, %s, 7' % (sr(S_T2), H))
    g.e('s_add_u32 %s, %s, 0x%x' % (sr(S_F1), sr(S_T2), WS_FLAGS + F1_OFF))
    g.e('s_lshl_b32 %s, %s, 2' % (sr(S_T3), W))
    g.e('s_add_u32 %s, %s, %s' % (sr(S_F2), sr(S_T2), sr(S_T3)))
    g.e('s_add_u32 %s, %s, 0x%x' % (sr(S_F2), sr(S_F2), WS_FLAGS + F2_OFF))


def chain_init_buffers(g, opt):
    for i in range(4):
        g.e('v_mov_b32 v%d, 0' % (24 + i))
    for i in range(4):
        g.e('buffer_store_dwordx4 v[24:27], v%d, %s, %s offen offset:%d' % (V_L16, sr(SRD_WS, 4), sr(S_PL), i * 1024))
    for slot in range(3):
        g.e('s_mov_b32 %s, 0x%x' % (sr(S_T0), WS_M2 + slot * 8192))
        g.e('buffer_store_dword v%d, v%d, %s, %s offen' % (V_ONES, V_MS, sr(SRD_WS, 4), sr(S_T0)))
    l = g.newlabel('L_if')
    g.e('s_cmp_lg_u32 %s, 0' % sr(S_WAVE))
    g.e('s_cbranch_scc1 %s' % l)
    g.e('v_and_b32 v28, 31, v20')
    g.e('v_lshlrev_b32 v28, 2, v28')
    g.e('v_lshrrev_b32 v29, 5, v20')
    g.e('v_lshl_add_u32 v28, v29, 12, v28')
    assert F2_OFF - F1_OFF == 4096
    g.e('buffer_store_dword v24, v28, %s, %s offen sc1' % (sr(SRD_WS, 4), sr(S_F1)))
    g.e('v_lshlrev_b32 v28, 11, v20')
    g.e('s_and_b32 %s, %s, 15' % (sr(S_T0), sr(S_RANK)))
    g.e('s_lshl_b32 %s, %s, 7' % (sr(S_T0), sr(S_T0)))
    g.e('s_add_u32 %s, %s, 0x%x' % (sr(S_T0), sr(S_T0), WS_FLAGS + 8192))
    g.e('s_mov_b64 exec, 7')
    g.e('buffer_store_dword v24, v28, %s, %s offen sc1' % (sr(SRD_WS, 4), sr(S_T0)))
    g.e('s_mov_b64 exec, -1')
    g.label(l)
    g.e('s_waitcnt vmcnt(0)')
    g.e('s_barrier')
    l = g.newlabel('L_if')
    g.e('s_cmp_lg_u32 %s, 0' % sr(S_WAVE))
    g.e('s_cbranch_scc1 %s' % l)
    g.e('s_mov_b64 exec, 1')
    g.e('v_mov_b32 v28, 40')
    g.e('v_mov_b32 v29, 1')
    g.e('global_atomic_add v28, v29, %s' % sr(S_DBG, 2))
    g.e('s_mov_b64 exec, -1')
    g.label(l)


def chain_load_weights(g, opt):
    W = sr(S_WAVE)
    H = sr(S_RANK)
    g.e('v_bfe_u32 v23, v20, 4, 1')
    g.e('v_lshlrev_b32 v24, 4, v23')
    g.e('v_lshrrev_b32 v25, 5, v20')
    g.e('v_add_u32 v24, v24, v25')
    g.e('s_lshl_b32 %s, %s, 5' % (sr(S_T0), W))
    g.e('v_add_u32 v24, %s, v24' % sr(S_T0))
    g.e('v_lshlrev_b32 v24, 13, v24')
    g.e('v_lshlrev_b32 v25, 1, v23')
    g.e('v_xor_b32 v25, v25, v21')
    g.e('v_lshl_add_u32 v30, v25, 4, v24')
    for i in range(1, 4):
        g.e('v_xor_b32 v%d, %d, v30' % (30 + i, i * 64))
    g.e('s_and_b32 %s, %s, 1' % (sr(S_T0), W))
    g.e('s_lshl_b32 %s, %s, 7' % (sr(S_T0), sr(S_T0)))
    g.e('v_xor_b32 v34, %s, v%d' % (sr(S_T0), V_L16))
    g.e('s_lshl_b32 %s, %s, 13' % (sr(S_T0), W))
    g.e('v_add_u32 v34, %s, v34' % sr(S_T0))
    g.e('v_lshrrev_b32 v23, 2, v21')
    g.e('v_and_b32 v24, 3, v21')
    g.e('v_lshrrev_b32 v25, 1, v22')
    g.e('v_lshlrev_b32 v25, 4, v25')
    g.e('v_lshrrev_b32 v26, 1, v23')
    g.e('v_lshl_add_u32 v25, v26, 3, v25')
    g.e('v_and_b32 v27, 1, v22')
    g.e('v_lshl_add_u32 v25, v27, 2, v25')
    g.e('v_and_b32 v28, 1, v23')
    g.e('v_add_u32 v25, v25, v28')
    g.e('v_lshl_add_u32 v28, v27, 1, v28')
    g.e('v_lshl_add_u32 v28, v26, 2, v28')
    g.e('v_lshlrev_b32 v28, 1, v28')
    g.e('v_lshrrev_b32 v26, 1, v24')
    g.e('v_and_b32 v27, 1, v24')
    g.e('s_lshl_b32 %s, %s, 2' % (sr(S_T0), W))
    g.e('v_add_u32 v29, %s, v26' % sr(S_T0))
    g.e('v_xor_b32 v29, v29, v28')
    g.e('v_lshlrev_b32 v29, 4, v29')
    g.e('v_lshl_add_u32 v29, v27, 3, v29')
    g.e('v_lshl_add_u32 v35, v25, 8, v29')
    g.e('v_xor_b32 v36, 32, v35')
    g.e('v_xor_b32 v29, v26, v28')
    g.e('s_lshl_b32 %s, %s, 4' % (sr(S_T0), W))
    g.e('v_add_u32 v29, %s, v29' % sr(S_T0))
    g.e('v_lshlrev_b32 v29, 4, v29')
    g.e('v_lshl_add_u32 v29, v27, 3, v29')
    g.e('v_lshl_add_u32 v37, v25, 10, v29')

    chunks = [('V', c) for c in range(4)] + [('Q', c) for c in range(4)] + [('K', c) for c in range(4)] + [('O', c) for c in range(4)]
    ptr = {'V': S_WV, 'Q': S_WQ, 'K': S_WK, 'O': S_WO}
    srd = {'V': SRD_A, 'Q': SRD_B, 'K': SRD_A, 'O': SRD_B}

    def issue(ci):
        m, c = chunks[ci]
        ring = RING[ci % 3]
        if c == 0:
            make_srd(g, srd[m], ptr[m], 4 << 20)
        for i in range(8):
            g.e('s_lshl_b32 %s, %s, 13' % (sr(S_T0), W))
            g.e('s_add_u32 %s, %s, %d' % (sr(S_T0), sr(S_T0), ring + i * 1024))
            g.e('s_mov_b32 m0, %s' % sr(S_T0))
            if m != 'O':
                g.e('s_lshl_b32 %s, %s, 8' % (sr(S_T1), H))
                g.e('s_add_u32 %s, %s, %d' % (sr(S_T1), sr(S_T1), (c * 128 + 2 * i) * 8192))
                g.e('buffer_load_dwordx4 v%d, %s, %s offen lds' % (30 + (i & 3), sr(srd[m], 4), sr(S_T1)))
            else:
                x = ((i & 1) | (((i >> 2) & 1) << 1)) * 32
                g.e('v_xor_b32 v38, %d, v34' % x)
                g.e('s_lshl_b32 %s, %s, 17' % (sr(S_T1), H))
                g.e('s_add_u32 %s, %s, %d' % (sr(S_T1), sr(S_T1), (c * 32 + i) * 1024))
                g.e('buffer_load_dwordx4 v38, %s, %s offen lds' % (sr(srd[m], 4), sr(S_T1)))

    for ci in range(3):
        issue(ci)
    for ci in range(16):
        m, c = chunks[ci]
        ring = RING[ci % 3]
        inflight_after = min(15 - ci, 2)
        g.e('s_waitcnt vmcnt(%d)' % (8 * inflight_after))
        g.e('s_barrier')
        if m != 'O':
            g.e('v_add_u32 v38, %d, v35' % ring)
            g.e('v_add_u32 v39, %d, v36' % ring)
            for ksl in range(2):
                ks = 2 * c + ksl
                for t in range(2):
                    for sq in range(4):
                        off = (64 * ksl + 32 * (sq >> 1) + 2 * (sq & 1)) * 256
                        if m == 'Q':
                            dst = ar(A_WQ + (t * 8 + ks) * 8 + sq * 2, 2)
                        elif m == 'K':
                            dst = ar(A_WK + (t * 8 + ks) * 8 + sq * 2, 2)
                        elif t == 0:
                            dst = vr(V_WV0 + ks * 8 + sq * 2, 2)
                        else:
                            dst = vr(BUF + ksl * 8 + sq * 2, 2)
                        g.e('ds_read_b64_tr_b16 %s, v%d offset:%d' % (dst, 38 + t, off))
            g.e('s_waitcnt lgkmcnt(0)')
            if m == 'V':
                for ksl in range(2):
                    ks = 2 * c + ksl
                    g.e('ds_write_b128 v%d, %s offset:%d' % (V_WL, vr(BUF + ksl * 8, 4), ks * 2048))
                    g.e('ds_write_b128 v%d, %s offset:%d' % (V_WL, vr(BUF + ksl * 8 + 4, 4), ks * 2048 + 1024))
                g.e('s_waitcnt lgkmcnt(0)')
        else:
            ks2, hf = c >> 1, c & 1
            for tp in range(8):
                g.e('v_xor_b32 v38, %d, v37' % (tp * 32))
                g.e('v_add_u32 v38, %d, v38' % ring)
                for s1 in range(2):
                    off = (2 * s1) * 1024
                    if tp < 4:
                        dst = vr(V_WOL + (tp * 2 + ks2) * 8 + hf * 4 + s1 * 2, 2)
                    else:
                        dst = vr(BUF + ((tp - 4) * 2 + ks2) * 8 + hf * 4 + s1 * 2, 2)
                    g.e('ds_read_b64_tr_b16 %s, v38 offset:%d' % (dst, off))
            g.e('s_waitcnt lgkmcnt(0)')
        g.e('s_barrier')
        if ci + 3 < 16:
            issue(ci + 3)
    for f in range(8):
        g.e('ds_write_b128 v%d, %s offset:%d' % (V_WO, vr(BUF + f * 8, 4), f * 2048))
        g.e('ds_write_b128 v%d, %s offset:%d' % (V_WO, vr(BUF + f * 8 + 4, 4), f * 2048 + 1024))
    g.e('s_waitcnt lgkmcnt(0)')


def chain_stage_mem0(g, opt):
    make_srd(g, SRD_A, S_MEM0, 8192)
    for half in range(2):
        g.e('v_add_u32 v23, %d, v0' % (half * 256))
        g.e('v_and_b32 v24, 0x1e0, v23')
        g.e('v_and_b32 v25, 1, v23')
        g.e('v_lshl_add_u32 v24, v25, 4, v24')
        g.e('v_bfe_u32 v25, v23, 1, 4')
        g.e('v_add_u32 v24, v24, v25')
        g.e('v_lshlrev_b32 v%d, 1, v24' % (26 + half))
        g.e('v_lshrrev_b32 v24, 3, v23')
        g.e('v_lshlrev_b32 v24, 7, v24')
        g.e('v_and_b32 v25, 7, v23')
        g.e('v_lshl_add_u32 v24, v25, 1, v24')
        g.e('v_add_u32 v%d, 0x%x, v24' % (28 + half, L_MST))
    for m in range(8):
        for half in range(2):
            g.e('buffer_load_ushort v%d, v%d, %s, 0 offen offset:%d' % (AR + m * 2 + half, 26 + half, sr(SRD_A, 4), (m & 3) * 1024)
                if m < 4 else
                'buffer_load_ushort v%d, v%d, %s, %s offen offset:%d' % (AR + m * 2 + half, 26 + half, sr(SRD_A, 4), sr(S_T3), (m & 3) * 1024))
            if m == 3 and half == 1:
                g.e('s_mov_b32 %s, 4096' % sr(S_T3))
    g.e('s_waitcnt vmcnt(0)')
    for m in range(8):
        for half in range(2):
            g.e('ds_write_b16 v%d, v%d offset:%d' % (28 + half, AR + m * 2 + half, m * 16))
    g.e('s_waitcnt lgkmcnt(0)')


def dma_kxvx(g):
    g.e('s_mov_b32 m0, %s' % sr(S_M0KX))
    g.e('s_add_u32 %s, %s, 0x%x' % (sr(S_T0), sr(S_KXO), WS_VX - WS_KX))
    g.e('buffer_load_dwordx4 v%d, %s, %s offen sc1 lds' % (V_L16, sr(SRD_WS, 4), sr(S_KXO)))
    g.e('buffer_load_dwordx4 v%d, %s, %s offen offset:1024 sc1 lds' % (V_L16, sr(SRD_WS, 4), sr(S_KXO)))
    g.e('s_mov_b32 m0, %s' % sr(S_M0VX))
    g.nop(1)
    g.e('buffer_load_dwordx4 v%d, %s, %s offen sc1 lds' % (V_L16, sr(SRD_WS, 4), sr(S_T0)))
    g.e('buffer_load_dwordx4 v%d, %s, %s offen offset:1024 sc1 lds' % (V_L16, sr(SRD_WS, 4), sr(S_T0)))


def prefetch_buf(g, base):
    for f in range(8):
        g.e('ds_read_b128 %s, v%d offset:%d' % (vr(BUF + f * 8, 4), base, f * 2048))
        g.e('ds_read_b128 %s, v%d offset:%d' % (vr(BUF + f * 8 + 4, 4), base, f * 2048 + 1024))


def zero_regs(g, a, n):
    for i in range(0, n, 2):
        g.e('v_mov_b64 %s, 0' % vr(a + i, 2))


def smf(g, d, a, b):
    g.e('v_smfmac_f32_16x16x64_bf16 %s, %s, %s, v%d' % (vr(d, 4), vr(a, 4), b, V_IDX))


def chain_loop(g, opt):
    Q0, Q1, K0, K1, VT0, VT1 = ACC, ACC + 4, ACC + 8, ACC + 12, ACC + 16, ACC + 20
    g.e('s_mov_b32 %s, 0' % sr(S_STEP))
    g.e('s_mov_b32 %s, 1' % sr(S_PHASE))
    g.e('s_mov_b32 %s, 0x%x' % (sr(S_M2W), WS_M2 + 8192))
    g.e('s_mov_b32 %s, 0x%x' % (sr(S_M2Z), WS_M2 + 16384))
    g.e('s_mov_b32 %s, 0x%x' % (sr(S_M2R), WS_M2))
    l = g.newlabel('L_spin')
    g.e('v_mov_b32 v%d, 40' % TMP)
    g.label(l)
    g.guard()
    g.e('global_load_dword v%d, v%d, %s sc1' % (TMP + 1, TMP, sr(S_DBG, 2)))
    g.e('s_waitcnt vmcnt(0)')
    g.e('v_readfirstlane_b32 %s, v%d' % (sr(S_T0), TMP + 1))
    g.nop(3)
    g.e('s_cmp_lt_u32 %s, 32' % sr(S_T0))
    g.e('s_cbranch_scc1 %s' % l)
    if not opt.get('nof1'):
        wait_f1(g, 0)
    dma_kxvx(g)
    g.e('s_add_u32 %s, %s, 0x40000' % (sr(S_KXO), sr(S_KXO)))
    prefetch_buf(g, V_WL)
    zero_regs(g, ACC, 24)
    g.e('s_waitcnt vmcnt(0) lgkmcnt(0)')
    g.e('s_barrier')

    g.label('L_step')
    ts(g, opt, 'start')
    for ks in range(3):
        g.e('ds_read_b128 %s, v%d offset:%d' % (vr(AR + ks * 4, 4), V_AF, ks * 1024))
    g.e('v_mov_b32 v%d, %s' % (TMP, sr(S_STEP)))
    g.e('v_mov_b32 v%d, 0' % (TMP + 1))
    g.e('s_mov_b64 exec, 1')
    g.e('buffer_store_dword v%d, v%d, %s, %s offen sc1' % (TMP, TMP + 1, sr(SRD_WS, 4), sr(S_F2)))
    g.e('s_mov_b64 exec, -1')
    g.e('buffer_store_dword v%d, v%d, %s, %s offen' % (V_ONES, V_MS, sr(SRD_WS, 4), sr(S_M2Z)))
    g.e('s_cmp_ge_u32 %s, 63' % sr(S_STEP))
    lw = g.newlabel('L_nowarm')
    g.e('s_cbranch_scc1 %s' % lw)
    if not opt.get('nof1'):
        lf = g.newlabel('L_nof1')
        g.e('s_and_b32 %s, %s, 3' % (sr(S_T0), sr(S_STEP)))
        g.e('s_cmp_lg_u32 %s, 3' % sr(S_T0))
        g.e('s_cbranch_scc1 %s' % lf)
        wait_f1(g, None)
        g.label(lf)
    g.e('buffer_load_dword v%d, v%d, %s, %s offen sc1' % (V_WD, V_WM, sr(SRD_WS, 4), sr(S_KXO)))
    g.label(lw)
    ts(g, opt, 'pre-qk', True)
    for ks in range(8):
        a = AR + (ks & 3) * 4
        g.e('s_waitcnt lgkmcnt(%d)' % (2 if ks < 6 else 2))
        nk = ks + 3
        g.e('ds_read_b128 %s, v%d offset:%d' % (vr(AR + (nk & 3) * 4, 4), V_AF, (nk & 7) * 1024))
        smf(g, Q0, a, ar(A_WQ + (0 * 8 + ks) * 8, 8))
        smf(g, Q1, a, ar(A_WQ + (1 * 8 + ks) * 8, 8))
        smf(g, K0, a, ar(A_WK + (0 * 8 + ks) * 8, 8))
        smf(g, K1, a, ar(A_WK + (1 * 8 + ks) * 8, 8))
    ts(g, opt, 'qk', True)
    fin = []
    for t, (acc, base) in enumerate(((Q0, 0), (Q1, 256), (K0, 2048), (K1, 2048 + 256))):
        fin.append('v_add_f32 v%d, v%d, v%d' % (acc, acc, acc + 1))
        fin.append('v_add_f32 v%d, v%d, v%d' % (acc + 2, acc + 2, acc + 3))
        fin.append('v_cvt_pk_bf16_f32 v%d, v%d, v%d' % (acc, acc, acc + 2))
        fin.append('ds_write_b16 v%d, v%d offset:%d' % (V_QW, acc, base))
        fin.append('ds_write_b16_d16_hi v%d, v%d offset:%d' % (V_QW, acc, base + 16))
    lg_out = 3
    pend = ['A0', 'A1', 'A2']

    def wait_for(name):
        i = pend.index(name)
        n = len(pend) - 1 - i
        g.e('s_waitcnt lgkmcnt(%d)' % n)
        del pend[:i + 1]

    fi = 0
    for ks in range(8):
        a = AR + (ks & 3) * 4
        wait_for('A%d' % ks)
        if ks + 3 < 8:
            nk = ks + 3
            g.e('ds_read_b128 %s, v%d offset:%d' % (vr(AR + (nk & 3) * 4, 4), V_AF, nk * 1024))
            pend.append('A%d' % nk)
        smf(g, VT1, a, vr(BUF + ks * 8, 8))
        smf(g, VT0, a, vr(V_WV0 + ks * 8, 8))
        if ks == 0:
            g.nop(4)
        if ks >= 0:
            for _ in range(5):
                if fi < len(fin):
                    g.e(fin[fi])
                    if fin[fi].startswith('ds_'):
                        pend.append('W%d' % fi)
                    fi += 1
        if ks == 3:
            pass
        if ks == 4:
            for f in range(8):
                g.e('ds_read_b128 %s, v%d offset:%d' % (vr(BUF + f * 4, 4), V_HI, f * 1024))
                pend.append('KX%d' % f)
    g.e('s_waitcnt lgkmcnt(0)')
    ts(g, opt, 'v', True)
    pend.clear()
    g.e('s_barrier')
    ts(g, opt, 'qkbar')
    QF, KMF = BUF + 32, BUF + 48
    for ks in range(4):
        g.e('ds_read_b128 %s, v%d offset:%d' % (vr(QF + ks * 4, 4), V_QR, ks * 512))
        g.e('ds_read_b128 %s, v%d offset:%d' % (vr(KMF + ks * 4, 4), V_KR, ks * 512))
    VXF = AR
    g.e('ds_read_b128 %s, v%d offset:%d' % (vr(VXF, 4), V_HIW, 8192))
    g.e('ds_read_b128 %s, v%d offset:%d' % (vr(VXF + 4, 4), V_HIW, 8192 + 1024))
    VM0, VM1 = AR + 8, AR + 10
    g.e('v_add_f32 v%d, v%d, v%d' % (VT0, VT0, VT0 + 1))
    g.e('v_add_f32 v%d, v%d, v%d' % (VT0 + 2, VT0 + 2, VT0 + 3))
    g.e('v_add_f32 v%d, v%d, v%d' % (VT1, VT1, VT1 + 1))
    g.e('v_add_f32 v%d, v%d, v%d' % (VT1 + 2, VT1 + 2, VT1 + 3))
    g.e('v_cvt_pk_bf16_f32 v%d, v%d, v%d' % (VM0, VT0, VT0 + 2))
    g.e('v_cvt_pk_bf16_f32 v%d, v%d, v%d' % (VM1, VT1, VT1 + 2))
    g.e('v_mov_b32 v%d, 0' % (VM0 + 1))
    g.e('v_mov_b32 v%d, 0' % (VM1 + 1))
    SX0, SX1, SM = ACC, ACC + 4, ACC + 8
    for ks in range(4):
        g.e('s_waitcnt lgkmcnt(%d)' % (2 + 2 * (3 - ks)))
        c0 = '0' if ks == 0 else vr(SX0, 4)
        c1 = '0' if ks == 0 else vr(SX1, 4)
        c2 = '0' if ks == 0 else vr(SM, 4)
        g.e('v_mfma_f32_16x16x32_bf16 %s, %s, %s, %s' % (vr(SX0, 4), vr(BUF + (0 * 4 + ks) * 4, 4), vr(QF + ks * 4, 4), c0))
        g.e('v_mfma_f32_16x16x32_bf16 %s, %s, %s, %s' % (vr(SX1, 4), vr(BUF + (1 * 4 + ks) * 4, 4), vr(QF + ks * 4, 4), c1))
        g.e('v_mfma_f32_16x16x32_bf16 %s, %s, %s, %s' % (vr(SM, 4), vr(KMF + ks * 4, 4), vr(QF + ks * 4, 4), c2))
    ts(g, opt, 'scmfma', True)
    for wv in range(4):
        ln = g.newlabel('L_km')
        g.e('s_cmp_lg_u32 %s, %d' % (sr(S_WAVE), wv))
        g.e('s_cbranch_scc1 %s' % ln)
        g.e('buffer_store_dwordx4 %s, v%d, %s, %s offen sc1' % (vr(KMF + wv * 4, 4), V_KS, sr(SRD_WS, 4), sr(S_KMO)))
        g.label(ln)
    g.e('s_add_u32 %s, %s, 0x%x' % (sr(S_T0), sr(S_KMO), WS_VM - WS_KM))
    g.e('buffer_store_dword v%d, v%d, %s, %s offen sc1' % (VM0, V_VS, sr(SRD_WS, 4), sr(S_T0)))
    g.e('buffer_store_dword v%d, v%d, %s, %s offen offset:256 sc1' % (VM1, V_VS, sr(SRD_WS, 4), sr(S_T0)))
    g.e('s_add_u32 %s, %s, 0x10000' % (sr(S_KMO), sr(S_KMO)))
    g.e('s_cmp_eq_u32 %s, 63' % sr(S_STEP))
    g.e('s_cbranch_scc1 L_chain_done')
    ts(g, opt, 'kmst', True)
    for f in range(4):
        g.e('ds_read_b128 %s, v%d offset:%d' % (vr(BUF + f * 8, 4), V_WO, f * 2048))
        g.e('ds_read_b128 %s, v%d offset:%d' % (vr(BUF + f * 8 + 4, 4), V_WO, f * 2048 + 1024))
    ts(g, opt, 'pf1', True)
    S = [SX0 + i for i in range(8)] + [SM, SM + 1]
    C = [ACC + 12 + i for i in range(5)]
    g.nop(2)

    def rnd():
        for i in range(5):
            g.e('v_cvt_pk_bf16_f32 v%d, v%d, v%d' % (C[i], S[2 * i], S[2 * i + 1]))
        for i in range(5):
            g.e('v_lshlrev_b32 v%d, 16, v%d' % (S[2 * i], C[i]))
            g.e('v_and_b32 v%d, 0xffff0000, v%d' % (S[2 * i + 1], C[i]))
    rnd()
    for i in range(5):
        g.e('v_pk_mul_f32 %s, %s, %s' % (vr(S[2 * i], 2), vr(S[2 * i], 2), sr(S_SC, 2)))
    rnd()
    MX, MT = TMP, TMP + 1
    g.e('v_max3_f32 v%d, v%d, v%d, v%d' % (MX, S[0], S[1], S[2]))
    g.e('v_max3_f32 v%d, v%d, v%d, v%d' % (MT, S[3], S[4], S[5]))
    g.e('v_max3_f32 v%d, v%d, v%d, v%d' % (MX, MX, S[6], S[7]))
    g.e('v_max3_f32 v%d, v%d, v%d, v%d' % (MT, MT, S[8], S[9]))
    g.e('v_max_f32 v%d, v%d, v%d' % (MX, MX, MT))
    for sw in ('v_permlane16_swap_b32', 'v_permlane32_swap_b32'):
        g.e('v_mov_b32 v%d, v%d' % (MT, MX))
        g.nop(2)
        g.e('%s v%d, v%d' % (sw, MT, MX))
        g.nop(1)
        g.e('v_max_f32 v%d, v%d, v%d' % (MX, MX, MT))
    g.e('v_mov_b32 v%d, v%d' % (MT, MX))
    for i in range(5):
        g.e('v_pk_add_f32 %s, %s, %s neg_lo:[0,1] neg_hi:[0,1]' % (vr(S[2 * i], 2), vr(S[2 * i], 2), vr(MX, 2)))
    for i in range(5):
        g.e('v_pk_mul_f32 %s, %s, %s' % (vr(S[2 * i], 2), vr(S[2 * i], 2), sr(S_L2E, 2)))
    for i in range(10):
        g.e('v_exp_f32 v%d, v%d' % (S[i], S[i]))
    ts(g, opt, 'exp', True)
    for f in range(4, 8):
        g.e('ds_read_b128 %s, v%d offset:%d' % (vr(BUF + f * 8, 4), V_WO, f * 2048))
        g.e('ds_read_b128 %s, v%d offset:%d' % (vr(BUF + f * 8 + 4, 4), V_WO, f * 2048 + 1024))
    ts(g, opt, 'pf2', True)
    g.e('v_pk_add_f32 %s, %s, %s' % (vr(C[0], 2), vr(S[0], 2), vr(S[2], 2)))
    g.e('v_pk_add_f32 %s, %s, %s' % (vr(C[2], 2), vr(S[4], 2), vr(S[6], 2)))
    g.e('v_pk_add_f32 %s, %s, %s' % (vr(C[0], 2), vr(C[0], 2), vr(S[8], 2)))
    g.e('v_pk_add_f32 %s, %s, %s' % (vr(C[0], 2), vr(C[0], 2), vr(C[2], 2)))
    g.e('v_add_f32 v%d, v%d, v%d' % (MX, C[0], C[1]))
    for sw in ('v_permlane16_swap_b32', 'v_permlane32_swap_b32'):
        g.e('v_mov_b32 v%d, v%d' % (MT, MX))
        g.nop(2)
        g.e('%s v%d, v%d' % (sw, MT, MX))
        g.nop(1)
        g.e('v_add_f32 v%d, v%d, v%d' % (MX, MX, MT))
    g.e('v_rcp_f32 v%d, v%d' % (MX, MX))
    g.nop(1)
    g.e('v_mov_b32 v%d, v%d' % (MT, MX))
    for i in range(5):
        g.e('v_pk_mul_f32 %s, %s, %s' % (vr(S[2 * i], 2), vr(S[2 * i], 2), vr(MX, 2)))
    PX, PM = AR + 12, TMP + 2
    for i in range(4):
        g.e('v_cvt_pk_bf16_f32 v%d, v%d, v%d' % (PX + i, S[2 * i], S[2 * i + 1]))
    g.e('v_cvt_pk_bf16_f32 v%d, v%d, v%d' % (PM, S[8], S[9]))
    g.e('v_mov_b32 v%d, 0' % (PM + 1))
    g.nop(1)
    ts(g, opt, 'smax')
    O0, O1 = ACC + 12, ACC + 16
    g.e('s_waitcnt lgkmcnt(15)')
    g.e('v_mfma_f32_16x16x32_bf16 %s, %s, %s, 0' % (vr(O0, 4), vr(VXF, 4), vr(PX, 4)))
    g.e('v_mfma_f32_16x16x32_bf16 %s, %s, %s, 0' % (vr(O1, 4), vr(VXF + 4, 4), vr(PX, 4)))
    g.e('v_mfma_f32_16x16x16_bf16 %s, %s, %s, %s' % (vr(O0, 4), vr(VM0, 2), vr(PM, 2), vr(O0, 4)))
    g.e('v_mfma_f32_16x16x16_bf16 %s, %s, %s, %s' % (vr(O1, 4), vr(VM1, 2), vr(PM, 2), vr(O1, 4)))
    zero_regs(g, ACC, 12)
    g.nop(2)
    OP = ACC + 20
    g.e('v_cvt_pk_bf16_f32 v%d, v%d, v%d' % (OP, O0, O0 + 1))
    g.e('v_cvt_pk_bf16_f32 v%d, v%d, v%d' % (OP + 1, O0 + 2, O0 + 3))
    g.e('v_cvt_pk_bf16_f32 v%d, v%d, v%d' % (OP + 2, O1, O1 + 1))
    g.e('v_cvt_pk_bf16_f32 v%d, v%d, v%d' % (OP + 3, O1 + 2, O1 + 3))
    g.e('ds_write_b64 v%d, %s' % (V_OW, vr(OP, 2)))
    g.e('ds_write_b64 v%d, %s offset:256' % (V_OW, vr(OP + 2, 2)))
    zero_regs(g, ACC + 12, 8)
    zero_regs(g, AR, 8)
    g.e('s_waitcnt lgkmcnt(0)')
    zero_regs(g, ACC + 20, 4)
    g.e('s_barrier')
    ts(g, opt, 'obar')
    OA = AR + 8
    g.e('ds_read_b128 %s, v%d offset:%d' % (vr(OA, 4), V_AF, L_O - L_MST))
    g.e('ds_read_b128 %s, v%d offset:%d' % (vr(OA + 4, 4), V_AF, L_O - L_MST + 1024))
    dma_kxvx(g)
    g.e('s_add_u32 %s, %s, 0x40000' % (sr(S_KXO), sr(S_KXO)))
    g.e('s_waitcnt lgkmcnt(0)')

    ts(g, opt, 'oread', True)

    def wfrag(tp, ks2):
        if tp < 4:
            return vr(V_WOL + (tp * 2 + ks2) * 8, 8)
        return vr(BUF + ((tp - 4) * 2 + ks2) * 8, 8)

    def post(u):
        a, b = ACC + u * 8, ACC + u * 8 + 4
        ops = ['v_add_f32 v%d, v%d, v%d' % (a, a, a + 1),
               'v_add_f32 v%d, v%d, v%d' % (a + 1, b, b + 1),
               'v_add_f32 v%d, v%d, v%d' % (a + 2, a + 2, a + 3),
               'v_add_f32 v%d, v%d, v%d' % (a + 3, b + 2, b + 3)]
        for i in range(4):
            ops.append('v_bfi_b32 v%d, 1, %s, v%d' % (a + i, sr(S_PHASE), a + i))
        so = '0' if u == 0 else sr((S_U1, S_U2, S_U3)[u - 1])
        ops.append('buffer_store_dwordx4 %s, v%d, %s, %s offen' % (vr(a, 4), V_PS, sr(SRD_WS, 4), so))
        return ops

    pendp = []
    for u in range(4):
        for ks2 in range(2):
            for ab in range(2):
                tp = 2 * u + ab
                smf(g, ACC + tp * 4, OA + ks2 * 4, wfrag(tp, ks2))
                for _ in range(3):
                    if pendp:
                        g.e(pendp.pop(0))
        while pendp:
            g.e(pendp.pop(0))
        pendp = [None]
        pendp = post(u)
        if u < 3:
            pendp = ['s_nop 2', 's_nop 2'] + pendp
    g.nop(8)
    while pendp:
        g.e(pendp.pop(0))
    ts(g, opt, 'wo')
    prefetch_buf(g, V_WL)
    ts(g, opt, 'pfv', True)
    PL = [ACC + 4, ACC + 12, ACC + 20, ACC + 28]
    lp = g.newlabel('L_poll1')
    if opt.get('ts'):
        g.e('s_mov_b32 s80, 0')
    g.label(lp)
    g.guard()
    if opt.get('ts'):
        g.e('s_add_u32 s80, s80, 1')
    for i in range(4):
        g.e('buffer_load_dwordx4 %s, v%d, %s, %s offen offset:%d sc1' % (vr(PL[i], 4), V_L16, sr(SRD_WS, 4), sr(S_PL), i * 1024))
    g.e('v_mov_b32 v%d, %s' % (TMP + 3, sr(S_PHASE)))
    T = [AR + 8 + i for i in range(8)]
    for i in range(4):
        g.e('s_waitcnt vmcnt(%d)' % (3 - i))
        tt = 0
        for a in range(2):
            for b in range(2):
                for c_ in range(2):
                    if (a ^ c_) | (b ^ c_):
                        tt |= 1 << (a * 4 + b * 2 + c_)
        g.e('v_bitop3_b32 v%d, v%d, v%d, v%d bitop3:0x%x' % (T[2 * i], PL[i], PL[i] + 1, TMP + 3, tt))
        g.e('v_bitop3_b32 v%d, v%d, v%d, v%d bitop3:0x%x' % (T[2 * i + 1], PL[i] + 2, PL[i] + 3, TMP + 3, tt))
    g.e('v_or3_b32 v%d, v%d, v%d, v%d' % (T[0], T[0], T[1], T[2]))
    g.e('v_or3_b32 v%d, v%d, v%d, v%d' % (T[3], T[3], T[4], T[5]))
    g.e('v_or3_b32 v%d, v%d, v%d, v%d' % (T[0], T[0], T[6], T[7]))
    g.e('v_or_b32 v%d, v%d, v%d' % (T[0], T[0], T[3]))
    g.e('v_and_b32 v%d, 1, v%d' % (T[0], T[0]))
    g.e('v_cmp_ne_u32 vcc, 0, v%d' % T[0])
    g.e('v_pk_add_f32 %s, %s, %s' % (vr(PL[0], 2), vr(PL[0], 2), vr(PL[1], 2)))
    g.e('v_pk_add_f32 %s, %s, %s' % (vr(PL[0] + 2, 2), vr(PL[0] + 2, 2), vr(PL[1] + 2, 2)))
    g.e('s_cbranch_vccnz %s' % lp)
    ts(g, opt, 'hop1')
    g.e('v_pk_add_f32 %s, %s, %s' % (vr(PL[2], 2), vr(PL[2], 2), vr(PL[3], 2)))
    g.e('v_pk_add_f32 %s, %s, %s' % (vr(PL[2] + 2, 2), vr(PL[2] + 2, 2), vr(PL[3] + 2, 2)))
    g.e('v_pk_add_f32 %s, %s, %s' % (vr(PL[0], 2), vr(PL[0], 2), vr(PL[2], 2)))
    g.e('v_pk_add_f32 %s, %s, %s' % (vr(PL[0] + 2, 2), vr(PL[0] + 2, 2), vr(PL[2] + 2, 2)))
    r0 = PL[0]
    g.nop(2)
    g.e('v_permlane32_swap_b32 v%d, v%d' % (r0, r0 + 2))
    g.e('v_permlane32_swap_b32 v%d, v%d' % (r0 + 1, r0 + 3))
    g.nop(1)
    g.e('v_pk_add_f32 %s, %s, %s' % (vr(r0, 2), vr(r0, 2), vr(r0 + 2, 2)))
    g.nop(2)
    g.e('v_permlane16_swap_b32 v%d, v%d' % (r0, r0 + 1))
    g.nop(1)
    g.e('v_add_f32 v%d, v%d, v%d' % (r0, r0, r0 + 1))
    g.nop(2)
    g.e('v_add_f32_dpp v%d, v%d, v%d row_ror:8 row_mask:0xf bank_mask:0xf' % (r0, r0, r0))
    g.e('v_mov_b32 v%d, v%d' % (r0 + 1, r0))
    g.nop(2)
    g.e('v_permlane16_swap_b32 v%d, v%d' % (r0, r0 + 1))
    g.nop(1)
    g.e('v_cvt_pk_bf16_f32 v%d, v%d, v%d' % (r0, r0, r0 + 1))
    g.e('v_min_u32 v%d, -2, v%d' % (r0, r0))
    g.e('buffer_store_dword v%d, v%d, %s, %s offen' % (r0, V_MS, sr(SRD_WS, 4), sr(S_M2W)))
    g.e('s_add_u32 %s, %s, 1' % (sr(S_STEP), sr(S_STEP)))
    g.e('s_mov_b32 %s, %s' % (sr(S_T0), sr(S_M2R)))
    g.e('s_mov_b32 %s, %s' % (sr(S_M2R), sr(S_M2W)))
    g.e('s_mov_b32 %s, %s' % (sr(S_M2W), sr(S_M2Z)))
    g.e('s_mov_b32 %s, %s' % (sr(S_M2Z), sr(S_T0)))
    g.e('s_xor_b32 %s, %s, 1' % (sr(S_PHASE), sr(S_PHASE)))
    g.e('s_lshl_b32 %s, %s, 11' % (sr(S_T1), sr(S_WAVE)))
    g.e('s_add_u32 %s, %s, %s' % (sr(S_T1), sr(S_T1), sr(S_M2R)))
    zero_regs(g, ACC, 4)
    zero_regs(g, ACC + 8, 16)
    ts(g, opt, 'red')
    PMR = AR + 8
    lp = g.newlabel('L_poll2')
    if opt.get('ts'):
        g.e('s_mov_b32 s81, 0')
    g.label(lp)
    g.guard()
    if opt.get('ts'):
        g.e('s_add_u32 s81, s81, 1')
    g.e('buffer_load_dwordx4 %s, v%d, %s, %s offen sc1' % (vr(PMR, 4), V_L16, sr(SRD_WS, 4), sr(S_T1)))
    g.e('buffer_load_dwordx4 %s, v%d, %s, %s offen offset:1024 sc1' % (vr(PMR + 4, 4), V_L16, sr(SRD_WS, 4), sr(S_T1)))
    g.e('s_waitcnt vmcnt(1)')
    g.e('v_max3_u32 v%d, v%d, v%d, v%d' % (TMP, PMR, PMR + 1, PMR + 2))
    g.e('s_waitcnt vmcnt(0)')
    g.e('v_max3_u32 v%d, v%d, v%d, v%d' % (TMP + 1, PMR + 3, PMR + 4, PMR + 5))
    g.e('v_max3_u32 v%d, v%d, v%d, v%d' % (TMP, TMP, PMR + 6, PMR + 7))
    g.e('v_max_u32 v%d, v%d, v%d' % (TMP, TMP, TMP + 1))
    g.e('v_cmp_eq_u32 vcc, -1, v%d' % TMP)
    g.e('s_cbranch_vccnz %s' % lp)
    g.e('ds_write_b128 v%d, %s offset:16384' % (V_HIW, vr(PMR, 4)))
    g.e('ds_write_b128 v%d, %s offset:17408' % (V_HIW, vr(PMR + 4, 4)))
    zero_regs(g, ACC + 4, 4)
    ts(g, opt, 'hop2')
    ts_flush(g, opt)
    g.e('s_waitcnt lgkmcnt(0)')
    g.e('s_barrier')
    g.e('s_branch L_step')
    g.label('L_chain_done')
    g.e('s_waitcnt vmcnt(0)')
    g.e('v_mov_b32 v%d, 64' % TMP)
    g.e('v_mov_b32 v%d, 0' % (TMP + 1))
    g.e('s_mov_b64 exec, 1')
    g.e('buffer_store_dword v%d, v%d, %s, %s offen sc1' % (TMP, TMP + 1, sr(SRD_WS, 4), sr(S_F2)))
    g.e('s_mov_b64 exec, -1')
    g.e('s_branch L_exit')


def wait_f1(g, R):
    if R is None:
        g.e('s_add_u32 %s, %s, 1' % (sr(S_T0), sr(S_STEP)))
        g.e('s_and_b32 %s, %s, 0xfffffffc' % (sr(S_T0), sr(S_T0)))
        g.e('s_add_u32 %s, %s, %s' % (sr(S_T0), sr(S_T0), sr(S_F1)))
    else:
        g.e('s_add_u32 %s, %s, %d' % (sr(S_T0), sr(S_F1), R * 4))
    l = g.newlabel('L_f1')
    g.e('v_mov_b32 v%d, 0' % TMP)
    g.label(l)
    g.guard()
    g.e('buffer_load_dword v%d, v%d, %s, %s offen sc1' % (TMP + 1, TMP, sr(SRD_WS, 4), sr(S_T0)))
    g.e('s_waitcnt vmcnt(0)')
    g.e('v_readfirstlane_b32 %s, v%d' % (sr(S_T1), TMP + 1))
    g.nop(3)
    g.e('s_cmp_eq_u32 %s, 0' % sr(S_T1))
    g.e('s_cbranch_scc1 %s' % l)


def build(opt):
    g = G()
    hdr = open('cdna_kernels/%s.s.ref' % NAME).read().split('\n')
    for l in hdr:
        if l.startswith(';') and '@launch' not in l:
            g.lines.append(l)
        elif not l.startswith(';'):
            break
    g.lines.append('; @launch grid=(256,1,1) block=(256,1,1) lds=%d' % LDS_SIZE)
    g.lines.append('.amdgcn_target "amdgcn-amd-amdhsa--gfx950"')
    g.lines.append('.text')
    g.lines.append('.globl %s_kernel' % NAME)
    g.lines.append('.p2align 8')
    g.lines.append('.type %s_kernel,@function' % NAME)
    g.label('%s_kernel' % NAME)
    prologue(g, opt)
    import genc
    genc.setup(g, opt)
    genc.load_weights(g, opt)
    if opt.get('rt'):
        g.e('s_memrealtime s[76:77]')
        g.e('s_waitcnt lgkmcnt(0)')
    genc.loop(g, opt)
    if opt.get('noworker'):
        g.label('L_worker')
    else:
        import genw
        genw.worker(g, opt)
    g.label('L_exit')
    g.e('s_endpgm')
    g.lines.append('.section .rodata,"a"')
    g.lines.append('.p2align 6')
    g.lines.append('.amdhsa_kernel %s_kernel' % NAME)
    g.lines.append('  .amdhsa_next_free_vgpr 512')
    g.lines.append('  .amdhsa_next_free_sgpr 102')
    g.lines.append('  .amdhsa_accum_offset 256')
    g.lines.append('  .amdhsa_group_segment_fixed_size 0')
    g.lines.append('  .amdhsa_kernarg_size 104')
    g.lines.append('  .amdhsa_user_sgpr_count 2')
    g.lines.append('  .amdhsa_user_sgpr_kernarg_segment_ptr 1')
    g.lines.append('  .amdhsa_system_sgpr_workgroup_id_x 1')
    g.lines.append('  .amdhsa_float_denorm_mode_32 3')
    g.lines.append('.end_amdhsa_kernel')
    return g.text()


if __name__ == '__main__':
    opt = {}
    out = sys.argv[1]
    for a in sys.argv[2:]:
        opt[a] = True
    open(out, 'w').write(build(opt))
    open(out + '.names', 'w').write(' '.join(TS_NAMES))
```

```python
from gen import *

C_KX = 0
C_VX = 8192
C_MST = 16384
C_Q = 24576
C_K = 26624
C_VM = 28672
C_O = 30720
C_W = 32768
C_RING = [0, 98304, 131072]
C_SEL = C_O

PB2_STRIDE = 8192 + 128
WS_KV = WS_KM

(V_L16, V_WL, V_AF, V_QW, V_QR, V_KR, V_OW, V_PS, V_MS, V_PLD, V_WM, V_IDX, V_VW, V_FL, V_WD, V_ONE) = range(16)
S_SELM = 86
S_H0, S_H1, S_H2 = 94, 95, 96
A0 = 16
ACC2 = 48
RG = 72
PM = 120
Q0, Q1, K0, K1, VT0, VT1 = ACC2, ACC2 + 4, ACC2 + 8, ACC2 + 12, ACC2 + 16, ACC2 + 20
A_Q0, A_K, A_V0 = 0, 64, 192
V_V1 = 128
V_WOL = 192
S_PL2 = 56
S_P1M = 84

S_W512 = 78
S_W1K = 79
S_U = 55
S_KVO = 62
S_LO8 = 82


class Sched:
    def __init__(self, g):
        self.g = g
        self.l = []
        self.v = []

    def ds(self, s, name=None):
        self.g.e(s)
        self.l.append(name)

    def vm(self, s, name=None):
        self.g.e(s)
        self.v.append(name)

    def wl(self, name):
        if name not in self.l:
            return
        i = len(self.l) - 1 - self.l[::-1].index(name)
        n = len(self.l) - 1 - i
        assert n <= 15, (name, n)
        self.g.e('s_waitcnt lgkmcnt(%d)' % n)
        del self.l[:i + 1]

    def wl_all(self):
        self.g.e('s_waitcnt lgkmcnt(0)')
        self.l = []


TS_PAIRS = [4, 6, 8, 10, 12, 14, 16, 18, 20, 22, 24, 36, 38, 40, 42, 98, 72, 30]


def ts2(g, opt, name, fine=False):
    if not opt.get('ts') or (fine and not opt.get('fine')):
        return
    if opt.get('only') is not None and name not in opt['only'] and name != 'start':
        return
    idx = len(TS_NAMES)
    TS_NAMES.append(str(name))
    g.e('s_memtime %s' % sr(TS_PAIRS[idx], 2))


def ts2_flush(g, opt, tmp):
    if not opt.get('ts'):
        return
    g.e('s_waitcnt lgkmcnt(0)')
    for i in range(len(TS_NAMES)):
        g.e('v_writelane_b32 v%d, s%d, %d' % (tmp + 1, TS_PAIRS[i], i))
    g.e('v_writelane_b32 v%d, s80, 62' % (tmp + 1))
    g.e('v_writelane_b32 v%d, s81, 63' % (tmp + 1))
    g.e('s_lshl_b32 %s, %s, 2' % (sr(S_T0), sr(S_RANK)))
    g.e('s_add_u32 %s, %s, %s' % (sr(S_T0), sr(S_T0), sr(S_WAVE)))
    g.e('s_lshl_b32 %s, %s, 6' % (sr(S_T0), sr(S_T0)))
    g.e('s_add_u32 %s, %s, %s' % (sr(S_T0), sr(S_T0), sr(S_STEP)))
    g.e('s_lshl_b32 %s, %s, 8' % (sr(S_T0), sr(S_T0)))
    g.e('s_add_u32 %s, %s, 0x%x' % (sr(S_T0), sr(S_T0), WS_TS))
    g.e('v_lshrrev_b32 v%d, 2, v%d' % (tmp, V_L16))
    g.e('buffer_store_dword v%d, v%d, %s, %s offen' % (tmp + 1, tmp, sr(SRD_WS, 4), sr(S_T0)))


def setup(g, opt):
    W = sr(S_WAVE)
    H = sr(S_RANK)
    g.e('v_mov_b32 v19, v0')
    g.e('v_and_b32 v20, 63, v19')
    g.e('v_and_b32 v21, 15, v19')
    g.e('v_bfe_u32 v22, v19, 4, 2')
    g.e('v_lshlrev_b32 v%d, 4, v20' % V_L16)
    g.e('s_lshl_b32 %s, %s, 9' % (sr(S_W512), W))
    g.e('s_lshl_b32 %s, %s, 10' % (sr(S_W1K), W))
    g.e('s_lshl_b32 %s, %s, 14' % (sr(S_T0), W))
    g.e('s_add_u32 %s, %s, %d' % (sr(S_T0), sr(S_T0), C_W))
    g.e('v_add_u32 v%d, %s, v%d' % (V_WL, sr(S_T0), V_L16))
    g.e('v_lshlrev_b32 v23, 8, v22')
    g.e('v_bfe_u32 v24, v21, 1, 1')
    g.e('v_lshl_add_u32 v23, v24, 7, v23')
    g.e('v_lshrrev_b32 v24, 2, v21')
    g.e('v_lshl_add_u32 v23, v24, 5, v23')
    g.e('v_and_b32 v24, 1, v21')
    g.e('v_lshl_add_u32 v%d, v24, 4, v23' % V_AF)
    g.e('v_lshrrev_b32 v23, 3, v21')
    g.e('v_lshlrev_b32 v23, 7, v23')
    g.e('v_lshl_add_u32 v23, v22, 5, v23')
    g.e('v_and_b32 v24, 7, v21')
    g.e('v_lshl_add_u32 v23, v24, 1, v23')
    g.e('v_add_u32 v%d, %s, v23' % (V_QW, sr(S_W512)))
    g.e('v_lshlrev_b32 v23, 7, v22')
    g.e('v_lshl_add_u32 v%d, v24, 4, v23' % V_QR)
    g.e('v_lshrrev_b32 v24, 2, v21')
    g.e('v_lshlrev_b32 v24, 1, v24')
    g.e('v_and_b32 v25, 1, v21')
    g.e('v_add_u32 v24, v24, v25')
    g.e('v_lshl_add_u32 v%d, v24, 4, v23' % V_KR)
    g.e('v_lshrrev_b32 v23, 1, v22')
    g.e('v_lshlrev_b32 v23, 7, v23')
    g.e('v_lshl_add_u32 v23, v21, 4, v23')
    g.e('v_and_b32 v24, 1, v22')
    g.e('v_lshl_add_u32 v23, v24, 3, v23')
    g.e('s_add_u32 %s, %s, %d' % (sr(S_T1), sr(S_W512), C_O))
    g.e('v_add_u32 v23, %s, v23' % sr(S_T1))
    g.e('v_lshlrev_b32 v24, 3, v19')
    g.e('v_add_u32 v24, %d, v24' % C_MST)
    g.e('v_cmp_gt_u32 vcc, 8, v21')
    g.nop(2)
    g.e('v_cndmask_b32 v%d, v24, v23, vcc' % V_OW)
    g.e('v_lshlrev_b32 v23, 4, v21')
    g.e('v_lshl_add_u32 v23, v22, 2, v23')
    g.e('v_add_u32 v%d, %s, v23' % (V_VW, sr(S_W512)))
    g.e('s_lshl_b32 %s, %s, 3' % (sr(S_T1), W))
    g.e('v_add_u32 v23, %s, v22' % sr(S_T1))
    g.e('v_mul_u32_u24 v23, %d, v23' % PB2_STRIDE)
    g.e('v_lshl_add_u32 v23, v21, 3, v23')
    g.e('s_lshl_b32 %s, %s, 8' % (sr(S_T1), H))
    g.e('s_add_u32 %s, %s, 0x%x' % (sr(S_T1), sr(S_T1), WS_PB))
    g.e('v_add_u32 v%d, %s, v23' % (V_PS, sr(S_T1)))
    g.e('s_mov_b32 %s, %d' % (sr(S_U), 4 * PB2_STRIDE))
    g.e('s_mul_i32 %s, %s, %d' % (sr(S_PL), H, PB2_STRIDE))
    g.e('s_lshl_b32 %s, %s, 6' % (sr(S_T1), W))
    g.e('s_add_u32 %s, %s, %s' % (sr(S_PL), sr(S_PL), sr(S_T1)))
    g.e('s_add_u32 %s, %s, 0x%x' % (sr(S_PL), sr(S_PL), WS_PB))
    g.e('s_add_u32 %s, %s, 4096' % (sr(S_PL2), sr(S_PL)))
    g.e('v_lshrrev_b32 v23, 2, v20')
    g.e('v_lshlrev_b32 v23, 8, v23')
    g.e('v_and_b32 v24, 3, v20')
    g.e('v_lshl_add_u32 v%d, v24, 4, v23' % V_PLD)
    g.e('s_lshr_b32 %s, %s, 2' % (sr(S_T2), H))
    g.e('s_lshl_b32 %s, %s, 10' % (sr(S_T2), sr(S_T2)))
    g.e('s_and_b32 %s, %s, 1' % (sr(S_T3), W))
    g.e('s_lshl_b32 %s, %s, 9' % (sr(S_T3), sr(S_T3)))
    g.e('s_add_u32 %s, %s, %s' % (sr(S_T2), sr(S_T2), sr(S_T3)))
    g.e('s_lshr_b32 %s, %s, 1' % (sr(S_T3), W))
    g.e('s_lshl_b32 %s, %s, 2' % (sr(S_T3), sr(S_T3)))
    g.e('s_add_u32 %s, %s, %s' % (sr(S_T2), sr(S_T2), sr(S_T3)))
    g.e('s_and_b32 %s, %s, 3' % (sr(S_T3), H))
    g.e('s_lshl_b32 %s, %s, 6' % (sr(S_T0), sr(S_T3)))
    g.e('s_add_u32 %s, %s, %s' % (sr(S_T2), sr(S_T2), sr(S_T0)))
    g.e('s_lshl_b32 %s, %s, 1' % (sr(S_T3), sr(S_T3)))
    g.e('v_bfe_u32 v25, v20, 2, 2')
    g.e('v_add_u32 v27, %s, v25' % sr(S_T3))
    g.e('v_lshrrev_b32 v23, 1, v24')
    g.e('v_lshlrev_b32 v23, 8, v23')
    g.e('v_and_b32 v26, 1, v24')
    g.e('v_lshl_add_u32 v23, v26, 5, v23')
    g.e('v_lshl_add_u32 v23, v25, 4, v23')
    g.e('v_lshl_add_u32 v23, v22, 3, v23')
    g.e('v_add_u32 v23, %s, v23' % sr(S_T2))
    g.e('v_and_b32 v26, 0x28, v20')
    g.e('v_cmp_eq_u32 vcc, 0, v26')
    g.e('v_mov_b32 v26, 0x%x' % OOB)
    g.nop(1)
    g.e('v_cndmask_b32 v%d, v26, v23, vcc' % V_MS)
    g.e('s_mov_b32 %s, 0x00f000f0' % sr(S_P1M))
    g.e('s_mov_b32 %s, 0x00f000f0' % sr(S_P1M + 1))
    g.e('v_and_b32 v23, 31, v20')
    g.e('v_lshlrev_b32 v23, 6, v23')
    g.e('v_lshrrev_b32 v24, 5, v20')
    g.e('v_lshl_add_u32 v%d, v24, 24, v23' % V_WM)
    g.e('v_and_b32 v23, 1, v20')
    g.e('v_lshlrev_b32 v23, 4, v23')
    g.e('v_mov_b32 v24, 0x3f80')
    g.e('v_lshlrev_b32 v%d, v23, v24' % V_ONE)
    for d in range(4):
        mk = (3 << (2 * d)) * 0x00010001
        g.e('s_mov_b32 %s, 0x%x' % (sr(S_SELM + 2 * d), mk))
        g.e('s_mov_b32 %s, 0x%x' % (sr(S_SELM + 2 * d + 1), mk))
    g.e('v_bfe_u32 v23, v20, 1, 1')
    g.e('v_mov_b32 v24, 0x4444')
    g.e('v_mov_b32 v25, 0xeeee')
    g.e('v_cmp_eq_u32 vcc, 1, v23')
    g.nop(2)
    g.e('v_cndmask_b32 v%d, v24, v25, vcc' % V_IDX)
    g.e('s_mov_b32 %s, 0x3db504f3' % sr(S_SC))
    g.e('s_mov_b32 %s, 0x3db504f3' % sr(S_SC + 1))
    import struct
    c = struct.unpack('<I', struct.pack('<f', (128 ** -0.5) * 1.4426950408889634))[0]
    g.e('s_mov_b32 %s, 0x%x' % (sr(S_L2E), c))
    g.e('s_mov_b32 %s, 0x%x' % (sr(S_L2E + 1), c))
    g.e('s_lshl_b32 %s, %s, 11' % (sr(S_T2), W))
    g.e('s_add_u32 %s, %s, %d' % (sr(S_M0KX), sr(S_T2), C_KX))
    g.e('s_add_u32 %s, %s, %d' % (sr(S_M0VX), sr(S_T2), C_VX))
    g.e('s_lshl_b32 %s, %s, 13' % (sr(S_T3), H))
    g.e('s_add_u32 %s, %s, %s' % (sr(S_KXO), sr(S_T3), sr(S_T2)))
    g.e('s_add_u32 %s, %s, 0x%x' % (sr(S_KXO), sr(S_KXO), WS_KX))
    g.e('s_lshl_b32 %s, %s, 12' % (sr(S_T3), H))
    g.e('s_add_u32 %s, %s, %s' % (sr(S_KVO), sr(S_T3), sr(S_W1K)))
    g.e('s_add_u32 %s, %s, 0x%x' % (sr(S_KVO), sr(S_KVO), WS_KV))
    g.e('s_lshl_b32 %s, %s, 7' % (sr(S_T2), H))
    g.e('s_add_u32 %s, %s, 0x%x' % (sr(S_F1), sr(S_T2), WS_FLAGS + F1_OFF))
    g.e('s_lshl_b32 %s, %s, 2' % (sr(S_T3), W))
    g.e('s_add_u32 %s, %s, %s' % (sr(S_F2), sr(S_T2), sr(S_T3)))
    g.e('s_add_u32 %s, %s, 0x%x' % (sr(S_F2), sr(S_F2), WS_FLAGS + F2_OFF))
    g.e('v_mov_b32 v41, v27')


def init_a(g):
    W = sr(S_WAVE)
    H = sr(S_RANK)
    make_srd(g, 4, S_MEM0, 8192)
    g.e('s_lshr_b32 %s, %s, 2' % (sr(S_T2), H))
    g.e('s_lshl_b32 %s, %s, 7' % (sr(S_T2), sr(S_T2)))
    g.e('s_lshr_b32 %s, %s, 1' % (sr(S_T3), W))
    g.e('s_lshl_b32 %s, %s, 6' % (sr(S_T3), sr(S_T3)))
    g.e('s_add_u32 %s, %s, %s' % (sr(S_T2), sr(S_T2), sr(S_T3)))
    g.e('s_and_b32 %s, %s, 1' % (sr(S_T3), W))
    g.e('s_lshl_b32 %s, %s, 4' % (sr(S_T3), sr(S_T3)))
    g.e('s_add_u32 %s, %s, %s' % (sr(S_T2), sr(S_T2), sr(S_T3)))
    g.e('v_and_b32 v40, 3, v20')
    g.e('v_lshlrev_b32 v40, 2, v40')
    g.e('v_and_b32 v42, 1, v22')
    g.e('v_lshl_add_u32 v40, v42, 1, v40')
    g.e('v_and_b32 v42, 7, v41')
    g.e('v_lshl_add_u32 v40, v42, 10, v40')
    g.e('buffer_load_ushort v42, v40, s[4:7], %s offen' % sr(S_T2))
    g.e('buffer_load_ushort v43, v40, s[4:7], %s offen offset:32' % sr(S_T2))


def init_b(g):
    for i in range(4):
        g.e('v_mov_b32 v%d, 0' % (44 + i))
    g.e('buffer_store_dwordx4 v[44:47], v%d, %s, %s offen' % (V_PLD, sr(SRD_WS, 4), sr(S_PL)))
    g.e('buffer_store_dwordx4 v[44:47], v%d, %s, %s offen' % (V_PLD, sr(SRD_WS, 4), sr(S_PL2)))
    g.e('v_mov_b32 v40, -1')
    for slot in (1, 2):
        g.e('s_mov_b32 %s, 0x%x' % (sr(S_T0), WS_M2 + slot * 8192))
        g.e('buffer_store_dword v40, v%d, %s, %s offen' % (V_MS, sr(SRD_WS, 4), sr(S_T0)))
    g.e('v_lshl_or_b32 v42, v43, 16, v42')
    g.e('v_min_u32 v42, -2, v42')
    g.e('s_mov_b32 %s, 0x%x' % (sr(S_T0), WS_M2))
    g.e('buffer_store_dword v42, v%d, %s, %s offen' % (V_MS, sr(SRD_WS, 4), sr(S_T0)))
    l = g.newlabel('L_if')
    g.e('s_cmp_lg_u32 %s, 0' % sr(S_WAVE))
    g.e('s_cbranch_scc1 %s' % l)
    g.e('v_and_b32 v41, 31, v20')
    g.e('v_lshlrev_b32 v41, 2, v41')
    g.e('v_lshrrev_b32 v43, 5, v20')
    g.e('v_lshl_add_u32 v41, v43, 12, v41')
    g.e('buffer_store_dword v44, v41, %s, %s offen sc1' % (sr(SRD_WS, 4), sr(S_F1)))
    g.e('v_lshlrev_b32 v43, 11, v20')
    g.e('s_and_b32 %s, %s, 15' % (sr(S_T0), sr(S_RANK)))
    g.e('s_lshl_b32 %s, %s, 7' % (sr(S_T0), sr(S_T0)))
    g.e('s_add_u32 %s, %s, 0x%x' % (sr(S_T0), sr(S_T0), WS_FLAGS + 8192))
    g.e('s_mov_b64 exec, 15')
    g.e('buffer_store_dword v44, v43, %s, %s offen sc1' % (sr(SRD_WS, 4), sr(S_T0)))
    g.e('s_mov_b64 exec, -1')
    g.label(l)


def init_c(g):
    l = g.newlabel('L_if')
    g.e('s_cmp_lg_u32 %s, 0' % sr(S_WAVE))
    g.e('s_cbranch_scc1 %s' % l)
    g.e('s_mov_b64 exec, 1')
    g.e('v_mov_b32 v40, 128')
    g.e('v_mov_b32 v41, 1')
    g.e('global_atomic_add v40, v41, %s' % sr(S_DBG, 2))
    g.e('s_mov_b64 exec, -1')
    g.label(l)


def load_weights(g, opt):
    W = sr(S_WAVE)
    H = sr(S_RANK)
    TB = 64
    g.e('s_lshr_b32 %s, %s, 1' % (sr(S_T0), W))
    g.e('s_lshl_b32 %s, %s, 6' % (sr(S_T0), sr(S_T0)))
    g.e('s_and_b32 %s, %s, 1' % (sr(S_T1), W))
    g.e('s_lshl_b32 %s, %s, 3' % (sr(S_T1), sr(S_T1)))
    g.e('s_add_u32 %s, %s, %s' % (sr(S_T0), sr(S_T0), sr(S_T1)))
    g.e('v_lshlrev_b32 v24, 4, v22')
    g.e('v_add_u32 v24, %s, v24' % sr(S_T0))
    g.e('v_lshlrev_b32 v24, 13, v24')
    g.e('v_bfe_u32 v23, v20, 4, 1')
    g.e('v_lshlrev_b32 v25, 1, v23')
    g.e('v_xor_b32 v25, v25, v21')
    g.e('v_lshl_add_u32 v30, v25, 4, v24')
    g.e('v_bfe_u32 v25, v20, 2, 2')
    g.e('v_lshl_add_u32 v30, v25, 20, v30')
    for i in range(1, 4):
        g.e('v_xor_b32 v%d, 0x%x, v30' % (30 + i, i * 64 + (i << 20)))
    g.e('s_and_b32 %s, %s, 1' % (sr(S_T0), W))
    g.e('s_lshl_b32 %s, %s, 7' % (sr(S_T0), sr(S_T0)))
    g.e('v_xor_b32 v34, %s, v%d' % (sr(S_T0), V_L16))
    g.e('s_lshl_b32 %s, %s, 13' % (sr(S_T0), W))
    g.e('v_add_u32 v34, %s, v34' % sr(S_T0))
    g.e('v_lshrrev_b32 v23, 2, v21')
    g.e('v_and_b32 v24, 3, v21')
    g.e('v_lshrrev_b32 v25, 1, v22')
    g.e('v_lshlrev_b32 v25, 4, v25')
    g.e('v_lshrrev_b32 v26, 1, v23')
    g.e('v_lshl_add_u32 v25, v26, 3, v25')
    g.e('v_and_b32 v27, 1, v22')
    g.e('v_lshl_add_u32 v25, v27, 2, v25')
    g.e('v_and_b32 v28, 1, v23')
    g.e('v_add_u32 v25, v25, v28')
    g.e('v_lshl_add_u32 v28, v27, 1, v28')
    g.e('v_lshl_add_u32 v28, v26, 2, v28')
    g.e('v_lshlrev_b32 v28, 1, v28')
    g.e('v_lshrrev_b32 v26, 1, v24')
    g.e('v_and_b32 v27, 1, v24')
    g.e('s_lshl_b32 %s, %s, 2' % (sr(S_T0), W))
    g.e('v_add_u32 v29, %s, v26' % sr(S_T0))
    g.e('v_xor_b32 v29, v29, v28')
    g.e('v_lshlrev_b32 v29, 4, v29')
    g.e('v_lshl_add_u32 v29, v27, 3, v29')
    g.e('v_lshl_add_u32 v35, v25, 8, v29')
    g.e('v_xor_b32 v36, 32, v35')
    g.e('v_xor_b32 v29, v26, v28')
    g.e('s_lshl_b32 %s, %s, 4' % (sr(S_T0), W))
    g.e('v_add_u32 v29, %s, v29' % sr(S_T0))
    g.e('v_lshlrev_b32 v29, 4, v29')
    g.e('v_lshl_add_u32 v29, v27, 3, v29')
    g.e('v_lshl_add_u32 v37, v25, 10, v29')

    chunks = [('V', c) for c in range(4)] + [('K', c) for c in range(4)] + [('O', c) for c in range(4)] + [('Q', c) for c in range(4)]
    ptr = {'V': S_WV, 'Q': S_WQ, 'K': S_WK, 'O': S_WO}
    srd = {'V': SRD_A, 'K': SRD_B, 'O': SRD_A, 'Q': SRD_B}
    bufs = [0, 1, 2, 3, 4, 0, 1, 2, 3, 4, 0, 1, 3, 4, 0, 3]
    nxt = {0: 5, 1: 6, 2: 7, 3: 8, 4: 9, 5: 10, 6: 11, 8: 12, 9: 13, 10: 14, 12: 15}
    TQ = 48

    def issue(ci):
        m, c = chunks[ci]
        ring = bufs[ci] * 32768
        if c == 0:
            make_srd(g, srd[m], ptr[m], 4 << 20)
        for i in range(8):
            g.e('s_lshl_b32 %s, %s, 13' % (sr(S_T0), W))
            g.e('s_add_u32 m0, %s, %d' % (sr(S_T0), ring + i * 1024))
            if m != 'O':
                g.e('s_lshl_b32 %s, %s, 8' % (sr(S_T1), H))
                g.e('s_add_u32 %s, %s, %d' % (sr(S_T1), sr(S_T1), i * 8192))
                g.e('v_xor_b32 v38, 0x%x, v%d' % (c << 20, 30 + (i & 3)))
                g.e('buffer_load_dwordx4 v38, %s, %s offen lds' % (sr(srd[m], 4), sr(S_T1)))
            else:
                x = ((i & 1) | (((i >> 2) & 1) << 1)) * 32
                g.e('v_xor_b32 v38, %d, v34' % x)
                g.e('s_lshl_b32 %s, %s, 17' % (sr(S_T1), H))
                g.e('s_add_u32 %s, %s, %d' % (sr(S_T1), sr(S_T1), (c * 32 + i) * 1024))
                g.e('buffer_load_dwordx4 v38, %s, %s offen lds' % (sr(srd[m], 4), sr(S_T1)))

    init_a(g)
    for ci in range(5):
        issue(ci)
    issued = 5
    for ci in range(16):
        m, c = chunks[ci]
        ring = bufs[ci] * 32768
        g.e('s_waitcnt vmcnt(%d)' % (8 * (issued - ci - 1)))
        g.e('s_barrier')
        if ci == 5:
            init_c(g)
        if m != 'O':
            g.e('v_add_u32 v38, %d, v35' % ring)
            g.e('v_add_u32 v39, %d, v36' % ring)
            for ksl in range(2):
                ks = 2 * c + ksl
                for t in range(2):
                    for sq in range(4):
                        off = (64 * ksl + 32 * (sq >> 1) + 2 * (sq & 1)) * 256
                        if m == 'V':
                            dst = ar(A_V0 + ks * 8 + sq * 2, 2) if t == 0 else vr(V_V1 + ks * 8 + sq * 2, 2)
                        elif m == 'K':
                            dst = ar(A_K + (t * 8 + ks) * 8 + sq * 2, 2)
                        elif t == 0:
                            dst = ar(A_Q0 + ks * 8 + sq * 2, 2)
                        else:
                            dst = vr(TQ + ksl * 8 + sq * 2, 2)
                        g.e('ds_read_b64_tr_b16 %s, v%d offset:%d' % (dst, 38 + t, off))
            g.e('s_waitcnt lgkmcnt(0)')
            if m == 'Q':
                for ksl in range(2):
                    ks = 2 * c + ksl
                    g.e('ds_write_b128 v%d, %s offset:%d' % (V_WL, vr(TQ + ksl * 8, 4), ks * 2048))
                    g.e('ds_write_b128 v%d, %s offset:%d' % (V_WL, vr(TQ + ksl * 8 + 4, 4), ks * 2048 + 1024))
                g.e('s_waitcnt lgkmcnt(0)')
        else:
            ks2, hf = c >> 1, c & 1
            for tp in range(8):
                g.e('v_xor_b32 v38, %d, v37' % (tp * 32))
                g.e('v_add_u32 v38, %d, v38' % ring)
                for s1 in range(2):
                    if tp < 4:
                        dst = vr(V_WOL + (tp * 2 + ks2) * 8 + hf * 4 + s1 * 2, 2)
                    else:
                        dst = vr(TB + ((tp - 4) * 2 + ks2) * 8 + hf * 4 + s1 * 2, 2)
                    g.e('ds_read_b64_tr_b16 %s, v38 offset:%d' % (dst, 2 * s1 * 1024))
            g.e('s_waitcnt lgkmcnt(0)')
        g.e('s_barrier')
        if ci == 0:
            init_b(g)
        if ci == 8:
            g.e('buffer_load_dwordx4 v[44:47], v%d, %s, %s offen sc1' % (V_PLD, sr(SRD_WS, 4), sr(S_PL)))
            g.e('buffer_load_dwordx4 v[44:47], v%d, %s, %s offen sc1' % (V_PLD, sr(SRD_WS, 4), sr(S_PL2)))
            for slot in range(3):
                g.e('s_add_u32 %s, %s, 0x%x' % (sr(S_T0), sr(S_M0KX), WS_M2 + slot * 8192))
                g.e('buffer_load_dwordx4 v[44:47], v%d, %s, %s offen sc1' % (V_L16, sr(SRD_WS, 4), sr(S_T0)))
                g.e('buffer_load_dwordx4 v[44:47], v%d, %s, %s offen offset:1024 sc1' % (V_L16, sr(SRD_WS, 4), sr(S_T0)))
        if ci in nxt:
            issue(nxt[ci])
            issued += 1
    g.e('v_add_u32 v38, 65536, v%d' % V_WL)
    for f in range(8):
        g.e('ds_write_b128 v38, %s offset:%d' % (vr(TB + f * 8, 4), f * 2048))
        g.e('ds_write_b128 v38, %s offset:%d' % (vr(TB + f * 8 + 4, 4), f * 2048 + 1024))
    g.e('s_waitcnt lgkmcnt(0)')


def dma_kxvx2(g, sc):
    g.e('s_mov_b32 m0, %s' % sr(S_M0KX))
    g.e('s_add_u32 %s, %s, 0x%x' % (sr(S_T0), sr(S_KXO), WS_VX - WS_KX))
    sc.vm('buffer_load_dwordx4 v%d, %s, %s offen sc1 lds' % (V_L16, sr(SRD_WS, 4), sr(S_KXO)))
    sc.vm('buffer_load_dwordx4 v%d, %s, %s offen offset:1024 sc1 lds' % (V_L16, sr(SRD_WS, 4), sr(S_KXO)))
    g.e('s_mov_b32 m0, %s' % sr(S_M0VX))
    g.e('s_add_u32 %s, %s, 0x40000' % (sr(S_KXO), sr(S_KXO)))
    sc.vm('buffer_load_dwordx4 v%d, %s, %s offen sc1 lds' % (V_L16, sr(SRD_WS, 4), sr(S_T0)))
    sc.vm('buffer_load_dwordx4 v%d, %s, %s offen offset:1024 sc1 lds' % (V_L16, sr(SRD_WS, 4), sr(S_T0)))


def ring_load(sc, idx, VK1):
    slot = RG + (idx % 6) * 8
    base, f = (V_WL, idx) if idx < 8 else (VK1, idx - 8)
    sc.ds('ds_read_b128 %s, v%d offset:%d' % (vr(slot, 4), base, f * 2048), None)
    sc.ds('ds_read_b128 %s, v%d offset:%d' % (vr(slot + 4, 4), base, f * 2048 + 1024), 'R%d' % idx)


def smf2(g, d, a, b):
    g.e('v_smfmac_f32_16x16x64_bf16 %s, %s, %s, v%d' % (vr(d, 4), vr(a, 4), b, V_IDX))


def xlane(g, op, MX, MT):
    for sw in ('v_permlane16_swap_b32', 'v_permlane32_swap_b32'):
        g.e('v_mov_b32 v%d, v%d' % (MT, MX))
        g.nop(2)
        g.e('%s v%d, v%d' % (sw, MT, MX))
        g.nop(1)
        g.e('%s v%d, v%d, v%d' % (op, MX, MX, MT))


def poll(g, opt, name, issue_fn, check_fn, fillers, cnt_sgpr, depth=3):
    fd = opt.get('fd', 1)
    gap = opt.get('gap', 12)
    issue_fn()
    for grp in fillers:
        for s in grp:
            g.e(s)
    lp = g.newlabel('L_' + name)
    dn = g.newlabel('L_' + name + 'd')
    if opt.get('ts'):
        g.e('s_mov_b32 %s, 1' % cnt_sgpr)
    dbl = opt.get('dbl' + name[1], 0)
    for k_ in range(opt.get('nd', 1) if dbl else 0):
        g.nop(dbl)
        issue_fn()
    for k_ in range(opt.get('nd', 1) if dbl else 0):
        g.e('s_waitcnt vmcnt(%d)' % (2 * (opt.get('nd', 1) - k_)))
        check_fn()
        g.e('s_cbranch_vccz %s' % dn)
        if opt.get('ts'):
            g.e('s_add_u32 %s, %s, 1' % (cnt_sgpr, cnt_sgpr))
    g.e('s_waitcnt vmcnt(0)')
    check_fn()
    g.e('s_cbranch_vccz %s' % dn)
    g.e('s_mov_b64 exec, vcc')
    for d in range(fd - 1):
        issue_fn()
        g.nop(gap)
    g.label(lp)
    issue_fn()
    g.e('s_mov_b64 exec, -1')
    if opt.get('ts'):
        g.e('s_add_u32 %s, %s, 1' % (cnt_sgpr, cnt_sgpr))
    g.guard()
    g.e('s_waitcnt vmcnt(%d)' % (2 * (fd - 1)))
    check_fn()
    g.e('s_cbranch_vccz %s' % dn)
    g.e('s_mov_b64 exec, vcc')
    g.e('s_branch %s' % lp)
    g.label(dn)


def loop(g, opt):
    sc = Sched(g)

    def padd(a):
        if opt.get('sadd'):
            return ['v_add_f32 v%d, v%d, v%d' % (a, a, a + 2), 'v_add_f32 v%d, v%d, v%d' % (a + 1, a + 1, a + 3)]
        return ['v_pk_add_f32 %s, %s, %s' % (vr(a, 2), vr(a, 2), vr(a + 2, 2))]

    VK1 = V_WD
    g.e('v_add_u32 v%d, 65536, v%d' % (VK1, V_WL))
    g.e('s_mov_b32 %s, 0' % sr(S_STEP))
    g.e('s_mov_b32 %s, 1' % sr(S_PHASE))
    g.e('s_mov_b32 %s, 0x%x' % (sr(S_M2R), WS_M2))
    g.e('s_mov_b32 %s, 0x%x' % (sr(S_M2W), WS_M2 + 8192))
    g.e('s_mov_b32 %s, 0x%x' % (sr(S_M2Z), WS_M2 + 16384))
    l = g.newlabel('L_spin')
    g.e('v_mov_b32 v%d, 128' % PM)
    g.label(l)
    g.guard()
    g.e('global_load_dword v%d, v%d, %s sc1' % (PM + 1, PM, sr(S_DBG, 2)))
    g.e('s_waitcnt vmcnt(0)')
    g.e('v_readfirstlane_b32 %s, v%d' % (sr(S_T0), PM + 1))
    g.nop(3)
    g.e('s_cmp_lt_u32 %s, 32' % sr(S_T0))
    g.e('s_cbranch_scc1 %s' % l)

    def f1_spin(off_reg):
        l = g.newlabel('L_f1')
        g.e('v_mov_b32 v%d, 0' % (A0 + 24))
        g.label(l)
        g.guard()
        g.e('buffer_load_dword v%d, v%d, %s, %s offen sc1' % (V_FL, A0 + 24, sr(SRD_WS, 4), off_reg))
        g.e('s_waitcnt vmcnt(0)')
        g.e('v_readfirstlane_b32 %s, v%d' % (sr(S_T1), V_FL))
        g.nop(3)
        g.e('s_cmp_lt_u32 %s, 3' % sr(S_T1))
        g.e('s_cbranch_scc1 %s' % l)
    if not opt.get('nof1'):
        f1_spin(sr(S_F1))
    g.e('s_barrier')
    dma_kxvx2(g, sc)
    g.e('v_mov_b32 v%d, 3' % V_FL)
    if opt.get('rt'):
        g.e('s_memrealtime s[4:5]')
        g.e('s_waitcnt lgkmcnt(0)')
    for idx in range(6):
        ring_load(sc, idx, VK1)
    g.e('s_branch L_hop2')

    g.label('L_step')
    sc.l = []
    ts2(g, opt, 'start')
    HK = A0
    AD = A0 + 4
    AS = lambda j: PM + 4 * j if j < 2 else A0 + 4 * j
    SL = lambda i: RG + i * 8
    KXF = lambda T, k4: SL(2 + 2 * T + (k4 >> 1)) + (k4 & 1) * 4
    SX0, SX1, SM = SL(0), SL(0) + 4, SL(1)
    MXX, MTT = SL(1) + 4, SL(1) + 5

    def emit_fill(grp):
        for s in grp:
            if isinstance(s, tuple):
                if s[0] == 'ds':
                    sc.ds(s[1], s[2])
                elif s[0] == 'wl':
                    sc.wl(s[1])
                elif s[0] == 'bar':
                    g.e('s_barrier')
            else:
                g.e(s)

    def wsrc(mat, t, j):
        if mat == 'Q':
            return ar(A_Q0 + j * 8, 8) if t == 0 else vr(SL(j % 6), 8)
        if mat == 'K':
            return ar(A_K + (t * 8 + j) * 8, 8)
        return ar(A_V0 + j * 8, 8) if t == 0 else vr(V_V1 + j * 8, 8)
    accs = {'Q': (Q0, Q1), 'K': (K0, K1), 'V': (VT0, VT1)}
    sc.ds('ds_write_b128 v%d, %s offset:%d' % (AD, vr(PM, 4), C_MST), None)
    sc.ds('ds_write_b128 v%d, %s offset:%d' % (AD, vr(PM + 4, 4), C_MST + 1024), 'MW')

    def aread(j):
        return ('ds', 'ds_read_b128 %s, v%d offset:%d' % (vr(AS(j), 4), AD + (j >> 1), C_MST + (j & 1) * 1024), 'A%d' % j)
    rl = []
    for idx in (6, 7):
        rl.append(('ds', 'ds_read_b128 %s, v%d offset:%d' % (vr(SL(idx % 6), 4), V_WL, idx * 2048), None))
        rl.append(('ds', 'ds_read_b128 %s, v%d offset:%d' % (vr(SL(idx % 6) + 4, 4), V_WL, idx * 2048 + 1024), 'R%d' % idx))
    early = [(m_, t, j) for j in range(2) for m_ in 'QKV' for t in range(2)]
    early = [x for x in early if x[0] == 'Q'] + [x for x in early if x[0] != 'Q']
    eb = opt.get('eb', 5)
    fillE = {eb: [('wl', 'MW'), ('bar',)]}
    for i_, x_ in enumerate(rl[:3]):
        fillE[min(2 + i_ * 1 + 2, eb - 1) if False else (4 + i_ if 4 + i_ < eb else 100 + i_)] = [x_]
    rest = [aread(j) for j in range(2, 8)] + [x_ for i_, x_ in enumerate(rl[:3]) if 4 + i_ >= eb]
    n_ = eb + 1
    while rest:
        k_ = min(n_, 11)
        fillE.setdefault(k_, [])
        fillE[k_] = fillE[k_] + [rest.pop(0)]
        n_ += 1
    for n, (m_, t, j) in enumerate(early):
        smf2(g, accs[m_][t], AS(j), wsrc(m_, t, j))
        emit_fill(fillE.get(n, []))
    ts2(g, opt, 'early', True)
    fillQ = [
        [rl[3]],
        ['s_waitcnt vmcnt(0)', ('ds', 'ds_read_b128 %s, v%d offset:%d' % (vr(PM, 4), HK, C_K), 'PUB')],
        ['buffer_store_dword v%d, v%d, %s, %s offen' % (HK + 1, V_MS, sr(SRD_WS, 4), sr(S_M2Z))],
        ['buffer_load_dword v%d, v%d, %s, %s offen sc1' % (V_FL, V_WM, sr(SRD_WS, 4), sr(S_H0))],
        ([] if opt.get('nof1') else
         ['buffer_load_dword v%d, v%d, %s, %s offen sc1' % (V_FL, HK + 2, sr(SRD_WS, 4), sr(S_H1))]),
        ['buffer_store_dword v%d, v%d, %s, %s offen sc1' % (HK + 3, HK + 2, sr(SRD_WS, 4), sr(S_F2))],
    ]
    kxq = [('ds', 'ds_read_b128 %s, v%d offset:%d' % (vr(KXF(T, k4), 4), V_L16, C_KX + (T * 4 + k4) * 1024), 'KX%d_%d' % (T, k4))
           for T in range(2) for k4 in range(4)]
    for j in range(2, 8):
        sc.wl('A%d' % j)
        smf2(g, Q0, AS(j), wsrc('Q', 0, j))
        emit_fill(fillQ.pop(0))
        sc.wl('R%d' % j)
        smf2(g, Q1, AS(j), wsrc('Q', 1, j))
        if 2 <= j <= 5:
            emit_fill([kxq[2 * (j - 2)]])
        if j == 6:
            emit_fill([('wl', 'PUB'), 'buffer_store_dwordx4 %s, v%d, %s, %s offen sc1' % (vr(PM, 4), V_L16, sr(SRD_WS, 4), sr(S_H2))])
    assert not fillQ
    ts2(g, opt, 'q', True)
    QF = [Q0, Q1, PM, PM + 4]

    def fin(accs, base0, tag):
        o = []
        for acc, base in ((accs[0], base0), (accs[1], base0 + 256)):
            o.append(padd(acc) + ['v_cvt_pk_bf16_f32 v%d, v%d, v%d' % (acc, acc, acc + 1)])
            o.append([('ds', 'ds_write_b16 v%d, v%d offset:%d' % (V_QW, acc, base), None),
                      ('ds', 'ds_write_b16_d16_hi v%d, v%d offset:%d' % (V_QW, acc, base + 16), tag)])
        return o
    fin_q = fin((Q0, Q1), C_Q, 'QW')
    fillK = {
        (2, 0): [kxq[1], 's_nop 0'], (2, 1): [kxq[3], 's_nop 1'],
        (3, 0): fin_q[0], (3, 1): fin_q[1], (4, 0): fin_q[2], (4, 1): fin_q[3],
        (5, 0): [kxq[5]], (5, 1): [kxq[7], ('wl', 'QW'), ('bar',)],
        (6, 0): [('ds', 'ds_read_b128 %s, v%d offset:%d' % (vr(QF[k], 4), V_QR, C_Q + k * 512), 'QF%d' % k) for k in range(2)],
        (6, 1): [('ds', 'ds_read_b128 %s, v%d offset:%d' % (vr(QF[k], 4), V_QR, C_Q + k * 512), 'QF%d' % k) for k in range(2, 4)],
    }
    for j in range(2, 8):
        smf2(g, K0, AS(j), wsrc('K', 0, j))
        emit_fill(fillK.get((j, 0), []))
        smf2(g, K1, AS(j), wsrc('K', 1, j))
        emit_fill(fillK.get((j, 1), []))
    ts2(g, opt, 'k', True)
    fin_k = fin((K0, K1), C_K, 'KW')
    fillX = {1: ['s_nop 3'], 2: fin_k[0], 3: fin_k[1], 4: fin_k[2], 5: fin_k[3]}
    n = 0
    for T, S_ in ((0, SX0), (1, SX1)):
        for k4 in range(4):
            sc.wl('QF%d' % k4)
            sc.wl('KX%d_%d' % (T, k4))
            g.e('v_mfma_f32_16x16x32_bf16 %s, %s, %s, %s' % (vr(S_, 4), vr(KXF(T, k4), 4), vr(QF[k4], 4), '0' if k4 == 0 else vr(S_, 4)))
            emit_fill(fillX.get(n, []))
            n += 1
    vq = [(t, ks) for ks in range(2, 8) for t in range(2)]

    def vsmf(k=1, pad=False):
        for _ in range(k):
            if vq:
                t, ks = vq.pop(0)
                smf2(g, VT0 + 4 * t, AS(ks), wsrc('V', t, ks))
            elif pad:
                g.nop(1)

    WH = [SL(5), SL(2), SL(3), PM, SL(0), SL(1), SL(4), A0 + 16]

    def wh_load(f):
        sc.ds('ds_read_b128 %s, v%d offset:%d' % (vr(WH[f], 4), VK1, f * 2048), None)
        sc.ds('ds_read_b128 %s, v%d offset:%d' % (vr(WH[f] + 4, 4), VK1, f * 2048 + 1024), 'WH%d' % f)
    ts2(g, opt, 'xsc', True)
    vsmf(2)
    sc.wl('KW')
    g.e('s_barrier')
    ts2(g, opt, 'kbar', True)
    KMF = lambda k4: KXF(0, k4)
    for k4 in range(4):
        sc.ds('ds_read_b128 %s, v%d offset:%d' % (vr(KMF(k4), 4), V_KR, C_K + k4 * 512), 'KM%d' % k4)
    vsmf(1)
    VXF = SL(4)
    g.e('v_add_u32 v%d, %s, v%d' % (K0, sr(S_M0VX), V_L16))
    sc.ds('ds_read_b128 %s, v%d' % (vr(VXF, 4), K0), None)
    sc.ds('ds_read_b128 %s, v%d offset:1024' % (vr(VXF + 4, 4), K0), 'VX')
    vsmf(1)
    S = [SX0 + i for i in range(8)]
    g.e('s_mov_b32 m0, %s' % sr(S_M0KX))
    g.e('v_max3_f32 v%d, v%d, v%d, v%d' % (MXX, S[0], S[1], S[2]))
    g.e('buffer_load_dwordx4 v%d, %s, %s offen sc1 lds' % (V_L16, sr(SRD_WS, 4), sr(S_H0)))
    g.e('v_max3_f32 v%d, v%d, v%d, v%d' % (MTT, S[3], S[4], S[5]))
    vsmf(1)
    g.e('buffer_load_dwordx4 v%d, %s, %s offen offset:1024 sc1 lds' % (V_L16, sr(SRD_WS, 4), sr(S_H0)))
    g.e('v_max3_f32 v%d, v%d, v%d, v%d' % (MXX, MXX, S[6], S[7]))
    g.e('v_max_f32 v%d, v%d, v%d' % (MXX, MXX, MTT))
    vsmf(1)
    wh_load(0)
    g.e('v_mov_b32 v%d, 0x3f803f80' % K0)
    g.e('v_mov_b32 v%d, 0x3f803f80' % (K0 + 1))
    g.e('v_mov_b64 %s, %s' % (vr(K0 + 2, 2), vr(K0, 2)))
    for k4 in range(4):
        sc.wl('KM%d' % k4)
        g.e('v_mfma_f32_16x16x32_bf16 %s, %s, %s, %s' % (vr(SM, 4), vr(KMF(k4), 4), vr(QF[k4], 4), '0' if k4 == 0 else vr(SM, 4)))
    vsmf(1)
    wh_load(1)
    vsmf(1)
    wh_load(2)
    vsmf(1)
    g.nop(1)
    ts2(g, opt, 'msc', True)
    sc.wl('VX')
    g.e('s_mov_b32 m0, %s' % sr(S_M0VX))
    g.e('s_add_u32 %s, %s, 0x%x' % (sr(S_T0), sr(S_H0), WS_VX - WS_KX))
    g.e('v_max3_f32 v%d, v%d, v%d, v%d' % (MXX, MXX, SM, SM + 1))
    for i_, sw in enumerate(('v_permlane16_swap_b32', 'v_permlane32_swap_b32')):
        g.e('v_mov_b32 v%d, v%d' % (MTT, MXX))
        vsmf(1)
        g.e('buffer_load_dwordx4 v%d, %s, %s offen offset:%d sc1 lds' % (V_L16, sr(SRD_WS, 4), sr(S_T0), 1024 * i_))
        g.e('%s v%d, v%d' % (sw, MTT, MXX))
        g.nop(1)
        g.e('v_max_f32 v%d, v%d, v%d' % (MXX, MXX, MTT))
    ts2(g, opt, 'max', True)
    g.e('v_mul_f32 v%d, %s, v%d' % (MXX, sr(S_L2E), MXX))
    g.e('v_mov_b32 v%d, v%d' % (MTT, MXX))
    SA = S + [SM, SM + 1]
    for i in range(5):
        g.e('v_pk_fma_f32 %s, %s, %s, %s neg_lo:[0,0,1] neg_hi:[0,0,1]' % (vr(SA[2 * i], 2), vr(SA[2 * i], 2), sr(S_L2E, 2), vr(MXX, 2)))
        if i % 2 == 1:
            vsmf(1)
    for i in range(10):
        g.e('v_exp_f32 v%d, v%d' % (SA[i], SA[i]))
        if i % 3 == 1:
            vsmf(1)
    assert not vq, len(vq)
    ts2(g, opt, 'exp', True)
    VM0, VM1 = A0, A0 + 2
    PX, PMm, RINV = A0 + 4, A0 + 8, A0 + 10
    O0, O1, OP = A0 + 12, A0 + 16, A0 + 4
    ONES, SUMS = K0, K1
    for i in range(4):
        g.e('v_cvt_pk_bf16_f32 v%d, v%d, v%d' % (PX + i, SA[2 * i], SA[2 * i + 1]))
    g.e('v_cvt_pk_bf16_f32 v%d, v%d, v%d' % (PMm, SA[8], SA[9]))
    g.e('v_mov_b32 v%d, 0' % (PMm + 1))
    g.e('v_mfma_f32_16x16x32_bf16 %s, %s, %s, 0' % (vr(SUMS, 4), vr(ONES, 4), vr(PX, 4)))
    g.e('v_pk_add_f32 %s, %s, %s' % (vr(VT0, 2), vr(VT0, 2), vr(VT0 + 2, 2)))
    g.e('v_mfma_f32_16x16x16_bf16 %s, %s, %s, %s' % (vr(SUMS, 4), vr(ONES, 2), vr(PMm, 2), vr(SUMS, 4)))
    g.e('v_pk_add_f32 %s, %s, %s' % (vr(VT1, 2), vr(VT1, 2), vr(VT1 + 2, 2)))
    g.e('v_mfma_f32_16x16x32_bf16 %s, %s, %s, 0' % (vr(O0, 4), vr(VXF, 4), vr(PX, 4)))
    g.e('v_cvt_pk_bf16_f32 v%d, v%d, v%d' % (VM0, VT0, VT0 + 1))
    g.e('v_cvt_pk_bf16_f32 v%d, v%d, v%d' % (VM1, VT1, VT1 + 1))
    g.e('v_mfma_f32_16x16x32_bf16 %s, %s, %s, 0' % (vr(O1, 4), vr(VXF + 4, 4), vr(PX, 4)))
    g.e('v_mov_b32 v%d, 0' % (VM0 + 1))
    g.e('v_mov_b32 v%d, 0' % (VM1 + 1))
    sc.ds('ds_write_b32 v%d, v%d offset:%d' % (V_VW, VM0, C_VM), None)
    g.e('v_rcp_f32 v%d, v%d' % (RINV, SUMS))
    g.e('v_mfma_f32_16x16x16_bf16 %s, %s, %s, %s' % (vr(O0, 4), vr(VM0, 2), vr(PMm, 2), vr(O0, 4)))
    g.e('v_mfma_f32_16x16x16_bf16 %s, %s, %s, %s' % (vr(O1, 4), vr(VM1, 2), vr(PMm, 2), vr(O1, 4)))
    sc.ds('ds_write_b32 v%d, v%d offset:%d' % (V_VW, VM1, C_VM + 256), None)
    g.e('s_cmp_eq_u32 %s, 63' % sr(S_STEP))
    g.e('s_cbranch_scc1 L_chain_done')
    ts2(g, opt, 'pv', True)
    WA = [ACC2 + 4 * i for i in range(6)] + [A0 + 24, A0 + 28]
    zl = ['v_mov_b64 %s, 0' % vr(WA[i // 2] + 2 * (i & 1), 2) for i in range(16)]
    g.e('v_mov_b32 v%d, v%d' % (RINV + 1, RINV))
    for _ in range(4):
        g.e(zl.pop(0))
    for i in range(4):
        g.e('v_pk_mul_f32 %s, %s, %s' % (vr(O0 + 2 * i, 2), vr(O0 + 2 * i, 2), vr(RINV, 2)))
    for i in range(4):
        g.e('v_cvt_pk_bf16_f32 v%d, v%d, v%d' % (OP + i, O0 + 2 * i, O0 + 2 * i + 1))
    sc.ds('ds_write_b64 v%d, %s' % (V_OW, vr(OP, 2)), None)
    sc.ds('ds_write_b64 v%d, %s offset:256' % (V_OW, vr(OP + 2, 2)), 'OW')
    ts2(g, opt, 'smax')
    wh_load(3)
    wh_load(4)
    for _ in range(6):
        g.e(zl.pop(0))
    sc.wl('OW')
    g.e('s_barrier')
    ts2(g, opt, 'obar')
    OA = A0 + 8
    sc.ds('ds_read_b128 %s, v%d offset:%d' % (vr(OA, 4), V_AF, C_O), 'OA0')
    sc.ds('ds_read_b128 %s, v%d offset:%d' % (vr(OA + 4, 4), V_AF, C_O + 1024), 'OA1')
    while zl:
        g.e(zl.pop(0))
    ST = A0

    def post(pr):
        ops = []
        for d in range(2):
            a = WA[2 * pr + d]
            ops += padd(a) + ['v_cvt_pk_bf16_f32 v%d, v%d, v%d' % (ST + 2 * pr + d, a, a + 1)]
            if d == 0:
                ops.append('v_bfi_b32 v%d, 1, %s, v%d' % (ST + 2 * pr, sr(S_PHASE), ST + 2 * pr))
        ops.append('buffer_store_dwordx2 %s, v%d, %s, %s offen offset:%d' % (vr(ST + 2 * pr, 2), V_PS, sr(SRD_WS, 4), '0' if pr < 2 else sr(S_U), (pr & 1) * 128))
        return ops
    side = []
    for f in (5, 6, 7):
        side.append(('ds', 'ds_read_b128 %s, v%d offset:%d' % (vr(WH[f], 4), VK1, f * 2048), None))
        side.append(('ds', 'ds_read_b128 %s, v%d offset:%d' % (vr(WH[f] + 4, 4), VK1, f * 2048 + 1024), 'WH%d' % f))
    sc.wl('OA0')
    ts2(g, opt, 'oa', True)
    pend = []
    cnt = [0]

    def emit(s_):
        emit_fill([s_])
        cnt[0] += 1
    order = [(pr, ks2, d) for pr in range(4) for ks2 in range(2) for d in range(2)]
    for n, (pr, ks2, d) in enumerate(order):
        tp = 2 * pr + d
        if ks2 == 1:
            sc.wl('OA1')
        if tp >= 4:
            sc.wl('WH%d' % ((tp - 4) * 2 + ks2))
            bsrc = vr(WH[(tp - 4) * 2 + ks2], 8)
        else:
            bsrc = vr(V_WOL + (tp * 2 + ks2) * 8, 8)
        smf2(g, WA[tp], OA + 4 * ks2, bsrc)
        cnt[0] += 1
        if ks2 == 1 and d == 1:
            pend += [(cnt[0] + 8, o) for o in post(pr)]
        k = 0
        if side:
            emit(side.pop(0))
            k += 1
        while k < opt.get('wper', 2) and pend and pend[0][0] <= cnt[0]:
            emit(pend.pop(0)[1])
            k += 1
    ts2(g, opt, 'wo16', True)
    while pend:
        if pend[0][0] > cnt[0]:
            g.nop(pend[0][0] - cnt[0])
            cnt[0] = pend[0][0]
        emit(pend.pop(0)[1])
    g.e('s_add_u32 %s, %s, 0x40000' % (sr(S_KXO), sr(S_KXO)))
    ts2(g, opt, 'wo')
    if opt.get('ack'):
        g.e('s_waitcnt vmcnt(2)')
        ts2(g, opt, 'dmaack')
        g.e('s_waitcnt vmcnt(1)')
        ts2(g, opt, 'ack0')
        g.e('s_waitcnt vmcnt(0)')
        ts2(g, opt, 'ack1')
    SEL = A0 + 8
    RD = A0 + 12
    tt = 0
    for a in range(2):
        for b in range(2):
            for c_ in range(2):
                if (a ^ c_) | (b ^ c_):
                    tt |= 1 << (a * 4 + b * 2 + c_)
    PHV, CK = A0 + 16, A0 + 17

    def issue1():
        g.e('buffer_load_dwordx4 %s, v%d, %s, %s offen sc1' % (vr(PM, 4), V_PLD, sr(SRD_WS, 4), sr(S_PL)))
        g.e('buffer_load_dwordx4 %s, v%d, %s, %s offen sc1' % (vr(PM + 4, 4), V_PLD, sr(SRD_WS, 4), sr(S_PL2)))

    def check1():
        g.e('v_bitop3_b32 v%d, v%d, v%d, v%d bitop3:0x%x' % (CK, PM, PM + 4, PHV, tt))
        g.e('v_bitop3_b32 v%d, v%d, v%d, v%d bitop3:0x%x' % (CK + 1, PM + 2, PM + 6, PHV, tt))
        g.e('v_bitop3_b32 v%d, v%d, v%d, 1 bitop3:0xa8' % (CK, CK, CK + 1))
        g.e('v_cmp_ne_u32 vcc, 0, v%d' % CK)
    sel = ['v_mov_b32 v%d, %s' % (PHV, sr(S_PHASE))]
    for d in range(4):
        sel += ['v_cndmask_b32 v%d, 0, v%d, %s' % (SEL + d, V_ONE, sr(S_SELM + 2 * d, 2))]
    rp = []
    for idx in range(6):
        rp.append('ds_read_b128 %s, v%d offset:%d' % (vr(SL(idx), 4), V_WL, idx * 2048))
        rp.append('ds_read_b128 %s, v%d offset:%d' % (vr(SL(idx) + 4, 4), V_WL, idx * 2048 + 1024))
    if opt.get('pd', 1) == 1:
        for s_ in sel:
            g.e(s_)
        if opt.get('ack'):
            ts2(g, opt, 'sel')
            issue1()
            g.e('s_waitcnt vmcnt(0)')
            ts2(g, opt, 'ld1')
            issue1()
            g.e('s_waitcnt vmcnt(0)')
            ts2(g, opt, 'ld2')
        if opt.get('probe'):
            for s_ in rp[:opt.get('n1', 0)]:
                g.e(s_)
            rp = rp[opt.get('n1', 0):]
            ts2(g, opt, 'pre')
            issue1()
            g.e('s_waitcnt vmcnt(3)')
            ts2(g, opt, 'st0')
            g.e('s_waitcnt vmcnt(2)')
            ts2(g, opt, 'st1')
            g.e('s_waitcnt vmcnt(1)')
            ts2(g, opt, 'ld0')
            g.e('s_waitcnt vmcnt(0)')
            ts2(g, opt, 'ld1')
        if opt.get('aw1'):
            for s_ in rp[:opt.get('n1', 0)]:
                g.e(s_)
            rp = rp[opt.get('n1', 0):]
            g.e('s_waitcnt vmcnt(%d)' % (opt['aw1'] - 1))
        poll(g, opt, 'p1', issue1, check1, [], 's80', depth=1)
    elif opt.get('pd') == 2:
        for s_ in sel[:7]:
            g.e(s_)
        poll(g, opt, 'p1', issue1, check1, [sel[7:] + rp[:4], []], 's80', depth=2)
        rp = rp[4:]
    else:
        for s_ in sel[:7]:
            g.e(s_)
        poll(g, opt, 'p1', issue1, check1, [sel[7:] + rp[:1], rp[1:6], []], 's80', depth=3)
        rp = rp[6:]
    ts2(g, opt, 'hop1')
    g.e('v_mfma_f32_16x16x32_bf16 %s, %s, %s, 0' % (vr(RD, 4), vr(SEL, 4), vr(PM, 4)))
    g.e('v_mfma_f32_16x16x32_bf16 %s, %s, %s, %s' % (vr(RD, 4), vr(SEL, 4), vr(PM + 4, 4), vr(RD, 4)))
    g.e('s_add_u32 %s, %s, 1' % (sr(S_STEP), sr(S_STEP)))
    g.e('s_mov_b32 %s, %s' % (sr(S_T0), sr(S_M2R)))
    g.e('s_mov_b32 %s, %s' % (sr(S_M2R), sr(S_M2W)))
    g.e('s_mov_b32 %s, %s' % (sr(S_M2W), sr(S_M2Z)))
    g.e('s_mov_b32 %s, %s' % (sr(S_M2Z), sr(S_T0)))
    g.e('s_xor_b32 %s, %s, 1' % (sr(S_PHASE), sr(S_PHASE)))
    g.nop(2)
    for ror in (4, 8):
        for i in range(4):
            g.e('v_add_f32_dpp v%d, v%d, v%d row_ror:%d row_mask:0xf bank_mask:0xf' % (RD + i, RD + i, RD + i, ror))
    g.e('v_cvt_pk_bf16_f32 v%d, v%d, v%d' % (RD, RD, RD + 2))
    g.e('v_cvt_pk_bf16_f32 v%d, v%d, v%d' % (RD + 1, RD + 1, RD + 3))
    g.e('v_cndmask_b32 v%d, v%d, v%d, %s' % (RD, RD, RD + 1, sr(S_P1M, 2)))
    g.e('v_min_u32 v%d, -2, v%d' % (RD, RD))
    g.e('buffer_store_dword v%d, v%d, %s, %s offen' % (RD, V_MS, sr(SRD_WS, 4), sr(S_M2R)))
    ts2(g, opt, 'red')
    if opt.get('ack'):
        g.e('s_waitcnt vmcnt(0)')
        ts2(g, opt, 'ack2')
    rp2 = rp
    g.label('L_hop2')
    g.e('s_lshl_b32 %s, %s, 11' % (sr(S_T3), sr(S_WAVE)))
    g.e('s_add_u32 %s, %s, %s' % (sr(S_T3), sr(S_T3), sr(S_M2R)))

    def issue2():
        g.e('buffer_load_dwordx4 %s, v%d, %s, %s offen sc1' % (vr(PM, 4), V_L16, sr(SRD_WS, 4), sr(S_T3)))
        g.e('buffer_load_dwordx4 %s, v%d, %s, %s offen offset:1024 sc1' % (vr(PM + 4, 4), V_L16, sr(SRD_WS, 4), sr(S_T3)))

    def check2():
        g.e('v_max3_u32 v%d, v%d, v%d, v%d' % (CK, PM, PM + 1, PM + 2))
        g.e('v_max3_u32 v%d, v%d, v%d, v%d' % (CK + 1, PM + 3, PM + 4, PM + 5))
        g.e('v_max3_u32 v%d, v%d, v%d, v%d' % (CK, CK, PM + 6, PM + 7))
        g.e('v_max_u32 v%d, v%d, v%d' % (CK, CK, CK + 1))
        g.e('v_cmp_eq_u32 vcc, -1, v%d' % CK)
    zr = ['v_mov_b64 %s, 0' % vr(ACC2 + 2 * i, 2) for i in range(12)]
    HK = A0
    AD = A0 + 4
    zr += ['v_add_u32 v%d, %s, v%d' % (AD, sr(S_M0KX), V_L16)]
    zr += ['v_xor_b32 v%d, %d, v%d' % (AD + q_, q_ << 11, AD) for q_ in (1, 2, 3)]
    zr += ['v_add_u32 v%d, %s, v%d' % (HK, sr(S_W1K), V_L16),
           'v_mov_b32 v%d, -1' % (HK + 1),
           'v_mov_b32 v%d, 0' % (HK + 2),
           's_sub_u32 %s, %s, 1' % (sr(S_T0), sr(S_STEP)),
           's_max_i32 %s, %s, 0' % (sr(S_T0), sr(S_T0)),
           'v_mov_b32 v%d, %s' % (HK + 3, sr(S_T0)),
           's_cmp_ge_u32 %s, 63' % sr(S_STEP),
           's_cselect_b32 %s, 0x7ff00000, %s' % (sr(S_H0), sr(S_KXO)),
           's_add_u32 %s, %s, 2' % (sr(S_T0), sr(S_STEP)),
           's_min_u32 %s, %s, 63' % (sr(S_T0), sr(S_T0)),
           's_and_b32 %s, %s, 0xfffffffc' % (sr(S_T0), sr(S_T0)),
           's_add_u32 %s, %s, %s' % (sr(S_H1), sr(S_T0), sr(S_F1)),
           's_cmp_eq_u32 %s, 0' % sr(S_STEP),
           's_cselect_b32 %s, 0x7ff00000, %s' % (sr(S_H2), sr(S_KVO)),
           's_cselect_b32 %s, 0, 0x20000' % sr(S_T0),
           's_add_u32 %s, %s, %s' % (sr(S_KVO), sr(S_KVO), sr(S_T0))]
    lf = g.newlabel('L_flok')
    fl = ['v_readfirstlane_b32 %s, v%d' % (sr(S_T1), V_FL),
          's_nop 2',
          's_cmp_ge_u32 %s, 3' % sr(S_T1)]
    nz = opt.get('nz', 99)
    post_fill = zr[nz:]
    for s_ in rp2 + zr[:nz] + fl:
        g.e(s_)
    if not opt.get('nof1'):
        g.e('s_cbranch_scc1 %s' % lf)
        g.e('s_add_u32 %s, %s, 1' % (sr(S_T0), sr(S_STEP)))
        g.e('s_min_u32 %s, %s, 63' % (sr(S_T0), sr(S_T0)))
        g.e('s_and_b32 %s, %s, 0xfffffffc' % (sr(S_T0), sr(S_T0)))
        g.e('s_add_u32 %s, %s, %s' % (sr(S_T2), sr(S_T0), sr(S_F1)))
        f1_spin(sr(S_T2))
        g.label(lf)
    ts2_flush(g, opt, A0 + 21)
    if not opt.get('noaw2'):
        g.e('s_waitcnt vmcnt(0)')
    poll(g, opt, 'p2', issue2, check2, [post_fill + ['s_waitcnt lgkmcnt(0)']], 's81', depth=1)
    g.e('s_branch L_step')
    g.label('L_chain_done')
    g.e('s_waitcnt lgkmcnt(0)')
    g.e('s_barrier')
    g.e('v_add_u32 v%d, %s, v%d' % (PM + 4, sr(S_W1K), V_L16))
    g.e('ds_read_b128 %s, v%d offset:%d' % (vr(PM, 4), PM + 4, C_K))
    g.e('s_waitcnt lgkmcnt(0)')
    g.e('buffer_store_dwordx4 %s, v%d, %s, %s offen sc1' % (vr(PM, 4), V_L16, sr(SRD_WS, 4), sr(S_KVO)))
    g.e('s_waitcnt vmcnt(0)')
    g.e('v_mov_b32 v%d, 64' % PM)
    g.e('v_mov_b32 v%d, 0' % (PM + 1))
    g.e('s_mov_b64 exec, 1')
    g.e('buffer_store_dword v%d, v%d, %s, %s offen sc1' % (PM, PM + 1, sr(SRD_WS, 4), sr(S_F2)))
    g.e('s_mov_b64 exec, -1')
    if opt.get('rt'):
        g.e('s_memrealtime s[98:99]')
        g.e('s_waitcnt lgkmcnt(0)')
        for i, r_ in enumerate((74, 76, 4, 98)):
            g.e('v_writelane_b32 v%d, s%d, %d' % (PM, r_, i))
        g.e('s_lshl_b32 %s, %s, 2' % (sr(S_T0), sr(S_RANK)))
        g.e('s_add_u32 %s, %s, %s' % (sr(S_T0), sr(S_T0), sr(S_WAVE)))
        g.e('s_lshl_b32 %s, %s, 8' % (sr(S_T0), sr(S_T0)))
        g.e('s_add_u32 %s, %s, 0x%x' % (sr(S_T0), sr(S_T0), WS_TS + 0x800000))
        g.e('v_lshrrev_b32 v%d, 2, v%d' % (PM + 1, V_L16))
        g.e('buffer_store_dword v%d, v%d, %s, %s offen' % (PM, PM + 1, sr(SRD_WS, 4), sr(S_T0)))
    g.e('s_branch L_exit')
```

```python
from gen import *

WS_QA = 0x6000000
WS_KA = 0x6200000
WS_VA = 0x6400000
WS_OA = 0x6600000
CA_OFF = 8192
CB_OFF = 8192 + 2048
CO_OFF = 8192 + 4096
FLAG_ZERO_BYTES = 8192 + 6144

N_BP = 512
N_AP = 64
N_AA = 128
N_AO = 64
GATE = 2
NBIG = 12
N_BT = NBIG * 36
NX = 4
N_BF = 0
N_BX = NX * 32 + (64 - 4 * NBIG) * 8
CS_OFF = 8192 + 6144
T_AP = N_BP
T_AA = T_AP + N_AP
T_AO = T_AA + N_AA
T_BT = T_AO + N_AO
T_BF = T_BT + N_BT
T_BX = T_BF + N_BF
T_END = T_BX + N_BX

S_TASK = 52
S_R = 53
S_H = 54
S_AOFF = 55
S_BOFF = 56
S_KC = 59
S_X0, S_X1, S_X2, S_X3 = 60, 61, 62, 63
SRD_B0, SRD_B1, SRD_B2 = 80, 84, 88
SRD_OUT = 92
S_RET = 96
S_INIT = 98
S_LOG = 75
S_QN = 74

W_LANE = 1
W_AD = 2
W_BD = 6
W_AR = 8
W_BR = 12
W_T = 16
W_ACC = 64
STAGE = 65536


def wave0_begin(g):
    l = g.newlabel('L_w0')
    g.e('s_cmp_lg_u32 %s, 0' % sr(S_WAVE))
    g.e('s_cbranch_scc1 %s' % l)
    return l


def ensure_init(g):
    lw = g.newlabel('L_iw')
    ld = g.newlabel('L_id')
    g.e('s_cmp_lg_u32 %s, 0' % sr(S_INIT))
    g.e('s_cbranch_scc1 %s' % ld)
    g.e('v_mov_b32 v%d, 128' % W_T)
    g.label(lw)
    g.guard()
    g.e('global_load_dword v%d, v%d, %s sc1' % (W_T + 1, W_T, sr(S_DBG, 2)))
    g.e('s_waitcnt vmcnt(0)')
    g.e('v_readfirstlane_b32 %s, v%d' % (sr(S_X1), W_T + 1))
    g.nop(3)
    g.e('s_cmp_lt_u32 %s, 32' % sr(S_X1))
    g.e('s_cbranch_scc1 %s' % lw)
    g.e('s_mov_b32 %s, 1' % sr(S_INIT))
    g.label(ld)


def wait_ge(g, soff_expr_emit, target, sleep=8):
    ensure_init(g)
    l = g.newlabel('L_wait')
    g.e('v_mov_b32 v%d, 0' % W_T)
    g.label(l)
    g.guard()
    g.e('buffer_load_dword v%d, v%d, %s, %s offen sc1' % (W_T + 1, W_T, sr(SRD_WS, 4), sr(S_X0)))
    g.e('s_waitcnt vmcnt(0)')
    g.e('v_readfirstlane_b32 %s, v%d' % (sr(S_X1), W_T + 1))
    g.nop(3)
    g.e('s_cmp_ge_u32 %s, %s' % (sr(S_X1), target))
    d = g.newlabel('L_waitd')
    g.e('s_cbranch_scc1 %s' % d)
    g.e('s_sleep %d' % sleep)
    g.e('s_branch %s' % l)
    g.label(d)


def signal_add(g, amount=1):
    g.e('s_waitcnt vmcnt(0)')
    g.e('s_barrier')
    l = wave0_begin(g)
    ensure_init(g)
    g.e('s_mov_b64 exec, 1')
    g.e('v_mov_b32 v%d, 0' % W_T)
    g.e('v_mov_b32 v%d, %d' % (W_T + 1, amount))
    g.e('buffer_atomic_add v%d, v%d, %s, %s offen' % (W_T + 1, W_T, sr(SRD_WS, 4), sr(S_X0)))
    g.e('s_mov_b64 exec, -1')
    g.label(l)


def gemm_setup(g, strideA, strideB):
    L = W_LANE
    t = W_T
    g.e('v_lshrrev_b32 v%d, 3, v%d' % (t, L))
    g.e('s_mov_b32 %s, %d' % (sr(S_X0), strideA))
    g.e('v_mul_lo_u32 v%d, v%d, %s' % (t, t, sr(S_X0)))
    g.e('v_and_b32 v%d, 7, v%d' % (t + 1, L))
    g.e('v_lshrrev_b32 v%d, 4, v%d' % (t + 2, L))
    g.e('v_xor_b32 v%d, v%d, v%d' % (t + 1, t + 1, t + 2))
    g.e('v_lshl_add_u32 v%d, v%d, 4, v%d' % (t, t + 1, t))
    for i in range(4):
        g.e('v_xor_b32 v%d, %d, v%d' % (W_AD + i, (i & 1) * 64, t))
        if i:
            g.e('v_add_u32 v%d, %d, v%d' % (W_AD + i, 8 * i * strideA, W_AD + i))
    g.e('s_mov_b32 %s, %d' % (sr(S_X0), strideB))
    g.e('v_mul_lo_u32 v%d, v%d, %s' % (t, t + 2, sr(S_X0)))
    g.e('v_and_b32 v%d, 15, v%d' % (t + 1, L))
    g.e('v_lshlrev_b32 v%d, 2, v%d' % (t + 3, t + 2))
    g.e('v_xor_b32 v%d, v%d, v%d' % (t + 1, t + 1, t + 3))
    g.e('v_lshl_add_u32 v%d, v%d, 4, v%d' % (W_BD, t + 1, t))


def gemm_consts(g):
    L = W_LANE
    t = W_T
    g.e('v_and_b32 v%d, 31, v%d' % (t, L))
    g.e('v_bfe_u32 v%d, v%d, 1, 3' % (t + 1, L))
    g.e('v_lshrrev_b32 v%d, 5, v%d' % (t + 2, L))
    g.e('v_xor_b32 v%d, v%d, v%d' % (t + 1, t + 1, t + 2))
    g.e('v_lshlrev_b32 v%d, 7, v%d' % (t, t))
    g.e('v_lshl_add_u32 v%d, v%d, 4, v%d' % (t, t + 1, t))
    g.e('s_lshl_b32 %s, %s, 12' % (sr(S_X0), sr(S_WAVE)))
    g.e('v_add_u32 v%d, %s, v%d' % (t, sr(S_X0), t))
    for ks in range(4):
        g.e('v_xor_b32 v%d, %d, v%d' % (W_AR + ks, ks * 32, t))
    g.e('v_bfe_u32 v%d, v%d, 2, 2' % (t, L))
    g.e('v_lshl_add_u32 v%d, v%d, 3, v%d' % (t + 1, t + 2, t))
    g.e('v_lshlrev_b32 v%d, 8, v%d' % (t + 1, t + 1))
    g.e('v_bfe_u32 v%d, v%d, 4, 1' % (t + 3, L))
    g.e('v_bfe_u32 v%d, v%d, 1, 1' % (t + 4, L))
    g.e('v_lshl_add_u32 v%d, v%d, 1, v%d' % (t + 3, t + 3, t + 4))
    g.e('v_lshlrev_b32 v%d, 2, v%d' % (t + 4, t))
    g.e('v_xor_b32 v%d, v%d, v%d' % (t + 3, t + 3, t + 4))
    g.e('v_lshl_add_u32 v%d, v%d, 4, v%d' % (t + 1, t + 3, t + 1))
    g.e('v_and_b32 v%d, 1, v%d' % (t + 3, L))
    g.e('v_lshl_add_u32 v%d, v%d, 3, v%d' % (t + 1, t + 3, t + 1))
    g.e('v_add_u32 v%d, 16384, v%d' % (t + 1, t + 1))
    for tt in range(4):
        g.e('v_xor_b32 v%d, %d, v%d' % (W_BR + tt, tt * 64, t + 1))


def gemm_core(g, name, nb, nchunks, strideB, srdA, srdB, swap, asc1=False, warm=None):
    nt = 4 * nb
    NSTG = 2 if nb == 3 else 4
    STG = 65536 if nb == 3 else 32768
    nd = 4 + 4 * nb
    FB = [0, 64]
    FA = [48, 112]

    def dma(stage):
        base = stage * STG
        o = []
        pre = ['s_lshl_b32 %s, %s, 12' % (sr(S_X0), sr(S_WAVE)),
               's_lshl_b32 %s, %s, 7' % (sr(S_X1), sr(S_KC)),
               's_add_u32 %s, %s, %s' % (sr(S_X1), sr(S_X1), sr(S_AOFF))]
        for i in range(4):
            o.append(pre + ['s_add_u32 m0, %s, %d' % (sr(S_X0), base + i * 1024), 's_nop 0',
                            'buffer_load_dwordx4 v%d, %s, %s offen%s lds' % (W_AD + i, sr(srdA, 4), sr(S_X1), ' sc1' if asc1 else '')])
            pre = []
        pre = ['s_lshl_b32 %s, %s, 6' % (sr(S_X1), sr(S_KC)),
               's_lshl_b32 %s, %s, 4' % (sr(S_X2), sr(S_WAVE)),
               's_add_u32 %s, %s, %s' % (sr(S_X1), sr(S_X1), sr(S_X2)),
               's_mul_i32 %s, %s, %d' % (sr(S_X1), sr(S_X1), strideB)]
        for j in range(nb):
            pre = pre + ['s_add_u32 %s, %s, %s' % (sr(S_X2), sr(S_X1), sr(S_BOFF + j))]
            for i in range(4):
                o.append(pre + ['s_add_u32 m0, %s, %d' % (sr(S_X0), base + 16384 + j * 16384 + i * 1024),
                                's_add_u32 %s, %s, %d' % (sr(S_X3), sr(S_X2), 4 * i * strideB),
                                'buffer_load_dwordx4 v%d, %s, %s offen lds' % (W_BD, sr(srdB[j], 4), sr(S_X3))])
                pre = []
        return o

    def reads(ks, fs):
        o = ['ds_read_b128 %s, v%d' % (ar(FA[fs], 4), W_AR + ks)]
        for t in range(nt):
            j, tt = t >> 2, t & 3
            for s in range(2):
                o.append('ds_read_b64_tr_b16 %s, v%d offset:%d' % (ar(FB[fs] + t * 4 + s * 2, 2), W_BR + tt, (16 * ks + 4 * s) * 256 + j * 16384))
        return o

    def mfmas(fs, side, dq):
        nside = 0
        for t in range(nt):
            rem = 2 * (nt - 1 - t) + nside
            g.e('s_waitcnt lgkmcnt(%d)' % min(rem, 15))
            acc = vr(W_ACC + t * 16, 16)
            a, b = ar(FA[fs], 4), ar(FB[fs] + t * 4, 4)
            if swap[t >> 2]:
                a, b = b, a
            g.e('v_mfma_f32_32x32x16_bf16 %s, %s, %s, %s' % (acc, a, b, acc))
            k = 3 if t == 0 else 2
            for _ in range(k):
                if side:
                    g.e(side.pop(0))
                    nside += 1
            if dq and (t & 1) == 0:
                for s_ in dq.pop(0):
                    g.e(s_)

    for t in range(nt * 8):
        g.e('v_mov_b64 %s, 0' % vr(W_ACC + 2 * t, 2))
    for c in range(NSTG - 1):
        g.e('s_mov_b32 %s, %d' % (sr(S_KC), c))
        for grp in dma(c):
            for s_ in grp:
                g.e(s_)
    if warm is not None:
        strideA = warm
        t = W_T
        g.e('v_lshrrev_b32 v%d, 3, v%d' % (t, W_LANE))
        g.e('v_mul_u32_u24 v%d, %d, v%d' % (t, strideA, t))
        g.e('v_and_b32 v%d, 7, v%d' % (t + 1, W_LANE))
        g.e('v_lshl_add_u32 v%d, v%d, 7, v%d' % (t, t + 1, t))
        for i in range(4):
            g.e('s_add_u32 %s, %s, %d' % (sr(S_X0), sr(S_AOFF), 8 * i * strideA))
            g.e('buffer_load_dword v%d, v%d, %s, %s offen' % (t + 2, t, sr(srdA, 4), sr(S_X0)))
        g.e('v_lshrrev_b32 v%d, 1, v0' % t)
        g.e('v_mul_u32_u24 v%d, %d, v%d' % (t, strideB, t))
        g.e('v_and_b32 v%d, 1, v0' % (t + 1))
        g.e('v_lshl_add_u32 v%d, v%d, 7, v%d' % (t, t + 1, t))
        for i in range(4):
            for j in range(nb):
                g.e('s_add_u32 %s, %s, %d' % (sr(S_X0), sr(S_BOFF + j), 128 * i * strideB))
                g.e('buffer_load_dword v%d, v%d, %s, %s offen' % (t + 2, t, sr(srdB[j], 4), sr(S_X0)))
    g.e('s_mov_b32 %s, %d' % (sr(S_INIT + 2), NSTG - 2))
    loop = 'L_gl_%s' % name
    first = True
    if warm is not None:
        g.e('s_waitcnt vmcnt(%d)' % (4 + 4 * nb))
        g.e('s_branch %s_in' % loop)
    g.label(loop)
    for st in range(NSTG):
        g.e('s_waitcnt vmcnt(%d)' % ((NSTG - 2) * nd))
        if st == 0:
            g.label(loop + '_in')
        g.e('s_barrier')
        for s_ in reads(0, 0):
            g.e(s_)
        g.e('s_add_u32 %s, %s, 1' % (sr(S_INIT + 2), sr(S_INIT + 2)))
        g.e('s_min_u32 %s, %s, %d' % (sr(S_KC), sr(S_INIT + 2), nchunks - 1))
        dq = dma((st + NSTG - 1) % NSTG)
        for ks in range(4):
            mfmas(ks & 1, reads(ks + 1, (ks + 1) & 1) if ks < 3 else [], dq)
        assert not dq
        d = STG if st < NSTG - 1 else -(NSTG - 1) * STG
        for i in range(4):
            g.e('v_add_u32 v%d, 0x%x, v%d' % (W_AR + i, d & 0xffffffff, W_AR + i))
            g.e('v_add_u32 v%d, 0x%x, v%d' % (W_BR + i, d & 0xffffffff, W_BR + i))
    g.e('s_cmp_lt_u32 %s, %d' % (sr(S_INIT + 2), nchunks + NSTG - 2))
    g.e('s_cbranch_scc1 %s' % loop)
    g.e('s_waitcnt vmcnt(0)')
    g.nop(16)


def epi_ct_store(g, t, voff, srd, soff, ioff_fn, sc1):
    a = W_ACC + t * 16
    for gq in range(4):
        g.e('v_cvt_pk_bf16_f32 v%d, v%d, v%d' % (a + 4 * gq, a + 4 * gq, a + 4 * gq + 1))
        g.e('v_cvt_pk_bf16_f32 v%d, v%d, v%d' % (a + 4 * gq + 1, a + 4 * gq + 2, a + 4 * gq + 3))
    for gq in range(4):
        g.e('buffer_store_dwordx2 %s, v%d, %s, %s offen offset:%d%s' % (vr(a + 4 * gq, 2), voff, sr(srd, 4), soff, ioff_fn(gq), ' sc1' if sc1 else ''))


def epi_ct_store16(g, t, voff16, srd, soff, ioff_fn):
    a = W_ACC + t * 16
    for gq in range(4):
        g.e('v_cvt_pk_bf16_f32 v%d, v%d, v%d' % (a + 2 * gq, a + 4 * gq, a + 4 * gq + 1))
        g.e('v_cvt_pk_bf16_f32 v%d, v%d, v%d' % (a + 2 * gq + 1, a + 4 * gq + 2, a + 4 * gq + 3))
    g.nop(2)
    for j in range(2):
        g.e('v_permlane32_swap_b32 v%d, v%d' % (a + 4 * j, a + 4 * j + 2))
        g.e('v_permlane32_swap_b32 v%d, v%d' % (a + 4 * j + 1, a + 4 * j + 3))
    g.nop(1)
    for j in range(2):
        g.e('buffer_store_dwordx4 %s, v%d, %s, %s offen offset:%d sc1' % (vr(a + 4 * j, 4), voff16, sr(srd, 4), soff, ioff_fn(2 * j)))


def epi_v_store(g, t, voff, soff, ioff_fn):
    a = W_ACC + t * 16
    for q in range(2):
        d = W_T + 4 * q
        g.e('v_cvt_pk_bf16_f32 v%d, v%d, v%d' % (d, a + 4 * q, a + 4 * q + 1))
        g.e('v_cvt_pk_bf16_f32 v%d, v%d, v%d' % (d + 1, a + 4 * q + 2, a + 4 * q + 3))
        g.e('v_cvt_pk_bf16_f32 v%d, v%d, v%d' % (d + 2, a + 8 + 4 * q, a + 8 + 4 * q + 1))
        g.e('v_cvt_pk_bf16_f32 v%d, v%d, v%d' % (d + 3, a + 8 + 4 * q + 2, a + 8 + 4 * q + 3))
        for i in range(4):
            g.e('v_mov_b32 v%d, v%d' % (a + 4 * q + i if False else a + 8 * q + i, d + i)) if False else None
    for q in range(2):
        g.e('buffer_store_dwordx4 %s, v%d, %s, %s offen offset:%d sc1' % (vr(W_T + 4 * q, 4), voff, sr(SRD_WS, 4), soff, ioff_fn(q)))
    g.nop(2)


def task_bproj(g):
    g.label('L_t_bproj')
    g.e('s_lshr_b32 %s, %s, 5' % (sr(S_R), sr(S_TASK)))
    g.e('s_and_b32 %s, %s, 31' % (sr(S_H), sr(S_TASK)))
    lg_ = g.newlabel('L_gate')
    g.e('s_cmp_lt_u32 %s, %d' % (sr(S_R), GATE))
    g.e('s_cbranch_scc1 %s' % lg_)
    l = wave0_begin(g)
    g.e('s_lshl_b32 %s, %s, 7' % (sr(S_X0), sr(S_H)))
    g.e('s_add_u32 %s, %s, 0x%x' % (sr(S_X0), sr(S_X0), WS_FLAGS + F1_OFF))
    wait_ge(g, None, '3', 8)
    g.label(l)
    g.e('s_barrier')
    g.label(lg_)
    make_srd(g, SRD_A, S_BX, 2 << 20)
    make_srd(g, SRD_B0, S_WQ, 4 << 20)
    make_srd(g, SRD_B1, S_WK, 4 << 20)
    make_srd(g, SRD_B2, S_WV, 4 << 20)
    gemm_setup(g, 1024, 8192)
    g.e('s_lshl_b32 %s, %s, 17' % (sr(S_AOFF), sr(S_R)))
    g.e('s_lshl_b32 %s, %s, 15' % (sr(S_X0), sr(S_WAVE)))
    g.e('s_add_u32 %s, %s, %s' % (sr(S_AOFF), sr(S_AOFF), sr(S_X0)))
    for j in range(3):
        g.e('s_lshl_b32 %s, %s, 8' % (sr(S_BOFF + j), sr(S_H)))
    gemm_core(g, 'bp', 3, 8, 8192, SRD_A, [SRD_B0, SRD_B1, SRD_B2], [1, 1, 0])
    t = W_T + 8
    L = W_LANE
    g.e('s_lshl_b32 %s, %s, 2' % (sr(S_X0), sr(S_R)))
    g.e('s_add_u32 %s, %s, %s' % (sr(S_X0), sr(S_X0), sr(S_WAVE)))
    g.e('s_lshl_b32 %s, %s, 5' % (sr(S_X0), sr(S_X0)))
    g.e('s_add_u32 %s, %s, %s' % (sr(S_X0), sr(S_X0), sr(S_H)))
    g.e('s_lshl_b32 %s, %s, 13' % (sr(S_X0), sr(S_X0)))
    g.e('s_add_u32 %s, %s, 0x%x' % (sr(S_X1), sr(S_X0), WS_QX))
    g.e('s_add_u32 %s, %s, 0x%x' % (sr(S_X2), sr(S_X0), WS_KX))
    g.e('s_add_u32 %s, %s, 0x%x' % (sr(S_X3), sr(S_X0), WS_VX))
    g.e('v_bfe_u32 v%d, v%d, 4, 1' % (t, L))
    g.e('v_lshlrev_b32 v%d, 12, v%d' % (t, t))
    g.e('v_and_b32 v%d, 15, v%d' % (t + 1, L))
    g.e('v_lshl_add_u32 v%d, v%d, 4, v%d' % (t, t + 1, t))
    g.e('v_lshrrev_b32 v%d, 5, v%d' % (t + 2, L))
    g.e('v_lshl_add_u32 v%d, v%d, 8, v%d' % (t, t + 2, t))
    g.e('v_bfe_u32 v%d, v%d, 4, 1' % (t + 3, L))
    g.e('v_lshl_add_u32 v%d, v%d, 2, v%d' % (t + 3, t + 3, t + 2))
    g.e('v_lshlrev_b32 v%d, 8, v%d' % (t + 3, t + 3))
    g.e('v_lshl_add_u32 v%d, v%d, 4, v%d' % (t + 3, t + 1, t + 3))
    for tt in range(4):
        epi_ct_store16(g, tt, t, SRD_WS, sr(S_X1), lambda gq, tt=tt: tt * 1024 + gq * 256)
        epi_ct_store16(g, 4 + tt, t, SRD_WS, sr(S_X2), lambda gq, tt=tt: tt * 1024 + gq * 256)
    for tt in range(4):
        if tt == 2:
            g.e('s_add_u32 %s, %s, 4096' % (sr(S_X3), sr(S_X3)))
        epi_v_store(g, 8 + tt, t + 3, sr(S_X3), lambda q, tt=tt: (tt & 1) * 2048 + q * 512)
    g.e('s_lshl_b32 %s, %s, 7' % (sr(S_X0), sr(S_H)))
    g.e('s_lshl_b32 %s, %s, 2' % (sr(S_X1), sr(S_R)))
    g.e('s_add_u32 %s, %s, %s' % (sr(S_X0), sr(S_X0), sr(S_X1)))
    g.e('s_add_u32 %s, %s, 0x%x' % (sr(S_X0), sr(S_X0), WS_FLAGS + F1_OFF))
    signal_add(g, 3)
    g.e('s_branch L_next')


def task_aproj(g):
    g.label('L_t_aproj')
    g.e('s_sub_u32 %s, %s, %d' % (sr(S_X0), sr(S_TASK), T_AP))
    g.e('s_lshr_b32 %s, %s, 2' % (sr(S_R), sr(S_X0)))
    g.e('s_and_b32 %s, %s, 3' % (sr(S_H), sr(S_X0)))
    l = wave0_begin(g)
    g.e('s_mov_b32 %s, 0x%x' % (sr(S_X0), WS_FLAGS + F1_OFF + 4 * 128))
    wait_ge(g, None, '3', 8)
    g.label(l)
    g.e('s_barrier')
    make_srd(g, SRD_A, S_AX, 2 << 20)
    make_srd(g, SRD_B0, S_AWQKV, 512 * 3072)
    gemm_setup(g, 1024, 3072)
    g.e('s_lshl_b32 %s, %s, 17' % (sr(S_AOFF), sr(S_R)))
    g.e('s_lshl_b32 %s, %s, 15' % (sr(S_X0), sr(S_WAVE)))
    g.e('s_add_u32 %s, %s, %s' % (sr(S_AOFF), sr(S_AOFF), sr(S_X0)))
    g.e('s_lshl_b32 %s, %s, 8' % (sr(S_BOFF), sr(S_H)))
    g.e('s_add_u32 %s, %s, 1024' % (sr(S_BOFF + 1), sr(S_BOFF)))
    g.e('s_add_u32 %s, %s, 2048' % (sr(S_BOFF + 2), sr(S_BOFF)))
    gemm_core(g, 'ap', 3, 8, 3072, SRD_A, [SRD_B0, SRD_B0, SRD_B0], [1, 1, 0])
    t = W_T + 8
    L = W_LANE
    g.e('v_and_b32 v%d, 31, v%d' % (t, L))
    g.e('v_lshlrev_b32 v%d, 5, v%d' % (t, t))
    g.e('v_lshrrev_b32 v%d, 5, v%d' % (t + 2, L))
    g.e('v_lshl_add_u32 v%d, v%d, 3, v%d' % (t, t + 2, t))
    g.e('v_add_u32 v%d, 65536, v%d' % (t + 4, t))
    g.e('s_lshl_b32 %s, %s, 2' % (sr(S_X0), sr(S_R)))
    g.e('s_add_u32 %s, %s, %s' % (sr(S_X0), sr(S_X0), sr(S_WAVE)))
    g.e('s_lshl_b32 %s, %s, 10' % (sr(S_X0), sr(S_X0)))
    g.e('s_lshl_b32 %s, %s, 19' % (sr(S_X1), sr(S_H)))
    g.e('s_add_u32 %s, %s, %s' % (sr(S_X0), sr(S_X0), sr(S_X1)))
    for tt in range(4):
        for blk, base in ((0, WS_QA), (1, WS_KA)):
            a = W_ACC + (4 * blk + tt) * 16
            g.e('s_add_u32 %s, %s, 0x%x' % (sr(S_X2), sr(S_X0), base + tt * 131072))
            for gq in range(4):
                g.e('v_cvt_pk_bf16_f32 v%d, v%d, v%d' % (a + 4 * gq, a + 4 * gq, a + 4 * gq + 1))
                g.e('v_cvt_pk_bf16_f32 v%d, v%d, v%d' % (a + 4 * gq + 1, a + 4 * gq + 2, a + 4 * gq + 3))
            for gq in range(4):
                g.e('buffer_store_dwordx2 %s, v%d, %s, %s offen offset:%d sc1' % (vr(a + 4 * gq, 2), t + 4 * (gq >> 1), sr(SRD_WS, 4), sr(S_X2), (gq & 1) * 16))
    g.e('v_bfe_u32 v%d, v%d, 4, 1' % (t + 3, L))
    g.e('v_lshlrev_b32 v%d, 16, v%d' % (t + 3, t + 3))
    g.e('v_lshl_add_u32 v%d, v%d, 8, v%d' % (t + 3, t + 2, t + 3))
    g.e('v_and_b32 v%d, 15, v%d' % (t + 1, L))
    g.e('v_lshl_add_u32 v%d, v%d, 4, v%d' % (t + 3, t + 1, t + 3))
    for tt in range(4):
        g.e('s_add_u32 %s, %s, 0x%x' % (sr(S_X3), sr(S_X0), WS_VA + tt * 131072))
        epi_v_store(g, 8 + tt, t + 3, sr(S_X3), lambda q: q * 512)
    g.e('s_lshl_b32 %s, %s, 7' % (sr(S_X0), sr(S_R)))
    g.e('s_add_u32 %s, %s, 0x%x' % (sr(S_X0), sr(S_X0), WS_FLAGS + CA_OFF))
    signal_add(g)
    g.e('s_branch L_next')


def task_out(g, name, label, a_base, a_stride, nchunks, w_ptr, w_bytes, out_col, cnt_off, cnt_target):
    g.label(label)
    l = wave0_begin(g)
    g.e('s_lshl_b32 %s, %s, 7' % (sr(S_X0), sr(S_R)))
    g.e('s_add_u32 %s, %s, 0x%x' % (sr(S_X0), sr(S_X0), WS_FLAGS + cnt_off))
    wait_ge(g, None, str(cnt_target), 16)
    g.label(l)
    g.e('s_barrier')
    make_srd(g, SRD_B0, w_ptr, w_bytes)
    make_srd(g, SRD_OUT, S_OUT, 2048 * 2048)
    gemm_setup(g, a_stride, 1024)
    g.e('s_lshl_b32 %s, %s, 2' % (sr(S_X0), sr(S_R)))
    g.e('s_add_u32 %s, %s, %s' % (sr(S_X0), sr(S_X0), sr(S_WAVE)))
    g.e('s_mul_i32 %s, %s, %d' % (sr(S_AOFF), sr(S_X0), 32 * a_stride))
    g.e('s_add_u32 %s, %s, 0x%x' % (sr(S_AOFF), sr(S_AOFF), a_base))
    g.e('s_lshl_b32 %s, %s, 8' % (sr(S_BOFF), sr(S_H)))
    gemm_core(g, name, 1, nchunks, 1024, SRD_WS, [SRD_B0], [1], asc1=True)
    t = W_T + 8
    L = W_LANE
    g.e('v_and_b32 v%d, 31, v%d' % (t, L))
    g.e('v_lshlrev_b32 v%d, 11, v%d' % (t, t))
    g.e('v_lshrrev_b32 v%d, 5, v%d' % (t + 2, L))
    g.e('v_lshl_add_u32 v%d, v%d, 3, v%d' % (t, t + 2, t))
    g.e('s_lshl_b32 %s, %s, 2' % (sr(S_X0), sr(S_R)))
    g.e('s_add_u32 %s, %s, %s' % (sr(S_X0), sr(S_X0), sr(S_WAVE)))
    g.e('s_lshl_b32 %s, %s, 16' % (sr(S_X0), sr(S_X0)))
    g.e('s_lshl_b32 %s, %s, 8' % (sr(S_X1), sr(S_H)))
    g.e('s_add_u32 %s, %s, %s' % (sr(S_X0), sr(S_X0), sr(S_X1)))
    g.e('s_add_u32 %s, %s, %d' % (sr(S_X0), sr(S_X0), out_col * 2))
    for tt in range(4):
        epi_ct_store(g, tt, t, SRD_OUT, sr(S_X0), lambda gq, tt=tt: tt * 64 + gq * 16, False)
    g.e('s_branch L_next')


def softmax_vals(g, S, C, MX, l2e_sgpr, xl, n_round2_scale=None):
    n = len(S)
    MT = MX + 1

    def rnd():
        for i in range(n // 2):
            c = C[i % len(C)]
            g.e('v_cvt_pk_bf16_f32 v%d, v%d, v%d' % (c, S[2 * i], S[2 * i + 1]))
            g.e('v_lshlrev_b32 v%d, 16, v%d' % (S[2 * i], c))
            g.e('v_and_b32 v%d, 0xffff0000, v%d' % (S[2 * i + 1], c))
    rnd()
    if n_round2_scale is not None:
        for i in range(n // 2):
            g.e('v_pk_mul_f32 %s, %s, %s' % (vr(S[2 * i], 2), vr(S[2 * i], 2), sr(n_round2_scale, 2)))
        rnd()


def softmax_rest(g, S, C, MX, l2e_sgpr, xl):
    n = len(S)
    MT = MX + 1
    g.e('v_max_f32 v%d, v%d, v%d' % (MX, S[0], S[1]))
    for i in range(2, n, 2):
        g.e('v_max3_f32 v%d, v%d, v%d, v%d' % (MX, MX, S[i], S[i + 1]))
    for sw in xl:
        g.e('v_mov_b32 v%d, v%d' % (MT, MX))
        g.nop(2)
        g.e('%s v%d, v%d' % (sw, MT, MX))
        g.nop(1)
        g.e('v_max_f32 v%d, v%d, v%d' % (MX, MX, MT))
    g.e('v_mov_b32 v%d, v%d' % (MT, MX))
    for i in range(n // 2):
        g.e('v_pk_add_f32 %s, %s, %s neg_lo:[0,1] neg_hi:[0,1]' % (vr(S[2 * i], 2), vr(S[2 * i], 2), vr(MX, 2)))
        g.e('v_pk_mul_f32 %s, %s, %s' % (vr(S[2 * i], 2), vr(S[2 * i], 2), sr(l2e_sgpr, 2)))
    for i in range(n):
        g.e('v_exp_f32 v%d, v%d' % (S[i], S[i]))
    g.nop(1)
    g.e('v_pk_add_f32 %s, %s, %s' % (vr(C[0], 2), vr(S[0], 2), vr(S[2], 2)))
    for i in range(2, n // 2):
        g.e('v_pk_add_f32 %s, %s, %s' % (vr(C[0], 2), vr(C[0], 2), vr(S[2 * i], 2)))
    g.e('v_add_f32 v%d, v%d, v%d' % (MX, C[0], C[0] + 1))
    for sw in xl:
        g.e('v_mov_b32 v%d, v%d' % (MT, MX))
        g.nop(2)
        g.e('%s v%d, v%d' % (sw, MT, MX))
        g.nop(1)
        g.e('v_add_f32 v%d, v%d, v%d' % (MX, MX, MT))
    g.e('v_rcp_f32 v%d, v%d' % (MX, MX))
    g.nop(1)
    g.e('v_mov_b32 v%d, v%d' % (MT, MX))
    for i in range(n // 2):
        g.e('v_pk_mul_f32 %s, %s, %s' % (vr(S[2 * i], 2), vr(S[2 * i], 2), vr(MX, 2)))


def task_aattn(g):
    g.label('L_t_aattn')
    g.e('s_sub_u32 %s, %s, %d' % (sr(S_X0), sr(S_TASK), T_AA))
    g.e('s_lshr_b32 %s, %s, 2' % (sr(S_AOFF), sr(S_X0)))
    g.e('s_and_b32 %s, %s, 3' % (sr(S_H), sr(S_X0)))
    g.e('s_lshr_b32 %s, %s, 1' % (sr(S_R), sr(S_AOFF)))
    l = wave0_begin(g)
    for back in range(3):
        g.e('s_sub_u32 %s, %s, %d' % (sr(S_X0), sr(S_R), back))
        g.e('s_max_i32 %s, %s, 0' % (sr(S_X0), sr(S_X0)))
        g.e('s_lshl_b32 %s, %s, 7' % (sr(S_X0), sr(S_X0)))
        g.e('s_add_u32 %s, %s, 0x%x' % (sr(S_X0), sr(S_X0), WS_FLAGS + CA_OFF))
        wait_ge(g, None, '4', 8)
    g.label(l)
    g.e('s_barrier')
    L = W_LANE
    S_QT, S_A, S_HH = S_BOFF, S_BOFF + 1, S_BOFF + 2
    g.e('s_lshl_b32 %s, %s, 2' % (sr(S_QT), sr(S_AOFF)))
    g.e('s_add_u32 %s, %s, %s' % (sr(S_QT), sr(S_QT), sr(S_WAVE)))
    g.e('s_lshr_b32 %s, %s, 1' % (sr(S_A), sr(S_QT)))
    VQK, VL16, VD, VO = 2, 3, 4, 5
    g.e('v_and_b32 v6, 15, v%d' % L)
    g.e('v_lshrrev_b32 v7, 4, v%d' % L)
    g.e('v_lshlrev_b32 v%d, 5, v6' % VQK)
    g.e('v_lshl_add_u32 v%d, v7, 3, v%d' % (VQK, VQK))
    g.e('v_lshlrev_b32 v%d, 4, v%d' % (VL16, L))
    g.e('s_and_b32 %s, %s, 1' % (sr(S_X0), sr(S_QT)))
    g.e('s_lshl_b32 %s, %s, 4' % (sr(S_X0), sr(S_X0)))
    g.e('s_add_u32 %s, %s, 256' % (sr(S_X0), sr(S_X0)))
    g.e('v_add_u32 v%d, %s, v6' % (VD, sr(S_X0)))
    g.e('v_lshlrev_b32 v8, 2, v7')
    g.e('v_sub_u32 v%d, v%d, v8' % (VD, VD))
    g.e('v_lshlrev_b32 v%d, 10, v6' % VO)
    g.e('v_lshl_add_u32 v%d, v7, 3, v%d' % (VO, VO))
    g.e('s_mov_b32 %s, 0x3eb8aa3b' % sr(S_L2E))
    g.e('s_mov_b32 %s, 0x3eb8aa3b' % sr(S_L2E + 1))
    g.e('s_lshl_b32 %s, %s, 3' % (sr(S_HH), sr(S_H)))
    g.e('s_mov_b32 %s, 0' % sr(S_KC))
    QF, KF, VF, SC, CB, PF, OC = 10, 12, 48, 84, 156, 192, 228
    NEG = 232
    lp = g.newlabel('L_aa')
    g.label(lp)
    g.e('s_lshl_b32 %s, %s, 16' % (sr(S_X0), sr(S_HH)))
    g.e('s_lshl_b32 %s, %s, 9' % (sr(S_X1), sr(S_QT)))
    g.e('s_add_u32 %s, %s, %s' % (sr(S_X1), sr(S_X1), sr(S_X0)))
    g.e('s_add_u32 %s, %s, 0x%x' % (sr(S_X1), sr(S_X1), WS_QA))
    g.e('buffer_load_dwordx2 %s, v%d, %s, %s offen sc1' % (vr(QF, 2), VQK, sr(SRD_WS, 4), sr(S_X1)))
    for b in range(9):
        g.e('s_add_i32 %s, %s, %d' % (sr(S_X1), sr(S_A), b - 8))
        g.e('s_max_i32 %s, %s, 0' % (sr(S_X1), sr(S_X1)))
        g.e('s_lshl_b32 %s, %s, 10' % (sr(S_X1), sr(S_X1)))
        g.e('s_add_u32 %s, %s, %s' % (sr(S_X1), sr(S_X1), sr(S_X0)))
        g.e('s_add_u32 %s, %s, 0x%x' % (sr(S_X2), sr(S_X1), WS_KA))
        g.e('s_add_u32 %s, %s, 0x%x' % (sr(S_X3), sr(S_X1), WS_VA))
        g.e('buffer_load_dwordx2 %s, v%d, %s, %s offen sc1' % (vr(KF + 4 * b, 2), VQK, sr(SRD_WS, 4), sr(S_X2)))
        g.e('buffer_load_dwordx2 %s, v%d, %s, %s offen offset:512 sc1' % (vr(KF + 4 * b + 2, 2), VQK, sr(SRD_WS, 4), sr(S_X2)))
        g.e('buffer_load_dwordx4 %s, v%d, %s, %s offen sc1' % (vr(VF + 4 * b, 4), VL16, sr(SRD_WS, 4), sr(S_X3)))
    for b in range(9):
        g.e('s_add_i32 %s, %s, %d' % (sr(S_X1), sr(S_A), b - 8))
        g.e('s_cmp_lt_i32 %s, 0' % sr(S_X1))
        g.e('s_cselect_b32 %s, 0xf149f2ca, 0' % sr(S_X1))
        for i in range(4):
            g.e('v_mov_b32 v%d, %s' % (CB + 4 * b + i, sr(S_X1)))
    g.e('v_mov_b32 v%d, 0xf149f2ca' % NEG)
    g.e('s_waitcnt vmcnt(0)')
    for b in range(9):
        for T in range(2):
            g.e('v_mfma_f32_16x16x16_bf16 %s, %s, %s, %s' % (vr(SC + 8 * b + 4 * T, 4), vr(KF + 4 * b + 2 * T, 2), vr(QF, 2), vr(CB + 4 * b, 4)))
    g.nop(8)
    S = [SC + i for i in range(72)]
    C = [KF + i for i in range(8)]
    softmax_vals(g, S, C, OC, None, None)
    for b in (0, 8):
        for T in range(2):
            for r in range(4):
                g.e('v_subrev_u32 v%d, %d, v%d' % (OC, 32 * b + 16 * T + r, VD))
                g.e('v_cmp_gt_u32 vcc, 0x100, v%d' % OC)
                g.nop(2)
                g.e('v_cndmask_b32 v%d, v%d, v%d, vcc' % (SC + 8 * b + 4 * T + r, NEG, SC + 8 * b + 4 * T + r))
    softmax_rest(g, S, C, OC, S_L2E, ['v_permlane16_swap_b32', 'v_permlane32_swap_b32'])
    for i in range(36):
        g.e('v_cvt_pk_bf16_f32 v%d, v%d, v%d' % (PF + i, S[2 * i], S[2 * i + 1]))
    g.nop(2)
    for b in range(9):
        g.e('v_mfma_f32_16x16x32_bf16 %s, %s, %s, %s' % (vr(OC, 4), vr(VF + 4 * b, 4), vr(PF + 4 * b, 4), '0' if b == 0 else vr(OC, 4)))
    g.nop(8)
    g.e('v_cvt_pk_bf16_f32 v%d, v%d, v%d' % (OC, OC, OC + 1))
    g.e('v_cvt_pk_bf16_f32 v%d, v%d, v%d' % (OC + 1, OC + 2, OC + 3))
    g.e('s_lshl_b32 %s, %s, 14' % (sr(S_X1), sr(S_QT)))
    g.e('s_lshl_b32 %s, %s, 5' % (sr(S_X2), sr(S_HH)))
    g.e('s_add_u32 %s, %s, %s' % (sr(S_X1), sr(S_X1), sr(S_X2)))
    g.e('s_add_u32 %s, %s, 0x%x' % (sr(S_X1), sr(S_X1), WS_OA))
    g.e('buffer_store_dwordx2 %s, v%d, %s, %s offen sc1' % (vr(OC, 2), VO, sr(SRD_WS, 4), sr(S_X1)))
    g.e('s_add_u32 %s, %s, 1' % (sr(S_HH), sr(S_HH)))
    g.e('s_add_u32 %s, %s, 1' % (sr(S_KC), sr(S_KC)))
    g.e('s_cmp_lt_u32 %s, 8' % sr(S_KC))
    g.nop(2)
    g.e('s_cbranch_scc1 %s' % lp)
    g.e('s_lshl_b32 %s, %s, 7' % (sr(S_X0), sr(S_R)))
    g.e('s_add_u32 %s, %s, 0x%x' % (sr(S_X0), sr(S_X0), WS_FLAGS + CB_OFF))
    signal_add(g)
    g.e('s_branch L_next_regs')


def task_battn(g):
    g.label('L_t_battn')
    S_SEGI, S_HD = S_AOFF, S_BOFF
    g.e('s_lshl_b32 %s, %s, 2' % (sr(S_HD), sr(S_H)))
    g.e('s_add_u32 %s, %s, %s' % (sr(S_HD), sr(S_HD), sr(S_WAVE)))
    g.e('s_lshl_b32 %s, %s, 7' % (sr(S_X0), sr(S_HD)))
    g.e('s_lshl_b32 %s, %s, 2' % (sr(S_X1), sr(S_R)))
    g.e('s_add_u32 %s, %s, %s' % (sr(S_X0), sr(S_X0), sr(S_X1)))
    g.e('s_add_u32 %s, %s, 0x%x' % (sr(S_X0), sr(S_X0), WS_FLAGS + F1_OFF))
    wait_ge(g, None, '3', 16)
    L = W_LANE
    VK, VKM, VV, VVM, VO, VD = 2, 3, 4, 5, 6, 7
    g.e('v_bfe_u32 v8, v%d, 4, 1' % L)
    g.e('v_lshrrev_b32 v9, 5, v%d' % L)
    g.e('v_and_b32 v10, 15, v%d' % L)
    g.e('v_lshlrev_b32 v%d, 12, v8' % VK)
    g.e('v_lshl_add_u32 v%d, v9, 8, v%d' % (VK, VK))
    g.e('v_lshl_add_u32 v%d, v10, 4, v%d' % (VK, VK))
    g.e('v_and_b32 v11, 7, v%d' % L)
    g.e('v_lshlrev_b32 v%d, 7, v9' % VKM)
    g.e('v_lshl_add_u32 v%d, v11, 4, v%d' % (VKM, VKM))
    g.e('v_lshlrev_b32 v%d, 10, v8' % VV)
    g.e('v_lshl_add_u32 v%d, v9, 8, v%d' % (VV, VV))
    g.e('v_lshl_add_u32 v%d, v10, 4, v%d' % (VV, VV))
    g.e('v_and_b32 v11, 31, v%d' % L)
    g.e('v_lshlrev_b32 v%d, 4, v11' % VVM)
    g.e('v_lshl_add_u32 v%d, v9, 3, v%d' % (VVM, VVM))
    g.e('v_lshlrev_b32 v%d, 13, v11' % VO)
    g.e('v_lshl_add_u32 v%d, v9, 4, v%d' % (VO, VO))
    g.e('v_lshlrev_b32 v12, 2, v9')
    g.e('v_sub_u32 v%d, v11, v12' % VD)
    g.e('s_lshl_b32 %s, %s, 5' % (sr(S_X0), sr(S_SEGI)))
    g.e('s_add_u32 %s, %s, %s' % (sr(S_X0), sr(S_X0), sr(S_HD)))
    g.e('s_lshl_b32 %s, %s, 13' % (sr(S_X1), sr(S_X0)))
    g.e('s_lshl_b32 %s, %s, 12' % (sr(S_X0), sr(S_X0)))
    QF, KF, KM, VF, VMF = 16, 48, 80, 112, 144
    SX, SMm, PF, OC = 160, 176, 192, 208
    g.e('s_add_u32 %s, %s, 0x%x' % (sr(S_X2), sr(S_X1), WS_QX))
    g.e('s_add_u32 %s, %s, 0x%x' % (sr(S_X3), sr(S_X1), WS_KX))
    for ks in range(8):
        o = (ks >> 1) * 1024 + (ks & 1) * 512
        g.e('buffer_load_dwordx4 %s, v%d, %s, %s offen offset:%d sc1' % (vr(QF + 4 * ks, 4), VK, sr(SRD_WS, 4), sr(S_X2), o))
        g.e('buffer_load_dwordx4 %s, v%d, %s, %s offen offset:%d sc1' % (vr(KF + 4 * ks, 4), VK, sr(SRD_WS, 4), sr(S_X3), o))
    g.e('s_add_u32 %s, %s, 0x%x' % (sr(S_X2), sr(S_X1), WS_VX))
    g.e('s_add_u32 %s, %s, 4096' % (sr(S_X3), sr(S_X2)))
    for ft in range(4):
        so = sr(S_X2) if ft < 2 else sr(S_X3)
        for ks in range(2):
            for e in range(2):
                g.e('buffer_load_dwordx2 %s, v%d, %s, %s offen offset:%d sc1' % (vr(VF + 8 * ft + 4 * ks + 2 * e, 2), VV, sr(SRD_WS, 4), so, (ft & 1) * 2048 + e * 512 + ks * 8))
    l = g.newlabel('L_wait')
    g.e('s_lshl_b32 %s, %s, 7' % (sr(S_BOFF + 1), sr(S_HD)))
    g.e('s_add_u32 %s, %s, 0x%x' % (sr(S_BOFF + 1), sr(S_BOFF + 1), WS_FLAGS + F2_OFF))
    g.e('v_mov_b32 v%d, 0' % (OC + 4))
    g.label(l)
    g.guard()
    g.e('buffer_load_dwordx4 %s, v%d, %s, %s offen sc1' % (vr(OC, 4), OC + 4, sr(SRD_WS, 4), sr(S_BOFF + 1)))
    g.e('s_waitcnt vmcnt(0)')
    g.e('v_min3_u32 v%d, v%d, v%d, v%d' % (OC, OC, OC + 1, OC + 2))
    g.e('v_min_u32 v%d, v%d, v%d' % (OC, OC, OC + 3))
    g.nop(1)
    g.e('v_readfirstlane_b32 %s, v%d' % (sr(S_X1), OC))
    g.nop(3)
    g.e('s_cmp_gt_u32 %s, %s' % (sr(S_X1), sr(S_SEGI)))
    d = g.newlabel('L_waitd')
    g.e('s_cbranch_scc1 %s' % d)
    g.e('s_sleep 4')
    g.e('s_branch %s' % l)
    g.label(d)
    g.e('s_add_u32 %s, %s, 0x%x' % (sr(S_X2), sr(S_X0), WS_KM))
    for ks in range(8):
        g.e('buffer_load_dwordx4 %s, v%d, %s, %s offen offset:%d sc1' % (vr(KM + 4 * ks, 4), VKM, sr(SRD_WS, 4), sr(S_X2), ks * 256))
    g.e('s_add_u32 %s, %s, 0x%x' % (sr(S_X2), sr(S_X0), WS_KM + 2048))
    for ft in range(4):
        g.e('buffer_load_dwordx2 %s, v%d, %s, %s offen offset:%d sc1' % (vr(VMF + 4 * ft, 2), VVM, sr(SRD_WS, 4), sr(S_X2), ft * 512))
        g.e('v_mov_b64 %s, 0' % vr(VMF + 4 * ft + 2, 2))
    g.e('s_mov_b32 %s, 0x3db504f3' % sr(S_SC))
    g.e('s_mov_b32 %s, 0x3db504f3' % sr(S_SC + 1))
    g.e('s_mov_b32 %s, 0x3fb8aa3b' % sr(S_L2E))
    g.e('s_mov_b32 %s, 0x3fb8aa3b' % sr(S_L2E + 1))
    for ks in range(8):
        g.e('v_mfma_f32_32x32x16_bf16 %s, %s, %s, %s' % (vr(SX, 16), vr(KF + 4 * ks, 4), vr(QF + 4 * ks, 4), '0' if ks == 0 else vr(SX, 16)))
    g.e('s_waitcnt vmcnt(4)')
    for ks in range(8):
        g.e('v_mfma_f32_32x32x16_bf16 %s, %s, %s, %s' % (vr(SMm, 16), vr(KM + 4 * ks, 4), vr(QF + 4 * ks, 4), '0' if ks == 0 else vr(SMm, 16)))
    g.nop(16)
    S = [SX + i for i in range(16)] + [SMm + i for i in range(4)]
    C = [QF + i for i in range(8)]
    MX = QF + 8
    softmax_vals(g, S, C, MX, None, None, S_SC)
    g.e('v_mov_b32 v%d, 0xf149f2ca' % (QF + 10))
    for r in range(16):
        key = 8 * (r >> 2) + (r & 3)
        g.e('v_cmp_le_i32 vcc, %d, v%d' % (key, VD))
        g.nop(2)
        g.e('v_cndmask_b32 v%d, v%d, v%d, vcc' % (SX + r, QF + 10, SX + r))
    softmax_rest(g, S, C, MX, S_L2E, ['v_permlane32_swap_b32'])
    for i in range(10):
        g.e('v_cvt_pk_bf16_f32 v%d, v%d, v%d' % (PF + i, S[2 * i], S[2 * i + 1]))
    g.e('v_mov_b64 %s, 0' % vr(PF + 10, 2))
    g.e('s_waitcnt vmcnt(0)')
    g.e('s_lshl_b32 %s, %s, 18' % (sr(S_X0), sr(S_SEGI)))
    g.e('s_lshl_b32 %s, %s, 8' % (sr(S_X1), sr(S_HD)))
    g.e('s_add_u32 %s, %s, %s' % (sr(S_X0), sr(S_X0), sr(S_X1)))
    g.e('s_add_u32 %s, %s, 0x%x' % (sr(S_X0), sr(S_X0), WS_OX))
    OCS = [OC, OC + 16, KF, KF + 16]
    for ft in range(4):
        oc = vr(OCS[ft], 16)
        g.e('v_mfma_f32_32x32x16_bf16 %s, %s, %s, 0' % (oc, vr(VF + 8 * ft, 4), vr(PF, 4)))
        g.e('v_mfma_f32_32x32x16_bf16 %s, %s, %s, %s' % (oc, vr(VF + 8 * ft + 4, 4), vr(PF + 4, 4), oc))
        g.e('v_mfma_f32_32x32x16_bf16 %s, %s, %s, %s' % (oc, vr(VMF + 4 * ft, 4), vr(PF + 8, 4), oc))
    g.nop(16)
    for ft in range(4):
        a = OCS[ft]
        for gq in range(4):
            g.e('v_cvt_pk_bf16_f32 v%d, v%d, v%d' % (a + 2 * gq, a + 4 * gq, a + 4 * gq + 1))
            g.e('v_cvt_pk_bf16_f32 v%d, v%d, v%d' % (a + 2 * gq + 1, a + 4 * gq + 2, a + 4 * gq + 3))
        g.nop(2)
        for j in range(2):
            g.e('v_permlane32_swap_b32 v%d, v%d' % (a + 4 * j, a + 4 * j + 2))
            g.e('v_permlane32_swap_b32 v%d, v%d' % (a + 4 * j + 1, a + 4 * j + 3))
        g.nop(1)
        for j in range(2):
            g.e('buffer_store_dwordx4 %s, v%d, %s, %s offen offset:%d sc1' % (vr(a + 4 * j, 4), VO, sr(SRD_WS, 4), sr(S_X0), ft * 64 + j * 32))
    g.e('s_lshl_b32 %s, %s, 7' % (sr(S_X0), sr(S_R)))
    g.e('s_add_u32 %s, %s, 0x%x' % (sr(S_X0), sr(S_X0), WS_FLAGS + CO_OFF))
    g.e('s_lshl_b32 %s, %s, 7' % (sr(S_X1), sr(S_SEGI)))
    g.e('s_add_u32 %s, %s, 0x%x' % (sr(S_X1), sr(S_X1), WS_FLAGS + CS_OFF - 4 * NBIG * 128))
    g.e('s_cmp_ge_u32 %s, %d' % (sr(S_SEGI), 4 * NBIG))
    g.e('s_cselect_b32 %s, %s, %s' % (sr(S_X0), sr(S_X1), sr(S_X0)))
    signal_add(g)
    g.e('s_branch L_next_regs')


def task_boutf(g):
    g.label('L_t_boutf')
    S_SEGI = S_AOFF
    l = wave0_begin(g)
    g.e('s_lshl_b32 %s, %s, 7' % (sr(S_X0), sr(S_SEGI)))
    g.e('s_add_u32 %s, %s, 0x%x' % (sr(S_X0), sr(S_X0), WS_FLAGS + CS_OFF - 4 * NBIG * 128))
    wait_ge(g, None, '8', 4)
    g.label(l)
    make_srd(g, SRD_B0, S_WO, 4 << 20)
    make_srd(g, SRD_OUT, S_OUT, 2048 * 2048)
    gemm_setup(g, 8192, 1024)
    L = W_LANE
    t = W_T
    NS = 5
    SLOT = 8192
    g.e('v_lshrrev_b32 v%d, 2, v%d' % (t, L))
    g.e('v_lshlrev_b32 v%d, 10, v%d' % (t, t))
    g.e('v_and_b32 v%d, 3, v%d' % (t + 1, L))
    g.e('v_lshl_add_u32 v%d, v%d, 4, v%d' % (W_BD, t + 1, t))
    VA, VB = 20, 24
    g.e('s_mul_i32 %s, %s, %d' % (sr(S_BOFF + 2), sr(S_WAVE), NS * SLOT))
    g.e('v_and_b32 v%d, 31, v%d' % (t, L))
    g.e('v_bfe_u32 v%d, v%d, 1, 3' % (t + 1, L))
    g.e('v_lshrrev_b32 v%d, 5, v%d' % (t + 2, L))
    g.e('v_xor_b32 v%d, v%d, v%d' % (t + 1, t + 1, t + 2))
    g.e('v_lshlrev_b32 v%d, 7, v%d' % (t, t))
    g.e('v_lshl_add_u32 v%d, v%d, 4, v%d' % (t, t + 1, t))
    g.e('v_add_u32 v%d, %s, v%d' % (t, sr(S_BOFF + 2), t))
    for ks in range(4):
        g.e('v_xor_b32 v%d, %d, v%d' % (VA + ks, ks * 32, t))
    g.e('v_bfe_u32 v%d, v%d, 2, 2' % (t, L))
    g.e('v_lshl_add_u32 v%d, v%d, 3, v%d' % (t, t + 2, t))
    g.e('v_lshlrev_b32 v%d, 6, v%d' % (t, t))
    g.e('v_bfe_u32 v%d, v%d, 4, 1' % (t + 1, L))
    g.e('v_lshl_add_u32 v%d, v%d, 5, v%d' % (t, t + 1, t))
    g.e('v_and_b32 v%d, 3, v%d' % (t + 1, L))
    g.e('v_lshl_add_u32 v%d, v%d, 3, v%d' % (t, t + 1, t))
    g.e('v_add_u32 v%d, %s, v%d' % (t, sr(S_BOFF + 2), t))
    g.e('v_add_u32 v%d, 4096, v%d' % (VB, t))
    g.e('s_lshl_b32 %s, %s, 18' % (sr(S_BOFF), sr(S_SEGI)))
    g.e('s_lshl_b32 %s, %s, 11' % (sr(S_X0), sr(S_WAVE)))
    g.e('s_add_u32 %s, %s, %s' % (sr(S_BOFF), sr(S_BOFF), sr(S_X0)))
    g.e('s_add_u32 %s, %s, 0x%x' % (sr(S_BOFF), sr(S_BOFF), WS_OX))
    g.e('s_lshl_b32 %s, %s, 20' % (sr(S_BOFF + 1), sr(S_WAVE)))
    g.e('s_lshl_b32 %s, %s, 6' % (sr(S_X0), sr(S_H)))
    g.e('s_add_u32 %s, %s, %s' % (sr(S_BOFF + 1), sr(S_BOFF + 1), sr(S_X0)))

    def dmaB(blk):
        sl = blk % NS
        for i in range(4):
            g.e('s_add_u32 m0, %s, %d' % (sr(S_BOFF + 2), sl * SLOT + 4096 + i * 1024))
            g.e('s_add_u32 %s, %s, %d' % (sr(S_X0), sr(S_BOFF + 1), blk * 65536 + i * 16384))
            g.e('buffer_load_dwordx4 v%d, %s, %s offen lds' % (W_BD, sr(SRD_B0, 4), sr(S_X0)))

    def dmaA(blk):
        sl = blk % NS
        g.e('s_add_u32 %s, %s, %d' % (sr(S_X0), sr(S_BOFF), blk * 128))
        for i in range(4):
            g.e('s_add_u32 m0, %s, %d' % (sr(S_BOFF + 2), sl * SLOT + i * 1024))
            g.nop(1)
            g.e('buffer_load_dwordx4 v%d, %s, %s offen sc1 lds' % (W_AD + i, sr(SRD_WS, 4), sr(S_X0)))
    g.e('s_barrier')
    for blk in range(NS - 1):
        dmaA(blk)
        dmaB(blk)
    FAr, FBr = 32, 48
    for blk in range(16):
        sl = blk % NS
        infl = min(15 - blk, NS - 2)
        g.e('s_waitcnt vmcnt(%d)' % (8 * infl))
        for ks in range(4):
            g.e('ds_read_b128 %s, v%d offset:%d' % (vr(FAr + 4 * ks, 4), VA + ks, sl * SLOT))
            for s_ in range(2):
                g.e('ds_read_b64_tr_b16 %s, v%d offset:%d' % (vr(FBr + 4 * ks + 2 * s_, 2), VB, sl * SLOT + (16 * ks + 4 * s_) * 64))
        if blk + NS - 1 < 16:
            dmaA(blk + NS - 1)
            dmaB(blk + NS - 1)
        for ks in range(4):
            g.e('s_waitcnt lgkmcnt(%d)' % (3 * (3 - ks)))
            g.e('v_mfma_f32_32x32x16_bf16 %s, %s, %s, %s' % (vr(W_ACC, 16), vr(FBr + 4 * ks, 4), vr(FAr + 4 * ks, 4), '0' if (blk == 0 and ks == 0) else vr(W_ACC, 16)))
    g.nop(16)
    g.e('s_barrier')
    g.e('v_lshlrev_b32 v%d, 4, v%d' % (t, L))
    g.e('s_lshl_b32 %s, %s, 12' % (sr(S_X0), sr(S_WAVE)))
    g.e('v_add_u32 v%d, %s, v%d' % (t + 1, sr(S_X0), t))
    for gq in range(4):
        g.e('ds_write_b128 v%d, %s offset:%d' % (t + 1, vr(W_ACC + 4 * gq, 4), gq * 1024))
    g.e('s_lshl_b32 %s, %s, 10' % (sr(S_X0), sr(S_WAVE)))
    g.e('v_add_u32 v%d, %s, v%d' % (t + 1, sr(S_X0), t))
    g.e('s_waitcnt lgkmcnt(0)')
    g.e('s_barrier')
    for ww in range(4):
        g.e('ds_read_b128 %s, v%d offset:%d' % (vr(FAr + 4 * ww, 4), t + 1, ww * 4096))
    g.e('v_and_b32 v%d, 31, v%d' % (t, L))
    g.e('v_lshlrev_b32 v%d, 11, v%d' % (t, t))
    g.e('v_lshl_add_u32 v%d, v%d, 3, v%d' % (t, t + 2, t))
    g.e('s_lshl_b32 %s, %s, 16' % (sr(S_X0), sr(S_SEGI)))
    g.e('s_lshl_b32 %s, %s, 6' % (sr(S_X1), sr(S_H)))
    g.e('s_add_u32 %s, %s, %s' % (sr(S_X0), sr(S_X0), sr(S_X1)))
    g.e('s_lshl_b32 %s, %s, 4' % (sr(S_X1), sr(S_WAVE)))
    g.e('s_add_u32 %s, %s, %s' % (sr(S_X0), sr(S_X0), sr(S_X1)))
    g.e('s_waitcnt lgkmcnt(0)')
    for i in range(2):
        g.e('v_pk_add_f32 %s, %s, %s' % (vr(FAr + 2 * i, 2), vr(FAr + 2 * i, 2), vr(FAr + 4 + 2 * i, 2)))
        g.e('v_pk_add_f32 %s, %s, %s' % (vr(FAr + 8 + 2 * i, 2), vr(FAr + 8 + 2 * i, 2), vr(FAr + 12 + 2 * i, 2)))
    for i in range(2):
        g.e('v_pk_add_f32 %s, %s, %s' % (vr(FAr + 2 * i, 2), vr(FAr + 2 * i, 2), vr(FAr + 8 + 2 * i, 2)))
    g.e('v_cvt_pk_bf16_f32 v%d, v%d, v%d' % (FAr, FAr, FAr + 1))
    g.e('v_cvt_pk_bf16_f32 v%d, v%d, v%d' % (FAr + 1, FAr + 2, FAr + 3))
    g.e('buffer_store_dwordx2 %s, v%d, %s, %s offen offset:1024' % (vr(FAr, 2), t, sr(SRD_OUT, 4), sr(S_X0)))
    g.e('s_branch L_next')


def task_boutx(g):
    g.label('L_t_boutx')
    S_SEGI = S_AOFF
    L = W_LANE
    t = W_T
    make_srd(g, SRD_B0, S_WO, 4 << 20)
    make_srd(g, SRD_OUT, S_OUT, 2048 * 2048)
    g.e('v_lshrrev_b32 v%d, 2, v%d' % (t, L))
    g.e('v_lshlrev_b32 v%d, 10, v%d' % (t, t))
    g.e('v_and_b32 v%d, 3, v%d' % (t + 3, L))
    g.e('v_lshl_add_u32 v%d, v%d, 4, v%d' % (t, t + 3, t))
    g.e('s_and_b32 %s, %s, 15' % (sr(S_BOFF), sr(S_H)))
    g.e('s_lshr_b32 %s, %s, 4' % (sr(S_BOFF + 1), sr(S_H)))
    g.e('s_lshl_b32 %s, %s, 20' % (sr(S_X1), sr(S_WAVE)))
    g.e('s_lshl_b32 %s, %s, 6' % (sr(S_X0), sr(S_BOFF)))
    g.e('s_add_u32 %s, %s, %s' % (sr(S_X1), sr(S_X1), sr(S_X0)))
    g.e('s_lshl_b32 %s, %s, 15' % (sr(S_BOFF + 2), sr(S_WAVE)))
    g.e('v_lshrrev_b32 v%d, 4, v%d' % (t + 2, L))
    g.e('v_bfe_u32 v%d, v%d, 2, 2' % (t + 1, L))
    g.e('v_lshl_add_u32 v%d, v%d, 3, v%d' % (t + 1, t + 2, t + 1))
    g.e('v_lshlrev_b32 v%d, 6, v%d' % (t + 1, t + 1))
    g.e('v_lshl_add_u32 v%d, v%d, 3, v%d' % (t + 1, t + 3, t + 1))
    g.e('v_add_u32 v%d, %s, v%d' % (t + 1, sr(S_BOFF + 2), t + 1))
    g.e('v_and_b32 v%d, 15, v%d' % (t + 3, L))
    g.e('v_lshlrev_b32 v%d, 13, v%d' % (t + 4, t + 3))
    g.e('v_lshl_add_u32 v%d, v%d, 4, v%d' % (t + 4, t + 2, t + 4))
    g.e('v_lshlrev_b32 v%d, 11, v%d' % (t + 5, t + 3))
    g.e('v_lshl_add_u32 v%d, v%d, 3, v%d' % (t + 5, t + 2, t + 5))
    for p in range(2):
        for i in range(32):
            g.e('s_add_u32 m0, %s, %d' % (sr(S_BOFF + 2), i * 1024))
            g.e('s_add_u32 %s, %s, %d' % (sr(S_X0), sr(S_X1), (512 * p + 16 * i) * 1024))
            g.e('buffer_load_dwordx4 v%d, %s, %s offen lds' % (t, sr(SRD_B0, 4), sr(S_X0)))
        g.e('s_waitcnt vmcnt(0)')
        for ksl in range(16):
            for tt in range(2):
                for s_ in range(2):
                    g.e('ds_read_b64_tr_b16 %s, v%d offset:%d' % (ar(128 * tt + 4 * (16 * p + ksl) + 2 * s_, 2), t + 1, (32 * ksl + 4 * s_) * 64 + tt * 32))
        g.e('s_waitcnt lgkmcnt(0)')
    g.e('v_lshlrev_b32 v%d, 4, v%d' % (t + 6, L))
    g.e('v_add_u32 v%d, %s, v%d' % (t + 7, sr(S_BOFF + 2), t + 6))
    g.e('s_lshl_b32 %s, %s, 10' % (sr(S_X0), sr(S_WAVE)))
    g.e('v_add_u32 v%d, %s, v%d' % (t + 6, sr(S_X0), t + 6))
    g.e('v_add_u32 v%d, 65536, v%d' % (t + 8, t + 6))
    g.label('L_bx_loop')
    g.e('s_lshl_b32 %s, %s, 7' % (sr(S_X0), sr(S_SEGI)))
    g.e('s_add_u32 %s, %s, 0x%x' % (sr(S_X0), sr(S_X0), WS_FLAGS + CS_OFF - 4 * NBIG * 128))
    wait_ge(g, None, '8', 4)
    g.e('s_lshl_b32 %s, %s, 1' % (sr(S_X0), sr(S_SEGI)))
    g.e('s_add_u32 %s, %s, %s' % (sr(S_X0), sr(S_X0), sr(S_BOFF + 1)))
    g.e('s_lshl_b32 %s, %s, 17' % (sr(S_X1), sr(S_X0)))
    g.e('s_lshl_b32 %s, %s, 11' % (sr(S_X2), sr(S_WAVE)))
    g.e('s_add_u32 %s, %s, %s' % (sr(S_X1), sr(S_X1), sr(S_X2)))
    g.e('s_add_u32 %s, %s, 0x%x' % (sr(S_X1), sr(S_X1), WS_OX))
    for ks in range(32):
        g.e('buffer_load_dwordx4 %s, v%d, %s, %s offen offset:%d sc1' % (vr(W_ACC + 4 * ks, 4), t + 4, sr(SRD_WS, 4), sr(S_X1), ks * 64))
    AC = 32
    for ks in range(32):
        g.e('s_waitcnt vmcnt(%d)' % (31 - ks))
        for tt in range(2):
            g.e('v_mfma_f32_16x16x32_bf16 %s, %s, %s, %s' % (vr(AC + 4 * tt, 4), ar(128 * tt + 4 * ks, 4), vr(W_ACC + 4 * ks, 4), '0' if ks == 0 else vr(AC + 4 * tt, 4)))
    g.nop(8)
    g.e('ds_write_b128 v%d, %s' % (t + 7, vr(AC, 4)))
    g.e('ds_write_b128 v%d, %s offset:1024' % (t + 7, vr(AC + 4, 4)))
    g.e('s_waitcnt lgkmcnt(0)')
    g.e('s_barrier')
    l = g.newlabel('L_bxs')
    g.e('s_cmp_ge_u32 %s, 2' % sr(S_WAVE))
    g.e('s_cbranch_scc1 %s' % l)
    for ww in range(4):
        g.e('ds_read_b128 %s, v%d offset:%d' % (vr(AC + 4 * ww, 4), t + 6 if ww < 2 else t + 8, (ww & 1) * 32768))
    g.e('s_lshl_b32 %s, %s, 15' % (sr(S_X0), sr(S_X0)))
    g.e('s_lshl_b32 %s, %s, 6' % (sr(S_X1), sr(S_BOFF)))
    g.e('s_add_u32 %s, %s, %s' % (sr(S_X0), sr(S_X0), sr(S_X1)))
    g.e('s_lshl_b32 %s, %s, 5' % (sr(S_X1), sr(S_WAVE)))
    g.e('s_add_u32 %s, %s, %s' % (sr(S_X0), sr(S_X0), sr(S_X1)))
    g.e('s_waitcnt lgkmcnt(0)')
    for i in range(2):
        g.e('v_pk_add_f32 %s, %s, %s' % (vr(AC + 2 * i, 2), vr(AC + 2 * i, 2), vr(AC + 4 + 2 * i, 2)))
        g.e('v_pk_add_f32 %s, %s, %s' % (vr(AC + 8 + 2 * i, 2), vr(AC + 8 + 2 * i, 2), vr(AC + 12 + 2 * i, 2)))
    for i in range(2):
        g.e('v_pk_add_f32 %s, %s, %s' % (vr(AC + 2 * i, 2), vr(AC + 2 * i, 2), vr(AC + 8 + 2 * i, 2)))
    g.e('v_cvt_pk_bf16_f32 v%d, v%d, v%d' % (AC, AC, AC + 1))
    g.e('v_cvt_pk_bf16_f32 v%d, v%d, v%d' % (AC + 1, AC + 2, AC + 3))
    g.e('buffer_store_dwordx2 %s, v%d, %s, %s offen offset:1024' % (vr(AC, 2), t + 5, sr(SRD_OUT, 4), sr(S_X0)))
    g.label(l)
    g.e('s_barrier')
    g.e('s_add_u32 %s, %s, %d' % (sr(S_SEGI), sr(S_SEGI), NX))
    g.e('s_cmp_lt_u32 %s, 64' % sr(S_SEGI))
    g.e('s_cbranch_scc1 L_bx_loop')
    g.e('s_branch L_next')


def task_bsplit(g):
    g.label('L_t_bsplit')
    g.e('s_bfe_u32 %s, %s, 0x40005' % (sr(S_R), sr(S_TASK)))
    g.e('s_and_b32 %s, %s, 31' % (sr(S_H), sr(S_TASK)))
    g.e('s_bfe_u32 %s, %s, 0x20009' % (sr(S_BOFF + 1), sr(S_TASK)))
    make_srd(g, SRD_A, S_BX, 2 << 20)
    make_srd(g, SRD_B0, S_WQ, 4 << 20)
    make_srd(g, SRD_B1, S_WK, 4 << 20)
    make_srd(g, SRD_B2, S_WV, 4 << 20)
    gemm_setup(g, 1024, 8192)
    g.e('s_lshl_b32 %s, %s, 17' % (sr(S_AOFF), sr(S_R)))
    g.e('s_lshl_b32 %s, %s, 15' % (sr(S_X0), sr(S_WAVE)))
    g.e('s_add_u32 %s, %s, %s' % (sr(S_AOFF), sr(S_AOFF), sr(S_X0)))
    g.e('s_lshl_b32 %s, %s, 8' % (sr(S_BOFF), sr(S_H)))
    t = W_T + 8
    L = W_LANE

    def base():
        g.e('s_lshl_b32 %s, %s, 2' % (sr(S_X0), sr(S_R)))
        g.e('s_add_u32 %s, %s, %s' % (sr(S_X0), sr(S_X0), sr(S_WAVE)))
        g.e('s_lshl_b32 %s, %s, 5' % (sr(S_X0), sr(S_X0)))
        g.e('s_add_u32 %s, %s, %s' % (sr(S_X0), sr(S_X0), sr(S_H)))
        g.e('s_lshl_b32 %s, %s, 13' % (sr(S_X0), sr(S_X0)))
        g.e('v_bfe_u32 v%d, v%d, 4, 1' % (t, L))
        g.e('v_and_b32 v%d, 15, v%d' % (t + 1, L))
        g.e('v_lshrrev_b32 v%d, 5, v%d' % (t + 2, L))
    g.e('s_cmp_eq_u32 %s, 2' % sr(S_BOFF + 1))
    g.e('s_cbranch_scc1 L_bs_v')
    g.e('s_cmp_eq_u32 %s, 0' % sr(S_BOFF + 1))
    g.e('s_cbranch_scc1 L_bs_q')
    for srd_, ws_, nm in ((SRD_B1, WS_KX, 'k'), (SRD_B0, WS_QX, 'q')):
        g.label('L_bs_' + nm)
        gemm_core(g, 'bs' + nm, 1, 8, 8192, SRD_A, [srd_], [1])
        base()
        g.e('s_add_u32 %s, %s, 0x%x' % (sr(S_X1), sr(S_X0), ws_))
        g.e('v_lshlrev_b32 v%d, 12, v%d' % (t, t))
        g.e('v_lshl_add_u32 v%d, v%d, 4, v%d' % (t, t + 1, t))
        g.e('v_lshl_add_u32 v%d, v%d, 8, v%d' % (t, t + 2, t))
        for tt in range(4):
            epi_ct_store16(g, tt, t, SRD_WS, sr(S_X1), lambda gq, tt=tt: tt * 1024 + gq * 256)
        g.e('s_branch L_bs_done')
    g.label('L_bs_v')
    gemm_core(g, 'bsv', 1, 8, 8192, SRD_A, [SRD_B2], [0])
    base()
    g.e('s_add_u32 %s, %s, 0x%x' % (sr(S_X3), sr(S_X0), WS_VX))
    g.e('v_lshl_add_u32 v%d, v%d, 2, v%d' % (t + 3, t, t + 2))
    g.e('v_lshlrev_b32 v%d, 8, v%d' % (t + 3, t + 3))
    g.e('v_lshl_add_u32 v%d, v%d, 4, v%d' % (t + 3, t + 1, t + 3))
    for tt in range(4):
        if tt == 2:
            g.e('s_add_u32 %s, %s, 4096' % (sr(S_X3), sr(S_X3)))
        epi_v_store(g, tt, t + 3, sr(S_X3), lambda q, tt=tt: (tt & 1) * 2048 + q * 512)
    g.label('L_bs_done')
    g.e('s_lshl_b32 %s, %s, 7' % (sr(S_X0), sr(S_H)))
    g.e('s_lshl_b32 %s, %s, 2' % (sr(S_X1), sr(S_R)))
    g.e('s_add_u32 %s, %s, %s' % (sr(S_X0), sr(S_X0), sr(S_X1)))
    g.e('s_add_u32 %s, %s, 0x%x' % (sr(S_X0), sr(S_X0), WS_FLAGS + F1_OFF))
    signal_add(g, 1)
    g.e('s_and_b32 %s, %s, 0x1ff' % (sr(S_TASK), sr(S_TASK)))
    g.e('s_branch L_next')


def worker(g, opt):
    global GATE
    GATE = opt.get('gate', 2)
    g.label('L_worker')
    g.e('v_and_b32 v%d, 63, v0' % W_LANE)
    g.e('s_mov_b32 %s, 0' % sr(S_INIT))
    g.e('s_mov_b32 %s, 0' % sr(S_LOG))
    g.e('s_mov_b32 %s, 0' % sr(S_QN))
    g.label('L_next_regs')
    gemm_consts(g)
    g.label('L_next')
    if opt.get('rt'):
        lg = g.newlabel('L_lg')
        g.e('s_cmp_eq_u32 %s, 0' % sr(S_LOG))
        g.e('s_cbranch_scc1 %s' % lg)
        g.e('s_memrealtime s[76:77]')
        g.e('s_waitcnt lgkmcnt(0)')
        g.e('v_mov_b32 v%d, s78' % W_T)
        g.e('v_mov_b32 v%d, s76' % (W_T + 1))
        g.e('v_mov_b32 v%d, 0' % (W_T + 2))
        g.e('s_lshl_b32 %s, %s, 4' % (sr(S_X0), sr(S_TASK)))
        g.e('s_add_u32 %s, %s, 0x%x' % (sr(S_X0), sr(S_X0), WS_TS + 0xA00000))
        g.e('buffer_store_dwordx2 %s, v%d, %s, %s offen' % (vr(W_T, 2), W_T + 2, sr(SRD_WS, 4), sr(S_X0)))
        g.label(lg)
    g.e('s_barrier')
    l = wave0_begin(g)
    g.e('s_mov_b64 exec, 1')
    lq = g.newlabel('L_q')
    lgq = g.newlabel('L_gq')
    lgot = g.newlabel('L_got')
    g.e('v_mov_b32 v%d, 1' % (W_T + 1))
    g.label(lq)
    g.e('s_cmp_ge_u32 %s, 7' % sr(S_QN))
    g.e('s_cbranch_scc1 %s' % lgq)
    g.e('s_lshl_b32 %s, %s, 2' % (sr(S_X0), sr(S_RANK)))
    g.e('s_add_u32 %s, %s, 192' % (sr(S_X0), sr(S_X0)))
    g.e('v_mov_b32 v%d, %s' % (W_T, sr(S_X0)))
    g.e('global_atomic_add v%d, v%d, v%d, %s sc0' % (W_T + 2, W_T, W_T + 1, sr(S_DBG, 2)))
    g.e('s_waitcnt vmcnt(0)')
    g.e('v_readfirstlane_b32 %s, v%d' % (sr(S_X0), W_T + 2))
    g.nop(3)
    g.e('s_cmp_lt_u32 %s, 100' % sr(S_X0))
    lok = g.newlabel('L_qok')
    g.e('s_cbranch_scc1 %s' % lok)
    g.e('s_add_u32 %s, %s, 1' % (sr(S_QN), sr(S_QN)))
    g.e('s_add_u32 %s, %s, 1' % (sr(S_RANK), sr(S_RANK)))
    g.e('s_cmp_ge_u32 %s, 7' % sr(S_RANK))
    g.e('s_cselect_b32 %s, 0, %s' % (sr(S_RANK), sr(S_RANK)))
    g.e('s_branch %s' % lq)
    g.label(lok)
    g.e('s_mul_i32 %s, %s, 171' % (sr(S_X1), sr(S_X0)))
    g.e('s_lshr_b32 %s, %s, 9' % (sr(S_X1), sr(S_X1)))
    g.e('s_mul_i32 %s, %s, 3' % (sr(S_X2), sr(S_X1)))
    g.e('s_sub_u32 %s, %s, %s' % (sr(S_KC), sr(S_X0), sr(S_X2)))
    g.e('s_lshl_b32 %s, %s, 9' % (sr(S_KC), sr(S_KC)))
    g.e('s_or_b32 %s, %s, 0x10000' % (sr(S_KC), sr(S_KC)))
    g.e('s_sub_u32 %s, %s, 20' % (sr(S_X2), sr(S_X0)))
    g.e('s_cmp_lt_u32 %s, 30' % sr(S_X0))
    g.e('s_cselect_b32 %s, %s, %s' % (sr(S_X0), sr(S_X1), sr(S_X2)))
    g.e('s_cselect_b32 %s, %s, 0' % (sr(S_KC), sr(S_KC)))
    g.e('s_mul_i32 %s, %s, 205' % (sr(S_X1), sr(S_X0)))
    g.e('s_lshr_b32 %s, %s, 10' % (sr(S_X1), sr(S_X1)))
    g.e('s_mul_i32 %s, %s, 5' % (sr(S_X2), sr(S_X1)))
    g.e('s_sub_u32 %s, %s, %s' % (sr(S_X2), sr(S_X0), sr(S_X2)))
    g.e('s_mul_i32 %s, %s, 7' % (sr(S_X2), sr(S_X2)))
    g.e('s_add_u32 %s, %s, %s' % (sr(S_X2), sr(S_X2), sr(S_RANK)))
    g.e('s_lshl_b32 %s, %s, 5' % (sr(S_X0), sr(S_X1)))
    g.e('s_add_u32 %s, %s, %s' % (sr(S_X0), sr(S_X0), sr(S_X2)))
    g.e('s_lshl_b32 %s, %s, 2' % (sr(S_X3), sr(S_X1)))
    g.e('s_add_u32 %s, %s, %s' % (sr(S_X3), sr(S_X3), sr(S_X2)))
    g.e('s_add_u32 %s, %s, %d' % (sr(S_X3), sr(S_X3), T_AP - 32))
    g.e('s_or_b32 %s, %s, %s' % (sr(S_X0), sr(S_X0), sr(S_KC)))
    g.e('s_cmp_lt_u32 %s, 32' % sr(S_X2))
    lb_ = g.newlabel('L_isb')
    g.e('s_cbranch_scc1 %s' % lb_)
    g.e('s_mov_b32 %s, %s' % (sr(S_X0), sr(S_X3)))
    g.e('s_cmp_gt_u32 %s, 0x10000' % sr(S_KC))
    g.e('s_cbranch_scc1 %s' % lq)
    g.label(lb_)
    g.e('v_mov_b32 v%d, %s' % (W_T + 2, sr(S_X0)))
    g.e('s_branch %s' % lgot)
    g.label(lgq)
    g.e('v_mov_b32 v%d, 224' % W_T)
    g.e('global_atomic_add v%d, v%d, v%d, %s sc0' % (W_T + 2, W_T, W_T + 1, sr(S_DBG, 2)))
    g.e('s_waitcnt vmcnt(0)')
    g.e('v_readfirstlane_b32 %s, v%d' % (sr(S_X0), W_T + 2))
    g.nop(3)
    g.e('s_lshl_b32 %s, %s, 2' % (sr(S_X1), sr(S_X0)))
    g.e('s_add_u32 %s, %s, %d' % (sr(S_X1), sr(S_X1), T_AP + 3))
    g.e('s_add_u32 %s, %s, %d' % (sr(S_X2), sr(S_X0), T_AA - 16))
    g.e('s_cmp_lt_u32 %s, 16' % sr(S_X0))
    g.e('s_cselect_b32 %s, %s, %s' % (sr(S_X0), sr(S_X1), sr(S_X2)))
    g.e('v_mov_b32 v%d, %s' % (W_T + 2, sr(S_X0)))
    g.label(lgot)
    g.e('s_mov_b32 %s, 1' % sr(S_LOG))
    g.e('s_waitcnt vmcnt(0)')
    g.e('v_mov_b32 v%d, %d' % (W_T, L_MISC))
    g.e('ds_write_b32 v%d, v%d' % (W_T, W_T + 2))
    g.e('s_waitcnt lgkmcnt(0)')
    g.e('s_mov_b64 exec, -1')
    g.label(l)
    g.e('s_barrier')
    g.e('v_mov_b32 v%d, %d' % (W_T, L_MISC))
    g.e('ds_read_b32 v%d, v%d' % (W_T + 1, W_T))
    g.e('s_waitcnt lgkmcnt(0)')
    g.e('v_readfirstlane_b32 %s, v%d' % (sr(S_TASK), W_T + 1))
    g.nop(3)
    if opt.get('rt'):
        g.e('s_memrealtime s[78:79]')
        g.e('s_waitcnt lgkmcnt(0)')
    g.e('s_cmp_ge_u32 %s, 0x10000' % sr(S_TASK))
    g.e('s_cbranch_scc1 L_t_bsplit')
    g.e('s_cmp_lt_u32 %s, %d' % (sr(S_TASK), T_AP))
    g.e('s_cbranch_scc1 L_t_bproj')
    g.e('s_cmp_lt_u32 %s, %d' % (sr(S_TASK), T_AA))
    g.e('s_cbranch_scc1 L_t_aproj')
    g.e('s_cmp_lt_u32 %s, %d' % (sr(S_TASK), T_AO))
    g.e('s_cbranch_scc1 L_t_aattn')
    g.e('s_cmp_ge_u32 %s, %d' % (sr(S_TASK), T_END))
    g.e('s_cbranch_scc1 L_exit')
    g.e('s_cmp_ge_u32 %s, %d' % (sr(S_TASK), T_BX))
    g.e('s_cbranch_scc1 L_t_bx')
    g.e('s_cmp_ge_u32 %s, %d' % (sr(S_TASK), T_BF))
    g.e('s_cbranch_scc1 L_t_bf')
    g.e('s_cmp_ge_u32 %s, %d' % (sr(S_TASK), T_BT))
    g.e('s_cbranch_scc1 L_t_bt')
    g.e('s_sub_u32 %s, %s, %d' % (sr(S_X0), sr(S_TASK), T_AO))
    g.e('s_lshr_b32 %s, %s, 2' % (sr(S_R), sr(S_X0)))
    g.e('s_and_b32 %s, %s, 3' % (sr(S_H), sr(S_X0)))
    g.e('s_branch L_t_aout')
    g.label('L_t_bt')
    g.e('s_sub_u32 %s, %s, %d' % (sr(S_X0), sr(S_TASK), T_BT))
    g.e('s_mul_i32 %s, %s, 1821' % (sr(S_R), sr(S_X0)))
    g.e('s_lshr_b32 %s, %s, 16' % (sr(S_R), sr(S_R)))
    g.e('s_mul_i32 %s, %s, 36' % (sr(S_X1), sr(S_R)))
    g.e('s_sub_u32 %s, %s, %s' % (sr(S_X0), sr(S_X0), sr(S_X1)))
    g.e('s_cmp_ge_u32 %s, 32' % sr(S_X0))
    lb = g.newlabel('L_bo')
    g.e('s_cbranch_scc1 %s' % lb)
    g.e('s_lshr_b32 %s, %s, 3' % (sr(S_X1), sr(S_X0)))
    g.e('s_lshl_b32 %s, %s, 2' % (sr(S_AOFF), sr(S_R)))
    g.e('s_add_u32 %s, %s, %s' % (sr(S_AOFF), sr(S_AOFF), sr(S_X1)))
    g.e('s_and_b32 %s, %s, 7' % (sr(S_H), sr(S_X0)))
    g.e('s_branch L_t_battn')
    g.label(lb)
    g.e('s_sub_u32 %s, %s, 32' % (sr(S_H), sr(S_X0)))
    g.e('s_branch L_t_bout')
    g.label('L_t_bf')
    g.e('s_sub_u32 %s, %s, %d' % (sr(S_X0), sr(S_TASK), T_BF))
    g.e('s_mul_i32 %s, %s, 2731' % (sr(S_X1), sr(S_X0)))
    g.e('s_lshr_b32 %s, %s, 16' % (sr(S_X1), sr(S_X1)))
    g.e('s_add_u32 %s, %s, %d' % (sr(S_AOFF), sr(S_X1), 4 * NBIG))
    g.e('s_lshr_b32 %s, %s, 2' % (sr(S_R), sr(S_AOFF)))
    g.e('s_mul_i32 %s, %s, 24' % (sr(S_X1), sr(S_X1)))
    g.e('s_sub_u32 %s, %s, %s' % (sr(S_H), sr(S_X0), sr(S_X1)))
    g.e('s_cmp_lt_u32 %s, 8' % sr(S_H))
    g.e('s_cbranch_scc1 L_t_battn')
    g.e('s_sub_u32 %s, %s, 8' % (sr(S_H), sr(S_H)))
    g.e('s_branch L_exit')
    g.label('L_t_bx')
    g.e('s_sub_u32 %s, %s, %d' % (sr(S_X0), sr(S_TASK), T_BX))
    g.e('s_lshr_b32 %s, %s, 5' % (sr(S_X1), sr(S_X0)))
    g.e('s_add_u32 %s, %s, %d' % (sr(S_AOFF), sr(S_X1), 4 * NBIG))
    g.e('s_and_b32 %s, %s, 31' % (sr(S_H), sr(S_X0)))
    g.e('s_cmp_lt_u32 %s, %d' % (sr(S_X0), 32 * NX))
    g.e('s_cbranch_scc1 L_t_boutx')
    g.e('s_sub_u32 %s, %s, %d' % (sr(S_X0), sr(S_X0), 32 * NX))
    g.e('s_lshr_b32 %s, %s, 3' % (sr(S_X1), sr(S_X0)))
    g.e('s_add_u32 %s, %s, %d' % (sr(S_AOFF), sr(S_X1), 4 * NBIG))
    g.e('s_lshr_b32 %s, %s, 2' % (sr(S_R), sr(S_AOFF)))
    g.e('s_and_b32 %s, %s, 7' % (sr(S_H), sr(S_X0)))
    g.e('s_branch L_t_battn')
    task_boutx(g)
    task_bsplit(g)
    task_bproj(g)
    task_aproj(g)
    task_aattn(g)
    task_out(g, 'ao', 'L_t_aout', WS_OA, 1024, 8, S_AWO, 512 * 1024, 0, CB_OFF, 8)
    task_battn(g)
    task_out(g, 'bo', 'L_t_bout', WS_OX, 8192, 64, S_WO, 4 << 20, 512, CO_OFF, 32)


for x in range(576):
    assert (x * 1821) >> 16 == x // 36
for x in range(1024):
    assert (x * 2731) >> 16 == x // 24
for x in range(80):
    assert (x * 205) >> 10 == x // 5
for x in range(100):
    assert (x * 171) >> 9 == x // 3
```

```python
from gen import *

C_KX = 0
C_VX = 8192
C_MST = 16384
C_Q = 24576
C_K = 26624
C_VM = 28672
C_O = 30720
C_W = 32768
C_RING = [0, 98304, 131072]
C_SEL = C_O

PB2_STRIDE = 8192 + 128
WS_KV = WS_KM

(V_L16, V_WL, V_AF, V_QW, V_QR, V_KR, V_OW, V_PS, V_MS, V_PLD, V_WM, V_IDX, V_VW, V_FL, V_WD, V_ONE) = range(16)
S_SELM = 86
S_H0, S_H1, S_H2 = 94, 95, 96
A0 = 16
ACC2 = 48
RG = 72
PM = 120
Q0, Q1, K0, K1, VT0, VT1 = ACC2, ACC2 + 4, ACC2 + 8, ACC2 + 12, ACC2 + 16, ACC2 + 20
A_Q0, A_K, A_V0 = 0, 64, 192
V_V1 = 128
V_WOL = 192
S_PL2 = 56
S_P1M = 84

S_W512 = 78
S_W1K = 79
S_U = 55
S_KVO = 62
S_LO8 = 82


class Sched:
    def __init__(self, g):
        self.g = g
        self.l = []
        self.v = []

    def ds(self, s, name=None):
        self.g.e(s)
        self.l.append(name)

    def vm(self, s, name=None):
        self.g.e(s)
        self.v.append(name)

    def wl(self, name):
        if name not in self.l:
            return
        i = len(self.l) - 1 - self.l[::-1].index(name)
        n = len(self.l) - 1 - i
        assert n <= 15, (name, n)
        self.g.e('s_waitcnt lgkmcnt(%d)' % n)
        del self.l[:i + 1]

    def wl_all(self):
        self.g.e('s_waitcnt lgkmcnt(0)')
        self.l = []


TS_PAIRS = [4, 6, 8, 10, 12, 14, 16, 18, 20, 22, 24, 36, 38, 40, 42, 98, 72, 30]


def ts2(g, opt, name, fine=False):
    if not opt.get('ts') or (fine and not opt.get('fine')):
        return
    if opt.get('only') is not None and name not in opt['only'] and name != 'start':
        return
    idx = len(TS_NAMES)
    TS_NAMES.append(str(name))
    g.e('s_memtime %s' % sr(TS_PAIRS[idx], 2))


def ts2_flush(g, opt, tmp):
    if not opt.get('ts'):
        return
    g.e('s_waitcnt lgkmcnt(0)')
    for i in range(len(TS_NAMES)):
        g.e('v_writelane_b32 v%d, s%d, %d' % (tmp + 1, TS_PAIRS[i], i))
    g.e('v_writelane_b32 v%d, s80, 62' % (tmp + 1))
    g.e('v_writelane_b32 v%d, s81, 63' % (tmp + 1))
    g.e('s_lshl_b32 %s, %s, 2' % (sr(S_T0), sr(S_RANK)))
    g.e('s_add_u32 %s, %s, %s' % (sr(S_T0), sr(S_T0), sr(S_WAVE)))
    g.e('s_lshl_b32 %s, %s, 6' % (sr(S_T0), sr(S_T0)))
    g.e('s_add_u32 %s, %s, %s' % (sr(S_T0), sr(S_T0), sr(S_STEP)))
    g.e('s_lshl_b32 %s, %s, 8' % (sr(S_T0), sr(S_T0)))
    g.e('s_add_u32 %s, %s, 0x%x' % (sr(S_T0), sr(S_T0), WS_TS))
    g.e('v_lshrrev_b32 v%d, 2, v%d' % (tmp, V_L16))
    g.e('buffer_store_dword v%d, v%d, %s, %s offen' % (tmp + 1, tmp, sr(SRD_WS, 4), sr(S_T0)))


def setup(g, opt):
    W = sr(S_WAVE)
    H = sr(S_RANK)
    g.e('v_mov_b32 v19, v0')
    g.e('v_and_b32 v20, 63, v19')
    g.e('v_and_b32 v21, 15, v19')
    g.e('v_bfe_u32 v22, v19, 4, 2')
    g.e('v_lshlrev_b32 v%d, 4, v20' % V_L16)
    g.e('s_lshl_b32 %s, %s, 9' % (sr(S_W512), W))
    g.e('s_lshl_b32 %s, %s, 10' % (sr(S_W1K), W))
    g.e('s_lshl_b32 %s, %s, 14' % (sr(S_T0), W))
    g.e('s_add_u32 %s, %s, %d' % (sr(S_T0), sr(S_T0), C_W))
    g.e('v_add_u32 v%d, %s, v%d' % (V_WL, sr(S_T0), V_L16))
    g.e('v_lshlrev_b32 v23, 8, v22')
    g.e('v_bfe_u32 v24, v21, 1, 1')
    g.e('v_lshl_add_u32 v23, v24, 7, v23')
    g.e('v_lshrrev_b32 v24, 2, v21')
    g.e('v_lshl_add_u32 v23, v24, 5, v23')
    g.e('v_and_b32 v24, 1, v21')
    g.e('v_lshl_add_u32 v%d, v24, 4, v23' % V_AF)
    g.e('v_lshrrev_b32 v23, 3, v21')
    g.e('v_lshlrev_b32 v23, 7, v23')
    g.e('v_lshl_add_u32 v23, v22, 5, v23')
    g.e('v_and_b32 v24, 7, v21')
    g.e('v_lshl_add_u32 v23, v24, 1, v23')
    g.e('v_add_u32 v%d, %s, v23' % (V_QW, sr(S_W512)))
    g.e('v_lshlrev_b32 v23, 7, v22')
    g.e('v_lshl_add_u32 v%d, v24, 4, v23' % V_QR)
    g.e('v_lshrrev_b32 v24, 2, v21')
    g.e('v_lshlrev_b32 v24, 1, v24')
    g.e('v_and_b32 v25, 1, v21')
    g.e('v_add_u32 v24, v24, v25')
    g.e('v_lshl_add_u32 v%d, v24, 4, v23' % V_KR)
    g.e('v_lshrrev_b32 v23, 1, v22')
    g.e('v_lshlrev_b32 v23, 7, v23')
    g.e('v_lshl_add_u32 v23, v21, 4, v23')
    g.e('v_and_b32 v24, 1, v22')
    g.e('v_lshl_add_u32 v23, v24, 3, v23')
    g.e('s_add_u32 %s, %s, %d' % (sr(S_T1), sr(S_W512), C_O))
    g.e('v_add_u32 v23, %s, v23' % sr(S_T1))
    g.e('v_lshlrev_b32 v24, 3, v19')
    g.e('v_add_u32 v24, %d, v24' % C_MST)
    g.e('v_cmp_gt_u32 vcc, 8, v21')
    g.nop(2)
    g.e('v_cndmask_b32 v%d, v24, v23, vcc' % V_OW)
    g.e('v_lshlrev_b32 v23, 4, v21')
    g.e('v_lshl_add_u32 v23, v22, 2, v23')
    g.e('v_add_u32 v%d, %s, v23' % (V_VW, sr(S_W512)))
    g.e('s_lshl_b32 %s, %s, 3' % (sr(S_T1), W))
    g.e('v_add_u32 v23, %s, v22' % sr(S_T1))
    g.e('v_mul_u32_u24 v23, %d, v23' % PB2_STRIDE)
    g.e('v_lshl_add_u32 v23, v21, 3, v23')
    g.e('s_lshl_b32 %s, %s, 8' % (sr(S_T1), H))
    g.e('s_add_u32 %s, %s, 0x%x' % (sr(S_T1), sr(S_T1), WS_PB))
    g.e('v_add_u32 v%d, %s, v23' % (V_PS, sr(S_T1)))
    g.e('s_mov_b32 %s, %d' % (sr(S_U), 4 * PB2_STRIDE))
    g.e('s_mul_i32 %s, %s, %d' % (sr(S_PL), H, PB2_STRIDE))
    g.e('s_lshl_b32 %s, %s, 6' % (sr(S_T1), W))
    g.e('s_add_u32 %s, %s, %s' % (sr(S_PL), sr(S_PL), sr(S_T1)))
    g.e('s_add_u32 %s, %s, 0x%x' % (sr(S_PL), sr(S_PL), WS_PB))
    g.e('s_add_u32 %s, %s, 4096' % (sr(S_PL2), sr(S_PL)))
    g.e('v_lshrrev_b32 v23, 2, v20')
    g.e('v_lshlrev_b32 v23, 8, v23')
    g.e('v_and_b32 v24, 3, v20')
    g.e('v_lshl_add_u32 v%d, v24, 4, v23' % V_PLD)
    g.e('s_lshr_b32 %s, %s, 2' % (sr(S_T2), H))
    g.e('s_lshl_b32 %s, %s, 10' % (sr(S_T2), sr(S_T2)))
    g.e('s_and_b32 %s, %s, 1' % (sr(S_T3), W))
    g.e('s_lshl_b32 %s, %s, 9' % (sr(S_T3), sr(S_T3)))
    g.e('s_add_u32 %s, %s, %s' % (sr(S_T2), sr(S_T2), sr(S_T3)))
    g.e('s_lshr_b32 %s, %s, 1' % (sr(S_T3), W))
    g.e('s_lshl_b32 %s, %s, 2' % (sr(S_T3), sr(S_T3)))
    g.e('s_add_u32 %s, %s, %s' % (sr(S_T2), sr(S_T2), sr(S_T3)))
    g.e('s_and_b32 %s, %s, 3' % (sr(S_T3), H))
    g.e('s_lshl_b32 %s, %s, 6' % (sr(S_T0), sr(S_T3)))
    g.e('s_add_u32 %s, %s, %s' % (sr(S_T2), sr(S_T2), sr(S_T0)))
    g.e('s_lshl_b32 %s, %s, 1' % (sr(S_T3), sr(S_T3)))
    g.e('v_bfe_u32 v25, v20, 2, 2')
    g.e('v_add_u32 v27, %s, v25' % sr(S_T3))
    g.e('v_lshrrev_b32 v23, 1, v24')
    g.e('v_lshlrev_b32 v23, 8, v23')
    g.e('v_and_b32 v26, 1, v24')
    g.e('v_lshl_add_u32 v23, v26, 5, v23')
    g.e('v_lshl_add_u32 v23, v25, 4, v23')
    g.e('v_lshl_add_u32 v23, v22, 3, v23')
    g.e('v_add_u32 v23, %s, v23' % sr(S_T2))
    g.e('v_and_b32 v26, 0x28, v20')
    g.e('v_cmp_eq_u32 vcc, 0, v26')
    g.e('v_mov_b32 v26, 0x%x' % OOB)
    g.nop(1)
    g.e('v_cndmask_b32 v%d, v26, v23, vcc' % V_MS)
    g.e('s_mov_b32 %s, 0x00f000f0' % sr(S_P1M))
    g.e('s_mov_b32 %s, 0x00f000f0' % sr(S_P1M + 1))
    g.e('v_and_b32 v23, 31, v20')
    g.e('v_lshlrev_b32 v23, 6, v23')
    g.e('v_lshrrev_b32 v24, 5, v20')
    g.e('v_lshl_add_u32 v%d, v24, 24, v23' % V_WM)
    g.e('v_and_b32 v23, 1, v20')
    g.e('v_lshlrev_b32 v23, 4, v23')
    g.e('v_mov_b32 v24, 0x3f80')
    g.e('v_lshlrev_b32 v%d, v23, v24' % V_ONE)
    for d in range(4):
        mk = (3 << (2 * d)) * 0x00010001
        g.e('s_mov_b32 %s, 0x%x' % (sr(S_SELM + 2 * d), mk))
        g.e('s_mov_b32 %s, 0x%x' % (sr(S_SELM + 2 * d + 1), mk))
    g.e('v_bfe_u32 v23, v20, 1, 1')
    g.e('v_mov_b32 v24, 0x4444')
    g.e('v_mov_b32 v25, 0xeeee')
    g.e('v_cmp_eq_u32 vcc, 1, v23')
    g.nop(2)
    g.e('v_cndmask_b32 v%d, v24, v25, vcc' % V_IDX)
    g.e('s_mov_b32 %s, 0x3db504f3' % sr(S_SC))
    g.e('s_mov_b32 %s, 0x3db504f3' % sr(S_SC + 1))
    import struct
    c = struct.unpack('<I', struct.pack('<f', (128 ** -0.5) * 1.4426950408889634))[0]
    g.e('s_mov_b32 %s, 0x%x' % (sr(S_L2E), c))
    g.e('s_mov_b32 %s, 0x%x' % (sr(S_L2E + 1), c))
    g.e('s_lshl_b32 %s, %s, 11' % (sr(S_T2), W))
    g.e('s_add_u32 %s, %s, %d' % (sr(S_M0KX), sr(S_T2), C_KX))
    g.e('s_add_u32 %s, %s, %d' % (sr(S_M0VX), sr(S_T2), C_VX))
    g.e('s_lshl_b32 %s, %s, 13' % (sr(S_T3), H))
    g.e('s_add_u32 %s, %s, %s' % (sr(S_KXO), sr(S_T3), sr(S_T2)))
    g.e('s_add_u32 %s, %s, 0x%x' % (sr(S_KXO), sr(S_KXO), WS_KX))
    g.e('s_lshl_b32 %s, %s, 12' % (sr(S_T3), H))
    g.e('s_add_u32 %s, %s, %s' % (sr(S_KVO), sr(S_T3), sr(S_W1K)))
    g.e('s_add_u32 %s, %s, 0x%x' % (sr(S_KVO), sr(S_KVO), WS_KV))
    g.e('s_lshl_b32 %s, %s, 7' % (sr(S_T2), H))
    g.e('s_add_u32 %s, %s, 0x%x' % (sr(S_F1), sr(S_T2), WS_FLAGS + F1_OFF))
    g.e('s_lshl_b32 %s, %s, 2' % (sr(S_T3), W))
    g.e('s_add_u32 %s, %s, %s' % (sr(S_F2), sr(S_T2), sr(S_T3)))
    g.e('s_add_u32 %s, %s, 0x%x' % (sr(S_F2), sr(S_F2), WS_FLAGS + F2_OFF))
    g.e('v_mov_b32 v41, v27')


def init_a(g):
    W = sr(S_WAVE)
    H = sr(S_RANK)
    make_srd(g, 4, S_MEM0, 8192)
    g.e('s_lshr_b32 %s, %s, 2' % (sr(S_T2), H))
    g.e('s_lshl_b32 %s, %s, 7' % (sr(S_T2), sr(S_T2)))
    g.e('s_lshr_b32 %s, %s, 1' % (sr(S_T3), W))
    g.e('s_lshl_b32 %s, %s, 6' % (sr(S_T3), sr(S_T3)))
    g.e('s_add_u32 %s, %s, %s' % (sr(S_T2), sr(S_T2), sr(S_T3)))
    g.e('s_and_b32 %s, %s, 1' % (sr(S_T3), W))
    g.e('s_lshl_b32 %s, %s, 4' % (sr(S_T3), sr(S_T3)))
    g.e('s_add_u32 %s, %s, %s' % (sr(S_T2), sr(S_T2), sr(S_T3)))
    g.e('v_and_b32 v40, 3, v20')
    g.e('v_lshlrev_b32 v40, 2, v40')
    g.e('v_and_b32 v42, 1, v22')
    g.e('v_lshl_add_u32 v40, v42, 1, v40')
    g.e('v_and_b32 v42, 7, v41')
    g.e('v_lshl_add_u32 v40, v42, 10, v40')
    g.e('buffer_load_ushort v42, v40, s[4:7], %s offen' % sr(S_T2))
    g.e('buffer_load_ushort v43, v40, s[4:7], %s offen offset:32' % sr(S_T2))


def init_b(g):
    for i in range(4):
        g.e('v_mov_b32 v%d, 0' % (44 + i))
    g.e('buffer_store_dwordx4 v[44:47], v%d, %s, %s offen' % (V_PLD, sr(SRD_WS, 4), sr(S_PL)))
    g.e('buffer_store_dwordx4 v[44:47], v%d, %s, %s offen' % (V_PLD, sr(SRD_WS, 4), sr(S_PL2)))
    g.e('v_mov_b32 v40, -1')
    for slot in (1, 2):
        g.e('s_mov_b32 %s, 0x%x' % (sr(S_T0), WS_M2 + slot * 8192))
        g.e('buffer_store_dword v40, v%d, %s, %s offen' % (V_MS, sr(SRD_WS, 4), sr(S_T0)))
    g.e('v_lshl_or_b32 v42, v43, 16, v42')
    g.e('v_min_u32 v42, -2, v42')
    g.e('s_mov_b32 %s, 0x%x' % (sr(S_T0), WS_M2))
    g.e('buffer_store_dword v42, v%d, %s, %s offen' % (V_MS, sr(SRD_WS, 4), sr(S_T0)))
    l = g.newlabel('L_if')
    g.e('s_cmp_lg_u32 %s, 0' % sr(S_WAVE))
    g.e('s_cbranch_scc1 %s' % l)
    g.e('v_and_b32 v41, 31, v20')
    g.e('v_lshlrev_b32 v41, 2, v41')
    g.e('v_lshrrev_b32 v43, 5, v20')
    g.e('v_lshl_add_u32 v41, v43, 12, v41')
    g.e('buffer_store_dword v44, v41, %s, %s offen sc1' % (sr(SRD_WS, 4), sr(S_F1)))
    g.e('v_lshlrev_b32 v43, 11, v20')
    g.e('s_and_b32 %s, %s, 15' % (sr(S_T0), sr(S_RANK)))
    g.e('s_lshl_b32 %s, %s, 7' % (sr(S_T0), sr(S_T0)))
    g.e('s_add_u32 %s, %s, 0x%x' % (sr(S_T0), sr(S_T0), WS_FLAGS + 8192))
    g.e('s_mov_b64 exec, 15')
    g.e('buffer_store_dword v44, v43, %s, %s offen sc1' % (sr(SRD_WS, 4), sr(S_T0)))
    g.e('s_mov_b64 exec, -1')
    g.label(l)


def init_c(g):
    l = g.newlabel('L_if')
    g.e('s_cmp_lg_u32 %s, 0' % sr(S_WAVE))
    g.e('s_cbranch_scc1 %s' % l)
    g.e('s_mov_b64 exec, 1')
    g.e('v_mov_b32 v40, 128')
    g.e('v_mov_b32 v41, 1')
    g.e('global_atomic_add v40, v41, %s' % sr(S_DBG, 2))
    g.e('s_mov_b64 exec, -1')
    g.label(l)


def load_weights(g, opt):
    W = sr(S_WAVE)
    H = sr(S_RANK)
    TB = 64
    g.e('s_lshr_b32 %s, %s, 1' % (sr(S_T0), W))
    g.e('s_lshl_b32 %s, %s, 6' % (sr(S_T0), sr(S_T0)))
    g.e('s_and_b32 %s, %s, 1' % (sr(S_T1), W))
    g.e('s_lshl_b32 %s, %s, 3' % (sr(S_T1), sr(S_T1)))
    g.e('s_add_u32 %s, %s, %s' % (sr(S_T0), sr(S_T0), sr(S_T1)))
    g.e('v_lshlrev_b32 v24, 4, v22')
    g.e('v_add_u32 v24, %s, v24' % sr(S_T0))
    g.e('v_lshlrev_b32 v24, 13, v24')
    g.e('v_bfe_u32 v23, v20, 4, 1')
    g.e('v_lshlrev_b32 v25, 1, v23')
    g.e('v_xor_b32 v25, v25, v21')
    g.e('v_lshl_add_u32 v30, v25, 4, v24')
    g.e('v_bfe_u32 v25, v20, 2, 2')
    g.e('v_lshl_add_u32 v30, v25, 20, v30')
    for i in range(1, 4):
        g.e('v_xor_b32 v%d, 0x%x, v30' % (30 + i, i * 64 + (i << 20)))
    g.e('s_and_b32 %s, %s, 1' % (sr(S_T0), W))
    g.e('s_lshl_b32 %s, %s, 7' % (sr(S_T0), sr(S_T0)))
    g.e('v_xor_b32 v34, %s, v%d' % (sr(S_T0), V_L16))
    g.e('s_lshl_b32 %s, %s, 13' % (sr(S_T0), W))
    g.e('v_add_u32 v34, %s, v34' % sr(S_T0))
    g.e('v_lshrrev_b32 v23, 2, v21')
    g.e('v_and_b32 v24, 3, v21')
    g.e('v_lshrrev_b32 v25, 1, v22')
    g.e('v_lshlrev_b32 v25, 4, v25')
    g.e('v_lshrrev_b32 v26, 1, v23')
    g.e('v_lshl_add_u32 v25, v26, 3, v25')
    g.e('v_and_b32 v27, 1, v22')
    g.e('v_lshl_add_u32 v25, v27, 2, v25')
    g.e('v_and_b32 v28, 1, v23')
    g.e('v_add_u32 v25, v25, v28')
    g.e('v_lshl_add_u32 v28, v27, 1, v28')
    g.e('v_lshl_add_u32 v28, v26, 2, v28')
    g.e('v_lshlrev_b32 v28, 1, v28')
    g.e('v_lshrrev_b32 v26, 1, v24')
    g.e('v_and_b32 v27, 1, v24')
    g.e('s_lshl_b32 %s, %s, 2' % (sr(S_T0), W))
    g.e('v_add_u32 v29, %s, v26' % sr(S_T0))
    g.e('v_xor_b32 v29, v29, v28')
    g.e('v_lshlrev_b32 v29, 4, v29')
    g.e('v_lshl_add_u32 v29, v27, 3, v29')
    g.e('v_lshl_add_u32 v35, v25, 8, v29')
    g.e('v_xor_b32 v36, 32, v35')
    g.e('v_xor_b32 v29, v26, v28')
    g.e('s_lshl_b32 %s, %s, 4' % (sr(S_T0), W))
    g.e('v_add_u32 v29, %s, v29' % sr(S_T0))
    g.e('v_lshlrev_b32 v29, 4, v29')
    g.e('v_lshl_add_u32 v29, v27, 3, v29')
    g.e('v_lshl_add_u32 v37, v25, 10, v29')

    chunks = [('V', c) for c in range(4)] + [('K', c) for c in range(4)] + [('O', c) for c in range(4)] + [('Q', c) for c in range(4)]
    ptr = {'V': S_WV, 'Q': S_WQ, 'K': S_WK, 'O': S_WO}
    srd = {'V': SRD_A, 'K': SRD_B, 'O': SRD_A, 'Q': SRD_B}
    bufs = [0, 1, 2, 3, 4, 0, 1, 2, 3, 4, 0, 1, 3, 4, 0, 3]
    nxt = {0: 5, 1: 6, 2: 7, 3: 8, 4: 9, 5: 10, 6: 11, 8: 12, 9: 13, 10: 14, 12: 15}
    TQ = 48

    def issue(ci):
        m, c = chunks[ci]
        ring = bufs[ci] * 32768
        if c == 0:
            make_srd(g, srd[m], ptr[m], 4 << 20)
        for i in range(8):
            g.e('s_lshl_b32 %s, %s, 13' % (sr(S_T0), W))
            g.e('s_add_u32 m0, %s, %d' % (sr(S_T0), ring + i * 1024))
            if m != 'O':
                g.e('s_lshl_b32 %s, %s, 8' % (sr(S_T1), H))
                g.e('s_add_u32 %s, %s, %d' % (sr(S_T1), sr(S_T1), i * 8192))
                g.e('v_xor_b32 v38, 0x%x, v%d' % (c << 20, 30 + (i & 3)))
                g.e('buffer_load_dwordx4 v38, %s, %s offen lds' % (sr(srd[m], 4), sr(S_T1)))
            else:
                x = ((i & 1) | (((i >> 2) & 1) << 1)) * 32
                g.e('v_xor_b32 v38, %d, v34' % x)
                g.e('s_lshl_b32 %s, %s, 17' % (sr(S_T1), H))
                g.e('s_add_u32 %s, %s, %d' % (sr(S_T1), sr(S_T1), (c * 32 + i) * 1024))
                g.e('buffer_load_dwordx4 v38, %s, %s offen lds' % (sr(srd[m], 4), sr(S_T1)))

    init_a(g)
    for ci in range(5):
        issue(ci)
    issued = 5
    for ci in range(16):
        m, c = chunks[ci]
        ring = bufs[ci] * 32768
        g.e('s_waitcnt vmcnt(%d)' % (8 * (issued - ci - 1)))
        g.e('s_barrier')
        if ci == 5:
            init_c(g)
        if m != 'O':
            g.e('v_add_u32 v38, %d, v35' % ring)
            g.e('v_add_u32 v39, %d, v36' % ring)
            for ksl in range(2):
                ks = 2 * c + ksl
                for t in range(2):
                    for sq in range(4):
                        off = (64 * ksl + 32 * (sq >> 1) + 2 * (sq & 1)) * 256
                        if m == 'V':
                            dst = ar(A_V0 + ks * 8 + sq * 2, 2) if t == 0 else vr(V_V1 + ks * 8 + sq * 2, 2)
                        elif m == 'K':
                            dst = ar(A_K + (t * 8 + ks) * 8 + sq * 2, 2)
                        elif t == 0:
                            dst = ar(A_Q0 + ks * 8 + sq * 2, 2)
                        else:
                            dst = vr(TQ + ksl * 8 + sq * 2, 2)
                        g.e('ds_read_b64_tr_b16 %s, v%d offset:%d' % (dst, 38 + t, off))
            g.e('s_waitcnt lgkmcnt(0)')
            if m == 'Q':
                for ksl in range(2):
                    ks = 2 * c + ksl
                    g.e('ds_write_b128 v%d, %s offset:%d' % (V_WL, vr(TQ + ksl * 8, 4), ks * 2048))
                    g.e('ds_write_b128 v%d, %s offset:%d' % (V_WL, vr(TQ + ksl * 8 + 4, 4), ks * 2048 + 1024))
                g.e('s_waitcnt lgkmcnt(0)')
        else:
            ks2, hf = c >> 1, c & 1
            for tp in range(8):
                g.e('v_xor_b32 v38, %d, v37' % (tp * 32))
                g.e('v_add_u32 v38, %d, v38' % ring)
                for s1 in range(2):
                    if tp < 4:
                        dst = vr(V_WOL + (tp * 2 + ks2) * 8 + hf * 4 + s1 * 2, 2)
                    else:
                        dst = vr(TB + ((tp - 4) * 2 + ks2) * 8 + hf * 4 + s1 * 2, 2)
                    g.e('ds_read_b64_tr_b16 %s, v38 offset:%d' % (dst, 2 * s1 * 1024))
            g.e('s_waitcnt lgkmcnt(0)')
        g.e('s_barrier')
        if ci == 0:
            init_b(g)
        if ci == 8:
            g.e('buffer_load_dwordx4 v[44:47], v%d, %s, %s offen sc1' % (V_PLD, sr(SRD_WS, 4), sr(S_PL)))
            g.e('buffer_load_dwordx4 v[44:47], v%d, %s, %s offen sc1' % (V_PLD, sr(SRD_WS, 4), sr(S_PL2)))
            for slot in range(3):
                g.e('s_add_u32 %s, %s, 0x%x' % (sr(S_T0), sr(S_M0KX), WS_M2 + slot * 8192))
                g.e('buffer_load_dwordx4 v[44:47], v%d, %s, %s offen sc1' % (V_L16, sr(SRD_WS, 4), sr(S_T0)))
                g.e('buffer_load_dwordx4 v[44:47], v%d, %s, %s offen offset:1024 sc1' % (V_L16, sr(SRD_WS, 4), sr(S_T0)))
        if ci in nxt:
            issue(nxt[ci])
            issued += 1
    g.e('v_add_u32 v38, 65536, v%d' % V_WL)
    for f in range(8):
        g.e('ds_write_b128 v38, %s offset:%d' % (vr(TB + f * 8, 4), f * 2048))
        g.e('ds_write_b128 v38, %s offset:%d' % (vr(TB + f * 8 + 4, 4), f * 2048 + 1024))
    g.e('s_waitcnt lgkmcnt(0)')


def dma_kxvx2(g, sc):
    g.e('s_mov_b32 m0, %s' % sr(S_M0KX))
    g.e('s_add_u32 %s, %s, 0x%x' % (sr(S_T0), sr(S_KXO), WS_VX - WS_KX))
    sc.vm('buffer_load_dwordx4 v%d, %s, %s offen sc1 lds' % (V_L16, sr(SRD_WS, 4), sr(S_KXO)))
    sc.vm('buffer_load_dwordx4 v%d, %s, %s offen offset:1024 sc1 lds' % (V_L16, sr(SRD_WS, 4), sr(S_KXO)))
    g.e('s_mov_b32 m0, %s' % sr(S_M0VX))
    g.e('s_add_u32 %s, %s, 0x40000' % (sr(S_KXO), sr(S_KXO)))
    sc.vm('buffer_load_dwordx4 v%d, %s, %s offen sc1 lds' % (V_L16, sr(SRD_WS, 4), sr(S_T0)))
    sc.vm('buffer_load_dwordx4 v%d, %s, %s offen offset:1024 sc1 lds' % (V_L16, sr(SRD_WS, 4), sr(S_T0)))


def ring_load(sc, idx, VK1):
    slot = RG + (idx % 6) * 8
    base, f = (V_WL, idx) if idx < 8 else (VK1, idx - 8)
    sc.ds('ds_read_b128 %s, v%d offset:%d' % (vr(slot, 4), base, f * 2048), None)
    sc.ds('ds_read_b128 %s, v%d offset:%d' % (vr(slot + 4, 4), base, f * 2048 + 1024), 'R%d' % idx)


NOSMF = [False]


def q1reg(j):
    return A0 + 16 + 8 * j if j < 2 else RG + (j % 6) * 8


def smf2(g, d, a, b):
    if NOSMF[0]:
        g.e('s_nop 3')
        return
    g.e('v_smfmac_f32_16x16x64_bf16 %s, %s, %s, v%d' % (vr(d, 4), vr(a, 4), b, V_IDX))


def xlane(g, op, MX, MT):
    for sw in ('v_permlane16_swap_b32', 'v_permlane32_swap_b32'):
        g.e('v_mov_b32 v%d, v%d' % (MT, MX))
        g.nop(2)
        g.e('%s v%d, v%d' % (sw, MT, MX))
        g.nop(1)
        g.e('%s v%d, v%d, v%d' % (op, MX, MX, MT))


def poll(g, opt, name, issue_fn, check_fn, fillers, cnt_sgpr, depth=3):
    fd = opt.get('fd', 1)
    gap = opt.get('gap', 12)
    issue_fn()
    for grp in fillers:
        for s in grp:
            g.e(s)
    lp = g.newlabel('L_' + name)
    dn = g.newlabel('L_' + name + 'd')
    if opt.get('ts'):
        g.e('s_mov_b32 %s, 1' % cnt_sgpr)
    dbl = opt.get('dbl' + name[1], 0)
    for k_ in range(opt.get('nd', 1) if dbl else 0):
        g.nop(dbl)
        issue_fn()
    for k_ in range(opt.get('nd', 1) if dbl else 0):
        g.e('s_waitcnt vmcnt(%d)' % (2 * (opt.get('nd', 1) - k_)))
        check_fn()
        g.e('s_cbranch_vccz %s' % dn)
        if opt.get('ts'):
            g.e('s_add_u32 %s, %s, 1' % (cnt_sgpr, cnt_sgpr))
    g.e('s_waitcnt vmcnt(0)')
    check_fn()
    g.e('s_cbranch_vccz %s' % dn)
    g.e('s_mov_b64 exec, vcc')
    for d in range(fd - 1):
        issue_fn()
        g.nop(gap)
    g.label(lp)
    issue_fn()
    g.e('s_mov_b64 exec, -1')
    if opt.get('ts'):
        g.e('s_add_u32 %s, %s, 1' % (cnt_sgpr, cnt_sgpr))
    g.guard()
    g.e('s_waitcnt vmcnt(%d)' % (2 * (fd - 1)))
    check_fn()
    g.e('s_cbranch_vccz %s' % dn)
    g.e('s_mov_b64 exec, vcc')
    g.e('s_branch %s' % lp)
    g.label(dn)


def loop(g, opt):
    sc = Sched(g)
    NOSMF[0] = bool(opt.get('nosmf'))

    def padd(a):
        if opt.get('sadd'):
            return ['v_add_f32 v%d, v%d, v%d' % (a, a, a + 2), 'v_add_f32 v%d, v%d, v%d' % (a + 1, a + 1, a + 3)]
        return ['v_pk_add_f32 %s, %s, %s' % (vr(a, 2), vr(a, 2), vr(a + 2, 2))]

    VK1 = V_WD
    g.e('v_add_u32 v%d, 65536, v%d' % (VK1, V_WL))
    g.e('s_mov_b32 %s, 0' % sr(S_STEP))
    g.e('s_mov_b32 %s, 1' % sr(S_PHASE))
    g.e('s_mov_b32 %s, 0x%x' % (sr(S_M2R), WS_M2))
    g.e('s_mov_b32 %s, 0x%x' % (sr(S_M2W), WS_M2 + 8192))
    g.e('s_mov_b32 %s, 0x%x' % (sr(S_M2Z), WS_M2 + 16384))
    l = g.newlabel('L_spin')
    g.e('v_mov_b32 v%d, 128' % PM)
    g.label(l)
    g.guard()
    g.e('global_load_dword v%d, v%d, %s sc1' % (PM + 1, PM, sr(S_DBG, 2)))
    g.e('s_waitcnt vmcnt(0)')
    g.e('v_readfirstlane_b32 %s, v%d' % (sr(S_T0), PM + 1))
    g.nop(3)
    g.e('s_cmp_lt_u32 %s, 32' % sr(S_T0))
    g.e('s_cbranch_scc1 %s' % l)

    def f1_spin(off_reg):
        l = g.newlabel('L_f1')
        g.e('v_mov_b32 v%d, 0' % (A0 + 13))
        g.label(l)
        g.guard()
        g.e('buffer_load_dword v%d, v%d, %s, %s offen sc1' % (V_FL, A0 + 13, sr(SRD_WS, 4), off_reg))
        g.e('s_waitcnt vmcnt(0)')
        g.e('v_readfirstlane_b32 %s, v%d' % (sr(S_T1), V_FL))
        g.nop(3)
        g.e('s_cmp_lt_u32 %s, 3' % sr(S_T1))
        g.e('s_cbranch_scc1 %s' % l)
    if not opt.get('nof1'):
        f1_spin(sr(S_F1))
    g.e('s_barrier')
    dma_kxvx2(g, sc)
    g.e('v_mov_b32 v%d, 3' % V_FL)
    if opt.get('rt'):
        g.e('s_memrealtime s[4:5]')
        g.e('s_memtime s[6:7]')
        g.e('s_waitcnt lgkmcnt(0)')
    for idx in range(8):
        g.e('ds_read_b128 %s, v%d offset:%d' % (vr(q1reg(idx), 4), V_WL, idx * 2048))
        g.e('ds_read_b128 %s, v%d offset:%d' % (vr(q1reg(idx) + 4, 4), V_WL, idx * 2048 + 1024))
    g.e('s_branch L_hop2')

    g.label('L_step')
    sc.l = []
    ts2(g, opt, 'start')
    HK = A0
    AD = A0 + 4
    AS = lambda j: PM + 4 * j if j < 2 else A0 + 4 * j
    SL = lambda i: RG + i * 8
    KXF = lambda T, k4: SL(2 + 2 * T + (k4 >> 1)) + (k4 & 1) * 4
    SX0, SX1, SM = SL(0), SL(0) + 4, SL(1)
    MXX, MTT = SL(1) + 4, SL(1) + 5

    def emit_fill(grp):
        for s in grp:
            if isinstance(s, tuple):
                if s[0] == 'ds':
                    sc.ds(s[1], s[2])
                elif s[0] == 'wl':
                    sc.wl(s[1])
                elif s[0] == 'bar':
                    g.e('s_barrier')
            else:
                g.e(s)

    def wsrc(mat, t, j):
        if mat == 'Q':
            return ar(A_Q0 + j * 8, 8) if t == 0 else vr(q1reg(j), 8)
        if mat == 'K':
            return ar(A_K + (t * 8 + j) * 8, 8)
        return ar(A_V0 + j * 8, 8) if t == 0 else vr(V_V1 + j * 8, 8)
    accs = {'Q': (Q0, Q1), 'K': (K0, K1), 'V': (VT0, VT1)}
    sc.ds('ds_write_b128 v%d, %s offset:%d' % (AD, vr(PM, 4), C_MST), None)
    sc.ds('ds_write_b128 v%d, %s offset:%d' % (AD, vr(PM + 4, 4), C_MST + 1024), 'MW')

    def aread(j):
        return ('ds', 'ds_read_b128 %s, v%d offset:%d' % (vr(AS(j), 4), AD + (j >> 1), C_MST + (j & 1) * 1024), 'A%d' % j)
    early = [(m_, t, j) for j in range(2) for m_ in 'QKV' for t in range(2)]
    early = [x for x in early if x[0] == 'Q'] + [x for x in early if x[0] != 'Q']
    eb = opt.get('eb', 5)
    fillE = {eb: [('wl', 'MW'), ('bar',)]}
    rest = [aread(j) for j in range(2, 8)]
    n_ = eb + 1
    while rest:
        k_ = min(n_, 11)
        fillE.setdefault(k_, [])
        fillE[k_] = fillE[k_] + [rest.pop(0)]
        n_ += 1
    for n, (m_, t, j) in enumerate(early):
        smf2(g, accs[m_][t], AS(j), wsrc(m_, t, j))
        emit_fill(fillE.get(n, []))
    ts2(g, opt, 'early', True)
    fillQ = [
        [('ds', 'ds_read_b128 %s, v%d offset:%d' % (vr(PM, 4), HK, C_K), 'PUB')],
        [],
        ['buffer_store_dword v%d, v%d, %s, %s offen' % (HK + 1, V_MS, sr(SRD_WS, 4), sr(S_M2Z))],
        ['buffer_load_dword v%d, v%d, %s, %s offen sc1' % (V_FL, V_WM, sr(SRD_WS, 4), sr(S_H0))],
        ([] if opt.get('nof1') else
         ['buffer_load_dword v%d, v%d, %s, %s offen sc1' % (V_FL, HK + 2, sr(SRD_WS, 4), sr(S_H1))]),
        ['buffer_store_dword v%d, v%d, %s, %s offen sc1' % (HK + 3, HK + 2, sr(SRD_WS, 4), sr(S_F2))],
    ]
    kxq = [('ds', 'ds_read_b128 %s, v%d offset:%d' % (vr(KXF(T, k4), 4), V_L16, C_KX + (T * 4 + k4) * 1024), 'KX%d_%d' % (T, k4))
           for T in range(2) for k4 in range(4)]
    for j in range(2, 8):
        sc.wl('A%d' % j)
        smf2(g, Q0, AS(j), wsrc('Q', 0, j))
        emit_fill(fillQ.pop(0))
        sc.wl('R%d' % j)
        smf2(g, Q1, AS(j), wsrc('Q', 1, j))
        if 2 <= j <= 5:
            emit_fill([kxq[2 * (j - 2)]])
        if j == 6:
            emit_fill([('wl', 'PUB'), 'buffer_store_dwordx4 %s, v%d, %s, %s offen sc1' % (vr(PM, 4), V_L16, sr(SRD_WS, 4), sr(S_H2))])
    assert not fillQ
    ts2(g, opt, 'q', True)
    QF = [Q0, Q1, PM, PM + 4]

    def fin(accs, base0, tag):
        o = []
        for acc, base in ((accs[0], base0), (accs[1], base0 + 256)):
            o.append(padd(acc) + ['v_cvt_pk_bf16_f32 v%d, v%d, v%d' % (acc, acc, acc + 1)])
            o.append([('ds', 'ds_write_b16 v%d, v%d offset:%d' % (V_QW, acc, base), None),
                      ('ds', 'ds_write_b16_d16_hi v%d, v%d offset:%d' % (V_QW, acc, base + 16), tag)])
        return o
    fin_q = fin((Q0, Q1), C_Q, 'QW')
    fillK = {
        (2, 0): [kxq[1], 's_nop 0'], (2, 1): [kxq[3], 's_nop 1'],
        (3, 0): fin_q[0], (3, 1): fin_q[1], (4, 0): fin_q[2], (4, 1): fin_q[3],
        (5, 0): [kxq[5]], (5, 1): [kxq[7], ('wl', 'QW'), ('bar',)],
        (6, 0): [('ds', 'ds_read_b128 %s, v%d offset:%d' % (vr(QF[k], 4), V_QR, C_Q + k * 512), 'QF%d' % k) for k in range(2)],
        (6, 1): [('ds', 'ds_read_b128 %s, v%d offset:%d' % (vr(QF[k], 4), V_QR, C_Q + k * 512), 'QF%d' % k) for k in range(2, 4)],
    }
    for j in range(2, 8):
        smf2(g, K0, AS(j), wsrc('K', 0, j))
        emit_fill(fillK.get((j, 0), []))
        smf2(g, K1, AS(j), wsrc('K', 1, j))
        emit_fill(fillK.get((j, 1), []))
    ts2(g, opt, 'k', True)
    fin_k = fin((K0, K1), C_K, 'KW')
    fillX = {1: ['s_nop 3'], 2: fin_k[0], 3: fin_k[1], 4: fin_k[2], 5: fin_k[3]}
    n = 0
    for T, S_ in ((0, SX0), (1, SX1)):
        for k4 in range(4):
            sc.wl('QF%d' % k4)
            sc.wl('KX%d_%d' % (T, k4))
            g.e('v_mfma_f32_16x16x32_bf16 %s, %s, %s, %s' % (vr(S_, 4), vr(KXF(T, k4), 4), vr(QF[k4], 4), '0' if k4 == 0 else vr(S_, 4)))
            emit_fill(fillX.get(n, []))
            n += 1
    vq = [(t, ks) for ks in range(2, 8) for t in range(2)]

    def vsmf(k=1, pad=False):
        for _ in range(k):
            if vq:
                t, ks = vq.pop(0)
                smf2(g, VT0 + 4 * t, AS(ks), wsrc('V', t, ks))
            elif pad:
                g.nop(1)

    WH = [SL(5), SL(2), SL(3), PM, SL(0), SL(1), SL(4), A0 + 16]

    def wh_load(f):
        sc.ds('ds_read_b128 %s, v%d offset:%d' % (vr(WH[f], 4), VK1, f * 2048), None)
        sc.ds('ds_read_b128 %s, v%d offset:%d' % (vr(WH[f] + 4, 4), VK1, f * 2048 + 1024), 'WH%d' % f)
    ts2(g, opt, 'xsc', True)
    vsmf(2)
    sc.wl('KW')
    g.e('s_barrier')
    ts2(g, opt, 'kbar', True)
    KMF = lambda k4: KXF(0, k4)
    for k4 in range(4):
        sc.ds('ds_read_b128 %s, v%d offset:%d' % (vr(KMF(k4), 4), V_KR, C_K + k4 * 512), 'KM%d' % k4)
    vsmf(1)
    VXF = SL(4)
    g.e('v_add_u32 v%d, %s, v%d' % (K0, sr(S_M0VX), V_L16))
    sc.ds('ds_read_b128 %s, v%d' % (vr(VXF, 4), K0), None)
    sc.ds('ds_read_b128 %s, v%d offset:1024' % (vr(VXF + 4, 4), K0), 'VX')
    vsmf(1)
    S = [SX0 + i for i in range(8)]
    g.e('s_mov_b32 m0, %s' % sr(S_M0KX))
    g.e('v_max3_f32 v%d, v%d, v%d, v%d' % (MXX, S[0], S[1], S[2]))
    g.e('buffer_load_dwordx4 v%d, %s, %s offen sc1 lds' % (V_L16, sr(SRD_WS, 4), sr(S_H0)))
    g.e('v_max3_f32 v%d, v%d, v%d, v%d' % (MTT, S[3], S[4], S[5]))
    vsmf(1)
    g.e('buffer_load_dwordx4 v%d, %s, %s offen offset:1024 sc1 lds' % (V_L16, sr(SRD_WS, 4), sr(S_H0)))
    g.e('v_max3_f32 v%d, v%d, v%d, v%d' % (MXX, MXX, S[6], S[7]))
    g.e('v_max_f32 v%d, v%d, v%d' % (MXX, MXX, MTT))
    vsmf(1)
    wh_load(0)
    g.e('v_mov_b32 v%d, 0x3f803f80' % K0)
    g.e('v_mov_b32 v%d, 0x3f803f80' % (K0 + 1))
    g.e('v_mov_b64 %s, %s' % (vr(K0 + 2, 2), vr(K0, 2)))
    for k4 in range(4):
        sc.wl('KM%d' % k4)
        g.e('v_mfma_f32_16x16x32_bf16 %s, %s, %s, %s' % (vr(SM, 4), vr(KMF(k4), 4), vr(QF[k4], 4), '0' if k4 == 0 else vr(SM, 4)))
    vsmf(1)
    wh_load(1)
    vsmf(1)
    wh_load(2)
    vsmf(1)
    g.nop(1)
    ts2(g, opt, 'msc', True)
    sc.wl('VX')
    g.e('s_mov_b32 m0, %s' % sr(S_M0VX))
    g.e('s_add_u32 %s, %s, 0x%x' % (sr(S_T0), sr(S_H0), WS_VX - WS_KX))
    g.e('v_max3_f32 v%d, v%d, v%d, v%d' % (MXX, MXX, SM, SM + 1))
    for i_, sw in enumerate(('v_permlane16_swap_b32', 'v_permlane32_swap_b32')):
        g.e('v_mov_b32 v%d, v%d' % (MTT, MXX))
        vsmf(1)
        g.e('buffer_load_dwordx4 v%d, %s, %s offen offset:%d sc1 lds' % (V_L16, sr(SRD_WS, 4), sr(S_T0), 1024 * i_))
        g.e('%s v%d, v%d' % (sw, MTT, MXX))
        g.nop(1)
        g.e('v_max_f32 v%d, v%d, v%d' % (MXX, MXX, MTT))
    ts2(g, opt, 'max', True)
    g.e('v_mul_f32 v%d, %s, v%d' % (MXX, sr(S_L2E), MXX))
    g.e('v_mov_b32 v%d, v%d' % (MTT, MXX))
    SA = S + [SM, SM + 1]
    for i in range(5):
        g.e('v_pk_fma_f32 %s, %s, %s, %s neg_lo:[0,0,1] neg_hi:[0,0,1]' % (vr(SA[2 * i], 2), vr(SA[2 * i], 2), sr(S_L2E, 2), vr(MXX, 2)))
        if i % 2 == 1:
            vsmf(1)
    for i in range(10):
        g.e('v_exp_f32 v%d, v%d' % (SA[i], SA[i]))
        if i % 3 == 1:
            vsmf(1)
    assert not vq, len(vq)
    ts2(g, opt, 'exp', True)
    VM0, VM1 = A0, A0 + 2
    PX, PMm, RINV = A0 + 4, A0 + 8, A0 + 10
    O0, O1, OP = A0 + 12, A0 + 16, A0 + 4
    ONES, SUMS = K0, K1
    for i in range(4):
        g.e('v_cvt_pk_bf16_f32 v%d, v%d, v%d' % (PX + i, SA[2 * i], SA[2 * i + 1]))
    g.e('v_cvt_pk_bf16_f32 v%d, v%d, v%d' % (PMm, SA[8], SA[9]))
    g.e('v_mov_b32 v%d, 0' % (PMm + 1))
    g.e('v_mfma_f32_16x16x32_bf16 %s, %s, %s, 0' % (vr(SUMS, 4), vr(ONES, 4), vr(PX, 4)))
    g.e('v_pk_add_f32 %s, %s, %s' % (vr(VT0, 2), vr(VT0, 2), vr(VT0 + 2, 2)))
    g.e('v_mfma_f32_16x16x16_bf16 %s, %s, %s, %s' % (vr(SUMS, 4), vr(ONES, 2), vr(PMm, 2), vr(SUMS, 4)))
    g.e('v_pk_add_f32 %s, %s, %s' % (vr(VT1, 2), vr(VT1, 2), vr(VT1 + 2, 2)))
    g.e('v_mfma_f32_16x16x32_bf16 %s, %s, %s, 0' % (vr(O0, 4), vr(VXF, 4), vr(PX, 4)))
    g.e('v_cvt_pk_bf16_f32 v%d, v%d, v%d' % (VM0, VT0, VT0 + 1))
    g.e('v_cvt_pk_bf16_f32 v%d, v%d, v%d' % (VM1, VT1, VT1 + 1))
    g.e('v_mfma_f32_16x16x32_bf16 %s, %s, %s, 0' % (vr(O1, 4), vr(VXF + 4, 4), vr(PX, 4)))
    g.e('v_mov_b32 v%d, 0' % (VM0 + 1))
    g.e('v_mov_b32 v%d, 0' % (VM1 + 1))
    sc.ds('ds_write_b32 v%d, v%d offset:%d' % (V_VW, VM0, C_VM), None)
    g.e('v_rcp_f32 v%d, v%d' % (RINV, SUMS))
    g.e('v_mfma_f32_16x16x16_bf16 %s, %s, %s, %s' % (vr(O0, 4), vr(VM0, 2), vr(PMm, 2), vr(O0, 4)))
    g.e('v_mfma_f32_16x16x16_bf16 %s, %s, %s, %s' % (vr(O1, 4), vr(VM1, 2), vr(PMm, 2), vr(O1, 4)))
    sc.ds('ds_write_b32 v%d, v%d offset:%d' % (V_VW, VM1, C_VM + 256), None)
    g.e('s_cmp_eq_u32 %s, 63' % sr(S_STEP))
    g.e('s_cbranch_scc1 L_chain_done')
    ts2(g, opt, 'pv', True)
    WA = [ACC2 + 4 * i for i in range(6)] + [A0 + 24, A0 + 28]
    zl = ['v_mov_b64 %s, 0' % vr(WA[i // 2] + 2 * (i & 1), 2) for i in range(16)]
    g.e('v_mov_b32 v%d, v%d' % (RINV + 1, RINV))
    for _ in range(4):
        g.e(zl.pop(0))
    for i in range(4):
        g.e('v_pk_mul_f32 %s, %s, %s' % (vr(O0 + 2 * i, 2), vr(O0 + 2 * i, 2), vr(RINV, 2)))
    for i in range(4):
        g.e('v_cvt_pk_bf16_f32 v%d, v%d, v%d' % (OP + i, O0 + 2 * i, O0 + 2 * i + 1))
    sc.ds('ds_write_b64 v%d, %s' % (V_OW, vr(OP, 2)), None)
    sc.ds('ds_write_b64 v%d, %s offset:256' % (V_OW, vr(OP + 2, 2)), 'OW')
    ts2(g, opt, 'smax')
    wh_load(3)
    wh_load(4)
    for _ in range(6):
        g.e(zl.pop(0))
    sc.wl('OW')
    g.e('s_barrier')
    ts2(g, opt, 'obar')
    OA = A0 + 8
    sc.ds('ds_read_b128 %s, v%d offset:%d' % (vr(OA, 4), V_AF, C_O), 'OA0')
    sc.ds('ds_read_b128 %s, v%d offset:%d' % (vr(OA + 4, 4), V_AF, C_O + 1024), 'OA1')
    while zl:
        g.e(zl.pop(0))
    ST = A0

    def post(pr):
        ops = []
        for d in range(2):
            a = WA[2 * pr + d]
            ops += padd(a) + ['v_cvt_pk_bf16_f32 v%d, v%d, v%d' % (ST + 2 * pr + d, a, a + 1)]
            if d == 0:
                ops.append('v_bfi_b32 v%d, 1, %s, v%d' % (ST + 2 * pr, sr(S_PHASE), ST + 2 * pr))
        ops.append('buffer_store_dwordx2 %s, v%d, %s, %s offen offset:%d' % (vr(ST + 2 * pr, 2), V_PS, sr(SRD_WS, 4), '0' if pr < 2 else sr(S_U), (pr & 1) * 128))
        return ops
    side = []
    for f in (5, 6, 7):
        side.append(('ds', 'ds_read_b128 %s, v%d offset:%d' % (vr(WH[f], 4), VK1, f * 2048), None))
        side.append(('ds', 'ds_read_b128 %s, v%d offset:%d' % (vr(WH[f] + 4, 4), VK1, f * 2048 + 1024), 'WH%d' % f))
    sc.wl('OA0')
    ts2(g, opt, 'oa', True)
    pend = []
    cnt = [0]

    def emit(s_):
        emit_fill([s_])
        cnt[0] += 1
    order = [(pr, ks2, d) for pr in range(4) for ks2 in range(2) for d in range(2)]
    for n, (pr, ks2, d) in enumerate(order):
        tp = 2 * pr + d
        if ks2 == 1:
            sc.wl('OA1')
        if tp >= 4:
            sc.wl('WH%d' % ((tp - 4) * 2 + ks2))
            bsrc = vr(WH[(tp - 4) * 2 + ks2], 8)
        else:
            bsrc = vr(V_WOL + (tp * 2 + ks2) * 8, 8)
        smf2(g, WA[tp], OA + 4 * ks2, bsrc)
        cnt[0] += 1
        if ks2 == 1 and d == 1:
            pend += [(cnt[0] + 8, o) for o in post(pr)]
        k = 0
        if side:
            emit(side.pop(0))
            k += 1
        while k < opt.get('wper', 2) and pend and pend[0][0] <= cnt[0]:
            emit(pend.pop(0)[1])
            k += 1
    ts2(g, opt, 'wo16', True)
    while pend:
        if pend[0][0] > cnt[0]:
            g.nop(pend[0][0] - cnt[0])
            cnt[0] = pend[0][0]
        emit(pend.pop(0)[1])
    g.e('s_add_u32 %s, %s, 0x40000' % (sr(S_KXO), sr(S_KXO)))
    ts2(g, opt, 'wo')
    if opt.get('ack'):
        g.e('s_waitcnt vmcnt(2)')
        ts2(g, opt, 'dmaack')
        g.e('s_waitcnt vmcnt(1)')
        ts2(g, opt, 'ack0')
        g.e('s_waitcnt vmcnt(0)')
        ts2(g, opt, 'ack1')
    SEL = A0 + 8
    RD = A0 + 12
    tt = 0
    for a in range(2):
        for b in range(2):
            for c_ in range(2):
                if (a ^ c_) | (b ^ c_):
                    tt |= 1 << (a * 4 + b * 2 + c_)
    PHV, CK = ACC2, ACC2 + 1

    def issue1():
        g.e('buffer_load_dwordx4 %s, v%d, %s, %s offen sc1' % (vr(PM, 4), V_PLD, sr(SRD_WS, 4), sr(S_PL)))
        g.e('buffer_load_dwordx4 %s, v%d, %s, %s offen sc1' % (vr(PM + 4, 4), V_PLD, sr(SRD_WS, 4), sr(S_PL2)))

    def check1():
        g.e('v_bitop3_b32 v%d, v%d, v%d, v%d bitop3:0x%x' % (CK, PM, PM + 4, PHV, tt))
        g.e('v_bitop3_b32 v%d, v%d, v%d, v%d bitop3:0x%x' % (CK + 1, PM + 2, PM + 6, PHV, tt))
        g.e('v_bitop3_b32 v%d, v%d, v%d, 1 bitop3:0xa8' % (CK, CK, CK + 1))
        g.e('v_cmp_ne_u32 vcc, 0, v%d' % CK)
    sel = ['v_mov_b32 v%d, %s' % (PHV, sr(S_PHASE))]
    for d in range(4):
        sel += ['v_cndmask_b32 v%d, 0, v%d, %s' % (SEL + d, V_ONE, sr(S_SELM + 2 * d, 2))]
    rp = []
    for idx in (2, 3, 4, 5, 6, 7, 0, 1):
        rp.append('ds_read_b128 %s, v%d offset:%d' % (vr(q1reg(idx), 4), V_WL, idx * 2048))
        rp.append('ds_read_b128 %s, v%d offset:%d' % (vr(q1reg(idx) + 4, 4), V_WL, idx * 2048 + 1024))
    if opt.get('pd', 1) == 1:
        for s_ in sel:
            g.e(s_)
        if opt.get('ack'):
            ts2(g, opt, 'sel')
            issue1()
            g.e('s_waitcnt vmcnt(0)')
            ts2(g, opt, 'ld1')
            issue1()
            g.e('s_waitcnt vmcnt(0)')
            ts2(g, opt, 'ld2')
        if opt.get('probe'):
            for s_ in rp[:opt.get('n1', 0)]:
                g.e(s_)
            rp = rp[opt.get('n1', 0):]
            ts2(g, opt, 'pre')
            issue1()
            g.e('s_waitcnt vmcnt(3)')
            ts2(g, opt, 'st0')
            g.e('s_waitcnt vmcnt(2)')
            ts2(g, opt, 'st1')
            g.e('s_waitcnt vmcnt(1)')
            ts2(g, opt, 'ld0')
            g.e('s_waitcnt vmcnt(0)')
            ts2(g, opt, 'ld1')
        if opt.get('aw1'):
            for s_ in rp[:opt.get('n1', 0)]:
                g.e(s_)
            rp = rp[opt.get('n1', 0):]
            if opt['aw1'] < 9:
                g.e('s_waitcnt vmcnt(%d)' % (opt['aw1'] - 1))
        poll(g, opt, 'p1', issue1, check1, [], 's80', depth=1)
    elif opt.get('pd') == 2:
        for s_ in sel[:7]:
            g.e(s_)
        poll(g, opt, 'p1', issue1, check1, [sel[7:] + rp[:4], []], 's80', depth=2)
        rp = rp[4:]
    else:
        for s_ in sel[:7]:
            g.e(s_)
        poll(g, opt, 'p1', issue1, check1, [sel[7:] + rp[:1], rp[1:6], []], 's80', depth=3)
        rp = rp[6:]
    ts2(g, opt, 'hop1')
    g.e('v_mfma_f32_16x16x32_bf16 %s, %s, %s, 0' % (vr(RD, 4), vr(SEL, 4), vr(PM, 4)))
    g.e('v_mfma_f32_16x16x32_bf16 %s, %s, %s, %s' % (vr(RD, 4), vr(SEL, 4), vr(PM + 4, 4), vr(RD, 4)))
    g.e('s_add_u32 %s, %s, 1' % (sr(S_STEP), sr(S_STEP)))
    g.e('s_mov_b32 %s, %s' % (sr(S_T0), sr(S_M2R)))
    g.e('s_mov_b32 %s, %s' % (sr(S_M2R), sr(S_M2W)))
    g.e('s_mov_b32 %s, %s' % (sr(S_M2W), sr(S_M2Z)))
    g.e('s_mov_b32 %s, %s' % (sr(S_M2Z), sr(S_T0)))
    g.e('s_xor_b32 %s, %s, 1' % (sr(S_PHASE), sr(S_PHASE)))
    g.nop(2)
    for ror in (4, 8):
        for i in range(4):
            g.e('v_add_f32_dpp v%d, v%d, v%d row_ror:%d row_mask:0xf bank_mask:0xf' % (RD + i, RD + i, RD + i, ror))
    g.e('v_cvt_pk_bf16_f32 v%d, v%d, v%d' % (RD, RD, RD + 2))
    g.e('v_cvt_pk_bf16_f32 v%d, v%d, v%d' % (RD + 1, RD + 1, RD + 3))
    g.e('v_cndmask_b32 v%d, v%d, v%d, %s' % (RD, RD, RD + 1, sr(S_P1M, 2)))
    g.e('v_min_u32 v%d, -2, v%d' % (RD, RD))
    g.e('buffer_store_dword v%d, v%d, %s, %s offen' % (RD, V_MS, sr(SRD_WS, 4), sr(S_M2R)))
    ts2(g, opt, 'red')
    if opt.get('ack'):
        g.e('s_waitcnt vmcnt(0)')
        ts2(g, opt, 'ack2')
    rp2 = rp
    g.label('L_hop2')
    g.e('s_lshl_b32 %s, %s, 11' % (sr(S_T3), sr(S_WAVE)))
    g.e('s_add_u32 %s, %s, %s' % (sr(S_T3), sr(S_T3), sr(S_M2R)))

    def issue2():
        g.e('buffer_load_dwordx4 %s, v%d, %s, %s offen sc1' % (vr(PM, 4), V_L16, sr(SRD_WS, 4), sr(S_T3)))
        g.e('buffer_load_dwordx4 %s, v%d, %s, %s offen offset:1024 sc1' % (vr(PM + 4, 4), V_L16, sr(SRD_WS, 4), sr(S_T3)))

    def check2():
        CK = A0 + 13
        g.e('v_max3_u32 v%d, v%d, v%d, v%d' % (CK, PM, PM + 1, PM + 2))
        g.e('v_max3_u32 v%d, v%d, v%d, v%d' % (CK + 1, PM + 3, PM + 4, PM + 5))
        g.e('v_max3_u32 v%d, v%d, v%d, v%d' % (CK, CK, PM + 6, PM + 7))
        g.e('v_max_u32 v%d, v%d, v%d' % (CK, CK, CK + 1))
        g.e('v_cmp_eq_u32 vcc, -1, v%d' % CK)
    zr = ['v_mov_b64 %s, 0' % vr(ACC2 + 2 * i, 2) for i in range(12)]
    HK = A0
    AD = A0 + 4
    zr += ['v_add_u32 v%d, %s, v%d' % (AD, sr(S_M0KX), V_L16)]
    zr += ['v_xor_b32 v%d, %d, v%d' % (AD + q_, q_ << 11, AD) for q_ in (1, 2, 3)]
    zr += ['v_add_u32 v%d, %s, v%d' % (HK, sr(S_W1K), V_L16),
           'v_mov_b32 v%d, -1' % (HK + 1),
           'v_mov_b32 v%d, 0' % (HK + 2),
           's_sub_u32 %s, %s, 1' % (sr(S_T0), sr(S_STEP)),
           's_max_i32 %s, %s, 0' % (sr(S_T0), sr(S_T0)),
           'v_mov_b32 v%d, %s' % (HK + 3, sr(S_T0)),
           's_cmp_ge_u32 %s, 63' % sr(S_STEP),
           's_cselect_b32 %s, 0x7ff00000, %s' % (sr(S_H0), sr(S_KXO)),
           's_add_u32 %s, %s, 2' % (sr(S_T0), sr(S_STEP)),
           's_min_u32 %s, %s, 63' % (sr(S_T0), sr(S_T0)),
           's_and_b32 %s, %s, 0xfffffffc' % (sr(S_T0), sr(S_T0)),
           's_add_u32 %s, %s, %s' % (sr(S_H1), sr(S_T0), sr(S_F1)),
           's_cmp_eq_u32 %s, 0' % sr(S_STEP),
           's_cselect_b32 %s, 0x7ff00000, %s' % (sr(S_H2), sr(S_KVO)),
           's_cselect_b32 %s, 0, 0x20000' % sr(S_T0),
           's_add_u32 %s, %s, %s' % (sr(S_KVO), sr(S_KVO), sr(S_T0))]
    lf = g.newlabel('L_flok')
    fl = ['v_readfirstlane_b32 %s, v%d' % (sr(S_T1), V_FL),
          's_nop 2',
          's_cmp_ge_u32 %s, 3' % sr(S_T1)]
    nz = opt.get('nz', 99)
    post_fill = zr[nz:]
    for s_ in rp2 + zr[:nz] + fl:
        g.e(s_)
    if not opt.get('nof1'):
        g.e('s_cbranch_scc1 %s' % lf)
        g.e('s_add_u32 %s, %s, 1' % (sr(S_T0), sr(S_STEP)))
        g.e('s_min_u32 %s, %s, 63' % (sr(S_T0), sr(S_T0)))
        g.e('s_and_b32 %s, %s, 0xfffffffc' % (sr(S_T0), sr(S_T0)))
        g.e('s_add_u32 %s, %s, %s' % (sr(S_T2), sr(S_T0), sr(S_F1)))
        f1_spin(sr(S_T2))
        g.label(lf)
    ts2_flush(g, opt, A0 + 13)
    if not opt.get('noaw2'):
        g.e('s_waitcnt vmcnt(0)')
    poll(g, opt, 'p2', issue2, check2, [post_fill + ['s_waitcnt lgkmcnt(0)']], 's81', depth=1)
    g.e('s_branch L_step')
    g.label('L_chain_done')
    g.e('s_waitcnt lgkmcnt(0)')
    g.e('s_barrier')
    g.e('v_add_u32 v%d, %s, v%d' % (PM + 4, sr(S_W1K), V_L16))
    g.e('ds_read_b128 %s, v%d offset:%d' % (vr(PM, 4), PM + 4, C_K))
    g.e('s_waitcnt lgkmcnt(0)')
    g.e('buffer_store_dwordx4 %s, v%d, %s, %s offen sc1' % (vr(PM, 4), V_L16, sr(SRD_WS, 4), sr(S_KVO)))
    g.e('s_waitcnt vmcnt(0)')
    g.e('v_mov_b32 v%d, 64' % PM)
    g.e('v_mov_b32 v%d, 0' % (PM + 1))
    g.e('s_mov_b64 exec, 1')
    g.e('buffer_store_dword v%d, v%d, %s, %s offen sc1' % (PM, PM + 1, sr(SRD_WS, 4), sr(S_F2)))
    g.e('s_mov_b64 exec, -1')
    if opt.get('rt'):
        g.e('s_memrealtime s[98:99]')
        g.e('s_memtime s[8:9]')
        g.e('s_waitcnt lgkmcnt(0)')
        for i, r_ in enumerate((74, 76, 4, 98, 6, 8)):
            g.e('v_writelane_b32 v%d, s%d, %d' % (PM, r_, i))
        g.e('s_lshl_b32 %s, %s, 2' % (sr(S_T0), sr(S_RANK)))
        g.e('s_add_u32 %s, %s, %s' % (sr(S_T0), sr(S_T0), sr(S_WAVE)))
        g.e('s_lshl_b32 %s, %s, 8' % (sr(S_T0), sr(S_T0)))
        g.e('s_add_u32 %s, %s, 0x%x' % (sr(S_T0), sr(S_T0), WS_TS + 0x800000))
        g.e('v_lshrrev_b32 v%d, 2, v%d' % (PM + 1, V_L16))
        g.e('buffer_store_dword v%d, v%d, %s, %s offen' % (PM, PM + 1, sr(SRD_WS, 4), sr(S_T0)))
    g.e('s_branch L_exit')
```
